```python
import torch

def _softmax(x, axis=-1):
    return torch.softmax(x, dim=axis)

def _gelu(x):
    return torch.nn.functional.gelu(x, approximate='tanh')

def _silu(x):
    return torch.nn.functional.silu(x)

def _sigmoid(x):
    return torch.sigmoid(x)

def _layernorm(x, axis=-1, eps=1e-05):
    m = x.mean(dim=axis, keepdim=True)
    v = x.var(dim=axis, keepdim=True, unbiased=False)
    return (x - m) / torch.sqrt(v + eps)

def _scatter_add(tgt, idx, src, axis=0):
    return tgt.clone().index_add_(axis, idx, src)

def _segment_sum(src, seg, n):
    out = torch.zeros((n,) + src.shape[1:], dtype=src.dtype)
    return out.index_add_(0, seg, src)

def _pad(x, pw):
    flat = tuple((v for pair in reversed(pw) for v in pair))
    return torch.nn.functional.pad(x, flat)
kernel_name = 'gated_mix__memory_aug_recurrent_mem_tr__sliding_block__prompt'

def setup_inputs():

    _w = lambda a: (lambda t: t.to(torch.bfloat16) if t.is_floating_point() else t)(torch.as_tensor(a))

    def _A_setup():
        B, S, Dm = (1, 2048, 640)
        H, Dh = (32, 128)
        M, seg = (8, 32)
        seg = min(seg, S)
        S = S // seg * seg
        return {'x': _w((lambda *s: torch.randn(*s, dtype=torch.bfloat16) * 0.05)(B, S, Dm)), 'mem0': _w((lambda *s: torch.randn(*s, dtype=torch.bfloat16) * 1.6)(B, M, Dm)), 'Wq': _w((lambda *s: torch.randn(*s, dtype=torch.bfloat16) * 0.8)(Dm, H, Dh) * Dm ** (-0.5)), 'Wk': _w((lambda *s: torch.randn(*s, dtype=torch.bfloat16) * 0.8)(Dm, H, Dh) * Dm ** (-0.5)), 'Wv': _w((lambda *s: torch.randn(*s, dtype=torch.bfloat16) * 1.6)(Dm, H, Dh) * Dm ** (-0.5)), 'Wo': _w((lambda *s: torch.randn(*s, dtype=torch.bfloat16) * 1.6)(H, Dh, Dm) * (H * Dh) ** (-0.5)), 'seg_len': seg}
    _A_in = _A_setup()

    def _B_setup():
        B, S, D = (1, 2048, 640)
        return {'x': _w((lambda *s: torch.randn(*s, dtype=torch.bfloat16) * 0.05)(B, S, D)), 'wqkv': _w((lambda *s: torch.randn(*s, dtype=torch.bfloat16) * 0.8)(D, 3 * D)), 'wo': _w((lambda *s: torch.randn(*s, dtype=torch.bfloat16) * 0.05)(D, D))}
    _B_in = _B_setup()
    return {'A_x': _A_in['x'], 'A_mem0': _A_in['mem0'], 'A_Wq': _A_in['Wq'], 'A_Wk': _A_in['Wk'], 'A_Wv': _A_in['Wv'], 'A_Wo': _A_in['Wo'], 'A_seg_len': _A_in['seg_len'], 'B_x': _B_in['x'], 'B_wqkv': _B_in['wqkv'], 'B_wo': _B_in['wo'], 'gate_w': _w((lambda *s: torch.randn(*s, dtype=torch.bfloat16) * 0.05)(640) * 16.0)}

def reference(A_x, A_mem0, A_Wq, A_Wk, A_Wv, A_Wo, A_seg_len, B_x, B_wqkv, B_wo, gate_w):

    def _A_ref(x, mem0, Wq, Wk, Wv, Wo, seg_len):
        B, S, Dm = x.shape
        H, Dh = (Wq.shape[1], Wq.shape[2])
        M = mem0.shape[1]
        scale = Dh ** (-0.5)
        n_seg = S // seg_len
        L = M + seg_len
        idx = torch.arange(L)
        mask = (idx[:, None] < M) | (idx[:, None] >= idx[None, :])
        mem = mem0
        outs = []
        for s in range(n_seg):
            xs = x[:, s * seg_len:(s + 1) * seg_len, :].clone()
            h = torch.concatenate([mem, xs], axis=1)
            q = torch.einsum('btd,dhe->bhte', h, Wq)
            k = torch.einsum('btd,dhe->bhte', h, Wk)
            v = torch.einsum('btd,dhe->bhte', h, Wv)
            scores = torch.einsum('bhqe,bhke->bhqk', q, k) * scale
            scores = torch.where(mask[None, None], scores, -1000000000.0)
            p = _softmax(scores, axis=-1)
            o = torch.einsum('bhqk,bhke->bhqe', p, v)
            o = torch.einsum('bhte,hed->btd', o, Wo)
            mem = o[:, :M, :].clone()
            outs.append(o[:, M:, :])
        return torch.concatenate(outs, axis=1)

    def _B_ref(x, wqkv, wo):
        B, S, D = x.shape
        H = 32
        Dh = D // H
        W = 256
        qkv = (lambda x, *d: x.permute(*d))((x @ wqkv).reshape(B, S, 3, H, Dh), 2, 0, 3, 1, 4)
        q, k, v = (qkv[0], qkv[1], qkv[2])
        scores = torch.einsum('bhqd,bhkd->bhqk', q, k) * Dh ** (-0.5)
        idx = torch.arange(S)
        mask = (idx[:, None] - idx[None, :] >= 0) & (idx[:, None] - idx[None, :] < W)
        scores = torch.where(mask[None, None], scores, -1000000000.0)
        p = _softmax(scores, axis=-1)
        o = torch.einsum('bhqk,bhkd->bhqd', p, v)
        return (lambda x, *d: x.permute(*d))(o, 0, 2, 1, 3).reshape(B, S, D) @ wo
    x = A_x
    g = _sigmoid((x * gate_w).sum(-1, keepdims=True))
    a = _A_ref(x, A_mem0, A_Wq, A_Wk, A_Wv, A_Wo, A_seg_len)
    b = _B_ref(x, B_wqkv, B_wo)
    return g * a + (1 - g) * b
```

```python
NAME = 'gated_mix__memory_aug_recurrent_mem_tr__sliding_block__prompt'
HEADER = """; Kernarg layout for this problem (112 bytes, ptrs only, base s[0:1]):
"""

class Asm:
    def __init__(self):
        self.lines = []
        self.nlabel = 0
    def __call__(self, s=''):
        for l in s.split('\n'):
            l = l.strip()
            if l == '':
                continue
            if l.endswith(':') or l.startswith('.'):
                self.lines.append(l)
            else:
                self.lines.append('    ' + l)
    def c(self, s):
        self.lines.append('    ; ' + s)
    def label(self, base='L'):
        self.nlabel += 1
        return f'{base}_{self.nlabel}'
    def text(self):
        return '\n'.join(self.lines) + '\n'

def vr(a, n=1):
    return f'v{a}' if n == 1 else f'v[{a}:{a+n-1}]'
def ar(a, n=1):
    return f'a{a}' if n == 1 else f'a[{a}:{a+n-1}]'
def sr(a, n=1):
    return f's{a}' if n == 1 else f's[{a}:{a+n-1}]'

def kernel_begin(A, label):
    A(f'.globl {label}')
    A('.p2align 8')
    A(f'.type {label},@function')
    A(f'{label}:')

def kernel_desc(label, vgpr=512, sgpr=102, accum=256):
    return f""".section .rodata,"a"
.p2align 6
.amdhsa_kernel {label}
  .amdhsa_next_free_vgpr {vgpr}
  .amdhsa_next_free_sgpr {sgpr}
  .amdhsa_accum_offset {accum}
  .amdhsa_group_segment_fixed_size 0
  .amdhsa_kernarg_size 112
  .amdhsa_user_sgpr_count 2
  .amdhsa_user_sgpr_kernarg_segment_ptr 1
  .amdhsa_system_sgpr_workgroup_id_x 1
.end_amdhsa_kernel
"""

def file_text(launch_lines, body, descs):
    t = HEADER
    for l in launch_lines:
        t += l + '\n'
    t += '.amdgcn_target "amdgcn-amd-amdhsa--gfx950"\n.text\n'
    t += body
    t += descs
    return t
```

```python
from asmlib import *
from ws_layout import *
import sys
S_WS, S_X, S_J, S_W, S_TO, S_DBG = 8, 16, 17, 20, 22, 28
S_T = 12
S_XS = 24
S_t0, S_t1, S_t2, S_t3 = 30, 31, 32, 33
S_BID = 34
S_SEG = 35
S_OUT = 36
S_OSTR = 37
S_SLOT = 38
S_DSLOT = 39
S_XOFF = 40
S_PROGO = 41
S_KIND = 42
WSR = f's[{S_WS}:{S_WS+3}]'
XSR = f's[{S_XS}:{S_XS+3}]'
BIG = 0x40000000
V_XA = 1
V_RB = 12
V_RD = 13
V_ST = 14
V_FL = 15
V_T = 16
V_PV = 24
V_B = 32
V_ACC = 64
V_O = 96
SLOTB = 45056
NPRE = 8

def mfma32(A, d, a, b, c):
    A(f'v_mfma_f32_32x32x16_bf16 {d}, {a}, {b}, {c}')

def setsrd(A, dst, lo, size):
    A(f's_mov_b32 s{dst}, s{lo}')
    A(f's_and_b32 s{dst+1}, s{lo+1}, 0xffff')
    A(f's_mov_b32 s{dst+2}, {size}')
    A(f's_mov_b32 s{dst+3}, 0x20000')

def gen_phase1(A):
    L, T0, T1, T2, T3 = V_T, V_T+1, V_T+2, V_T+3, V_T+4
    A.c('==== phase 1 ====')
    A(f'v_and_b32 v{L}, 63, v0')
    A(f's_mov_b32 s{S_KIND}, 3')
    A(f's_cmp_eq_u32 s{S_BID}, 120')
    A(f's_cselect_b32 s{S_KIND}, 2, s{S_KIND}')
    A(f's_cmp_lt_u32 s{S_BID}, 120')
    A(f's_cselect_b32 s{S_KIND}, 1, s{S_KIND}')
    A(f's_cmp_lt_u32 s{S_BID}, 96')
    A(f's_cselect_b32 s{S_KIND}, 0, s{S_KIND}')
    A(f's_cmp_eq_u32 s{S_KIND}, 3')
    A('s_cbranch_scc1 L_p1_end')
    A(f's_lshl_b32 s{S_PROGO}, s{S_BID}, 7')
    A(f's_add_u32 s{S_PROGO}, s{S_PROGO}, {C_PROG1}')
    A(f'v_mov_b32 v{T2}, {BIG}')
    A(f'v_cmp_eq_u32 vcc, 0, v0')
    A(f'v_mov_b32 v{T0}, 0')
    A('s_nop 0')
    A(f'v_cndmask_b32 v{V_FL}, v{T2}, v{T0}, vcc')
    R_, CQ, AB, GK = V_T+5, V_T+6, V_T+7, V_PV
    A(f'v_bfe_u32 v{R_}, v{L}, 2, 2')
    A(f'v_and_b32 v{CQ}, 3, v{L}')
    A(f'v_bfe_u32 v{AB}, v{L}, 4, 1')
    A(f'v_lshrrev_b32 v{GK}, 5, v{L}')
    A(f'v_and_b32 v{T0}, 1, v{CQ}')
    A(f'v_lshlrev_b32 v{T0}, 3, v{T0}')
    A(f'v_lshrrev_b32 v{T1}, 1, v{CQ}')
    A(f'v_lshl_add_u32 v{T0}, v{T1}, 2, v{T0}')
    A(f'v_lshl_add_u32 v{T3}, v{AB}, 4, v{T0}')
    A(f's_cmp_eq_u32 s{S_KIND}, 0')
    A('s_cbranch_scc0 L_p1_notA')
    A(f's_lshr_b32 s{S_t0}, s{S_BID}, 5')
    A(f's_cmp_eq_u32 s{S_t0}, 0')
    A(f's_cselect_b32 s{S_t1}, 24, 32')
    A(f's_cmp_eq_u32 s{S_t0}, 2')
    A(f's_cselect_b32 s{S_t1}, 16, s{S_t1}')
    A(f's_load_dwordx2 s[4:5], s[0:1], s{S_t1}')
    A(f's_load_dwordx2 s[6:7], s[0:1], 0')
    A(f's_cmp_eq_u32 s{S_t0}, 0')
    A(f's_mov_b32 s{S_OUT}, {WS_VX}')
    A(f's_cselect_b32 s{S_OUT}, {WS_KX}, s{S_OUT}')
    A(f's_cmp_eq_u32 s{S_t0}, 2')
    A(f's_cselect_b32 s{S_OUT}, {WS_QX}, s{S_OUT}')
    A(f's_and_b32 s{S_t2}, s{S_BID}, 31')
    A(f's_lshl_b32 s{S_t3}, s{S_t2}, 13')
    A(f's_add_u32 s{S_OUT}, s{S_OUT}, s{S_t3}')
    A(f's_mov_b32 s{S_OSTR}, {32*8192}')
    A('s_waitcnt lgkmcnt(0)')
    setsrd(A, S_T, 4, 5242880)
    setsrd(A, S_XS, 6, 2048*1280)
    A(f'v_lshrrev_b32 v{T0}, 4, v{L}')
    A(f'v_lshlrev_b32 v{T0}, 13, v{T0}')
    A(f'v_and_b32 v{T1}, 15, v{L}')
    A(f'v_lshl_add_u32 v{T0}, v{T1}, 4, v{T0}')
    A(f's_lshl_b32 s{S_t3}, s{S_t2}, 8')
    A(f'v_add_u32 v{T0}, s{S_t3}, v{T0}')
    A(f's_lshl_b32 s{S_t0}, s{S_W}, 15')
    A(f's_lshl_b32 s{S_t1}, s{S_W}, 10')
    for i in range(40):
        A(f's_mov_b32 m0, s{S_t1}')
        A(f's_add_u32 s{S_t1}, s{S_t1}, 4096')
        A(f'buffer_load_dwordx4 v{T0}, s[{S_T}:{S_T+3}], s{S_t0} offen lds')
        A(f's_add_u32 s{S_t0}, s{S_t0}, {4*32768}')
    A(f'v_lshl_add_u32 v{T0}, v{GK}, 3, v{R_}')
    A(f'v_lshlrev_b32 v{T0}, 8, v{T0}')
    A(f'v_lshl_add_u32 v{T0}, v{T3}, 1, v{T0}')
    A(f's_lshl_b32 s{S_t0}, s{S_W}, 6')
    A(f'v_add_u32 v{T0}, s{S_t0}, v{T0}')
    A(f'v_lshlrev_b32 v{V_ST}, 4, v{L}')
    A(f's_lshl_b32 s{S_t0}, s{S_W}, 11')
    A(f'v_add_u32 v{V_ST}, s{S_t0}, v{V_ST}')
    A('s_waitcnt vmcnt(0)')
    A('s_barrier')
    for s in range(40):
        if s % 10 == 0 and s:
            A(f'v_add_u32 v{T0}, {10*4096}, v{T0}')
        for hf in range(2):
            A(f'ds_read_b64_tr_b16 {ar(4*s+2*hf,2)}, v{T0} offset:{(s%10)*4096 + hf*1024}')
        if s % 4 == 3: A('s_waitcnt lgkmcnt(0)')
    A('s_branch L_p1_wdone')
    A('L_p1_notA:')
    A(f's_cmp_eq_u32 s{S_KIND}, 1')
    A('s_cbranch_scc0 L_p1_gate')
    A(f's_load_dwordx2 s[4:5], s[0:1], 64')
    A(f's_load_dwordx2 s[6:7], s[0:1], 0')
    A(f's_sub_u32 s{S_t0}, s{S_BID}, 96')
    A(f's_lshl_b32 s{S_t0}, s{S_t0}, 2')
    A(f's_add_u32 s{S_t0}, s{S_t0}, s{S_W}')
    A(f's_lshl_b32 s{S_OUT}, s{S_t0}, 11')
    A(f's_add_u32 s{S_OUT}, s{S_OUT}, {WS_QB}')
    A(f's_mov_b32 s{S_OSTR}, {96*2048}')
    A(f's_lshr_b32 s{S_t1}, s{S_t0}, 5')
    A(f's_and_b32 s{S_t2}, s{S_t0}, 31')
    A(f's_mul_i32 s{S_t1}, s{S_t1}, 1280')
    A(f's_mul_i32 s{S_t2}, s{S_t2}, 40')
    A(f's_add_u32 s{S_t2}, s{S_t2}, s{S_t1}')
    A('s_waitcnt lgkmcnt(0)')
    setsrd(A, S_T, 4, 640*3840)
    setsrd(A, S_XS, 6, 2048*1280)
    A(f'v_lshrrev_b32 v{T0}, 2, v{L}')
    A(f'v_mul_u32_u24 v{T0}, 3840, v{T0}')
    A(f'v_and_b32 v{T1}, 3, v{L}')
    A(f'v_lshl_add_u32 v{T0}, v{T1}, 4, v{T0}')
    A(f'v_add_u32 v{T0}, s{S_t2}, v{T0}')
    A(f'v_cmp_eq_u32 vcc, 3, v{T1}')
    A(f's_mul_i32 s{S_t1}, s{S_W}, 40960')
    A(f's_mov_b32 s{S_t0}, 0')
    A(f'v_cndmask_b32 v{T0}, v{T0}, v{T2}, vcc')
    for i in range(40):
        A(f's_mov_b32 m0, s{S_t1}')
        A(f's_add_u32 s{S_t1}, s{S_t1}, 1024')
        A(f'buffer_load_dwordx4 v{T0}, s[{S_T}:{S_T+3}], s{S_t0} offen lds')
        A(f's_add_u32 s{S_t0}, s{S_t0}, {16*3840}')
    A('s_waitcnt vmcnt(0)')
    A('s_branch L_p1_priv')
    A('L_p1_gate:')
    A(f's_load_dwordx2 s[4:5], s[0:1], 80')
    A(f's_load_dwordx2 s[6:7], s[0:1], 0')
    A(f's_mov_b32 s{S_OUT}, {WS_GATE}')
    A(f's_cmp_eq_u32 s{S_W}, 0')
    A(f's_cselect_b32 s{S_OUT}, s{S_OUT}, {BIG}')
    A(f's_mov_b32 s{S_OSTR}, 2048')
    A('s_waitcnt lgkmcnt(0)')
    setsrd(A, S_T, 4, 1280)
    setsrd(A, S_XS, 6, 2048*1280)
    A(f's_mul_i32 s{S_t1}, s{S_W}, 40960')
    A(f'v_lshlrev_b32 v{T0}, 4, v{L}')
    A(f'v_add_u32 v{T0}, s{S_t1}, v{T0}')
    for r in range(4): A(f'v_mov_b32 v{V_B+r}, 0')
    for i in range(40): A(f'ds_write_b128 v{T0}, {vr(V_B,4)} offset:{i*1024}')
    A(f'v_lshlrev_b32 v{T1}, 1, v{L}')
    for i in range(10):
        A(f'buffer_load_ushort v{V_B+4+i}, v{T1}, s[{S_T}:{S_T+3}], 0 offen offset:{128*i}')
    A(f'v_lshlrev_b32 v{T0}, 6, v{L}')
    A(f'v_add_u32 v{T0}, s{S_t1}, v{T0}')
    A('s_waitcnt vmcnt(0) lgkmcnt(0)')
    for i in range(10):
        A(f'ds_write_b16 v{T0}, v{V_B+4+i} offset:{i*4096}')
    A('s_waitcnt lgkmcnt(0)')
    A('L_p1_priv:')
    A(f'v_lshl_add_u32 v{T0}, v{GK}, 3, v{R_}')
    A(f'v_lshlrev_b32 v{T0}, 6, v{T0}')
    A(f'v_lshlrev_b32 v{T1}, 1, v{T3}')
    A(f'v_cmp_le_u32 vcc, 20, v{T3}')
    A(f'v_mov_b32 v{T2}, 48')
    A('s_nop 0')
    A(f'v_cndmask_b32 v{T1}, v{T1}, v{T2}, vcc')
    A(f'v_add_u32 v{T0}, v{T0}, v{T1}')
    A(f's_mul_i32 s{S_t1}, s{S_W}, 40960')
    A(f'v_add_u32 v{T0}, s{S_t1}, v{T0}')
    A(f'v_lshlrev_b32 v{V_ST}, 4, v{L}')
    for s in range(40):
        for hf in range(2):
            A(f'ds_read_b64_tr_b16 {ar(4*s+2*hf,2)}, v{T0} offset:{s*1024 + hf*256}')
        if s % 4 == 3: A('s_waitcnt lgkmcnt(0)')
    A('L_p1_wdone:')
    A('s_waitcnt lgkmcnt(0)')
    A('s_barrier')
    for i in range(11):
        A(f's_lshl_b32 s{S_t0}, s{S_W}, 6')
        A(f's_add_u32 s{S_t0}, s{S_t0}, {256*i}')
        A(f'v_add_u32 v{T0}, s{S_t0}, v{L}')
        A(f'v_mul_u32_u24 v{T1}, 12946, v{T0}')
        A(f'v_lshrrev_b32 v{T1}, 20, v{T1}')
        A(f'v_mul_u32_u24 v{T2}, 81, v{T1}')
        A(f'v_sub_u32 v{T2}, v{T0}, v{T2}')
        A(f'v_mul_u32_u24 v{T3}, 1280, v{T1}')
        A(f'v_lshl_add_u32 v{T3}, v{T2}, 4, v{T3}')
        A(f'v_cmp_gt_u32 vcc, 80, v{T2}')
        A(f'v_cmp_gt_u32 s[{S_t2}:{S_t3}], 32, v{T1}')
        A('s_nop 3')
        A(f's_and_b64 vcc, vcc, s[{S_t2}:{S_t3}]')
        A(f'v_mov_b32 v{T0}, {BIG}')
        A('s_nop 0')
        A(f'v_cndmask_b32 v{V_XA+i}, v{T0}, v{T3}, vcc')
    A(f'v_and_b32 v{T0}, 31, v{L}')
    A(f'v_mul_u32_u24 v{T0}, 1296, v{T0}')
    A(f'v_lshrrev_b32 v{T1}, 5, v{L}')
    A(f'v_lshl_add_u32 v{V_RB}, v{T1}, 4, v{T0}')
    def dma_x(i):
        A(f's_add_u32 m0, s{S_t1}, {4096*i}')
        return f'buffer_load_dwordx4 v{V_XA+i}, {XSR}, s{S_XOFF} offen lds'
    for seg in range(2):
        A(f's_lshl_b32 s{S_t1}, s{S_W}, 10')
        A(f's_add_u32 s{S_t1}, s{S_t1}, {seg*SLOTB}')
        A(f's_mov_b32 s{S_XOFF}, {seg*32*1280}')
        for i in range(11):
            ins = dma_x(i); A('s_nop 0'); A(ins)
        for k in range(3):
            pass
    A(f's_mov_b32 s{S_SEG}, 0')
    A(f's_mov_b32 s{S_SLOT}, 0')
    A(f's_mov_b32 s{S_DSLOT}, {2*SLOTB}')
    A(f's_mov_b32 s{S_XOFF}, {2*32*1280}')
    A(f's_sub_u32 s{S_OUT}, s{S_OUT}, s{S_OSTR}')
    def body(par, first=False):
        acc, pacc = V_ACC+16*par, V_ACC+16*(1-par)
        if first:
            A('s_waitcnt vmcnt(11)')
        else:
            A('s_waitcnt vmcnt(14)')
        A('s_barrier')
        A(f'v_add_u32 v{V_RD}, s{S_SLOT}, v{V_RB}')
        A(f's_max_i32 s{S_t0}, s{S_SEG}, 2')
        A(f's_sub_u32 s{S_t0}, s{S_t0}, 2')
        A(f'v_mov_b32 v{V_PV}, s{S_t0}')
        A(f's_lshl_b32 s{S_t1}, s{S_W}, 10')
        A(f's_add_u32 s{S_t1}, s{S_t1}, s{S_DSLOT}')
        for t in range(NPRE):
            A(f'ds_read_b128 {vr(V_B+4*t,4)}, v{V_RD} offset:{32*t}')
        A(f'buffer_store_dword v{V_PV}, v{V_FL}, {WSR}, s{S_PROGO} offen sc1')
        issued = NPRE
        extra = []
        for t in range(40):
            A(f's_waitcnt lgkmcnt({min(issued-(t+1), 7)})')
            mfma32(A, vr(acc,16), ar(4*t,4), vr(V_B+4*(t%NPRE),4), '0' if t == 0 else vr(acc,16))
            if issued < 40:
                A(f'ds_read_b128 {vr(V_B+4*(issued%NPRE),4)}, v{V_RD} offset:{32*issued}')
                issued += 1
            if 2 <= t < 6:
                k = t-2
                A(f'v_cvt_pk_bf16_f32 v{V_O+2*k}, v{pacc+4*k}, v{pacc+4*k+1}')
                A(f'v_cvt_pk_bf16_f32 v{V_O+2*k+1}, v{pacc+4*k+2}, v{pacc+4*k+3}')
            if t == 7:
                A(f'buffer_store_dwordx4 {vr(V_O,4)}, v{V_ST}, {WSR}, s{S_OUT} offen sc1')
                A(f'buffer_store_dwordx4 {vr(V_O+4,4)}, v{V_ST}, {WSR}, s{S_OUT} offen offset:1024 sc1')
            if 10 <= t < 21:
                ins = dma_x(t-10); A('s_nop 0'); A(ins)
        A(f's_add_u32 s{S_SEG}, s{S_SEG}, 1')
        A(f's_add_u32 s{S_OUT}, s{S_OUT}, s{S_OSTR}')
        A(f's_add_u32 s{S_XOFF}, s{S_XOFF}, {32*1280}')
        for r in (S_SLOT, S_DSLOT):
            A(f's_add_u32 s{r}, s{r}, {SLOTB}')
            A(f's_cmp_eq_u32 s{r}, {3*SLOTB}')
            A(f's_cselect_b32 s{r}, 0, s{r}')
    return body

def gen_phase1_loop(A):
    body = gen_phase1(A)
    L = 'L_p1_loop'
    A(f's_mov_b32 s43, s{S_OUT}')
    A(f's_mov_b32 s{S_OUT}, {BIG}')
    body(0, first=True)
    A(f's_add_u32 s{S_OUT}, s43, s{S_OSTR}')
    body(1, first=False)
    A(f'{L}:')
    body(0)
    body(1)
    A(f's_cmp_lt_u32 s{S_SEG}, 64')
    A(f's_cbranch_scc1 {L}')
    A('s_nop 15')
    pacc = V_ACC+16
    for k in range(4):
        A(f'v_cvt_pk_bf16_f32 v{V_O+2*k}, v{pacc+4*k}, v{pacc+4*k+1}')
        A(f'v_cvt_pk_bf16_f32 v{V_O+2*k+1}, v{pacc+4*k+2}, v{pacc+4*k+3}')
    A(f'buffer_store_dwordx4 {vr(V_O,4)}, v{V_ST}, {WSR}, s{S_OUT} offen sc1')
    A(f'buffer_store_dwordx4 {vr(V_O+4,4)}, v{V_ST}, {WSR}, s{S_OUT} offen offset:1024 sc1')
    A('s_waitcnt vmcnt(0)')
    A('s_barrier')
    A(f'v_mov_b32 v{V_PV}, 64')
    A(f'buffer_store_dword v{V_PV}, v{V_FL}, {WSR}, s{S_PROGO} offen sc1')
    A('L_p1_end:')

if __name__ == '__main__':
    A = Asm(); K = NAME + '_kernel'
    kernel_begin(A, K)
    A('s_cmp_ge_u32 s2, 128')
    A('s_cbranch_scc1 L_end')
    A('s_load_dwordx2 s[4:5], s[0:1], 104')
    A('v_lshrrev_b32 v1, 6, v0')
    A('s_nop 0')
    A(f'v_readfirstlane_b32 s{S_W}, v1')
    A('s_waitcnt lgkmcnt(0)')
    setsrd(A, S_WS, 4, 0x10000000)
    A(f's_mov_b32 s{S_BID}, s2')
    gen_phase1_loop(A)
    A('s_waitcnt vmcnt(0)')
    A('L_end:')
    A('s_endpgm')
    open(sys.argv[1], 'w').write(file_text(['; @launch grid=(128,1,1) block=(256,1,1) lds=163840'], A.text(), kernel_desc(K)))
```

```python
from asmlib import *
from ws_layout import *
import sys, struct
def f2u(x): return struct.unpack('<I', struct.pack('<f', x))[0]
S_WS, S_X, S_J, S_W, S_TO, S_DBG = 8, 16, 17, 20, 22, 28
S_t0, S_t1, S_t2, S_t3 = 30, 31, 32, 33
S_BID = 34
S_JOB, S_H, S_JQ, S_IT, S_LQ, S_SQ = 35, 36, 37, 38, 39, 40
S_SCLB = 42
S_MK = 44
S_NEG1 = 60
WSR = f's[{S_WS}:{S_WS+3}]'
BIG = 0x40000000
V_L, V_I, V_G = 1, 2, 3
V_T = 4
V_KA = 12
V_VA = 13
V_QA = 14
V_D = 15
V_KC, V_VC = 16, 17
V_OA = 18
V_GT = 19
V_MX, V_SU = 20, 22
V_NINF = 24
V_Q = 28
V_S = 32
V_K = 104
V_P = 136
V_V = 172
V_O = 204
V_OUT = 212
L_K, L_V = 0, 32768
SCL = (20 ** -0.5) * 1.4426950408889634
def mfma(A, d, a, b, c): A(f'v_mfma_f32_16x16x32_bf16 {d}, {a}, {b}, {c}')

def wait_words(A, label, base, n, stride, target, vt):
    A(f'v_and_b32 v{vt}, 63, v0')
    A(f'v_cmp_gt_u32 vcc, {n}, v{vt}')
    A(f'v_mul_u32_u24 v{vt}, {stride}, v{vt}')
    A(f'v_mov_b32 v{vt+1}, {BIG}')
    A(f'v_cndmask_b32 v{vt}, v{vt+1}, v{vt}, vcc')
    A(f's_mov_b64 s[{S_t2}:{S_t3}], vcc')
    A(f's_mov_b32 s{S_t0}, {base}')
    A(f'{label}:')
    A(f'buffer_load_dword v{vt+1}, v{vt}, {WSR}, s{S_t0} offen sc1')
    A('s_waitcnt vmcnt(0)')
    A(f'v_cmp_gt_u32 vcc, {target}, v{vt+1}')
    A('s_nop 3')
    A(f's_and_b64 vcc, vcc, s[{S_t2}:{S_t3}]')
    A(f's_cbranch_vccz {label}_ok')
    A('s_sleep 32')
    A(f's_sub_u32 s{S_TO}, s{S_TO}, 1')
    A(f's_cbranch_scc0 {label}')
    A('s_branch L_timeout')
    A(f'{label}_ok:')

def gen_phase2(A):
    A.c('==== phase 2: B attention ====')
    T0, T1, T2, T3 = V_T, V_T+1, V_T+2, V_T+3
    wait_words(A, 'L_p2_wait', C_PROG1 + 96*128, 25, 128, 64, T0)
    A(f'v_and_b32 v{V_L}, 63, v0')
    A(f'v_and_b32 v{V_I}, 15, v0')
    A(f'v_bfe_u32 v{V_G}, v0, 4, 2')
    A(f's_mov_b32 s{S_SCLB}, {hex(f2u(SCL))}')
    A(f's_mov_b32 s{S_SCLB+1}, {hex(f2u(SCL))}')
    A(f'v_mov_b32 v{V_NINF}, 0xff800000')
    A(f'v_lshrrev_b32 v{T0}, 1, v{V_G}')
    A(f'v_lshlrev_b32 v{T0}, 10, v{T0}')
    A(f'v_and_b32 v{T1}, 1, v{V_G}')
    A(f'v_lshl_add_u32 v{T0}, v{T1}, 9, v{T0}')
    A(f'v_lshl_add_u32 v{V_KA}, v{V_I}, 4, v{T0}')
    A(f'v_mov_b32 v{V_QA}, v{V_KA}')
    A(f'v_bfe_u32 v{T0}, v{V_L}, 2, 2')
    A(f'v_lshl_add_u32 v{T0}, v{V_G}, 2, v{T0}')
    A(f'v_lshlrev_b32 v{T0}, 4, v{T0}')
    A(f'v_and_b32 v{T1}, 3, v{V_L}')
    A(f'v_lshrrev_b32 v{T2}, 1, v{T1}')
    A(f'v_lshl_add_u32 v{T0}, v{T2}, 10, v{T0}')
    A(f'v_and_b32 v{T2}, 1, v{T1}')
    A(f'v_lshl_add_u32 v{T0}, v{T2}, 9, v{T0}')
    A(f'v_add_u32 v{V_VA}, {L_V}, v{T0}')
    A(f'v_lshlrev_b32 v{T0}, 9, v{V_G}')
    A(f'v_lshl_add_u32 v{T0}, v{V_I}, 4, v{T0}')
    A(f'v_cmp_gt_u32 vcc, 3, v{V_G}')
    A(f'v_mov_b32 v{T1}, {BIG}')
    A('s_nop 0')
    A(f'v_cndmask_b32 v{V_OA}, v{T1}, v{T0}, vcc')
    A(f's_mov_b32 s{S_JOB}, s{S_BID}')
    A('L_p2_job:')
    A(f's_and_b32 s{S_H}, s{S_JOB}, 31')
    A(f's_lshr_b32 s{S_JQ}, s{S_JOB}, 5')
    A('s_barrier')
    A(f'v_lshlrev_b32 v{T0}, 4, v{V_L}')
    for ls in range(4):
        A(f's_lshl_b32 s{S_t0}, s{S_W}, 2')
        A(f's_add_u32 s{S_t0}, s{S_t0}, {ls}')
        A(f's_lshl_b32 s{S_t1}, s{S_JQ}, 3')
        A(f's_add_u32 s{S_t1}, s{S_t1}, s{S_t0}')
        A(f's_sub_i32 s{S_t1}, s{S_t1}, 8')
        A(f's_cmp_lt_i32 s{S_t1}, 0')
        A(f's_cselect_b32 s{S_t2}, {BIG}, 0')
        A(f's_max_i32 s{S_t1}, s{S_t1}, 0')
        A(f's_mul_i32 s{S_t1}, s{S_t1}, {96*2048}')
        A(f's_add_u32 s{S_t1}, s{S_t1}, s{S_t2}')
        A(f's_lshl_b32 s{S_t2}, s{S_H}, 11')
        A(f's_add_u32 s{S_t1}, s{S_t1}, s{S_t2}')
        A(f's_add_u32 s{S_t1}, s{S_t1}, {WS_QB}')
        A(f's_lshl_b32 s{S_t0}, s{S_t0}, 11')
        for mat in range(2):
            for hf in range(2):
                A(f's_add_u32 m0, s{S_t0}, {(L_K, L_V)[mat] + hf*1024}')
                A(f's_add_u32 s{S_t2}, s{S_t1}, {(32+32*mat)*2048 + hf*1024}')
                A(f'buffer_load_dwordx4 v{T0}, {WSR}, s{S_t2} offen sc1 lds')
    A('s_waitcnt vmcnt(0)')
    A('s_barrier')
    A(f's_mov_b32 s{S_IT}, 0')
    A('L_p2_tile:')
    A(f's_lshr_b32 s{S_t0}, s{S_IT}, 1')
    A(f's_lshl_b32 s{S_t1}, s{S_W}, 1')
    A(f's_add_u32 s{S_t0}, s{S_t0}, s{S_t1}')
    A(f's_mov_b32 s{S_LQ}, s{S_t0}')
    A(f's_lshl_b32 s{S_t1}, s{S_JQ}, 3')
    A(f's_add_u32 s{S_SQ}, s{S_t1}, s{S_t0}')
    A(f's_and_b32 s{S_t3}, s{S_IT}, 1')
    A(f's_mul_i32 s{S_t1}, s{S_SQ}, {96*2048}')
    A(f's_lshl_b32 s{S_t2}, s{S_H}, 11')
    A(f's_add_u32 s{S_t1}, s{S_t1}, s{S_t2}')
    A(f's_lshl_b32 s{S_t2}, s{S_t3}, 8')
    A(f's_add_u32 s{S_t1}, s{S_t1}, s{S_t2}')
    A(f's_add_u32 s{S_t1}, s{S_t1}, {WS_QB}')
    A(f'buffer_load_dwordx4 {vr(V_Q,4)}, v{V_QA}, {WSR}, s{S_t1} offen sc1')
    A(f's_lshl_b32 s{S_t1}, s{S_SQ}, 11')
    A(f's_add_u32 s{S_t1}, s{S_t1}, s{S_t2}')
    A(f's_add_u32 s{S_t1}, s{S_t1}, {WS_GATE}')
    A(f'v_lshlrev_b32 v{T0}, 4, v{V_I}')
    A(f'buffer_load_ushort v{V_GT}, v{T0}, {WSR}, s{S_t1} offen sc1')
    A(f's_lshl_b32 s{S_t2}, s{S_t3}, 4')
    A(f'v_lshlrev_b32 v{T0}, 2, v{V_G}')
    A(f'v_sub_u32 v{V_D}, v{V_I}, v{T0}')
    A(f'v_add_u32 v{V_D}, s{S_t2}, v{V_D}')
    for kt in range(2):
        for r in range(4):
            A(f'v_cmp_le_i32 s[{S_MK+2*(4*kt+r)}:{S_MK+2*(4*kt+r)+1}], {16*kt+r}, v{V_D}')
    A(f's_lshl_b32 s{S_t0}, s{S_LQ}, 11')
    A(f'v_add_u32 v{V_KC}, s{S_t0}, v{V_KA}')
    A(f'v_add_u32 v{V_VC}, s{S_t0}, v{V_VA}')
    tiles = [(kb, kt) for kb in range(9) for kt in range(2)]
    for n in range(8):
        kb, kt = tiles[n]
        A(f'ds_read_b128 {vr(V_K+4*n,4)}, v{V_KC} offset:{L_K + kb*2048 + kt*256}')
    A('s_waitcnt vmcnt(0)')
    issued = 8
    for n in range(18):
        A(f's_waitcnt lgkmcnt({min(issued-(n+1), 7)})')
        mfma(A, vr(V_S+4*n,4), vr(V_K+4*(n%8),4), vr(V_Q,4), '0')
        if issued < 18:
            kb, kt = tiles[issued]
            A(f'ds_read_b128 {vr(V_K+4*(issued%8),4)}, v{V_KC} offset:{L_K + kb*2048 + kt*256}')
            issued += 1
    def vread(n):
        kb, tt = n >> 1, n & 1
        q = V_V+4*(n % 8)
        A(f'ds_read_b64_tr_b16 {vr(q,2)}, v{V_VC} offset:{kb*2048 + tt*8}')
        A(f'ds_read_b64_tr_b16 {vr(q+2,2)}, v{V_VC} offset:{kb*2048 + tt*8 + 256}')
    for n in range(4): vread(n)
    A(f'v_lshlrev_b32 v{V_GT}, 16, v{V_GT}')
    A(f'v_mul_f32 v{V_GT}, 0x3fb8aa3b, v{V_GT}')
    A(f'v_exp_f32 v{V_GT}, v{V_GT}')
    A('s_nop 0')
    A(f'v_add_f32 v{V_GT}, 1.0, v{V_GT}')
    A('s_nop 2')
    for kt in range(2):
        for r in range(4):
            m = f's[{S_MK+2*(4*kt+r)}:{S_MK+2*(4*kt+r)+1}]'
            A(f'v_cndmask_b32 v{V_S+4*kt+r}, v{V_S+4*kt+r}, v{V_NINF}, {m}')
            A(f'v_cndmask_b32 v{V_S+64+4*kt+r}, v{V_NINF}, v{V_S+64+4*kt+r}, {m}')
    for kb in range(8):
        lab = A.label('L_p2_nk')
        A(f's_cmp_ge_u32 s{S_SQ}, {8-kb}')
        A(f's_cbranch_scc1 {lab}')
        for r in range(8): A(f'v_mov_b32 v{V_S+8*kb+r}, v{V_NINF}')
        A(f'{lab}:')
    A(f'v_max3_f32 v{V_MX}, v{V_S}, v{V_S+1}, v{V_S+2}')
    A(f'v_max3_f32 v{V_MX+1}, v{V_S+3}, v{V_S+4}, v{V_S+5}')
    cur = 0
    for r in range(6, 72, 2):
        A(f'v_max3_f32 v{V_MX+cur}, v{V_MX+cur}, v{V_S+r}, v{V_S+r+1}'); cur ^= 1
    A(f'v_max_f32 v{V_MX}, v{V_MX}, v{V_MX+1}')
    def allreduce(op, reg, tmp):
        for perm in ('v_permlane16_swap_b32', 'v_permlane32_swap_b32'):
            A(f'v_mov_b32 v{tmp}, v{reg}')
            A('s_nop 1')
            A(f'{perm} v{tmp}, v{reg}')
            A(f'{op} v{reg}, v{reg}, v{tmp}')
    allreduce('v_max_f32', V_MX, V_MX+1)
    A(f'v_mul_f32 v{V_MX}, s{S_SCLB}, v{V_MX}')
    for r in range(0, 72, 2):
        A(f'v_pk_fma_f32 {vr(V_S+r,2)}, {vr(V_S+r,2)}, s[{S_SCLB}:{S_SCLB+1}], {vr(V_MX,2)} op_sel_hi:[1,1,0] neg_lo:[0,0,1] neg_hi:[0,0,1]')
    for r in range(72): A(f'v_exp_f32 v{V_S+r}, v{V_S+r}')
    A('s_nop 0')
    for r in range(0, 72, 2):
        A(f'v_cvt_pk_bf16_f32 v{V_P+r//2}, v{V_S+r}, v{V_S+r+1}')
    A(f'v_pk_add_f32 {vr(V_SU,2)}, {vr(V_S,2)}, {vr(V_S+2,2)}')
    for r in range(4, 72, 2):
        A(f'v_pk_add_f32 {vr(V_SU,2)}, {vr(V_SU,2)}, {vr(V_S+r,2)}')
    A(f'v_add_f32 v{V_SU}, v{V_SU}, v{V_SU+1}')
    issued = 4
    for n in range(18):
        kb, tt = n >> 1, n & 1
        A(f's_waitcnt lgkmcnt({min(2*(issued-(n+1)), 14)})')
        mfma(A, vr(V_O+4*tt,4), vr(V_V+4*(n%8),4), vr(V_P+4*kb,4), '0' if kb == 0 else vr(V_O+4*tt,4))
        if issued < 18:
            vread(issued); issued += 1
    allreduce('v_add_f32', V_SU, V_SU+1)
    A(f'v_mul_f32 v{V_SU}, v{V_SU}, v{V_GT}')
    A(f'v_rcp_f32 v{V_SU}, v{V_SU}')
    A('s_nop 2')
    for r in range(0, 8, 2):
        A(f'v_pk_mul_f32 {vr(V_O+r,2)}, {vr(V_O+r,2)}, {vr(V_SU,2)} op_sel_hi:[1,0]')
    for k in range(4):
        A(f'v_cvt_pk_bf16_f32 v{V_OUT+k}, v{V_O+2*k}, v{V_O+2*k+1}')
    A(f's_mul_i32 s{S_t1}, s{S_SQ}, {O_SEG}')
    A(f's_mul_i32 s{S_t2}, s{S_H}, 1536')
    A(f's_add_u32 s{S_t1}, s{S_t1}, s{S_t2}')
    A(f's_and_b32 s{S_t3}, s{S_IT}, 1')
    A(f's_lshl_b32 s{S_t3}, s{S_t3}, 8')
    A(f's_add_u32 s{S_t1}, s{S_t1}, s{S_t3}')
    A(f's_add_u32 s{S_t1}, s{S_t1}, {WS_O + 512*512}')
    A(f'buffer_store_dwordx4 {vr(V_OUT,4)}, v{V_OA}, {WSR}, s{S_t1} offen sc1')
    A(f's_add_u32 s{S_IT}, s{S_IT}, 1')
    A(f's_cmp_lt_u32 s{S_IT}, 4')
    A('s_cbranch_scc1 L_p2_tile')
    A(f's_add_u32 s{S_JOB}, s{S_JOB}, 128')
    A(f's_cmp_lt_u32 s{S_JOB}, 256')
    A('s_cbranch_scc1 L_p2_job')
    A('s_waitcnt vmcnt(0)')
    A('s_barrier')
    A(f's_cmp_lg_u32 s{S_W}, 0')
    A('s_cbranch_scc1 L_p2_end')
    A(f'v_mov_b32 v{T0}, 0')
    A(f'v_mov_b32 v{T1}, 1')
    A(f's_mov_b32 s{S_t0}, {C_BCNT}')
    A('s_mov_b64 exec, 1')
    A(f'buffer_atomic_add v{T1}, v{T0}, {WSR}, s{S_t0} offen')
    A('s_mov_b64 exec, -1')
    A('L_p2_end:')

if __name__ == '__main__':
    import bulk1
    A = Asm(); K = NAME + '_kernel'
    kernel_begin(A, K)
    A('s_cmp_ge_u32 s2, 128')
    A('s_cbranch_scc1 L_end')
    A('s_load_dwordx2 s[4:5], s[0:1], 104')
    A(f's_load_dwordx2 s[{S_DBG}:{S_DBG+1}], s[0:1], 96')
    A('v_lshrrev_b32 v1, 6, v0')
    A('s_nop 0')
    A(f'v_readfirstlane_b32 s{S_W}, v1')
    A('s_waitcnt lgkmcnt(0)')
    bulk1.setsrd(A, S_WS, 4, 0x10000000)
    A(f's_mov_b32 s{S_BID}, s2')
    A(f's_mov_b32 s{S_TO}, 0x40000')
    bulk1.gen_phase1_loop(A)
    gen_phase2(A)
    A('s_waitcnt vmcnt(0)')
    A('L_end:')
    A('s_endpgm')
    A('L_timeout:')
    A('v_mov_b32 v1, 60')
    A('v_mov_b32 v2, 0xdead')
    A(f'global_store_dword v1, v2, s[{S_DBG}:{S_DBG+1}]')
    A('s_waitcnt vmcnt(0)')
    A('s_endpgm')
    open(sys.argv[1], 'w').write(file_text(['; @launch grid=(128,1,1) block=(256,1,1) lds=163840'], A.text(), kernel_desc(K)))
```

```python
from asmlib import *
from ws_layout import *
import sys, struct
from bulk2 import wait_words, f2u
from bulk1 import setsrd
S_WS, S_X, S_J, S_W, S_TO, S_DBG = 8, 16, 17, 20, 22, 28
S_T = 12
S_T2 = 24
S_t0, S_t1, S_t2, S_t3 = 30, 31, 32, 33
S_BID = 34
S_H, S_SEG, S_STEP6, S_XB = 36, 37, 38, 39
S_SCL = 42
S_MK = 44
S_A, S_B, S_C = 52, 53, 54
WSR = f's[{S_WS}:{S_WS+3}]'
BIG = 0x40000000
SCL = (128 ** -0.5) * 1.4426950408889634
def mfma(A, d, a, b, c): A(f'v_mfma_f32_16x16x32_bf16 {d}, {a}, {b}, {c}')
def mfma32(A, d, a, b, c): A(f'v_mfma_f32_32x32x16_bf16 {d}, {a}, {b}, {c}')

def gen_xattn(A):
    V_L, V_I, V_G = 1, 2, 3
    V_T = 4
    V_QA, V_MA, V_VA, V_VMA, V_OA, V_LIN, V_PA = 12, 13, 14, 15, 16, 17, 18
    V_GT = 20
    V_MX, V_SU = 22, 24
    V_NINF = 26
    V_Q = 32
    V_K = 64
    V_M = 96
    V_S = 112
    V_PX = 132
    V_PM = 140
    V_VX = 148
    V_VM = 164
    V_O = 180
    V_OUT = 196
    T0, T1, T2, T3 = V_T, V_T+1, V_T+2, V_T+3
    A.c('==== phase 3: x attention ====')
    A(f'v_and_b32 v{V_L}, 63, v0')
    A(f'v_and_b32 v{V_I}, 15, v0')
    A(f'v_bfe_u32 v{V_G}, v0, 4, 2')
    A(f's_mul_i32 s{S_t0}, s{S_XB}, 48')
    A(f's_sub_u32 s{S_t1}, s{S_J}, 20')
    A(f's_lshl_b32 s{S_t1}, s{S_t1}, 2')
    A(f's_add_u32 s{S_t0}, s{S_t0}, s{S_t1}')
    A(f's_add_u32 s{S_t0}, s{S_t0}, s{S_W}')
    A(f's_and_b32 s{S_H}, s{S_t0}, 31')
    A(f's_lshr_b32 s{S_SEG}, s{S_t0}, 5')
    A(f's_mov_b32 s{S_SCL}, {hex(f2u(SCL))}')
    A(f's_mov_b32 s{S_SCL+1}, {hex(f2u(SCL))}')
    A(f'v_mov_b32 v{V_NINF}, 0xff800000')
    A(f'v_lshrrev_b32 v{T0}, 1, v{V_G}')
    A(f'v_lshlrev_b32 v{T1}, 10, v{T0}')
    A(f'v_and_b32 v{T2}, 1, v{V_G}')
    A(f'v_lshl_add_u32 v{T1}, v{T2}, 9, v{T1}')
    A(f'v_lshl_add_u32 v{V_QA}, v{V_I}, 4, v{T1}')
    A(f'v_and_b32 v{T3}, 7, v{V_I}')
    A(f'v_lshlrev_b32 v{T1}, 8, v{T0}')
    A(f'v_lshl_add_u32 v{T1}, v{T3}, 5, v{T1}')
    A(f'v_lshl_add_u32 v{V_MA}, v{T2}, 4, v{T1}')
    A(f's_mul_i32 s{S_A}, s{S_W}, 12288')
    A(f'v_bfe_u32 v{T0}, v{V_L}, 2, 2')
    A(f'v_and_b32 v{T1}, 3, v{V_L}')
    A(f'v_lshl_add_u32 v{T2}, v{V_G}, 2, v{T0}')
    A(f'v_lshlrev_b32 v{T2}, 4, v{T2}')
    A(f'v_lshrrev_b32 v{T3}, 1, v{T1}')
    A(f'v_lshl_add_u32 v{T2}, v{T3}, 10, v{T2}')
    A(f'v_and_b32 v{T3}, 1, v{T1}')
    A(f'v_lshl_add_u32 v{T2}, v{T3}, 9, v{T2}')
    A(f'v_add_u32 v{V_VA}, s{S_A}, v{T2}')
    A(f'v_and_b32 v{T2}, 1, v{V_G}')
    A(f'v_lshl_add_u32 v{T2}, v{T2}, 2, v{T0}')
    A(f'v_lshlrev_b32 v{T2}, 5, v{T2}')
    A(f'v_lshrrev_b32 v{T3}, 1, v{V_G}')
    A(f'v_lshl_add_u32 v{T2}, v{T3}, 11, v{T2}')
    A(f'v_lshrrev_b32 v{T3}, 1, v{T1}')
    A(f'v_lshl_add_u32 v{T2}, v{T3}, 8, v{T2}')
    A(f'v_and_b32 v{T3}, 1, v{T1}')
    A(f'v_lshl_add_u32 v{T2}, v{T3}, 4, v{T2}')
    A(f'v_add_u32 v{T2}, s{S_A}, v{T2}')
    A(f'v_add_u32 v{V_VMA}, 8192, v{T2}')
    A(f'v_lshlrev_b32 v{T0}, 9, v{V_G}')
    A(f'v_lshl_add_u32 v{V_OA}, v{V_I}, 4, v{T0}')
    A(f'v_lshlrev_b32 v{V_LIN}, 4, v{V_L}')
    A(f'v_cmp_gt_u32 vcc, 4, v{V_L}')
    A(f's_lshl_b32 s{S_t0}, s{S_H}, 9')
    A(f'v_lshlrev_b32 v{T0}, 7, v{V_L}')
    A(f'v_add_u32 v{T0}, s{S_t0}, v{T0}')
    A(f'v_mov_b32 v{T1}, {BIG}')
    A(f'v_cndmask_b32 v{V_PA}, v{T1}, v{T0}, vcc')
    for q in range(4):
        A(f'v_mov_b32 v{V_VM+4*q+2}, 0'); A(f'v_mov_b32 v{V_VM+4*q+3}, 0')
    for qt in range(2):
        A(f'v_mov_b32 v{V_PM+4*qt+2}, 0'); A(f'v_mov_b32 v{V_PM+4*qt+3}, 0')
    A(f'v_mov_b32 v{V_PX+2}, 0'); A(f'v_mov_b32 v{V_PX+3}, 0')
    A(f'v_lshlrev_b32 v{T0}, 2, v{V_G}')
    A(f'v_sub_u32 v{T0}, v{V_I}, v{T0}')
    for r in range(4):
        A(f'v_cmp_le_i32 s[{S_MK+2*r}:{S_MK+2*r+1}], {r}, v{T0}')
    A(f'v_cmp_gt_u32 vcc, 3, v{V_L}')
    A(f'v_lshlrev_b32 v{T0}, 12, v{V_L}')
    A(f's_lshl_b32 s{S_t0}, s{S_H}, 7')
    A(f'v_add_u32 v{T0}, s{S_t0}, v{T0}')
    A(f'v_mov_b32 v{T1}, {BIG}')
    A(f'v_cndmask_b32 v{T0}, v{T1}, v{T0}, vcc')
    A(f's_mov_b64 s[{S_t2}:{S_t3}], vcc')
    A(f's_mov_b32 s{S_t0}, {C_PROG1}')
    A('L_x_w1:')
    A(f'buffer_load_dword v{T1}, v{T0}, {WSR}, s{S_t0} offen sc1')
    A('s_waitcnt vmcnt(0)')
    A(f'v_cmp_gt_u32 vcc, 64, v{T1}')
    A('s_nop 3')
    A(f's_and_b64 vcc, vcc, s[{S_t2}:{S_t3}]')
    A('s_cbranch_vccz L_x_unit')
    A('s_sleep 8')
    A(f's_sub_u32 s{S_TO}, s{S_TO}, 1')
    A('s_cbranch_scc0 L_x_w1')
    A('s_branch L_timeout')
    A('L_x_unit:')
    A(f's_lshl_b32 s{S_t0}, s{S_SEG}, 5')
    A(f's_add_u32 s{S_t0}, s{S_t0}, s{S_H}')
    A(f's_lshl_b32 s{S_B}, s{S_t0}, 13')
    A(f's_add_u32 s{S_t1}, s{S_B}, {WS_QX}')
    for qt in range(2):
        for s4 in range(4):
            A(f's_add_u32 s{S_t2}, s{S_t1}, {s4*2048 + qt*256}')
            A(f'buffer_load_dwordx4 {vr(V_Q+16*qt+4*s4,4)}, v{V_QA}, {WSR}, s{S_t2} offen sc1')
    A(f's_add_u32 s{S_t1}, s{S_B}, {WS_KX}')
    for kt in range(2):
        for s4 in range(4):
            A(f's_add_u32 s{S_t2}, s{S_t1}, {s4*2048 + kt*256}')
            A(f'buffer_load_dwordx4 {vr(V_K+16*kt+4*s4,4)}, v{V_QA}, {WSR}, s{S_t2} offen sc1')
    A(f's_add_u32 s{S_t1}, s{S_B}, {WS_VX}')
    for u in range(8):
        A(f's_add_u32 m0, s{S_A}, {u*1024}')
        A(f's_add_u32 s{S_t2}, s{S_t1}, {u*1024}')
        A(f'buffer_load_dwordx4 v{V_LIN}, {WSR}, s{S_t2} offen sc1 lds')
    A(f's_lshl_b32 s{S_t1}, s{S_SEG}, 11')
    A(f's_add_u32 s{S_t1}, s{S_t1}, {WS_GATE}')
    A(f'v_lshlrev_b32 v{T0}, 4, v{V_I}')
    A(f'buffer_load_ushort v{V_GT}, v{T0}, {WSR}, s{S_t1} offen sc1')
    A(f'buffer_load_ushort v{V_GT+1}, v{T0}, {WSR}, s{S_t1} offen offset:256 sc1')
    A(f's_add_u32 s{S_C}, s{S_SEG}, 1')
    A(f's_mov_b32 s{S_t0}, {C_CPROG}')
    A('L_x_w2:')
    A(f'buffer_load_dword v{T1}, v{V_PA}, {WSR}, s{S_t0} offen sc1')
    A('s_waitcnt vmcnt(0)')
    A(f'v_cmp_gt_u32 vcc, s{S_C}, v{T1}')
    A('s_nop 3')
    A('s_and_b64 vcc, vcc, 15')
    A('s_cbranch_vccz L_x_go')
    A('s_sleep 4')
    A(f's_sub_u32 s{S_TO}, s{S_TO}, 1')
    A('s_cbranch_scc0 L_x_w2')
    A('s_branch L_timeout')
    A('L_x_go:')
    A(f's_lshl_b32 s{S_t0}, s{S_SEG}, 5')
    A(f's_add_u32 s{S_t0}, s{S_t0}, s{S_H}')
    A(f's_lshl_b32 s{S_t1}, s{S_t0}, 11')
    A(f's_add_u32 s{S_t1}, s{S_t1}, {WS_KM}')
    for s4 in range(4):
        A(f'buffer_load_dwordx4 {vr(V_M+4*s4,4)}, v{V_MA}, {WSR}, s{S_t1} offen offset:{512*s4} sc1')
    A(f's_lshl_b32 s{S_t1}, s{S_t0}, 12')
    A(f's_add_u32 s{S_t1}, s{S_t1}, {WS_VM}')
    for u in range(4):
        A(f's_add_u32 m0, s{S_A}, {8192 + u*1024}')
        A(f's_add_u32 s{S_t2}, s{S_t1}, {u*1024}')
        A(f'buffer_load_dwordx4 v{V_LIN}, {WSR}, s{S_t2} offen sc1 lds')
    SX = {(0,0): V_S, (1,0): V_S+8, (1,1): V_S+12}
    SMm = {0: V_S+4, 1: V_S+16}
    for s4 in range(4):
        for (qt, kt), d in SX.items():
            mfma(A, vr(d,4), vr(V_K+16*kt+4*s4,4), vr(V_Q+16*qt+4*s4,4), '0' if s4 == 0 else vr(d,4))
    for qt in range(2):
        A(f'v_lshlrev_b32 v{V_GT+qt}, 16, v{V_GT+qt}')
        A(f'v_mul_f32 v{V_GT+qt}, 0xbfb8aa3b, v{V_GT+qt}')
        A(f'v_exp_f32 v{V_GT+qt}, v{V_GT+qt}')
        A('s_nop 0')
        A(f'v_add_f32 v{V_GT+qt}, 1.0, v{V_GT+qt}')
    A('s_waitcnt vmcnt(4)')
    for s4 in range(4):
        for qt in range(2):
            mfma(A, vr(SMm[qt],4), vr(V_M+4*s4,4), vr(V_Q+16*qt+4*s4,4), '0' if s4 == 0 else vr(SMm[qt],4))
    A('s_nop 7')
    for r in range(4):
        m = f's[{S_MK+2*r}:{S_MK+2*r+1}]'
        A(f'v_cndmask_b32 v{SX[(0,0)]+r}, v{V_NINF}, v{SX[(0,0)]+r}, {m}')
        A(f'v_cndmask_b32 v{SX[(1,1)]+r}, v{V_NINF}, v{SX[(1,1)]+r}, {m}')
    def allreduce(op, reg, tmp):
        for perm in ('v_permlane16_swap_b32', 'v_permlane32_swap_b32'):
            A(f'v_mov_b32 v{tmp}, v{reg}')
            A('s_nop 1')
            A(f'{perm} v{tmp}, v{reg}')
            A(f'{op} v{reg}, v{reg}, v{tmp}')
    for qt in range(2):
        regs = list(range(V_S, V_S+8)) if qt == 0 else list(range(V_S+8, V_S+20))
        mreg = SMm[qt]
        A(f'v_max3_f32 v{V_MX}, v{regs[0]}, v{regs[1]}, v{regs[2]}')
        rr = regs[3:]
        while len(rr) >= 2:
            A(f'v_max3_f32 v{V_MX}, v{V_MX}, v{rr[0]}, v{rr[1]}'); rr = rr[2:]
        if rr: A(f'v_max_f32 v{V_MX}, v{V_MX}, v{rr[0]}')
        allreduce('v_max_f32', V_MX, V_MX+1)
        A(f'v_mul_f32 v{V_MX}, s{S_SCL}, v{V_MX}')
        for r in regs[::2]:
            A(f'v_pk_fma_f32 {vr(r,2)}, {vr(r,2)}, s[{S_SCL}:{S_SCL+1}], {vr(V_MX,2)} op_sel_hi:[1,1,0] neg_lo:[0,0,1] neg_hi:[0,0,1]')
        for r in regs: A(f'v_exp_f32 v{r}, v{r}')
        A('s_nop 0')
        x0 = SX[(qt,0)]
        A(f'v_cvt_pk_bf16_f32 v{V_PX+4*qt}, v{x0}, v{x0+1}')
        A(f'v_cvt_pk_bf16_f32 v{V_PX+4*qt+1}, v{x0+2}, v{x0+3}')
        if qt == 1:
            x1 = SX[(1,1)]
            A(f'v_cvt_pk_bf16_f32 v{V_PX+6}, v{x1}, v{x1+1}')
            A(f'v_cvt_pk_bf16_f32 v{V_PX+7}, v{x1+2}, v{x1+3}')
        A(f'v_cvt_pk_bf16_f32 v{V_PM+4*qt}, v{mreg}, v{mreg+1}')
        A(f'v_cvt_pk_bf16_f32 v{V_PM+4*qt+1}, v{mreg+2}, v{mreg+3}')
        su = V_SU+qt if False else V_T+4+qt
        A(f'v_add_f32 v{T0}, v{mreg}, v{mreg+1}')
        A(f'v_add_f32 v{T1}, v{mreg+2}, v{mreg+3}')
        A(f'v_add_f32 v{T0}, v{T0}, v{T1}')
        A(f'v_mul_f32 v{su}, 0.5, v{T0}')
        for r in regs:
            if mreg <= r < mreg+4: continue
            A(f'v_add_f32 v{su}, v{su}, v{r}')
        allreduce('v_add_f32', su, T0)
        A(f'v_mul_f32 v{su}, v{su}, v{V_GT+qt}')
        A(f'v_rcp_f32 v{su}, v{su}')
    A('s_waitcnt vmcnt(0)')
    A(f's_mul_i32 s{S_t1}, s{S_SEG}, {O_SEG}')
    A(f's_lshl_b32 s{S_t2}, s{S_H}, 13')
    A(f's_add_u32 s{S_t1}, s{S_t1}, s{S_t2}')
    A(f's_add_u32 s{S_t1}, s{S_t1}, {WS_O}')
    for pp in range(4):
        for tt in range(2):
            q = (2*pp+tt) % 4
            A(f'ds_read_b64_tr_b16 {vr(V_VX+4*q,2)}, v{V_VA} offset:{pp*2048 + tt*8}')
            A(f'ds_read_b64_tr_b16 {vr(V_VX+4*q+2,2)}, v{V_VA} offset:{pp*2048 + tt*8 + 256}')
            A(f'ds_read_b64_tr_b16 {vr(V_VM+4*q,2)}, v{V_VMA} offset:{pp*512 + tt*8}')
        A('s_waitcnt lgkmcnt(0)')
        for tt in range(2):
            q = (2*pp+tt) % 4
            for qt in range(2):
                mfma(A, vr(V_O+4*(2*qt+tt),4), vr(V_VX+4*q,4), vr(V_PX+4*qt,4), '0')
        for tt in range(2):
            q = (2*pp+tt) % 4
            for qt in range(2):
                mfma(A, vr(V_O+4*(2*qt+tt),4), vr(V_VM+4*q,4), vr(V_PM+4*qt,4), vr(V_O+4*(2*qt+tt),4))
        A('s_nop 7')
        for qt in range(2):
            su = V_T+4+qt
            for r in range(8):
                A(f'v_mul_f32 v{V_O+8*qt+r}, v{su}, v{V_O+8*qt+r}')
            for k in range(4):
                A(f'v_cvt_pk_bf16_f32 v{V_OUT+4*qt+k}, v{V_O+8*qt+2*k}, v{V_O+8*qt+2*k+1}')
            A(f's_add_u32 s{S_t2}, s{S_t1}, {pp*4*512 + qt*256}')
            A(f'buffer_store_dwordx4 {vr(V_OUT+4*qt,4)}, v{V_OA}, {WSR}, s{S_t2} offen sc1')
        A('s_nop 1')
    A('s_waitcnt vmcnt(0)')
    A(f's_lshl_b32 s{S_t0}, s{S_SEG}, 7')
    A(f's_add_u32 s{S_t0}, s{S_t0}, {C_XCNT}')
    A(f'v_mov_b32 v{T0}, 0')
    A(f'v_mov_b32 v{T1}, 1')
    A('s_mov_b64 exec, 1')
    A(f'buffer_atomic_add v{T1}, v{T0}, {WSR}, s{S_t0} offen')
    A('s_mov_b64 exec, -1')
    A(f's_add_u32 s{S_SEG}, s{S_SEG}, 6')
    A(f's_cmp_lt_u32 s{S_SEG}, 64')
    A('s_cbranch_scc1 L_x_unit')

def gen_outproj(A):
    V_L = 1
    V_T = 2
    V_LIN, V_RW, V_RR, V_OA = 10, 11, 12, 13
    V_W = 16
    V_X = 64
    V_ACC = 112
    V_R = 128
    NR = 12
    T0, T1, T2, T3 = V_T, V_T+1, V_T+2, V_T+3
    def wreg(t): return ar(4*t,4) if t < 64 else vr(V_W+4*(t-64),4)
    def wreg2(t, hf): return ar(4*t+2*hf,2) if t < 64 else vr(V_W+4*(t-64)+2*hf,2)
    A.c('==== phase 3: out projection ====')
    A(f'v_and_b32 v{V_L}, 63, v0')
    A(f's_load_dwordx2 s[4:5], s[0:1], 40')
    A(f's_load_dwordx2 s[6:7], s[0:1], 72')
    A('s_waitcnt lgkmcnt(0)')
    setsrd(A, S_T, 4, 5242880)
    setsrd(A, S_T2, 6, 640*1280)
    A(f's_mul_i32 s{S_A}, s{S_W}, 38912')
    A(f'v_lshrrev_b32 v{T0}, 2, v{V_L}')
    A(f'v_and_b32 v{T1}, 3, v{V_L}')
    A(f's_lshl_b32 s{S_t0}, s{S_J}, 6')
    A(f'v_lshlrev_b32 v{T1}, 4, v{T1}')
    A(f'v_add_u32 v{T1}, s{S_t0}, v{T1}')
    A(f'v_mul_u32_u24 v{T2}, 1280, v{T0}')
    A(f'v_add_u32 v{T2}, v{T2}, v{T1}')
    R_, CQ, AB, GK, TR = V_T+4, V_T+5, V_T+6, V_T+7, V_LIN
    A(f'v_bfe_u32 v{R_}, v{V_L}, 2, 2')
    A(f'v_and_b32 v{CQ}, 3, v{V_L}')
    A(f'v_bfe_u32 v{AB}, v{V_L}, 4, 1')
    A(f'v_lshrrev_b32 v{GK}, 5, v{V_L}')
    A(f'v_lshl_add_u32 v{TR}, v{GK}, 3, v{R_}')
    A(f'v_lshlrev_b32 v{TR}, 6, v{TR}')
    A(f'v_lshl_add_u32 v{TR}, v{AB}, 5, v{TR}')
    A(f'v_lshl_add_u32 v{TR}, v{CQ}, 3, v{TR}')
    A(f'v_add_u32 v{TR}, s{S_A}, v{TR}')
    for rnd in range(2):
        for i in range(38):
            t = 38*rnd + i
            A(f's_add_u32 m0, s{S_A}, {i*1024}')
            if t < 28:
                A(f's_mul_i32 s{S_t0}, s{S_W}, {76*16*1280}')
                A(f's_add_u32 s{S_t0}, s{S_t0}, {t*16*1280}')
                A(f'buffer_load_dwordx4 v{T2}, s[{S_T}:{S_T+3}], s{S_t0} offen lds')
            else:
                lab = A.label('L_o_b'); lab2 = A.label('L_o_d')
                A(f's_cmp_eq_u32 s{S_W}, 3')
                A(f's_cbranch_scc1 {lab}')
                A(f's_mul_i32 s{S_t0}, s{S_W}, {76*16*1280}')
                A(f's_add_u32 s{S_t0}, s{S_t0}, {t*16*1280}')
                A(f'buffer_load_dwordx4 v{T2}, s[{S_T}:{S_T+3}], s{S_t0} offen lds')
                A(f's_branch {lab2}')
                A(f'{lab}:')
                A(f'v_add_u32 v{T3}, {16*(t-28)}, v{T0}')
                A(f'v_mul_u32_u24 v{V_R}, 2731, v{T3}')
                A(f'v_lshrrev_b32 v{V_R}, 16, v{V_R}')
                A(f'v_mul_u32_u24 v{V_R+1}, 24, v{V_R}')
                A(f'v_sub_u32 v{V_R+1}, v{T3}, v{V_R+1}')
                A(f'v_mul_u32_u24 v{V_R}, 20, v{V_R}')
                A(f'v_add_u32 v{V_R}, v{V_R}, v{V_R+1}')
                A(f'v_mul_u32_u24 v{V_R}, 1280, v{V_R}')
                A(f'v_add_u32 v{V_R}, v{V_R}, v{T1}')
                A(f'v_cmp_gt_u32 vcc, 20, v{V_R+1}')
                A(f'v_mov_b32 v{V_R+1}, {BIG}')
                A('s_nop 0')
                A(f'v_cndmask_b32 v{V_R}, v{V_R+1}, v{V_R}, vcc')
                A(f'buffer_load_dwordx4 v{V_R}, s[{S_T2}:{S_T2+3}], 0 offen lds')
                A(f'{lab2}:')
        A('s_waitcnt vmcnt(0)')
        for i in range(38):
            t = 38*rnd + i
            for hf in range(2):
                A(f'ds_read_b64_tr_b16 {wreg2(t, hf)}, v{TR} offset:{i*1024 + hf*256}')
            if i % 4 == 3: A('s_waitcnt lgkmcnt(0)')
        A('s_waitcnt lgkmcnt(0)')
    A('s_barrier')
    A(f'v_lshlrev_b32 v{V_LIN}, 4, v{V_L}')
    A(f's_lshl_b32 s{S_t0}, s{S_W}, 12')
    A(f'v_add_u32 v{V_RW}, s{S_t0}, v{V_LIN}')
    A(f's_lshl_b32 s{S_t0}, s{S_W}, 10')
    A(f'v_add_u32 v{V_RR}, s{S_t0}, v{V_LIN}')
    A(f'v_and_b32 v{T0}, 31, v{V_L}')
    A(f'v_mul_u32_u24 v{T0}, 1280, v{T0}')
    A(f'v_lshrrev_b32 v{T1}, 5, v{V_L}')
    A(f'v_lshl_add_u32 v{T0}, v{T1}, 3, v{T0}')
    A(f's_lshl_b32 s{S_t0}, s{S_J}, 6')
    A(f's_lshl_b32 s{S_t1}, s{S_W}, 4')
    A(f's_add_u32 s{S_t0}, s{S_t0}, s{S_t1}')
    A(f'v_add_u32 v{V_OA}, s{S_t0}, v{T0}')
    A(f's_load_dwordx2 s[4:5], s[0:1], 88')
    A('s_waitcnt lgkmcnt(0)')
    setsrd(A, S_T, 4, 2048*1280)
    A(f'v_mov_b32 v{T0}, 0')
    A(f's_mov_b32 s{S_t0}, {C_BCNT}')
    A('L_o_wb:')
    A(f'buffer_load_dword v{T1}, v{T0}, {WSR}, s{S_t0} offen sc1')
    A('s_waitcnt vmcnt(0)')
    A(f'v_readfirstlane_b32 s{S_t1}, v{T1}')
    A(f's_cmp_ge_u32 s{S_t1}, 128')
    A('s_cbranch_scc1 L_o_wb_ok')
    A('s_sleep 8')
    A(f's_sub_u32 s{S_TO}, s{S_TO}, 1')
    A('s_cbranch_scc0 L_o_wb')
    A('s_branch L_timeout')
    A('L_o_wb_ok:')
    A(f's_mov_b32 s{S_SEG}, s{S_XB}')
    A(f's_mov_b32 s{S_C}, 0')
    A('L_o_seg:')
    A(f's_lshl_b32 s{S_t0}, s{S_SEG}, 7')
    A(f's_add_u32 s{S_t0}, s{S_t0}, {C_XCNT}')
    A(f'v_mov_b32 v{T0}, 0')
    A('L_o_wx:')
    A(f'buffer_load_dword v{T1}, v{T0}, {WSR}, s{S_t0} offen sc1')
    A('s_waitcnt vmcnt(0)')
    A(f'v_readfirstlane_b32 s{S_t1}, v{T1}')
    A(f's_cmp_ge_u32 s{S_t1}, 32')
    A('s_cbranch_scc1 L_o_wx_ok')
    A('s_sleep 4')
    A(f's_sub_u32 s{S_TO}, s{S_TO}, 1')
    A('s_cbranch_scc0 L_o_wx')
    A('s_branch L_timeout')
    A('L_o_wx_ok:')
    A(f's_mul_i32 s{S_B}, s{S_SEG}, {O_SEG}')
    A(f's_mul_i32 s{S_t0}, s{S_W}, {76*1024}')
    A(f's_add_u32 s{S_B}, s{S_B}, s{S_t0}')
    A(f's_add_u32 s{S_B}, s{S_B}, {WS_O}')
    def xload(t):
        if t % 4 == 0 and t: A(f's_add_u32 s{S_B}, s{S_B}, 4096')
        A(f'buffer_load_dwordx4 {vr(V_X+4*(t%NR),4)}, v{V_LIN}, {WSR}, s{S_B} offen offset:{(t%4)*1024} sc1')
    for t in range(NR): xload(t)
    issued = NR
    for t in range(76):
        A(f's_waitcnt vmcnt({issued-(t+1)})')
        mfma32(A, vr(V_ACC,16), wreg(t), vr(V_X+4*(t%NR),4), '0' if t == 0 else vr(V_ACC,16))
        if issued < 76:
            xload(issued); issued += 1
    A('s_nop 11')
    A(f'v_add_u32 v{T0}, s{S_C}, v{V_RW}')
    for q in range(4):
        A(f'ds_write_b128 v{T0}, {vr(V_ACC+4*q,4)} offset:{q*1024}')
    A('s_waitcnt lgkmcnt(0)')
    A('s_barrier')
    A(f'v_add_u32 v{T0}, s{S_C}, v{V_RR}')
    for src in range(4):
        A(f'ds_read_b128 {vr(V_R+4*src,4)}, v{T0} offset:{src*4096}')
    A('s_waitcnt lgkmcnt(0)')
    for r in (0, 2):
        A(f'v_pk_add_f32 {vr(V_R+r,2)}, {vr(V_R+r,2)}, {vr(V_R+4+r,2)}')
        A(f'v_pk_add_f32 {vr(V_R+8+r,2)}, {vr(V_R+8+r,2)}, {vr(V_R+12+r,2)}')
    for r in (0, 2):
        A(f'v_pk_add_f32 {vr(V_R+r,2)}, {vr(V_R+r,2)}, {vr(V_R+8+r,2)}')
    A(f'v_cvt_pk_bf16_f32 v{V_R+4}, v{V_R}, v{V_R+1}')
    A(f'v_cvt_pk_bf16_f32 v{V_R+5}, v{V_R+2}, v{V_R+3}')
    A(f's_mul_i32 s{S_t0}, s{S_SEG}, {32*1280}')
    A(f'buffer_store_dwordx2 {vr(V_R+4,2)}, v{V_OA}, s[{S_T}:{S_T+3}], s{S_t0} offen')
    A(f's_xor_b32 s{S_C}, s{S_C}, 16384')
    A(f's_add_u32 s{S_SEG}, s{S_SEG}, 4')
    A(f's_cmp_lt_u32 s{S_SEG}, 64')
    A('s_cbranch_scc1 L_o_seg')

def gen_phase3(A):
    A(f's_lshr_b32 s{S_XB}, s{S_BID}, 5')
    A(f's_and_b32 s{S_J}, s{S_BID}, 31')
    A('s_barrier')
    A(f's_cmp_lt_u32 s{S_J}, 20')
    A('s_cbranch_scc1 L_p3_out')
    gen_xattn(A)
    A('s_branch L_p3_end')
    A('L_p3_out:')
    gen_outproj(A)
    A('L_p3_end:')

if __name__ == '__main__':
    import bulk1, bulk2
    A = Asm(); K = NAME + '_kernel'
    kernel_begin(A, K)
    A('s_cmp_ge_u32 s2, 128')
    A('s_cbranch_scc1 L_end')
    A('s_load_dwordx2 s[4:5], s[0:1], 104')
    A(f's_load_dwordx2 s[{S_DBG}:{S_DBG+1}], s[0:1], 96')
    A('v_lshrrev_b32 v1, 6, v0')
    A('s_nop 0')
    A(f'v_readfirstlane_b32 s{S_W}, v1')
    A('s_waitcnt lgkmcnt(0)')
    setsrd(A, S_WS, 4, 0x10000000)
    A(f's_mov_b32 s{S_BID}, s2')
    A(f's_mov_b32 s{S_TO}, 0x40000')
    bulk1.gen_phase1_loop(A)
    bulk2.gen_phase2(A)
    gen_phase3(A)
    A('s_waitcnt vmcnt(0)')
    A('L_end:')
    A('s_endpgm')
    A('L_timeout:')
    A('v_mov_b32 v1, 60')
    A('v_mov_b32 v2, 0xdead')
    A(f'global_store_dword v1, v2, s[{S_DBG}:{S_DBG+1}]')
    A('s_waitcnt vmcnt(0)')
    A('s_endpgm')
    open(sys.argv[1], 'w').write(file_text(['; @launch grid=(128,1,1) block=(256,1,1) lds=163840'], A.text(), kernel_desc(K)))
```

```python
from asmlib import *
from ws_layout import *
import struct, sys

NSEG = 64
S_WS   = 8
S_T    = 12
S_X, S_J, S_H, S_C, S_W, S_STEP = 16, 17, 18, 19, 20, 21
S_TO   = 22
S_HASITEM = 23
S_DUM  = 24
S_DBG  = 28
S_t0, S_t1, S_t2, S_t3 = 30, 31, 32, 33
S_PAR  = 34
S_SCL = 38
S_KM, S_VM = 40, 41
S_SEG2 = 42
S_CPO = 44
S_PROF = 48
S_PT   = 64
S_D0   = 68
S_M0   = 72
S_VALID = 76
S_QV, S_PR, S_MR, S_XR = 84, 88, 92, 96
V_QKST, V_VST, V_RLD, V_VLD, V_P4, V_P2, V_RS0, V_RS1 = 1, 2, 3, 4, 5, 6, 7, 8
V_MS   = 9
V_M0   = 10
V_LM0  = 100
V_LB   = 16
V_LRW, V_LRR = 17, 18
V_DMA  = 19
V_T    = 20
V_NEG  = 28
V_SEL  = 32
V_LKV  = 36
V_PRG  = 37
V_CPF  = 38
V_CPV  = 39
V_B    = 40
V_KPUB, V_VPUB = 80, 81
V_XS   = 82
V_KPL  = 83
V_ACV  = 84
V_RSD  = 88
V_DM3A, V_DM3B = 96, 97
V_VPL  = 98
V_XL   = 104
V_XD   = 108
V_ACC  = 120
V_R    = 128
V_VV   = 144
V_KX   = 160
V_S    = 192
V_VOX  = 204
V_VOM  = 216
V_PX   = 228
V_PM   = 232
V_F    = 236
V_O    = 248
V_PO   = 56
V_PO2  = 254
A_QK, A_V, A_O = 0, 80, 120
HOFF = 768
MEMSTRIDE = 2*HOFF + 32
L_KV  = 0
L_MEM = 65536
L_RAREA = 81920
BIG = 0x40000000
SCALE_LOG2E = (128 ** -0.5) * 1.4426950408889634
def f2u(x): return struct.unpack('<I', struct.pack('<f', x))[0]
OPT = set()
DEFAULTS = {'nS': 2, 'nX': 2, 'nR': 2, 'nA': 2}
WSR = f's[{S_WS}:{S_WS+3}]'
def optval(k, d):
    for o in OPT:
        if o.startswith(k+'='): return o.split('=')[1] if isinstance(d, str) else int(o.split('=')[1])
    return DEFAULTS.get(k, d)
def mfma(A, d, a, b, c):
    A(f'v_mfma_f32_16x16x32_bf16 {d}, {a}, {b}, {c}')
def nops(A, n):
    while n > 0:
        k = min(n, 16); A(f's_nop {k-1}'); n -= k

class Prof:
    def __init__(self, on): self.on = on
    def stamp(self, A, idx, trace_only=False):
        if 'trace' in OPT:
            lab = A.label('L_tr')
            A(f's_cmp_lg_u32 s{S_STEP}, {optval("ts", 30)}')
            A(f's_cbranch_scc1 {lab}')
            A(f's_memrealtime s[{S_PT}:{S_PT+1}]')
            A('s_waitcnt lgkmcnt(0)')
            A(f's_mov_b32 s{S_PROF+idx}, s{S_PT}')
            A(f'{lab}:')
            return
        if not self.on or trace_only: return
        A(f's_memtime s[{S_PT}:{S_PT+1}]')
        A('s_waitcnt lgkmcnt(0)')
        A(f's_sub_u32 s{S_PT+3}, s{S_PT}, s{S_PT+2}')
        A(f's_mov_b32 s{S_PT+2}, s{S_PT}')
        A(f's_add_u32 s{S_PROF+idx}, s{S_PROF+idx}, s{S_PT+3}')

PROFCNT = {}
def check(A, regs, tmp=V_T):
    r = list(regs)
    if len(r) <= 5:
        A(f'v_max3_u32 v{tmp}, v{r[0]}, v{r[1]}, v{r[2]}'); r = r[3:]
        if len(r) == 2: A(f'v_max3_u32 v{tmp}, v{tmp}, v{r[0]}, v{r[1]}')
        elif len(r) == 1: A(f'v_max_u32 v{tmp}, v{tmp}, v{r[0]}')
    else:
        A(f'v_max3_u32 v{tmp}, v{r[0]}, v{r[1]}, v{r[2]}')
        A(f'v_max3_u32 v{tmp+1}, v{r[3]}, v{r[4]}, v{r[5]}'); r = r[6:]; cur = 0
        while len(r) >= 2:
            A(f'v_max3_u32 v{tmp+cur}, v{tmp+cur}, v{r[0]}, v{r[1]}'); r = r[2:]; cur ^= 1
        if r: A(f'v_max3_u32 v{tmp}, v{tmp}, v{tmp+1}, v{r[0]}')
        else: A(f'v_max_u32 v{tmp}, v{tmp}, v{tmp+1}')
    A(f'v_cmp_eq_u32 vcc, -1, v{tmp}')

def retry(A, label, key=None):
    if key in PROFCNT:
        k = PROFCNT[key]; A(f's_add_u32 s{S_PROF+k}, s{S_PROF+k}, 1')
    A(f's_sub_u32 s{S_TO}, s{S_TO}, 1')
    A(f's_cbranch_scc0 {label}')
    A('s_branch L_timeout')

def setsrd(A, lo, size):
    A(f's_mov_b32 s{S_T}, s{lo}')
    A(f's_and_b32 s{S_T+1}, s{lo+1}, 0xffff')
    A(f's_mov_b32 s{S_T+2}, {size}')
    A(f's_mov_b32 s{S_T+3}, 0x20000')

def dbl(A, v, tmp, add=0):
    A(f'v_lshrrev_b32 v{tmp}, 13, v{v}')
    A(f'v_lshlrev_b32 v{tmp}, 14, v{tmp}')
    A(f'v_and_b32 v{v}, 8191, v{v}')
    A(f'v_add_u32 v{v}, v{v}, v{tmp}')
    if add: A(f'v_add_u32 v{v}, {add}, v{v}')

def vox_reads(A, slot):
    for kt in range(2):
        for s4 in range(4):
            A(f'ds_read_b128 {vr(V_KX+16*kt+4*s4,4)}, v{V_LKV} offset:{L_KV + slot*16384 + 8192 + 2048*s4 + 256*kt}')
def vox_compute(A, hook=None):
    A('s_waitcnt lgkmcnt(0)')
    if hook: hook()
    if 'skipvox' in OPT: return
    for tt in range(3):
        acc = V_F if tt % 2 == 0 else V_ACC
        for s4 in range(4):
            for kt in range(2):
                c = '0' if s4 == 0 else vr(acc+4*kt,4)
                mfma(A, vr(acc+4*kt,4), vr(V_KX+16*kt+4*s4,4), ar(A_O+16*tt+4*s4,4), c)
            if tt >= 1 and s4 in (1, 2):
                pacc = V_F if (tt-1) % 2 == 0 else V_ACC
                kt = s4-1
                A(f'v_cvt_pk_bf16_f32 v{V_VOX+4*(tt-1)+2*kt}, v{pacc+4*kt}, v{pacc+4*kt+1}')
                A(f'v_cvt_pk_bf16_f32 v{V_VOX+4*(tt-1)+2*kt+1}, v{pacc+4*kt+2}, v{pacc+4*kt+3}')
    A('s_nop 7')
    for kt in range(2):
        A(f'v_cvt_pk_bf16_f32 v{V_VOX+8+2*kt}, v{V_F+4*kt}, v{V_F+4*kt+1}')
        A(f'v_cvt_pk_bf16_f32 v{V_VOX+8+2*kt+1}, v{V_F+4*kt+2}, v{V_F+4*kt+3}')

def vox_tiles(A, tiles, wait=True):
    if wait: A('s_waitcnt lgkmcnt(0)')
    if 'skipvox' in OPT or not tiles: return
    accs = [V_F, V_ACC]
    for n, tt in enumerate(tiles):
        acc = accs[n % 2]
        for s4 in range(4):
            for kt in range(2):
                c = '0' if s4 == 0 else vr(acc+4*kt,4)
                mfma(A, vr(acc+4*kt,4), vr(V_KX+16*kt+4*s4,4), ar(A_O+16*tt+4*s4,4), c)
            if n >= 1 and s4 in (1, 2):
                pt = tiles[n-1]; pacc = accs[(n-1) % 2]; kt = s4-1
                A(f'v_cvt_pk_bf16_f32 v{V_VOX+4*pt+2*kt}, v{pacc+4*kt}, v{pacc+4*kt+1}')
                A(f'v_cvt_pk_bf16_f32 v{V_VOX+4*pt+2*kt+1}, v{pacc+4*kt+2}, v{pacc+4*kt+3}')
    A('s_nop 6')
    pt = tiles[-1]; pacc = accs[(len(tiles)-1) % 2]
    for kt in range(2):
        A(f'v_cvt_pk_bf16_f32 v{V_VOX+4*pt+2*kt}, v{pacc+4*kt}, v{pacc+4*kt+1}')
        A(f'v_cvt_pk_bf16_f32 v{V_VOX+4*pt+2*kt+1}, v{pacc+4*kt+2}, v{pacc+4*kt+3}')

def gen_prologue(A, P):
    A(f's_lshr_b32 s{S_t0}, s{S_J}, 2')
    A(f's_lshl_b32 s{S_H}, s{S_X}, 3')
    A(f's_add_u32 s{S_H}, s{S_H}, s{S_t0}')
    A(f's_and_b32 s{S_C}, s{S_J}, 3')
    A(f's_mov_b32 s{S_TO}, 0x100000')
    A(f's_mov_b32 s{S_SCL}, {hex(f2u(SCALE_LOG2E))}')
    A(f's_mov_b32 s{S_SCL+1}, {hex(f2u(SCALE_LOG2E))}')
    L, I, G = V_T, V_T+1, V_T+2
    T0, T1, T2 = V_T+3, V_T+4, V_T+5
    I7 = V_T+6; T3 = V_T+7
    A(f'v_and_b32 v{L}, 63, v0')
    A(f'v_and_b32 v{I}, 15, v0')
    A(f'v_bfe_u32 v{G}, v0, 4, 2')
    A(f'v_and_b32 v{I7}, 7, v{I}')
    A.c('weights DMA')
    A(f's_load_dwordx4 s[4:7], s[0:1], 16')
    A(f's_waitcnt lgkmcnt(0)')
    A(f'v_lshrrev_b32 v{T0}, 2, v{L}')
    A(f'v_lshlrev_b32 v{T0}, 13, v{T0}')
    A(f'v_and_b32 v{T1}, 3, v{L}')
    A(f'v_lshlrev_b32 v{T1}, 4, v{T1}')
    A(f'v_add_u32 v{T0}, v{T0}, v{T1}')
    A(f's_lshl_b32 s{S_t0}, s{S_H}, 8')
    A(f's_lshl_b32 s{S_t1}, s{S_C}, 6')
    A(f's_add_u32 s{S_t0}, s{S_t0}, s{S_t1}')
    A(f'v_add_u32 v{T0}, s{S_t0}, v{T0}')
    def dma_w(area):
        A(f's_lshl_b32 s{S_t0}, s{S_W}, 17')
        A(f's_lshl_b32 s{S_t1}, s{S_W}, 10')
        A(f's_add_u32 s{S_t1}, s{S_t1}, {area}')
        for i in range(10):
            A(f's_mov_b32 m0, s{S_t1}')
            A(f's_add_u32 s{S_t1}, s{S_t1}, 4096')
            A(f'buffer_load_dwordx4 v{T0}, s[{S_T}:{S_T+3}], s{S_t0} offen lds')
            A(f's_add_u32 s{S_t0}, s{S_t0}, {4*131072}')
    setsrd(A, 4, 5242880); dma_w(0)
    setsrd(A, 6, 5242880); dma_w(40960)
    A(f's_load_dwordx4 s[4:7], s[0:1], 32')
    A(f's_waitcnt lgkmcnt(0)')
    setsrd(A, 4, 5242880); dma_w(81920)
    setsrd(A, 6, 5242880)
    WO = V_B
    for b in range(5):
        A(f'v_add_u32 v{T1}, {64*b}, v{L}')
        A(f'v_mul_u32_u24 v{T2}, 3277, v{T1}')
        A(f'v_lshrrev_b32 v{T2}, 16, v{T2}')
        A(f'v_mul_u32_u24 v{WO+b}, 20, v{T2}')
        A(f'v_sub_u32 v{WO+b}, v{T1}, v{WO+b}')
        A(f'v_lshlrev_b32 v{WO+b}, 4, v{WO+b}')
        A(f'v_mul_u32_u24 v{T2}, 1280, v{T2}')
        A(f'v_add_u32 v{WO+b}, v{WO+b}, v{T2}')
    A(f's_mul_i32 s{S_t0}, s{S_H}, {128*1280}')
    A(f's_mul_i32 s{S_t1}, s{S_C}, 320')
    A(f's_add_u32 s{S_t0}, s{S_t0}, s{S_t1}')
    A(f's_mul_i32 s{S_t1}, s{S_W}, {16*1280}')
    A(f's_add_u32 s{S_t0}, s{S_t0}, s{S_t1}')
    A(f's_mul_i32 s{S_t1}, s{S_W}, 5120')
    A(f's_add_u32 s{S_t1}, s{S_t1}, 122880')
    for hi in range(2):
        for b in range(5):
            A(f's_add_u32 m0, s{S_t1}, {hi*4*5120 + b*1024}')
            A(f's_add_u32 s{S_t2}, s{S_t0}, {hi*4*16*1280}')
            A(f'buffer_load_dwordx4 v{WO+b}, s[{S_T}:{S_T+3}], s{S_t2} offen lds')
    A.c('address regs')
    VALID = f's[{S_VALID}:{S_VALID+1}]'
    VV_ = f's[{S_M0}:{S_M0+1}]'
    A(f'v_cmp_gt_u32 {VALID}, 8, v{I}')
    A(f'v_mov_b32 v{T2}, {BIG}')
    TO = V_B+8
    A(f's_lshr_b32 s{S_t1}, s{S_W}, 1')
    A(f's_lshl_b32 s{S_t0}, s{S_t1}, 11')
    A(f's_lshl_b32 s{S_t1}, s{S_C}, 9')
    A(f's_add_u32 s{S_t0}, s{S_t0}, s{S_t1}')
    A(f's_and_b32 s{S_t1}, s{S_W}, 1')
    A(f's_lshl_b32 s{S_t1}, s{S_t1}, 8')
    A(f's_add_u32 s{S_t0}, s{S_t0}, s{S_t1}')
    A(f'v_lshlrev_b32 v{TO}, 5, v{I7}')
    A(f'v_lshl_add_u32 v{TO}, v{G}, 3, v{TO}')
    A(f'v_add_u32 v{TO}, s{S_t0}, v{TO}')
    S_HB = S_D0
    A(f's_lshr_b32 s{S_t0}, s{S_H}, 1')
    A(f's_lshl_b32 s{S_t0}, s{S_t0}, 14')
    A(f's_and_b32 s{S_t1}, s{S_H}, 1')
    A(f's_lshl_b32 s{S_t1}, s{S_t1}, 12')
    A(f's_add_u32 s{S_HB}, s{S_t0}, s{S_t1}')
    A(f'v_add_u32 v{T0}, s{S_HB}, v{TO}')
    A(f'v_cndmask_b32 v{V_QKST}, v{T2}, v{T0}, {VALID}')
    A(f's_cmp_ge_u32 s{S_W}, 2')
    A(f's_cselect_b64 {VV_}, -1, 0')
    A(f's_xor_b64 {VV_}, {VV_}, {VALID}')
    A(f'v_add_u32 v{T0}, {V_RING_OFF}, v{T0}')
    A(f'v_cndmask_b32 v{V_VST}, v{T2}, v{T0}, {VV_}')
    A(f'v_lshlrev_b32 v{T0}, 4, v{L}')
    A(f'v_cmp_gt_u32 vcc, 32, v{L}')
    A(f's_lshl_b32 s{S_t0}, s{S_C}, 9')
    A(f's_lshl_b32 s{S_t1}, s{S_H}, 11')
    A(f's_add_u32 s{S_t1}, s{S_t1}, s{S_t0}')
    A(f'v_add_u32 v{T1}, s{S_t1}, v{T0}')
    A(f'v_cndmask_b32 v{V_KPUB}, v{T2}, v{T1}, vcc')
    A(f's_add_u32 s{S_t1}, s{S_HB}, s{S_t0}')
    A(f's_add_u32 s{S_t1}, s{S_t1}, 2048')
    A(f'v_add_u32 v{T1}, s{S_t1}, v{T0}')
    A(f'v_cndmask_b32 v{V_KPL}, v{T2}, v{T1}, vcc')
    A(f's_lshl_b32 s{S_t0}, s{S_C}, 10')
    A(f's_lshl_b32 s{S_t1}, s{S_H}, 12')
    A(f's_add_u32 s{S_t1}, s{S_t1}, s{S_t0}')
    A(f'v_add_u32 v{V_VPUB}, s{S_t1}, v{T0}')
    A(f's_add_u32 s{S_t1}, s{S_HB}, s{S_t0}')
    A(f's_add_u32 s{S_t1}, s{S_t1}, {V_RING_OFF}')
    A(f'v_add_u32 v{V_VPL}, s{S_t1}, v{T0}')
    A(f's_lshl_b32 s{S_t1}, s{S_W}, 10')
    A(f's_add_u32 s{S_t0}, s{S_HB}, s{S_t1}')
    A(f'v_add_u32 v{V_RLD}, s{S_t0}, v{T0}')
    A(f's_add_u32 s{S_t1}, s{S_t1}, {L_RAREA}')
    A(f'v_add_u32 v{V_LRW}, s{S_t1}, v{T0}')
    A(f'v_lshrrev_b32 v{T0}, 3, v{I}')
    A(f'v_lshlrev_b32 v{T0}, 11, v{T0}')
    A(f'v_lshrrev_b32 v{T1}, 1, v{G}')
    A(f'v_lshl_add_u32 v{T0}, v{T1}, 8, v{T0}')
    A(f'v_lshl_add_u32 v{T0}, v{I7}, 5, v{T0}')
    A(f'v_and_b32 v{T1}, 1, v{G}')
    A(f'v_lshl_add_u32 v{T0}, v{T1}, 4, v{T0}')
    A(f'v_add_u32 v{V_LRR}, {L_RAREA}, v{T0}')
    A(f's_add_u32 s{S_t0}, s{S_HB}, {V_RING_OFF}')
    A(f'v_add_u32 v{V_VLD}, s{S_t0}, v{T0}')
    A(f's_mul_i32 s{S_t0}, s{S_H}, 10240')
    A(f's_mul_i32 s{S_t1}, s{S_C}, 2560')
    A(f's_add_u32 s{S_t0}, s{S_t0}, s{S_t1}')
    A(f's_lshl_b32 s{S_t1}, s{S_W}, 9')
    A(f's_add_u32 s{S_t1}, s{S_t1}, s{S_t0}')
    A(f'v_lshlrev_b32 v{T0}, 6, v{I}')
    A(f'v_lshl_add_u32 v{T0}, v{G}, 4, v{T0}')
    A(f'v_add_u32 v{T0}, s{S_t1}, v{T0}')
    dbl(A, T0, T1)
    A(f'v_cndmask_b32 v{V_P4}, v{T2}, v{T0}, {VALID}')
    A(f's_lshl_b32 s{S_t1}, s{S_W}, 8')
    A(f's_add_u32 s{S_t1}, s{S_t1}, 2048')
    A(f's_add_u32 s{S_t1}, s{S_t1}, s{S_t0}')
    A(f'v_lshlrev_b32 v{T0}, 5, v{I}')
    A(f'v_lshl_add_u32 v{T0}, v{G}, 3, v{T0}')
    A(f'v_add_u32 v{T0}, s{S_t1}, v{T0}')
    dbl(A, T0, T1)
    A(f's_cmp_lt_u32 s{S_W}, 2')
    A(f's_cselect_b64 s[{S_t2}:{S_t3}], {VALID}, 0')
    A(f'v_cndmask_b32 v{V_P2}, v{T2}, v{T0}, s[{S_t2}:{S_t3}]')
    A(f's_lshl_b32 s{S_t0}, s{S_W}, 5')
    A(f's_add_u32 s{S_t0}, s{S_t0}, s{S_J}')
    A(f's_cmp_lt_u32 s{S_t0}, 80')
    A(f's_cselect_b32 s{S_HASITEM}, 1, 0')
    A(f's_cselect_b32 s{S_t0}, s{S_t0}, 0')
    A(f's_lshl_b32 s{S_t1}, s{S_t0}, 7')
    A(f's_cmp_eq_u32 s{S_HASITEM}, 1')
    A(f's_cselect_b64 {VV_}, -1, 0')
    for u, dst in enumerate((V_RS0, V_RS1)):
        A(f'v_add_u32 v{T0}, {4*u}, v{G}')
        A(f's_lshl_b32 s{S_t2}, s{S_X}, 3')
        A(f'v_add_u32 v{T0}, s{S_t2}, v{T0}')
        A(f'v_mul_u32_u24 v{T0}, 10240, v{T0}')
        A(f'v_lshl_add_u32 v{T0}, v{I}, 3, v{T0}')
        A(f'v_add_u32 v{T0}, s{S_t1}, v{T0}')
        dbl(A, T0, T1)
        A(f'v_cndmask_b32 v{dst}, v{T2}, v{T0}, {VV_}')
    A(f'v_cmp_eq_u32 vcc, 0, v{G}')
    A('s_nop 3')
    A(f's_and_b64 {VV_}, {VV_}, vcc')
    A(f's_mul_i32 s{S_t2}, s{S_X}, 10240')
    A(f's_add_u32 s{S_t2}, s{S_t2}, s{S_t1}')
    A(f'v_lshlrev_b32 v{T0}, 3, v{I}')
    A(f'v_add_u32 v{T0}, s{S_t2}, v{T0}')
    dbl(A, T0, T1)
    A(f'v_cndmask_b32 v{V_MS}, v{T2}, v{T0}, {VV_}')
    for k, dst in enumerate((V_XS, V_XL, V_XL+1, V_XL+2)):
        A(f's_add_u32 s{S_t2}, s{S_X}, {k}')
        A(f's_and_b32 s{S_t2}, s{S_t2}, 3')
        A(f's_mul_i32 s{S_t2}, s{S_t2}, 20480')
        A(f's_lshl_b32 s{S_t3}, s{S_t1}, 1')
        A(f's_add_u32 s{S_t2}, s{S_t2}, s{S_t3}')
        A(f'v_lshlrev_b32 v{T0}, 4, v{I}')
        A(f'v_add_u32 v{T0}, s{S_t2}, v{T0}')
        dbl(A, T0, T1)
        A(f'v_cndmask_b32 v{dst}, v{T2}, v{T0}, {VV_}')
    Q, LN, PT, ROW, COL = V_B+8, V_B+9, V_B+10, V_B+11, V_B+12
    M_, R2, C2 = V_B+13, V_B+14, V_B+15
    NAG = 4 if 'ag3' in OPT else 3
    for k in range(NAG):
        if 'ag3' in OPT:
            A(f's_mul_i32 s{S_t0}, s{S_W}, 214')
            A(f's_add_u32 s{S_t1}, s{S_t0}, 213')
            A(f's_min_u32 s{S_t1}, s{S_t1}, 639')
            A(f's_add_u32 s{S_t0}, s{S_t0}, {64*k}')
            A(f'v_add_u32 v{Q}, s{S_t0}, v{L}')
            A(f'v_min_u32 v{Q}, s{S_t1}, v{Q}')
        else:
            A(f's_mul_i32 s{S_t0}, s{S_W}, 160')
            A(f's_add_u32 s{S_t0}, s{S_t0}, {64*k}')
            A(f'v_add_u32 v{Q}, s{S_t0}, v{L}')
            if k == 2:
                A(f'v_cmp_le_u32 vcc, 32, v{L}')
                A(f'v_subrev_u32 v{T1}, 32, v{Q}')
                A('s_nop 0')
                A(f'v_cndmask_b32 v{Q}, v{Q}, v{T1}, vcc')
        A(f's_mul_i32 s{S_t0}, s{S_X}, 10240')
        A(f'v_lshlrev_b32 v{V_M0+k}, 4, v{Q}')
        A(f'v_add_u32 v{V_M0+k}, s{S_t0}, v{V_M0+k}')
        dbl(A, V_M0+k, T1)
        A(f'v_lshrrev_b32 v{LN}, 3, v{Q}')
        A(f'v_and_b32 v{PT}, 7, v{Q}')
        A(f'v_mul_u32_u24 v{T0}, 3277, v{LN}')
        A(f'v_lshrrev_b32 v{T0}, 16, v{T0}')
        A(f'v_mul_u32_u24 v{T1}, 20, v{T0}')
        A(f'v_sub_u32 v{LN}, v{LN}, v{T1}')
        A(f'v_mul_u32_u24 v{COL}, 160, v{T0}')
        A(f'v_and_b32 v{T0}, 3, v{LN}')
        A(f'v_lshlrev_b32 v{T0}, 1, v{T0}')
        A(f'v_lshrrev_b32 v{T1}, 2, v{PT}')
        A(f'v_add_u32 v{ROW}, v{T0}, v{T1}')
        A(f'v_lshrrev_b32 v{T0}, 2, v{LN}')
        A(f'v_lshlrev_b32 v{T0}, 5, v{T0}')
        A(f'v_and_b32 v{T1}, 3, v{PT}')
        A(f'v_lshl_add_u32 v{T0}, v{T1}, 3, v{T0}')
        A(f'v_subrev_u32 v{M_}, 16, v{LN}')
        A(f'v_and_b32 v{R2}, 1, v{M_}')
        A(f'v_lshlrev_b32 v{R2}, 2, v{R2}')
        A(f'v_lshrrev_b32 v{T1}, 1, v{PT}')
        A(f'v_add_u32 v{R2}, v{R2}, v{T1}')
        A(f'v_lshrrev_b32 v{C2}, 1, v{M_}')
        A(f'v_lshlrev_b32 v{C2}, 4, v{C2}')
        A(f'v_and_b32 v{T1}, 1, v{PT}')
        A(f'v_lshl_add_u32 v{C2}, v{T1}, 3, v{C2}')
        A(f'v_add_u32 v{C2}, 128, v{C2}')
        A(f'v_cmp_le_u32 vcc, 16, v{LN}')
        A('s_nop 1')
        A(f'v_cndmask_b32 v{ROW}, v{ROW}, v{R2}, vcc')
        A(f'v_cndmask_b32 v{T0}, v{T0}, v{C2}, vcc')
        A(f'v_add_u32 v{COL}, v{COL}, v{T0}')
        A(f'v_lshlrev_b32 v{T0}, 1, v{COL}')
        A(f'v_add_u32 v{T1}, {HOFF-640}, v{T0}')
        A(f'v_cmp_le_u32 vcc, 320, v{COL}')
        A(f'v_mul_u32_u24 v{ROW}, {MEMSTRIDE}, v{ROW}')
        A('s_nop 0')
        A(f'v_cndmask_b32 v{T0}, v{T0}, v{T1}, vcc')
        A(f'v_add_u32 v{V_LM0+k}, v{ROW}, v{T0}')
        A(f'v_add_u32 v{V_LM0+k}, {L_MEM}, v{V_LM0+k}')
    A(f'v_mul_u32_u24 v{T0}, {MEMSTRIDE}, v{I7}')
    A(f'v_lshrrev_b32 v{T1}, 3, v{I}')
    A(f'v_mul_u32_u24 v{T1}, {HOFF}, v{T1}')
    A(f'v_add_u32 v{T0}, v{T0}, v{T1}')
    A(f'v_lshl_add_u32 v{V_LB}, v{G}, 4, v{T0}')
    A(f'v_add_u32 v{V_LB}, {L_MEM}, v{V_LB}')
    A(f'v_lshrrev_b32 v{T0}, 1, v{G}')
    A(f'v_lshlrev_b32 v{T0}, 10, v{T0}')
    A(f'v_and_b32 v{T1}, 1, v{G}')
    A(f'v_lshl_add_u32 v{T0}, v{T1}, 9, v{T0}')
    A(f'v_lshl_add_u32 v{V_LKV}, v{I}, 4, v{T0}')
    A(f'v_lshlrev_b32 v{V_DM3A}, 4, v{L}')
    A(f'v_lshlrev_b32 v{T0}, 12, v{L}')
    A(f's_lshl_b32 s{S_t0}, s{S_H}, 7')
    A(f'v_add_u32 v{T0}, s{S_t0}, v{T0}')
    A(f'v_cmp_gt_u32 vcc, 2, v{L}')
    A(f'v_mov_b32 v{T1}, {BIG}')
    A('s_nop 0')
    A(f'v_cndmask_b32 v{V_PRG}, v{T1}, v{T0}, vcc')
    A(f's_lshl_b32 s{S_t0}, s{S_H}, 2')
    A(f's_add_u32 s{S_t0}, s{S_t0}, s{S_C}')
    A(f's_lshl_b32 s{S_t0}, s{S_t0}, 7')
    A(f'v_mov_b32 v{T0}, s{S_t0}')
    A(f'v_cmp_eq_u32 vcc, 192, v0')
    A('s_nop 1')
    A(f'v_cndmask_b32 v{V_CPF}, v{T1}, v{T0}, vcc')
    for k in range(4): A(f'v_mov_b32 v{V_NEG+k}, -1')
    A(f'v_mov_b32 v{V_SEL}, 0')
    A(f'v_mov_b32 v{V_SEL+1}, 0')
    for m, (reg, val) in enumerate(((0, 0x3F80), (0, 0x3F800000), (1, 0x3F80), (1, 0x3F800000))):
        A(f'v_cmp_eq_u32 vcc, {m}, v{I}')
        A(f'v_mov_b32 v{T0}, {hex(val)}')
        A('s_nop 0')
        A(f'v_cndmask_b32 v{V_SEL+reg}, v{V_SEL+reg}, v{T0}, vcc')
    A(f'v_mov_b32 v{V_SEL+2}, v{V_SEL}')
    A(f'v_mov_b32 v{V_SEL+3}, v{V_SEL+1}')
    for tt in range(3):
        A(f'v_mov_b32 v{V_VOM+4*tt+2}, 0')
        A(f'v_mov_b32 v{V_VOM+4*tt+3}, 0')
    A(f'v_mov_b32 v{V_PM+2}, 0')
    A(f'v_mov_b32 v{V_PM+3}, 0')
    A.c('initial poison (both parities)')
    A(f'v_mov_b32 v{V_CPV}, 0')
    A(f's_mov_b32 s{S_t0}, {C_CPROG}')
    A(f'buffer_store_dword v{V_CPV}, v{V_CPF}, {WSR}, s{S_t0} offen sc1')
    for sl in range(4):
        A(f's_mov_b32 s{S_t0}, {QV_SLOT(sl)[0]}')
        A(f'buffer_store_dwordx2 {vr(V_NEG,2)}, v{V_QKST}, {WSR}, s{S_t0} offen')
        A(f'buffer_store_dwordx2 {vr(V_NEG,2)}, v{V_VST}, {WSR}, s{S_t0} offen')
        A(f's_mov_b32 s{S_t0}, {P_SLOT(sl)[0]}')
        A(f'buffer_store_dwordx4 {vr(V_NEG,4)}, v{V_P4}, {WSR}, s{S_t0} offen')
        A(f'buffer_store_dwordx2 {vr(V_NEG,2)}, v{V_P2}, {WSR}, s{S_t0} offen')
        A(f's_mov_b32 s{S_t0}, {M_SLOT(sl)[0]}')
        A(f'buffer_store_dwordx2 {vr(V_NEG,2)}, v{V_MS}, {WSR}, s{S_t0} offen')
        for par in range(2):
            A(f's_mov_b32 s{S_t0}, {X_SLOT(sl)[0] + par*8192}')
            A(f'buffer_store_dwordx4 {vr(V_NEG,4)}, v{V_XS}, {WSR}, s{S_t0} offen sc1')
        if sl == 2: A('s_waitcnt vmcnt(30)')
    A('s_waitcnt vmcnt(0)')
    A('s_barrier')
    A(f's_cmp_lg_u32 s{S_W}, 0')
    A('s_cbranch_scc1 L_c_arrived')
    A(f'v_mov_b32 v{T0}, 32')
    A(f'v_mov_b32 v{T1}, 1')
    A('s_mov_b64 exec, 1')
    A(f'global_atomic_add v{T0}, v{T1}, s[{S_DBG}:{S_DBG+1}]')
    A('s_mov_b64 exec, -1')
    A('L_c_arrived:')
    A.c('weights tr-read')
    R_, CQ = V_T+6, V_T+7
    A(f'v_bfe_u32 v{R_}, v{L}, 2, 2')
    A(f'v_and_b32 v{CQ}, 3, v{L}')
    A(f'v_lshl_add_u32 v{T0}, v{G}, 3, v{R_}')
    A(f'v_lshlrev_b32 v{T0}, 6, v{T0}')
    A(f'v_lshl_add_u32 v{T0}, v{CQ}, 3, v{T0}')
    A(f's_and_b32 s{S_t0}, s{S_W}, 1')
    A(f's_lshl_b32 s{S_t0}, s{S_t0}, 5')
    A(f'v_add_u32 v{T0}, s{S_t0}, v{T0}')
    A(f's_lshr_b32 s{S_t1}, s{S_W}, 1')
    A(f's_mul_i32 s{S_t2}, s{S_t1}, 40960')
    A(f'v_add_u32 v{T1}, s{S_t2}, v{T0}')
    for t in range(20):
        for hf in range(2):
            A(f'ds_read_b64_tr_b16 {ar(A_QK+4*t+2*hf,2)}, v{T1} offset:{t*2048+hf*256}')
        if t % 4 == 3: A('s_waitcnt lgkmcnt(0)')
    A(f's_mul_i32 s{S_t3}, s{S_t1}, {10*2048}')
    A(f's_add_u32 s{S_t3}, s{S_t3}, 81920')
    A(f'v_add_u32 v{T1}, s{S_t3}, v{T0}')
    for t in range(10):
        for hf in range(2):
            A(f'ds_read_b64_tr_b16 {ar(A_V+4*t+2*hf,2)}, v{T1} offset:{t*2048+hf*256}')
        if t % 4 == 3: A('s_waitcnt lgkmcnt(0)')
    A('s_waitcnt lgkmcnt(0)')
    A(f'v_lshl_add_u32 v{T0}, v{G}, 3, v{R_}')
    A(f'v_mul_u32_u24 v{T0}, 320, v{T0}')
    A(f'v_add_u32 v{T0}, 122880, v{T0}')
    A(f's_lshl_b32 s{S_t0}, s{S_W}, 6')
    A(f'v_lshl_add_u32 v{T1}, v{CQ}, 4, v{T0}')
    A(f'v_add_u32 v{T1}, s{S_t0}, v{T1}')
    A(f's_and_b32 s{S_t0}, s{S_W}, 1')
    A(f's_lshl_b32 s{S_t0}, s{S_t0}, 5')
    A(f's_add_u32 s{S_t0}, s{S_t0}, 256')
    A(f'v_lshl_add_u32 v{T2}, v{CQ}, 3, v{T0}')
    A(f'v_add_u32 v{T2}, s{S_t0}, v{T2}')
    for tt in range(3):
        for s4 in range(4):
            for hf in range(2):
                if tt < 2:
                    A(f'ds_read_b64_tr_b16 {ar(A_O+16*tt+4*s4+2*hf,2)}, v{T1} offset:{(32*s4+4*hf)*320 + 8*tt}')
                else:
                    A(f'ds_read_b64_tr_b16 {ar(A_O+16*tt+4*s4+2*hf,2)}, v{T2} offset:{(32*s4+4*hf)*320}')
        A('s_waitcnt lgkmcnt(0)')
    A('s_barrier')
    A.c('prologue kv + mem0')
    A(f's_mov_b32 s{S_STEP}, 0')
    A(f's_load_dwordx2 s[4:5], s[0:1], 8')
    A('s_waitcnt lgkmcnt(0)')
    setsrd(A, 4, 10240)
    for k in range(3):
        A(f'v_add_u32 v{T0}, {64*k}, v{L}')
        if k == 2:
            A(f'v_cmp_le_u32 vcc, 160, v{T0}')
            A(f'v_subrev_u32 v{T1}, 32, v{T0}')
            A('s_nop 0')
            A(f'v_cndmask_b32 v{T0}, v{T0}, v{T1}, vcc')
        A(f'v_cmp_le_u32 vcc, 80, v{T0}')
        A(f'v_subrev_u32 v{T1}, 80, v{T0}')
        A('s_nop 0')
        A(f'v_cndmask_b32 v{T0}, v{T0}, v{T1}, vcc')
        A(f'v_cndmask_b32 v{T1}, 0, 1, vcc')
        A(f's_lshl_b32 s{S_t0}, s{S_W}, 1')
        A(f'v_add_u32 v{T1}, s{S_t0}, v{T1}')
        A(f'v_lshlrev_b32 v{T0}, 4, v{T0}')
        A(f'v_mul_u32_u24 v{T2}, 1280, v{T1}')
        A(f'v_add_u32 v{T2}, v{T2}, v{T0}')
        A(f'buffer_load_dwordx4 {vr(V_B+4*k,4)}, v{T2}, s[{S_T}:{S_T+3}], 0 offen')
        A(f'v_add_u32 v{V_B+16}, {HOFF-640}, v{T0}')
        A(f'v_cmp_le_u32 vcc, 640, v{T0}')
        A(f'v_mul_u32_u24 v{T1}, {MEMSTRIDE}, v{T1}')
        A('s_nop 0')
        A(f'v_cndmask_b32 v{T0}, v{T0}, v{V_B+16}, vcc')
        A(f'v_add_u32 v{V_B+20+k}, v{T1}, v{T0}')
        A(f'v_add_u32 v{V_B+20+k}, {L_MEM}, v{V_B+20+k}')
    A('s_waitcnt vmcnt(0)')
    for k in range(3):
        A(f'ds_write_b128 v{V_B+20+k}, {vr(V_B+4*k,4)}')
    A('s_waitcnt lgkmcnt(0)')
    A('L_c_census:')
    A(f'v_mov_b32 v{T0}, 32')
    A(f'global_load_dword v{T1}, v{T0}, s[{S_DBG}:{S_DBG+1}] sc1')
    A('s_waitcnt vmcnt(0)')
    A(f'v_readfirstlane_b32 s{S_t0}, v{T1}')
    A(f's_cmp_ge_u32 s{S_t0}, 256')
    A('s_cbranch_scc1 L_c_census_done')
    retry(A, 'L_c_census')
    A('L_c_census_done:')
    A(f'v_mov_b32 v{T0}, 64')
    A(f'global_load_dword v{V_B}, v{T0}, s[{S_DBG}:{S_DBG+1}] sc1')
    A('s_waitcnt vmcnt(0)')
    A(f'v_readfirstlane_b32 s{S_PAR}, v{V_B}')
    A(f's_and_b32 s{S_PAR}, s{S_PAR}, 1')
    if 'xfar' in OPT: A(f's_xor_b32 s{S_PAR}, s{S_PAR}, 1')
    A(f's_lshl_b32 s{S_PAR}, s{S_PAR}, 13')
    for nm, base, fn in (('Q', S_QV, QV_SLOT), ('P', S_PR, P_SLOT), ('M', S_MR, M_SLOT), ('X', S_XR, X_SLOT)):
        for k in range(4):
            addr, pg = fn(k)
            if nm == 'X': A(f's_add_u32 s{base+k}, s{S_PAR}, {addr}')
            else: A(f's_mov_b32 s{base+k}, {addr}')
    if 'noflag' not in OPT:
        A(f's_mov_b32 s{S_t0}, {C_PROG1}')
        A('L_c_w01:')
        A(f'buffer_load_dword v{T1}, v{V_PRG}, {WSR}, s{S_t0} offen sc1')
        A('s_waitcnt vmcnt(0)')
        A(f'v_cmp_gt_u32 vcc, 2, v{T1}')
        A('s_nop 3')
        A('s_and_b64 vcc, vcc, 3')
        A('s_cbranch_vccz L_c_w01_ok')
        A('s_sleep 2')
        retry(A, 'L_c_w01')
        A('L_c_w01_ok:')
    A(f's_lshl_b32 s{S_t3}, s{S_H}, 13')
    A(f's_lshl_b32 s{S_t1}, s{S_W}, 11')
    for seg in range(2):
        for mat in range(2):
            for k in range(2):
                A(f's_add_u32 m0, s{S_t1}, {L_KV + seg*16384 + mat*8192 + k*1024}')
                A(f's_add_u32 s{S_t2}, s{S_t1}, s{S_t3}')
                A(f's_add_u32 s{S_t2}, s{S_t2}, {(WS_KX, WS_VX)[mat] + seg*32*8192 + k*1024}')
                A(f'buffer_load_dwordx4 v{V_DM3A}, {WSR}, s{S_t2} offen sc1 lds')
    A('s_waitcnt vmcnt(0)')
    A('s_barrier')
    vox_reads(A, 0)
    vox_compute(A)
    A(f's_mov_b32 s{S_CPO}, {C_CPROG}')
    A(f's_mov_b32 s{S_KM}, {WS_KM}')
    A(f's_mov_b32 s{S_VM}, {WS_VM}')
    A(f's_lshl_b32 s{S_SEG2}, s{S_H}, 13')
    A(f's_add_u32 s{S_SEG2}, s{S_SEG2}, {2*32*8192}')

def ablate(A, start, kinds):
    keep = []
    for l in A.lines[start:]:
        t = l.strip()
        if any(t.startswith(k) for k in kinds): continue
        keep.append(l)
    A.lines[start:] = keep

def gen_step(A, P, u):
    cur, n1, p2, n3 = u, (u+1) & 3, (u+2) & 3, (u+3) & 3
    QC, QP = S_QV+cur, S_QV+p2
    PC, PP = S_PR+cur, S_PR+p2
    MC, MW, MP = S_MR+cur, S_MR+n1, S_MR+n3
    XC, XPn = S_XR+cur, S_XR+p2
    sf = f'_{u}'
    def pipe_poll(name, nsets, nloads, issue, regs, pre, ok, gap):
        lab = f'L_c_{name}{sf}'
        for k in range(nsets):
            issue(k)
            if k < nsets-1: nops(A, gap)
        A(f'{lab}_loop:')
        for k in range(nsets):
            A(f's_waitcnt vmcnt({nloads*(nsets-1)})')
            pre(k)
            check(A, regs(k))
            A(f's_cbranch_vccz {lab}_ok{k}')
            issue(k)
        retry(A, f'{lab}_loop', name)
        for k in reversed(range(nsets)):
            A(f'{lab}_ok{k}:')
            ok(k)
            if k > 0: A(f's_branch {lab}_done')
        A(f'{lab}_done:')
    A(f'L_c_loop{sf}:')
    P.stamp(A, 11, True)
    nops(A, optval('adelay', 0))
    NAG = 4 if 'ag3' in OPT else 3
    ASET = [V_VV, V_R, V_XD]
    def a_issue(k):
        for q in range(NAG):
            A(f'buffer_load_dwordx4 {vr(ASET[k]+4*q,4)}, v{V_M0+q}, {WSR}, s{MC} offen sc1')
    def a_pre(k):
        for q in range(NAG):
            A(f'ds_write_b128 v{V_LM0+q}, {vr(ASET[k]+4*q,4)}')
    if 'ag3' in OPT:
        A(f's_cmp_eq_u32 s{S_W}, 3')
        A(f's_cbranch_scc1 L_c_A{sf}_done')
    pipe_poll('A', optval('nA', 1), NAG, a_issue, lambda k: range(ASET[k], ASET[k]+4*NAG), a_pre, lambda k: None, optval('gapA', 40))
    P.stamp(A, 8, True)
    A('s_waitcnt lgkmcnt(0)')
    A('s_barrier')
    P.stamp(A, 0)
    if u == 0: A('L_c_afterA0:')
    A.c('[A1] qk mfma')
    mark = len(A.lines)
    for t in range(10):
        A(f'ds_read_b128 {vr(V_B+4*t,4)}, v{V_LB} offset:{64*t}')
    for t in range(10):
        A(f's_waitcnt lgkmcnt({9-t})')
        mfma(A, vr(V_ACC,4), ar(A_QK+4*t,4), vr(V_B+4*t,4), '0' if t == 0 else vr(V_ACC,4))
        mfma(A, vr(V_ACC+4,4), ar(A_QK+4*(t+10),4), vr(V_B+4*t,4), '0' if t == 0 else vr(V_ACC+4,4))
    NV0 = 0 if 'qkfast' in OPT else 2
    for t in range(NV0):
        mfma(A, vr(V_ACV,4), ar(A_V+4*t,4), vr(V_B+4*t,4), '0' if t == 0 else vr(V_ACV,4))
    A(f's_nop {7-NV0}')
    for r in range(4):
        A(f'v_add_f32_dpp v{V_ACC+r}, v{V_ACC+4+r}, v{V_ACC+r} row_ror:8 row_mask:0xf bank_mask:0xf')
    A(f'v_cvt_pk_bf16_f32 v{V_O}, v{V_ACC}, v{V_ACC+1}')
    A(f'v_cvt_pk_bf16_f32 v{V_O+1}, v{V_ACC+2}, v{V_ACC+3}')
    A(f'buffer_store_dwordx2 {vr(V_O,2)}, v{V_QKST}, {WSR}, s{QC} offen')
    P.stamp(A, 1)
    for t in range(NV0, 10):
        mfma(A, vr(V_ACV,4), ar(A_V+4*t,4), vr(V_B+4*t,4), '0' if t == 0 else vr(V_ACV,4))
    def kx_reads():
        for kt in range(2):
            for s4 in range(4):
                A(f'ds_read_b128 {vr(V_KX+16*kt+4*s4,4)}, v{V_LKV} offset:{L_KV + cur*16384 + 2048*s4 + 256*kt}')
    RE = [V_B+12, V_B+28]
    if 'rearly' in OPT:
        nops(A, optval('re0', 0))
        A(f'buffer_load_dwordx4 {vr(RE[0],4)}, v{V_RLD}, {WSR}, s{QC} offen sc1')
        kx_reads()
    else:
        kx_reads()
    A(f'v_cvt_pk_bf16_f32 v{V_O+2}, v{V_ACV}, v{V_ACV+1}')
    A(f'v_cvt_pk_bf16_f32 v{V_O+3}, v{V_ACV+2}, v{V_ACV+3}')
    if 'rearly' in OPT:
        A(f'buffer_load_dwordx4 {vr(RE[1],4)}, v{V_RLD}, {WSR}, s{QC} offen sc1')
    A(f'buffer_store_dwordx2 {vr(V_O+2,2)}, v{V_VST}, {WSR}, s{QC} offen')
    if 'rearly' in OPT:
        for k, cnt in ((0, 2), (1, 1)):
            A(f's_waitcnt vmcnt({cnt})')
            A(f'ds_write_b128 v{V_LRW}, {vr(RE[k],4)}')
            check(A, range(RE[k], RE[k]+4))
            A(f's_cbranch_vccz L_c_R{sf}_done')
    if 'skipA1' in OPT: ablate(A, mark, ['v_mfma', 'v_add_f32_dpp'])
    P.stamp(A, 2)
    A.c('[B0] R piece -> LDS')
    nops(A, optval('rdelay', 0))
    if 'skipR' in OPT: A(f's_branch L_c_R{sf}_done')
    RSET = [V_B, V_B+4, V_B+8]
    pipe_poll('R', optval('nR', 1), 1,
              lambda k: A(f'buffer_load_dwordx4 {vr(RSET[k],4)}, v{V_RLD}, {WSR}, s{QC} offen sc1'),
              lambda k: range(RSET[k], RSET[k]+4),
              lambda k: A(f'ds_write_b128 v{V_LRW}, {vr(RSET[k],4)}'),
              lambda k: None, optval('gapR', 20))
    if 'skipV' not in OPT:
        for s4 in range(4):
            A(f'buffer_load_dwordx4 {vr(V_VV+4*s4,4)}, v{V_VLD}, {WSR}, s{QC} offen offset:{512*s4} sc1')
    A('s_waitcnt lgkmcnt(0)')
    A('s_barrier')
    P.stamp(A, 3)
    for s4 in range(4):
        A(f'ds_read_b128 {vr(V_R+4*s4,4)}, v{V_LRR} offset:{512*s4}')
    A(f'v_mov_b32 v{V_CPV}, s{S_STEP}')
    A(f'buffer_store_dword v{V_CPV}, v{V_CPF}, {WSR}, s{S_CPO} offen sc1')
    A(f'buffer_store_dwordx2 {vr(V_NEG,2)}, v{V_QKST}, {WSR}, s{QP} offen')
    A(f'buffer_store_dwordx2 {vr(V_NEG,2)}, v{V_VST}, {WSR}, s{QP} offen')
    A(f'buffer_store_dwordx4 {vr(V_NEG,4)}, v{V_P4}, {WSR}, s{PP} offen')
    A(f'buffer_store_dwordx2 {vr(V_NEG,2)}, v{V_P2}, {WSR}, s{PP} offen')
    A(f'buffer_store_dwordx2 {vr(V_NEG,2)}, v{V_MS}, {WSR}, s{MP} offen')
    NLATE = 6
    if 'xplate' in OPT:
        A(f'buffer_store_dwordx4 {vr(V_NEG,4)}, v{V_XS}, {WSR}, s{XPn} offen sc1')
        NLATE += 1
    A.c('[B1] scores')
    mark = len(A.lines)
    for s4 in range(4):
        c0 = '0' if s4 == 0 else None
        A(f's_waitcnt lgkmcnt({3-s4})')
        mfma(A, vr(V_S+8,4), vr(V_R+4*s4,4), vr(V_R+4*s4,4), c0 or vr(V_S+8,4))
        mfma(A, vr(V_S,4), vr(V_KX+4*s4,4), vr(V_R+4*s4,4), c0 or vr(V_S,4))
        mfma(A, vr(V_S+4,4), vr(V_KX+16+4*s4,4), vr(V_R+4*s4,4), c0 or vr(V_S+4,4))
    if 'skipB' in OPT: ablate(A, mark, ['v_mfma'])
    A(f's_waitcnt vmcnt({NLATE})')
    A.c('[B2] V check')
    if 'skipV' in OPT: A(f's_branch L_c_okV{sf}')
    check(A, range(V_VV, V_VV+16))
    A(f's_cbranch_vccz L_c_okV{sf}')
    A(f'L_c_pollV{sf}:')
    for s4 in range(4):
        A(f'buffer_load_dwordx4 {vr(V_VV+4*s4,4)}, v{V_VLD}, {WSR}, s{QC} offen offset:{512*s4} sc1')
    A('s_waitcnt vmcnt(0)')
    check(A, range(V_VV, V_VV+16))
    A(f's_cbranch_vccz L_c_okV{sf}')
    retry(A, f'L_c_pollV{sf}', 'V')
    A(f'L_c_okV{sf}:')
    P.stamp(A, 10, True)
    if u == 3:
        A(f's_cmp_eq_u32 s{S_STEP}, {NSEG-1}')
        A('s_cbranch_scc1 L_c_final')
    A.c('[B4] softmax (VOm mfma interleaved)')
    mark = len(A.lines)
    SM = V_S+8; MX = V_T+4
    vom = [(s4, tt) for s4 in range(4) for tt in range(3)]
    def vom_next():
        if not vom: return
        s4, tt = vom.pop(0)
        mfma(A, vr(V_F+4*tt,4), vr(V_VV+4*s4,4), ar(A_O+16*tt+4*s4,4), '0' if s4 == 0 else vr(V_F+4*tt,4))
    for r in range(4): A(f'v_mov_b32 v{V_T+r}, v{SM+r}')
    A(f'v_max3_f32 v{MX}, v{V_S}, v{V_S+1}, v{V_S+2}')
    A(f'v_max3_f32 v{MX+1}, v{V_S+3}, v{V_S+4}, v{V_S+5}')
    for r in range(4): A(f'v_permlane32_swap_b32 v{V_T+r}, v{SM+r}')
    vom_next()
    A(f'v_max3_f32 v{MX}, v{MX}, v{V_S+6}, v{V_S+7}')
    A(f'v_max3_f32 v{MX+1}, v{MX+1}, v{SM}, v{SM+1}')
    A(f'v_max3_f32 v{MX}, v{MX}, v{SM+2}, v{SM+3}')
    A(f'v_max_f32 v{MX}, v{MX}, v{MX+1}')
    def allreduce(op, reg, tmp, fill=False):
        for perm in ('v_permlane16_swap_b32', 'v_permlane32_swap_b32'):
            A(f'v_mov_b32 v{tmp}, v{reg}')
            if fill: vom_next(); A('s_nop 0')
            else: A('s_nop 1')
            A(f'{perm} v{tmp}, v{reg}')
            A(f'{op} v{reg}, v{reg}, v{tmp}')
    allreduce('v_max_f32', MX, MX+1, True)
    A(f'v_mul_f32 v{MX}, s{S_SCL}, v{MX}')
    vom_next()
    for r in range(0, 12, 2):
        A(f'v_pk_fma_f32 {vr(V_S+r,2)}, {vr(V_S+r,2)}, s[{S_SCL}:{S_SCL+1}], {vr(MX,2)} op_sel_hi:[1,1,0] neg_lo:[0,0,1] neg_hi:[0,0,1]')
        if r % 4 == 2: vom_next()
    for r in range(12):
        A(f'v_exp_f32 v{V_S+r}, v{V_S+r}')
        if r % 2 == 1: vom_next()
    while vom: vom_next()
    A(f'v_cvt_pk_bf16_f32 v{V_PX}, v{V_S}, v{V_S+1}')
    A(f'v_cvt_pk_bf16_f32 v{V_PX+1}, v{V_S+2}, v{V_S+3}')
    A(f'v_cvt_pk_bf16_f32 v{V_PX+2}, v{V_S+4}, v{V_S+5}')
    A(f'v_cvt_pk_bf16_f32 v{V_PX+3}, v{V_S+6}, v{V_S+7}')
    A(f'v_cvt_pk_bf16_f32 v{V_PM}, v{SM}, v{SM+1}')
    A(f'v_cvt_pk_bf16_f32 v{V_PM+1}, v{SM+2}, v{SM+3}')
    SU = V_T+6; X2 = V_T+7
    FX = [V_ACC, V_ACC+4, V_ACV]
    for tt in range(3):
        mfma(A, vr(FX[tt],4), vr(V_VOX+4*tt,4), vr(V_PX,4), '0')
    for tt in range(3):
        A(f'v_cvt_pk_bf16_f32 v{V_VOM+4*tt}, v{V_F+4*tt}, v{V_F+4*tt+1}')
        A(f'v_cvt_pk_bf16_f32 v{V_VOM+4*tt+1}, v{V_F+4*tt+2}, v{V_F+4*tt+3}')
    A(f'v_pk_add_f32 {vr(V_T,2)}, {vr(SM,2)}, {vr(SM+2,2)}')
    A(f'v_pk_add_f32 {vr(V_T+2,2)}, {vr(V_S,2)}, {vr(V_S+2,2)}')
    for tt in range(3):
        mfma(A, vr(FX[tt],4), vr(V_VOM+4*tt,4), vr(V_PM,4), vr(FX[tt],4))
    A(f'v_pk_add_f32 {vr(V_T+4,2)}, {vr(V_S+4,2)}, {vr(V_S+6,2)}')
    A(f'v_pk_add_f32 {vr(V_T+2,2)}, {vr(V_T+2,2)}, {vr(V_T+4,2)}')
    A(f'v_pk_fma_f32 {vr(V_T,2)}, {vr(V_T,2)}, 0.5, {vr(V_T+2,2)} op_sel_hi:[1,0,1]')
    A(f'v_add_f32 v{SU}, v{V_T}, v{V_T+1}')
    allreduce('v_add_f32', SU, X2)
    A(f'v_rcp_f32 v{SU}, v{SU}')
    A('s_nop 0')
    PO = [V_PO, V_PO+2, V_PO2]
    for tt in range(3):
        for r in (0, 2):
            A(f'v_pk_mul_f32 {vr(FX[tt]+r,2)}, {vr(FX[tt]+r,2)}, {vr(SU,2)} op_sel_hi:[1,0]')
        A(f'v_cvt_pk_bf16_f32 v{PO[tt]}, v{FX[tt]}, v{FX[tt]+1}')
        A(f'v_cvt_pk_bf16_f32 v{PO[tt]+1}, v{FX[tt]+2}, v{FX[tt]+3}')
        if tt == 1: A(f'buffer_store_dwordx4 {vr(V_PO,4)}, v{V_P4}, {WSR}, s{PC} offen')
    A(f'buffer_store_dwordx2 {vr(V_PO2,2)}, v{V_P2}, {WSR}, s{PC} offen')
    if 'skipB' in OPT:
        ablate(A, mark, ['v_', 's_nop'])
        for r in (V_PO, V_PO+1, V_PO+2, V_PO+3, V_PO2, V_PO2+1): A.lines.insert(mark, f'    v_mov_b32 v{r}, 0')
    P.stamp(A, 4)
    vox_reads(A, n1)
    A(f's_cmp_eq_u32 s{S_HASITEM}, 0')
    A(f's_cbranch_scc1 L_c_noitem{sf}')
    A.c('[C1] local RS')
    nops(A, optval('rsdelay', 0))
    if 'skipRS' in OPT:
        for r in range(4): A(f'v_mov_b32 v{V_RSD+4+r}, 0')
        A(f's_branch L_c_RS{sf}_done')
    SSET = [V_RSD, V_B+20, V_B+24]
    def rs_issue(k):
        A(f'buffer_load_dwordx2 {vr(SSET[k],2)}, v{V_RS0}, {WSR}, s{PC} offen sc1')
        A(f'buffer_load_dwordx2 {vr(SSET[k]+2,2)}, v{V_RS1}, {WSR}, s{PC} offen sc1')
    pipe_poll('RS', optval('nS', 1), 2, rs_issue, lambda k: range(SSET[k], SSET[k]+4),
              lambda k: mfma(A, vr(V_RSD+4,4), vr(V_SEL,4), vr(SSET[k],4), '0'), lambda k: None, optval('gapS', 20))
    P.stamp(A, 12, True)
    A('s_nop 3')
    A(f'buffer_store_dwordx4 {vr(V_RSD+4,4)}, v{V_XS}, {WSR}, s{XC} offen sc1')
    if 'xplate' not in OPT: A(f'buffer_store_dwordx4 {vr(V_NEG,4)}, v{V_XS}, {WSR}, s{XPn} offen sc1')
    P.stamp(A, 5)
    NVX = optval('nvx', 3)
    vox_tiles(A, list(range(NVX)))
    P.stamp(A, 6)
    A.c('[C2] cross')
    nops(A, optval('xdelay', 0))
    if 'skipX' in OPT: A(f's_branch L_c_X{sf}_done')
    XSET = [V_XD, V_B+28, V_R]
    OWN = V_RSD+4
    def x_issue(k):
        for q in range(3):
            A(f'buffer_load_dwordx4 {vr(XSET[k]+4*q,4)}, v{V_XL+q}, {WSR}, s{XC} offen sc1')
    def x_ok(k):
        X = XSET[k]
        for r in (0, 2):
            A(f'v_pk_add_f32 {vr(V_T+r,2)}, {vr(X+r,2)}, {vr(X+8+r,2)}')
            A(f'v_pk_add_f32 {vr(OWN+r,2)}, {vr(OWN+r,2)}, {vr(X+4+r,2)}')
    pipe_poll('X', optval('nX', 1), 3, x_issue, lambda k: range(XSET[k], XSET[k]+12), lambda k: None, x_ok, optval('gapX', 40))
    P.stamp(A, 9, True)
    for r in (0, 2):
        A(f'v_pk_add_f32 {vr(OWN+r,2)}, {vr(OWN+r,2)}, {vr(V_T+r,2)}')
    A(f'v_cvt_pk_bf16_f32 v{V_PO2}, v{OWN}, v{OWN+1}')
    A(f'v_cvt_pk_bf16_f32 v{V_PO2+1}, v{OWN+2}, v{OWN+3}')
    A(f'buffer_store_dwordx2 {vr(V_PO2,2)}, v{V_MS}, {WSR}, s{MW} offen')
    vox_tiles(A, list(range(NVX, 3)), wait=False)
    A(f's_branch L_c_stepend{sf}')
    A(f'L_c_noitem{sf}:')
    A(f's_cmp_lg_u32 s{S_W}, 3')
    A(f's_cbranch_scc1 L_c_w2{sf}')
    A(f's_mov_b32 s{S_t0}, {C_PROG1}')
    A(f'buffer_load_dword v{V_T+4}, v{V_PRG}, {WSR}, s{S_t0} offen sc1')
    if 'nopub' not in OPT: publish(A, QC)
    vox_compute(A)
    A(f's_cmp_gt_u32 s{S_STEP}, {NSEG-4}')
    A(f's_cbranch_scc1 L_c_stepend{sf}')
    if 'noflag' not in OPT:
        A(f's_add_u32 s{S_t1}, s{S_STEP}, 3')
        A(f'L_c_wk{sf}:')
        A(f'v_cmp_gt_u32 vcc, s{S_t1}, v{V_T+4}')
        A('s_nop 3')
        A('s_and_b64 vcc, vcc, 3')
        A(f's_cbranch_vccz L_c_wk{sf}_ok')
        A(f's_mov_b32 s{S_t0}, {C_PROG1}')
        A(f'buffer_load_dword v{V_T+4}, v{V_PRG}, {WSR}, s{S_t0} offen sc1')
        A('s_waitcnt vmcnt(0)')
        retry(A, f'L_c_wk{sf}')
        A(f'L_c_wk{sf}_ok:')
    if 'nodma' not in OPT:
        for mat, base in ((0, WS_KX), (1, WS_VX)):
            for uu in range(8):
                A(f's_mov_b32 m0, {L_KV + p2*16384 + mat*8192 + uu*1024}')
                A(f's_add_u32 s{S_t2}, s{S_SEG2}, {base + uu*1024}')
                A(f'buffer_load_dwordx4 v{V_DM3A}, {WSR}, s{S_t2} offen sc1 lds')
    A(f's_branch L_c_stepend{sf}')
    A(f'L_c_w2{sf}:')
    vox_compute(A)
    A(f'L_c_stepend{sf}:')
    P.stamp(A, 7)
    A(f's_add_u32 s{S_KM}, s{S_KM}, 65536')
    A(f's_add_u32 s{S_VM}, s{S_VM}, 131072')
    A(f's_add_u32 s{S_SEG2}, s{S_SEG2}, {32*8192}')
    A(f's_add_u32 s{S_STEP}, s{S_STEP}, 1')
    if 'nobar0' not in OPT: A('s_barrier')
    if u == 3: A('s_branch L_c_loop_0')

def publish(A, QC):
    A(f'buffer_load_dwordx4 {vr(V_B,4)}, v{V_KPL}, {WSR}, s{QC} offen sc1')
    A(f'buffer_load_dwordx4 {vr(V_B+4,4)}, v{V_VPL}, {WSR}, s{QC} offen sc1')
    A('s_waitcnt vmcnt(0)')
    A(f'buffer_store_dwordx4 {vr(V_B,4)}, v{V_KPUB}, {WSR}, s{S_KM} offen sc1')
    A(f'buffer_store_dwordx4 {vr(V_B+4,4)}, v{V_VPUB}, {WSR}, s{S_VM} offen sc1')

def gen_chain(A, prof):
    P = Prof(prof)
    if prof and 'trace' not in OPT: PROFCNT.update({'A': 8, 'R': 9, 'V': 10, 'RS': 11, 'X': 12})
    A.c('==== chain role ====')
    gen_prologue(A, P)
    if prof and 'trace' not in OPT:
        for k in range(16): A(f's_mov_b32 s{S_PROF+k}, 0')
        A(f's_memtime s[{S_PT}:{S_PT+1}]')
        A('s_waitcnt lgkmcnt(0)')
        A(f's_mov_b32 s{S_PT+2}, s{S_PT}')
    if 'tot' in OPT:
        A(f's_memrealtime s[{S_PROF}:{S_PROF+1}]')
        A(f's_memtime s[{S_PROF+4}:{S_PROF+5}]')
        A('s_waitcnt lgkmcnt(0)')
    A('s_branch L_c_afterA0')
    A('.p2align 6')
    for u in range(4): gen_step(A, P, u)
    A('L_c_final:')
    A(f's_cmp_lg_u32 s{S_W}, 3')
    A('s_cbranch_scc1 L_c_end')
    publish(A, S_QV+3)
    A('s_waitcnt vmcnt(0)')
    A(f'v_mov_b32 v{V_CPV}, 64')
    A(f'buffer_store_dword v{V_CPV}, v{V_CPF}, {WSR}, s{S_CPO} offen sc1')
    A('L_c_end:')
    if 'tot' in OPT:
        A(f's_memrealtime s[{S_PROF+2}:{S_PROF+3}]')
        A(f's_memtime s[{S_PROF+6}:{S_PROF+7}]')
        A('s_waitcnt lgkmcnt(0)')
        A(f's_sub_u32 s{S_PROF}, s{S_PROF+2}, s{S_PROF}')
        A(f's_sub_u32 s{S_PROF+1}, s{S_PROF+6}, s{S_PROF+4}')
        A(f's_mov_b32 s{S_PROF+2}, s{S_PAR}')
    if prof or 'tot' in OPT:
        A(f's_lshl_b32 s{S_t0}, s{S_X}, 5')
        A(f's_add_u32 s{S_t0}, s{S_t0}, s{S_J}')
        A(f's_lshl_b32 s{S_t0}, s{S_t0}, 2')
        A(f's_add_u32 s{S_t0}, s{S_t0}, s{S_W}')
        A(f's_lshl_b32 s{S_t0}, s{S_t0}, 6')
        A(f's_add_u32 s{S_t0}, s{S_t0}, {WS_PROF}')
        A(f'v_mov_b32 v{V_T}, 0')
        for k in range(16):
            A(f'v_mov_b32 v{V_T+1}, s{S_PROF+k}')
            A(f'buffer_store_dword v{V_T+1}, v{V_T}, {WSR}, s{S_t0} offen offset:{4*k}')
    A('s_waitcnt vmcnt(0)')
    A('s_endpgm')

def gen_calib(A):
    CB = PG2 + 0x1A0000
    A(f's_mov_b32 s{S_t0}, {CB}')
    A('v_and_b32 v1, 15, v0')
    A('v_lshrrev_b32 v2, 1, v1')
    A('v_lshlrev_b32 v2, 14, v2')
    A('v_and_b32 v1, 1, v1')
    A('v_lshl_add_u32 v1, v1, 13, v2')
    A('v_mov_b32 v2, 0')
    A(f'buffer_store_dword v2, v1, {WSR}, s{S_t0} offen sc1')
    A('s_waitcnt vmcnt(0)')
    A(f's_mov_b32 s{S_t1}, -1')
    A(f's_mov_b32 s{S_t2}, -1')
    for rep in range(8):
        for par, acc in ((0, S_t1), (1, S_t2)):
            A(f'v_mov_b32 v1, {rep*16384 + par*8192}')
            A(f's_memtime s[{S_PT}:{S_PT+1}]')
            A('s_waitcnt lgkmcnt(0)')
            A(f'buffer_load_dword v2, v1, {WSR}, s{S_t0} offen sc1')
            A('s_waitcnt vmcnt(0)')
            A(f's_memtime s[{S_PT+2}:{S_PT+3}]')
            A('s_waitcnt lgkmcnt(0)')
            A(f's_sub_u32 s{S_PT}, s{S_PT+2}, s{S_PT}')
            A(f's_min_u32 s{acc}, s{acc}, s{S_PT}')
    A(f's_cmp_lt_u32 s{S_t1}, s{S_t2}')
    A(f's_cselect_b32 s{S_t3}, 1, 0')
    A(f's_or_b32 s{S_t3}, s{S_t3}, 0x100')
    A(f'v_mov_b32 v1, 64')
    A(f'v_mov_b32 v2, s{S_t3}')
    A(f'global_store_dword v1, v2, s[{S_DBG}:{S_DBG+1}] sc1')
    A(f'v_mov_b32 v1, 80')
    A(f'v_mov_b32 v2, s{S_t1}')
    A(f'global_store_dword v1, v2, s[{S_DBG}:{S_DBG+1}] sc1')
    A(f'v_mov_b32 v1, 84')
    A(f'v_mov_b32 v2, s{S_t2}')
    A(f'global_store_dword v1, v2, s[{S_DBG}:{S_DBG+1}] sc1')
    A('s_waitcnt vmcnt(0)')
    A('L_calib_done:')

def gen_common_entry(A, nwg=256):
    A(f's_cmp_ge_u32 s2, {nwg}')
    A('s_cbranch_scc1 L_end')
    A(f's_load_dwordx2 s[{S_DBG}:{S_DBG+1}], s[0:1], 96')
    A(f's_load_dwordx2 s[4:5], s[0:1], 104')
    A(f's_getreg_b32 s{S_X}, hwreg(HW_REG_XCC_ID, 0, 4)')
    A(f'v_lshrrev_b32 v1, 6, v0')
    A('s_nop 0')
    A(f'v_readfirstlane_b32 s{S_W}, v1')
    A('s_waitcnt lgkmcnt(0)')
    A(f's_mov_b32 s{S_WS}, s4')
    A(f's_and_b32 s{S_WS+1}, s5, 0xffff')
    A(f's_mov_b32 s{S_WS+2}, 0x10000000')
    A(f's_mov_b32 s{S_WS+3}, 0x20000')
    A(f's_cmp_lg_u32 s{S_W}, 0')
    A('s_cbranch_scc1 L_noticket')
    A(f's_lshl_b32 s{S_t0}, s{S_X}, 2')
    A(f'v_mov_b32 v1, s{S_t0}')
    A('v_mov_b32 v2, 1')
    A('s_mov_b64 exec, 1')
    A(f'global_atomic_add v3, v1, v2, s[{S_DBG}:{S_DBG+1}] sc0')
    A('s_waitcnt vmcnt(0)')
    A('v_mov_b32 v1, 0')
    A('ds_write_b32 v1, v3')
    A('s_waitcnt lgkmcnt(0)')
    A('s_mov_b64 exec, -1')
    A('L_noticket:')
    A('s_barrier')
    A('v_mov_b32 v1, 0')
    A('ds_read_b32 v2, v1')
    A('s_waitcnt lgkmcnt(0)')
    A(f'v_readfirstlane_b32 s{S_J}, v2')
    A('s_barrier')

def gen_timeout(A):
    A('L_timeout:')
    A('v_mov_b32 v1, 60')
    A('v_mov_b32 v2, 0xdead')
    A(f'global_store_dword v1, v2, s[{S_DBG}:{S_DBG+1}]')
    A('s_waitcnt vmcnt(0)')
    A('s_endpgm')

if __name__ == '__main__':
    out = sys.argv[1]
    OPT.update(sys.argv[2:])
    prof = 'prof' in OPT
    A = Asm()
    K = NAME + '_kernel'
    kernel_begin(A, K)
    gen_common_entry(A)
    A(f's_cmp_lt_u32 s{S_X}, 4')
    A('s_cbranch_scc1 L_chain')
    A(f's_cmp_lg_u32 s{S_W}, 0')
    A('s_cbranch_scc1 L_end')
    gen_calib(A)
    A('v_mov_b32 v1, 32')
    A('v_mov_b32 v2, 1')
    A('s_mov_b64 exec, 1')
    A(f'global_atomic_add v1, v2, s[{S_DBG}:{S_DBG+1}]')
    A('s_waitcnt vmcnt(0)')
    A('L_end:')
    A('s_endpgm')
    A('L_chain:')
    gen_chain(A, prof)
    gen_timeout(A)
    open(out, 'w').write(file_text(['; @launch grid=(256,1,1) block=(256,1,1) lds=163840'], A.text(), kernel_desc(K)))
```

```python
WS_QX  = 0x0000000
WS_KX  = 0x1000000
WS_VX  = 0x2000000
WS_O   = 0x3000000
O_SEG  = 608*512
WS_KM  = 0x4400000
WS_VM  = 0x4800000
PG0 = 0x5000000
PG1 = 0x5200000
PG2 = 0x5400000
def QV_SLOT(k): return (PG0 + k*0x40000, 0)
def P_SLOT(k):  return (PG1 + k*0xA0000, 1) if k < 3 else (PG2, 2)
def M_SLOT(k):  return (PG2 + 0xA0000 + k*0x14000, 2)
def X_SLOT(k):  return (PG2 + 0xF0000 + k*0x28000, 2)
V_RING_OFF = 0x100000
WS_PROF= 0x5600000
WS_QB  = 0x5800000
WS_GATE= 0x6400000
WS_CTRL= 0x6500000
C_PROG1 = WS_CTRL
C_CPROG = WS_CTRL + 0x4000
C_XCNT  = WS_CTRL + 0x8000
C_BCNT  = WS_CTRL + 0xA000
C_XDONE = WS_CTRL + 0xC000
```

```python
import sys
from asmlib import *
from ws_layout import *
import chain9 as ch
import bulk1, bulk2, bulk3
ch.OPT.update(sys.argv[2:])
S_X, S_J, S_W, S_TO, S_DBG, S_WS = 16, 17, 20, 22, 28, 8
WSR = f's[{S_WS}:{S_WS+3}]'
A = Asm(); K = NAME + '_kernel'
kernel_begin(A, K)
ch.gen_common_entry(A)
A(f's_cmp_lt_u32 s{S_X}, 4')
A('s_cbranch_scc1 L_chain')
A(f's_sub_u32 s{bulk1.S_BID}, s{S_X}, 4')
A(f's_lshl_b32 s{bulk1.S_BID}, s{bulk1.S_BID}, 5')
A(f's_add_u32 s{bulk1.S_BID}, s{bulk1.S_BID}, s{S_J}')
A(f's_mov_b32 s{S_TO}, 0x40000')
A(f's_cmp_lg_u32 s{S_W}, 0')
A('s_cbranch_scc1 L_b_arrived')
A('v_mov_b32 v1, 0')
A('v_mov_b32 v2, 0')
A(f's_lshl_b32 s30, s{bulk1.S_BID}, 7')
A(f's_add_u32 s30, s30, {C_PROG1}')
A(f'buffer_store_dword v2, v1, {WSR}, s30 offen sc1')
A(f's_cmp_lg_u32 s{bulk1.S_BID}, 127')
A('s_cbranch_scc1 L_b_nocal')
A('v_lshlrev_b32 v1, 7, v0')
A(f's_mov_b32 s30, {C_XCNT}')
A(f'buffer_store_dword v2, v1, {WSR}, s30 offen sc1')
A('v_mov_b32 v1, 0')
A(f's_mov_b32 s30, {C_BCNT}')
A(f'buffer_store_dword v2, v1, {WSR}, s30 offen sc1')
ch.gen_calib(A)
A('L_b_nocal:')
A('s_waitcnt vmcnt(0)')
A('v_mov_b32 v1, 32')
A('v_mov_b32 v2, 1')
A('s_mov_b64 exec, 1')
A(f'global_atomic_add v1, v2, s[{S_DBG}:{S_DBG+1}]')
A('s_mov_b64 exec, -1')
A('L_b_arrived:')
if 'nobulk' not in ch.OPT:
    bulk1.gen_phase1_loop(A)
    A('L_b_census:')
    A('v_mov_b32 v1, 32')
    A(f'global_load_dword v2, v1, s[{S_DBG}:{S_DBG+1}] sc1')
    A('s_waitcnt vmcnt(0)')
    A('v_readfirstlane_b32 s30, v2')
    A('s_cmp_ge_u32 s30, 256')
    A('s_cbranch_scc1 L_b_census_ok')
    A('s_sleep 8')
    A(f's_sub_u32 s{S_TO}, s{S_TO}, 1')
    A('s_cbranch_scc0 L_b_census')
    A('s_branch L_timeout')
    A('L_b_census_ok:')
    bulk2.gen_phase2(A)
    bulk3.gen_phase3(A)
A('s_waitcnt vmcnt(0)')
A('L_end:')
A('s_endpgm')
A('L_chain:')
ch.gen_chain(A, 'prof' in ch.OPT)
ch.gen_timeout(A)
open(sys.argv[1], 'w').write(file_text(['; @launch grid=(256,1,1) block=(256,1,1) lds=163840'], A.text(), kernel_desc(K)))
```

```python
NAME = 'gated_mix__memory_aug_recurrent_mem_tr__sliding_block__prompt'
HEADER = """; Kernarg layout for this problem (112 bytes, ptrs only, base s[0:1]):
"""

class Asm:
    def __init__(self):
        self.lines = []
        self.nlabel = 0
    def __call__(self, s=''):
        for l in s.split('\n'):
            l = l.strip()
            if l == '':
                continue
            if l.endswith(':') or l.startswith('.'):
                self.lines.append(l)
            else:
                self.lines.append('    ' + l)
    def c(self, s):
        self.lines.append('    ; ' + s)
    def label(self, base='L'):
        self.nlabel += 1
        return f'{base}_{self.nlabel}'
    def text(self):
        return '\n'.join(self.lines) + '\n'

def vr(a, n=1):
    return f'v{a}' if n == 1 else f'v[{a}:{a+n-1}]'
def ar(a, n=1):
    return f'a{a}' if n == 1 else f'a[{a}:{a+n-1}]'
def sr(a, n=1):
    return f's{a}' if n == 1 else f's[{a}:{a+n-1}]'

def kernel_begin(A, label):
    A(f'.globl {label}')
    A('.p2align 8')
    A(f'.type {label},@function')
    A(f'{label}:')

def kernel_desc(label, vgpr=512, sgpr=102, accum=256):
    return f""".section .rodata,"a"
.p2align 6
.amdhsa_kernel {label}
  .amdhsa_next_free_vgpr {vgpr}
  .amdhsa_next_free_sgpr {sgpr}
  .amdhsa_accum_offset {accum}
  .amdhsa_group_segment_fixed_size 0
  .amdhsa_kernarg_size 112
  .amdhsa_user_sgpr_count 2
  .amdhsa_user_sgpr_kernarg_segment_ptr 1
  .amdhsa_system_sgpr_workgroup_id_x 1
.end_amdhsa_kernel
"""

def file_text(launch_lines, body, descs):
    t = HEADER
    for l in launch_lines:
        t += l + '\n'
    t += '.amdgcn_target "amdgcn-amd-amdhsa--gfx950"\n.text\n'
    t += body
    t += descs
    return t

TL_ON = [False]
WS_TL = 0x5700000
def tl(A, idx):
    if not TL_ON[0]: return
    A('s_lshl_b32 s100, s16, 5')
    A('s_add_u32 s100, s100, s17')
    A('s_lshl_b32 s100, s100, 6')
    A(f's_add_u32 s100, s100, {WS_TL + idx*4}')
    A('v_mov_b32 v253, s100')
    A('s_memrealtime s[100:101]')
    A('s_waitcnt lgkmcnt(0)')
    A('v_mov_b32 v252, s100')
    A('buffer_store_dword v252, v253, s[8:11], 0 offen')
```

```python
from asmlib import *
from ws_layout import *
import sys
S_WS, S_X, S_J, S_W, S_TO, S_DBG = 8, 16, 17, 20, 22, 28
S_T = 12
S_XS = 24
S_t0, S_t1, S_t2, S_t3 = 30, 31, 32, 33
S_BID = 34
S_SEG = 35
S_OUT = 36
S_OSTR = 37
S_SLOT = 38
S_DSLOT = 39
S_XOFF = 40
S_PROGO = 41
S_KIND = 42
WSR = f's[{S_WS}:{S_WS+3}]'
XSR = f's[{S_XS}:{S_XS+3}]'
BIG = 0x40000000
V_XA = 1
V_RB = 12
V_RD = 13
V_ST = 14
V_FL = 15
V_T = 16
V_PV = 24
V_B = 32
V_ACC = 64
V_O = 96
SLOTB = 45056
NPRE = 8

def mfma32(A, d, a, b, c):
    A(f'v_mfma_f32_32x32x16_bf16 {d}, {a}, {b}, {c}')

def setsrd(A, dst, lo, size):
    A(f's_mov_b32 s{dst}, s{lo}')
    A(f's_and_b32 s{dst+1}, s{lo+1}, 0xffff')
    A(f's_mov_b32 s{dst+2}, {size}')
    A(f's_mov_b32 s{dst+3}, 0x20000')

def gen_phase1(A):
    L, T0, T1, T2, T3 = V_T, V_T+1, V_T+2, V_T+3, V_T+4
    A.c('==== phase 1 ====')
    A(f'v_and_b32 v{L}, 63, v0')
    A(f's_mov_b32 s{S_KIND}, 3')
    A(f's_cmp_eq_u32 s{S_BID}, 120')
    A(f's_cselect_b32 s{S_KIND}, 2, s{S_KIND}')
    A(f's_cmp_lt_u32 s{S_BID}, 120')
    A(f's_cselect_b32 s{S_KIND}, 1, s{S_KIND}')
    A(f's_cmp_lt_u32 s{S_BID}, 96')
    A(f's_cselect_b32 s{S_KIND}, 0, s{S_KIND}')
    A(f's_cmp_eq_u32 s{S_KIND}, 3')
    A('s_cbranch_scc1 L_p1_end')
    A(f's_lshl_b32 s{S_PROGO}, s{S_BID}, 7')
    A(f's_add_u32 s{S_PROGO}, s{S_PROGO}, {C_PROG1}')
    A(f'v_mov_b32 v{T2}, {BIG}')
    A(f'v_cmp_eq_u32 vcc, 0, v0')
    A(f'v_mov_b32 v{T0}, 0')
    A('s_nop 0')
    A(f'v_cndmask_b32 v{V_FL}, v{T2}, v{T0}, vcc')
    R_, CQ, AB, GK = V_T+5, V_T+6, V_T+7, V_PV
    A(f'v_bfe_u32 v{R_}, v{L}, 2, 2')
    A(f'v_and_b32 v{CQ}, 3, v{L}')
    A(f'v_bfe_u32 v{AB}, v{L}, 4, 1')
    A(f'v_lshrrev_b32 v{GK}, 5, v{L}')
    A(f'v_and_b32 v{T0}, 1, v{CQ}')
    A(f'v_lshlrev_b32 v{T0}, 3, v{T0}')
    A(f'v_lshrrev_b32 v{T1}, 1, v{CQ}')
    A(f'v_lshl_add_u32 v{T0}, v{T1}, 2, v{T0}')
    A(f'v_lshl_add_u32 v{T3}, v{AB}, 4, v{T0}')
    A(f's_cmp_eq_u32 s{S_KIND}, 0')
    A('s_cbranch_scc0 L_p1_notA')
    A(f's_lshr_b32 s{S_t0}, s{S_BID}, 5')
    A(f's_cmp_eq_u32 s{S_t0}, 0')
    A(f's_cselect_b32 s{S_t1}, 24, 32')
    A(f's_cmp_eq_u32 s{S_t0}, 2')
    A(f's_cselect_b32 s{S_t1}, 16, s{S_t1}')
    A(f's_load_dwordx2 s[4:5], s[0:1], s{S_t1}')
    A(f's_load_dwordx2 s[6:7], s[0:1], 0')
    A(f's_cmp_eq_u32 s{S_t0}, 0')
    A(f's_mov_b32 s{S_OUT}, {WS_VX}')
    A(f's_cselect_b32 s{S_OUT}, {WS_KX}, s{S_OUT}')
    A(f's_cmp_eq_u32 s{S_t0}, 2')
    A(f's_cselect_b32 s{S_OUT}, {WS_QX}, s{S_OUT}')
    A(f's_and_b32 s{S_t2}, s{S_BID}, 31')
    A(f's_lshl_b32 s{S_t3}, s{S_t2}, 13')
    A(f's_add_u32 s{S_OUT}, s{S_OUT}, s{S_t3}')
    A(f's_mov_b32 s{S_OSTR}, {32*8192}')
    A('s_waitcnt lgkmcnt(0)')
    setsrd(A, S_T, 4, 5242880)
    setsrd(A, S_XS, 6, 2048*1280)
    A(f'v_lshrrev_b32 v{T0}, 4, v{L}')
    A(f'v_lshlrev_b32 v{T0}, 13, v{T0}')
    A(f'v_and_b32 v{T1}, 15, v{L}')
    A(f'v_lshl_add_u32 v{T0}, v{T1}, 4, v{T0}')
    A(f's_lshl_b32 s{S_t3}, s{S_t2}, 8')
    A(f'v_add_u32 v{T0}, s{S_t3}, v{T0}')
    A(f's_lshl_b32 s{S_t0}, s{S_W}, 15')
    A(f's_lshl_b32 s{S_t1}, s{S_W}, 10')
    for i in range(40):
        A(f's_mov_b32 m0, s{S_t1}')
        A(f's_add_u32 s{S_t1}, s{S_t1}, 4096')
        A(f'buffer_load_dwordx4 v{T0}, s[{S_T}:{S_T+3}], s{S_t0} offen lds')
        A(f's_add_u32 s{S_t0}, s{S_t0}, {4*32768}')
    A(f'v_lshl_add_u32 v{T0}, v{GK}, 3, v{R_}')
    A(f'v_lshlrev_b32 v{T0}, 8, v{T0}')
    A(f'v_lshl_add_u32 v{T0}, v{T3}, 1, v{T0}')
    A(f's_lshl_b32 s{S_t0}, s{S_W}, 6')
    A(f'v_add_u32 v{T0}, s{S_t0}, v{T0}')
    A(f'v_lshlrev_b32 v{V_ST}, 4, v{L}')
    A(f's_lshl_b32 s{S_t0}, s{S_W}, 11')
    A(f'v_add_u32 v{V_ST}, s{S_t0}, v{V_ST}')
    A('s_waitcnt vmcnt(0)')
    A('s_barrier')
    for s in range(40):
        if s % 10 == 0 and s:
            A(f'v_add_u32 v{T0}, {10*4096}, v{T0}')
        for hf in range(2):
            A(f'ds_read_b64_tr_b16 {ar(4*s+2*hf,2)}, v{T0} offset:{(s%10)*4096 + hf*1024}')
        if s % 4 == 3: A('s_waitcnt lgkmcnt(0)')
    A('s_branch L_p1_wdone')
    A('L_p1_notA:')
    A(f's_cmp_eq_u32 s{S_KIND}, 1')
    A('s_cbranch_scc0 L_p1_gate')
    A(f's_load_dwordx2 s[4:5], s[0:1], 64')
    A(f's_load_dwordx2 s[6:7], s[0:1], 0')
    A(f's_sub_u32 s{S_t0}, s{S_BID}, 96')
    A(f's_lshl_b32 s{S_t0}, s{S_t0}, 2')
    A(f's_add_u32 s{S_t0}, s{S_t0}, s{S_W}')
    A(f's_lshl_b32 s{S_OUT}, s{S_t0}, 11')
    A(f's_add_u32 s{S_OUT}, s{S_OUT}, {WS_QB}')
    A(f's_mov_b32 s{S_OSTR}, {96*2048}')
    A(f's_lshr_b32 s{S_t1}, s{S_t0}, 5')
    A(f's_and_b32 s{S_t2}, s{S_t0}, 31')
    A(f's_mul_i32 s{S_t1}, s{S_t1}, 1280')
    A(f's_mul_i32 s{S_t2}, s{S_t2}, 40')
    A(f's_add_u32 s{S_t2}, s{S_t2}, s{S_t1}')
    A('s_waitcnt lgkmcnt(0)')
    setsrd(A, S_T, 4, 640*3840)
    setsrd(A, S_XS, 6, 2048*1280)
    A(f'v_lshrrev_b32 v{T0}, 2, v{L}')
    A(f'v_mul_u32_u24 v{T0}, 3840, v{T0}')
    A(f'v_and_b32 v{T1}, 3, v{L}')
    A(f'v_lshl_add_u32 v{T0}, v{T1}, 4, v{T0}')
    A(f'v_add_u32 v{T0}, s{S_t2}, v{T0}')
    A(f'v_cmp_eq_u32 vcc, 3, v{T1}')
    A(f's_mul_i32 s{S_t1}, s{S_W}, 40960')
    A(f's_mov_b32 s{S_t0}, 0')
    A(f'v_cndmask_b32 v{T0}, v{T0}, v{T2}, vcc')
    for i in range(40):
        A(f's_mov_b32 m0, s{S_t1}')
        A(f's_add_u32 s{S_t1}, s{S_t1}, 1024')
        A(f'buffer_load_dwordx4 v{T0}, s[{S_T}:{S_T+3}], s{S_t0} offen lds')
        A(f's_add_u32 s{S_t0}, s{S_t0}, {16*3840}')
    A('s_waitcnt vmcnt(0)')
    A('s_branch L_p1_priv')
    A('L_p1_gate:')
    A(f's_load_dwordx2 s[4:5], s[0:1], 80')
    A(f's_load_dwordx2 s[6:7], s[0:1], 0')
    A(f's_mov_b32 s{S_OUT}, {WS_GATE}')
    A(f's_cmp_eq_u32 s{S_W}, 0')
    A(f's_cselect_b32 s{S_OUT}, s{S_OUT}, {BIG}')
    A(f's_mov_b32 s{S_OSTR}, 2048')
    A('s_waitcnt lgkmcnt(0)')
    setsrd(A, S_T, 4, 1280)
    setsrd(A, S_XS, 6, 2048*1280)
    A(f's_mul_i32 s{S_t1}, s{S_W}, 40960')
    A(f'v_lshlrev_b32 v{T0}, 4, v{L}')
    A(f'v_add_u32 v{T0}, s{S_t1}, v{T0}')
    for r in range(4): A(f'v_mov_b32 v{V_B+r}, 0')
    for i in range(40): A(f'ds_write_b128 v{T0}, {vr(V_B,4)} offset:{i*1024}')
    A(f'v_lshlrev_b32 v{T1}, 1, v{L}')
    for i in range(10):
        A(f'buffer_load_ushort v{V_B+4+i}, v{T1}, s[{S_T}:{S_T+3}], 0 offen offset:{128*i}')
    A(f'v_lshlrev_b32 v{T0}, 6, v{L}')
    A(f'v_add_u32 v{T0}, s{S_t1}, v{T0}')
    A('s_waitcnt vmcnt(0) lgkmcnt(0)')
    for i in range(10):
        A(f'ds_write_b16 v{T0}, v{V_B+4+i} offset:{i*4096}')
    A('s_waitcnt lgkmcnt(0)')
    A('L_p1_priv:')
    A(f'v_lshl_add_u32 v{T0}, v{GK}, 3, v{R_}')
    A(f'v_lshlrev_b32 v{T0}, 6, v{T0}')
    A(f'v_lshlrev_b32 v{T1}, 1, v{T3}')
    A(f'v_cmp_le_u32 vcc, 20, v{T3}')
    A(f'v_mov_b32 v{T2}, 48')
    A('s_nop 0')
    A(f'v_cndmask_b32 v{T1}, v{T1}, v{T2}, vcc')
    A(f'v_add_u32 v{T0}, v{T0}, v{T1}')
    A(f's_mul_i32 s{S_t1}, s{S_W}, 40960')
    A(f'v_add_u32 v{T0}, s{S_t1}, v{T0}')
    A(f'v_lshlrev_b32 v{V_ST}, 4, v{L}')
    for s in range(40):
        for hf in range(2):
            A(f'ds_read_b64_tr_b16 {ar(4*s+2*hf,2)}, v{T0} offset:{s*1024 + hf*256}')
        if s % 4 == 3: A('s_waitcnt lgkmcnt(0)')
    A('L_p1_wdone:')
    A('s_waitcnt lgkmcnt(0)')
    A('s_barrier')
    for i in range(11):
        A(f's_lshl_b32 s{S_t0}, s{S_W}, 6')
        A(f's_add_u32 s{S_t0}, s{S_t0}, {256*i}')
        A(f'v_add_u32 v{T0}, s{S_t0}, v{L}')
        A(f'v_mul_u32_u24 v{T1}, 12946, v{T0}')
        A(f'v_lshrrev_b32 v{T1}, 20, v{T1}')
        A(f'v_mul_u32_u24 v{T2}, 81, v{T1}')
        A(f'v_sub_u32 v{T2}, v{T0}, v{T2}')
        A(f'v_mul_u32_u24 v{T3}, 1280, v{T1}')
        A(f'v_lshl_add_u32 v{T3}, v{T2}, 4, v{T3}')
        A(f'v_cmp_gt_u32 vcc, 80, v{T2}')
        A(f'v_cmp_gt_u32 s[{S_t2}:{S_t3}], 32, v{T1}')
        A('s_nop 3')
        A(f's_and_b64 vcc, vcc, s[{S_t2}:{S_t3}]')
        A(f'v_mov_b32 v{T0}, {BIG}')
        A('s_nop 0')
        A(f'v_cndmask_b32 v{V_XA+i}, v{T0}, v{T3}, vcc')
    A(f'v_and_b32 v{T0}, 31, v{L}')
    A(f'v_mul_u32_u24 v{T0}, 1296, v{T0}')
    A(f'v_lshrrev_b32 v{T1}, 5, v{L}')
    A(f'v_lshl_add_u32 v{V_RB}, v{T1}, 4, v{T0}')
    def dma_x(i):
        A(f's_add_u32 m0, s{S_t1}, {4096*i}')
        return f'buffer_load_dwordx4 v{V_XA+i}, {XSR}, s{S_XOFF} offen lds'
    for seg in range(2):
        A(f's_lshl_b32 s{S_t1}, s{S_W}, 10')
        A(f's_add_u32 s{S_t1}, s{S_t1}, {seg*SLOTB}')
        A(f's_mov_b32 s{S_XOFF}, {seg*32*1280}')
        for i in range(11):
            ins = dma_x(i); A('s_nop 0'); A(ins)
        for k in range(3):
            pass
    tl(A, 1)
    A(f's_mov_b32 s{S_SEG}, 0')
    A(f's_mov_b32 s{S_SLOT}, 0')
    A(f's_mov_b32 s{S_DSLOT}, {2*SLOTB}')
    A(f's_mov_b32 s{S_XOFF}, {2*32*1280}')
    A(f's_sub_u32 s{S_OUT}, s{S_OUT}, s{S_OSTR}')
    def body(par, first=False):
        acc, pacc = V_ACC+16*par, V_ACC+16*(1-par)
        if first:
            A('s_waitcnt vmcnt(%d)' % (12 if TL_ON[0] else 11))
        else:
            A('s_waitcnt vmcnt(11)')
        A('s_barrier')
        A(f'v_add_u32 v{V_RD}, s{S_SLOT}, v{V_RB}')
        A(f's_max_i32 s{S_t0}, s{S_SEG}, 1')
        A(f's_sub_u32 s{S_t0}, s{S_t0}, 1')
        A(f'v_mov_b32 v{V_PV}, s{S_t0}')
        A(f's_lshl_b32 s{S_t1}, s{S_W}, 10')
        A(f's_add_u32 s{S_t1}, s{S_t1}, s{S_DSLOT}')
        for t in range(NPRE):
            A(f'ds_read_b128 {vr(V_B+4*t,4)}, v{V_RD} offset:{32*t}')
        A(f'buffer_store_dword v{V_PV}, v{V_FL}, {WSR}, s{S_PROGO} offen sc1')
        issued = NPRE
        extra = []
        for t in range(40):
            A(f's_waitcnt lgkmcnt({min(issued-(t+1), 7)})')
            mfma32(A, vr(acc,16), ar(4*t,4), vr(V_B+4*(t%NPRE),4), '0' if t == 0 else vr(acc,16))
            if issued < 40:
                A(f'ds_read_b128 {vr(V_B+4*(issued%NPRE),4)}, v{V_RD} offset:{32*issued}')
                issued += 1
            if 2 <= t < 6:
                k = t-2
                A(f'v_cvt_pk_bf16_f32 v{V_O+2*k}, v{pacc+4*k}, v{pacc+4*k+1}')
                A(f'v_cvt_pk_bf16_f32 v{V_O+2*k+1}, v{pacc+4*k+2}, v{pacc+4*k+3}')
            if t == 7:
                A(f'buffer_store_dwordx4 {vr(V_O,4)}, v{V_ST}, {WSR}, s{S_OUT} offen sc1')
                A(f'buffer_store_dwordx4 {vr(V_O+4,4)}, v{V_ST}, {WSR}, s{S_OUT} offen offset:1024 sc1')
            if 10 <= t < 21:
                ins = dma_x(t-10); A('s_nop 0'); A(ins)
        A(f's_add_u32 s{S_SEG}, s{S_SEG}, 1')
        A(f's_add_u32 s{S_OUT}, s{S_OUT}, s{S_OSTR}')
        A(f's_add_u32 s{S_XOFF}, s{S_XOFF}, {32*1280}')
        for r in (S_SLOT, S_DSLOT):
            A(f's_add_u32 s{r}, s{r}, {SLOTB}')
            A(f's_cmp_eq_u32 s{r}, {3*SLOTB}')
            A(f's_cselect_b32 s{r}, 0, s{r}')
    return body

def gen_phase1_loop(A):
    body = gen_phase1(A)
    L = 'L_p1_loop'
    A(f's_mov_b32 s43, s{S_OUT}')
    A(f's_mov_b32 s{S_OUT}, {BIG}')
    body(0, first=True)
    A(f's_add_u32 s{S_OUT}, s43, s{S_OSTR}')
    body(1, first=False)
    A(f'{L}:')
    body(0)
    body(1)
    A(f's_cmp_lt_u32 s{S_SEG}, 64')
    A(f's_cbranch_scc1 {L}')
    A('s_nop 15')
    pacc = V_ACC+16
    for k in range(4):
        A(f'v_cvt_pk_bf16_f32 v{V_O+2*k}, v{pacc+4*k}, v{pacc+4*k+1}')
        A(f'v_cvt_pk_bf16_f32 v{V_O+2*k+1}, v{pacc+4*k+2}, v{pacc+4*k+3}')
    A(f'buffer_store_dwordx4 {vr(V_O,4)}, v{V_ST}, {WSR}, s{S_OUT} offen sc1')
    A(f'buffer_store_dwordx4 {vr(V_O+4,4)}, v{V_ST}, {WSR}, s{S_OUT} offen offset:1024 sc1')
    A('s_waitcnt vmcnt(0)')
    A('s_barrier')
    A(f'v_mov_b32 v{V_PV}, 64')
    A(f'buffer_store_dword v{V_PV}, v{V_FL}, {WSR}, s{S_PROGO} offen sc1')
    A('L_p1_end:')

if __name__ == '__main__':
    A = Asm(); K = NAME + '_kernel'
    kernel_begin(A, K)
    A('s_cmp_ge_u32 s2, 128')
    A('s_cbranch_scc1 L_end')
    A('s_load_dwordx2 s[4:5], s[0:1], 104')
    A('v_lshrrev_b32 v1, 6, v0')
    A('s_nop 0')
    A(f'v_readfirstlane_b32 s{S_W}, v1')
    A('s_waitcnt lgkmcnt(0)')
    setsrd(A, S_WS, 4, 0x10000000)
    A(f's_mov_b32 s{S_BID}, s2')
    gen_phase1_loop(A)
    A('s_waitcnt vmcnt(0)')
    A('L_end:')
    A('s_endpgm')
    open(sys.argv[1], 'w').write(file_text(['; @launch grid=(128,1,1) block=(256,1,1) lds=163840'], A.text(), kernel_desc(K)))
```

```python
from asmlib import *
from ws_layout import *
import sys, struct
from bulk2 import wait_words, f2u
from bulk1 import setsrd
S_WS, S_X, S_J, S_W, S_TO, S_DBG = 8, 16, 17, 20, 22, 28
S_T = 12
S_T2 = 24
S_t0, S_t1, S_t2, S_t3 = 30, 31, 32, 33
S_BID = 34
S_H, S_SEG, S_STEP6, S_XB = 36, 37, 38, 39
S_SCL = 42
S_MK = 44
S_A, S_B, S_C = 52, 53, 54
SLEEPN = [32]
WSR = f's[{S_WS}:{S_WS+3}]'
BIG = 0x40000000
SCL = (128 ** -0.5) * 1.4426950408889634
def mfma(A, d, a, b, c): A(f'v_mfma_f32_16x16x32_bf16 {d}, {a}, {b}, {c}')
def mfma32(A, d, a, b, c): A(f'v_mfma_f32_32x32x16_bf16 {d}, {a}, {b}, {c}')

def gen_xattn(A):
    V_L, V_I, V_G = 1, 2, 3
    V_T = 4
    V_QA, V_MA, V_VA, V_VMA, V_OA, V_LIN, V_PA = 12, 13, 14, 15, 16, 17, 18
    V_GT = 20
    V_MX, V_SU = 22, 24
    V_NINF = 26
    V_Q = 32
    V_K = 64
    V_M = 96
    V_S = 112
    V_PX = 132
    V_PM = 140
    V_VX = 148
    V_VM = 164
    V_O = 180
    V_OUT = 196
    T0, T1, T2, T3 = V_T, V_T+1, V_T+2, V_T+3
    A.c('==== phase 3: x attention ====')
    A(f'v_and_b32 v{V_L}, 63, v0')
    A(f'v_and_b32 v{V_I}, 15, v0')
    A(f'v_bfe_u32 v{V_G}, v0, 4, 2')
    A(f's_mul_i32 s{S_t0}, s{S_XB}, 48')
    A(f's_sub_u32 s{S_t1}, s{S_J}, 20')
    A(f's_lshl_b32 s{S_t1}, s{S_t1}, 2')
    A(f's_add_u32 s{S_t0}, s{S_t0}, s{S_t1}')
    A(f's_add_u32 s{S_t0}, s{S_t0}, s{S_W}')
    A(f's_and_b32 s{S_H}, s{S_t0}, 31')
    A(f's_lshr_b32 s{S_SEG}, s{S_t0}, 5')
    A(f's_mov_b32 s{S_SCL}, {hex(f2u(SCL))}')
    A(f's_mov_b32 s{S_SCL+1}, {hex(f2u(SCL))}')
    A(f'v_mov_b32 v{V_NINF}, 0xff800000')
    A(f'v_lshrrev_b32 v{T0}, 1, v{V_G}')
    A(f'v_lshlrev_b32 v{T1}, 10, v{T0}')
    A(f'v_and_b32 v{T2}, 1, v{V_G}')
    A(f'v_lshl_add_u32 v{T1}, v{T2}, 9, v{T1}')
    A(f'v_lshl_add_u32 v{V_QA}, v{V_I}, 4, v{T1}')
    A(f'v_and_b32 v{T3}, 7, v{V_I}')
    A(f'v_lshlrev_b32 v{T1}, 8, v{T0}')
    A(f'v_lshl_add_u32 v{T1}, v{T3}, 5, v{T1}')
    A(f'v_lshl_add_u32 v{V_MA}, v{T2}, 4, v{T1}')
    A(f's_mul_i32 s{S_A}, s{S_W}, 12288')
    A(f'v_bfe_u32 v{T0}, v{V_L}, 2, 2')
    A(f'v_and_b32 v{T1}, 3, v{V_L}')
    A(f'v_lshl_add_u32 v{T2}, v{V_G}, 2, v{T0}')
    A(f'v_lshlrev_b32 v{T2}, 4, v{T2}')
    A(f'v_lshrrev_b32 v{T3}, 1, v{T1}')
    A(f'v_lshl_add_u32 v{T2}, v{T3}, 10, v{T2}')
    A(f'v_and_b32 v{T3}, 1, v{T1}')
    A(f'v_lshl_add_u32 v{T2}, v{T3}, 9, v{T2}')
    A(f'v_add_u32 v{V_VA}, s{S_A}, v{T2}')
    A(f'v_and_b32 v{T2}, 1, v{V_G}')
    A(f'v_lshl_add_u32 v{T2}, v{T2}, 2, v{T0}')
    A(f'v_lshlrev_b32 v{T2}, 5, v{T2}')
    A(f'v_lshrrev_b32 v{T3}, 1, v{V_G}')
    A(f'v_lshl_add_u32 v{T2}, v{T3}, 11, v{T2}')
    A(f'v_lshrrev_b32 v{T3}, 1, v{T1}')
    A(f'v_lshl_add_u32 v{T2}, v{T3}, 8, v{T2}')
    A(f'v_and_b32 v{T3}, 1, v{T1}')
    A(f'v_lshl_add_u32 v{T2}, v{T3}, 4, v{T2}')
    A(f'v_add_u32 v{T2}, s{S_A}, v{T2}')
    A(f'v_add_u32 v{V_VMA}, 8192, v{T2}')
    A(f'v_lshlrev_b32 v{T0}, 9, v{V_G}')
    A(f'v_lshl_add_u32 v{V_OA}, v{V_I}, 4, v{T0}')
    A(f'v_lshlrev_b32 v{V_LIN}, 4, v{V_L}')
    A(f'v_cmp_gt_u32 vcc, 4, v{V_L}')
    A(f's_lshl_b32 s{S_t0}, s{S_H}, 9')
    A(f'v_lshlrev_b32 v{T0}, 7, v{V_L}')
    A(f'v_add_u32 v{T0}, s{S_t0}, v{T0}')
    A(f'v_mov_b32 v{T1}, {BIG}')
    A(f'v_cndmask_b32 v{V_PA}, v{T1}, v{T0}, vcc')
    for q in range(4):
        A(f'v_mov_b32 v{V_VM+4*q+2}, 0'); A(f'v_mov_b32 v{V_VM+4*q+3}, 0')
    for qt in range(2):
        A(f'v_mov_b32 v{V_PM+4*qt+2}, 0'); A(f'v_mov_b32 v{V_PM+4*qt+3}, 0')
    A(f'v_mov_b32 v{V_PX+2}, 0'); A(f'v_mov_b32 v{V_PX+3}, 0')
    A(f'v_lshlrev_b32 v{T0}, 2, v{V_G}')
    A(f'v_sub_u32 v{T0}, v{V_I}, v{T0}')
    for r in range(4):
        A(f'v_cmp_le_i32 s[{S_MK+2*r}:{S_MK+2*r+1}], {r}, v{T0}')
    A(f'v_cmp_gt_u32 vcc, 3, v{V_L}')
    A(f'v_lshlrev_b32 v{T0}, 12, v{V_L}')
    A(f's_lshl_b32 s{S_t0}, s{S_H}, 7')
    A(f'v_add_u32 v{T0}, s{S_t0}, v{T0}')
    A(f'v_mov_b32 v{T1}, {BIG}')
    A(f'v_cndmask_b32 v{T0}, v{T1}, v{T0}, vcc')
    A(f's_mov_b64 s[{S_t2}:{S_t3}], vcc')
    A(f's_mov_b32 s{S_t0}, {C_PROG1}')
    A('L_x_w1:')
    A(f'buffer_load_dword v{T1}, v{T0}, {WSR}, s{S_t0} offen sc1')
    A('s_waitcnt vmcnt(0)')
    A(f'v_cmp_gt_u32 vcc, 64, v{T1}')
    A('s_nop 3')
    A(f's_and_b64 vcc, vcc, s[{S_t2}:{S_t3}]')
    A('s_cbranch_vccz L_x_unit')
    A('s_sleep 32')
    A(f's_sub_u32 s{S_TO}, s{S_TO}, 1')
    A('s_cbranch_scc0 L_x_w1')
    A('s_branch L_timeout')
    tl(A, 4)
    A('L_x_unit:')
    A(f's_lshl_b32 s{S_t0}, s{S_SEG}, 5')
    A(f's_add_u32 s{S_t0}, s{S_t0}, s{S_H}')
    A(f's_lshl_b32 s{S_B}, s{S_t0}, 13')
    A(f's_add_u32 s{S_t1}, s{S_B}, {WS_QX}')
    for qt in range(2):
        for s4 in range(4):
            A(f's_add_u32 s{S_t2}, s{S_t1}, {s4*2048 + qt*256}')
            A(f'buffer_load_dwordx4 {vr(V_Q+16*qt+4*s4,4)}, v{V_QA}, {WSR}, s{S_t2} offen sc1')
    A(f's_add_u32 s{S_t1}, s{S_B}, {WS_KX}')
    for kt in range(2):
        for s4 in range(4):
            A(f's_add_u32 s{S_t2}, s{S_t1}, {s4*2048 + kt*256}')
            A(f'buffer_load_dwordx4 {vr(V_K+16*kt+4*s4,4)}, v{V_QA}, {WSR}, s{S_t2} offen sc1')
    A(f's_add_u32 s{S_t1}, s{S_B}, {WS_VX}')
    for u in range(8):
        A(f's_add_u32 m0, s{S_A}, {u*1024}')
        A(f's_add_u32 s{S_t2}, s{S_t1}, {u*1024}')
        A(f'buffer_load_dwordx4 v{V_LIN}, {WSR}, s{S_t2} offen sc1 lds')
    A(f's_lshl_b32 s{S_t1}, s{S_SEG}, 11')
    A(f's_add_u32 s{S_t1}, s{S_t1}, {WS_GATE}')
    A(f'v_lshlrev_b32 v{T0}, 4, v{V_I}')
    A(f'buffer_load_ushort v{V_GT}, v{T0}, {WSR}, s{S_t1} offen sc1')
    A(f'buffer_load_ushort v{V_GT+1}, v{T0}, {WSR}, s{S_t1} offen offset:256 sc1')
    A(f's_add_u32 s{S_C}, s{S_SEG}, 1')
    A(f's_mov_b32 s{S_t0}, {C_CPROG}')
    A('L_x_w2:')
    A(f'buffer_load_dword v{T1}, v{V_PA}, {WSR}, s{S_t0} offen sc1')
    A('s_waitcnt vmcnt(0)')
    A(f'v_cmp_gt_u32 vcc, s{S_C}, v{T1}')
    A('s_nop 3')
    A('s_and_b64 vcc, vcc, 15')
    A('s_cbranch_vccz L_x_go')
    A(f's_cmp_ge_u32 s{S_SEG}, 58')
    A('s_cbranch_scc1 L_x_w2_short')
    A(f's_sleep {SLEEPN[0]}')
    A('L_x_w2_short:')
    A('s_sleep 1')
    A(f's_sub_u32 s{S_TO}, s{S_TO}, 1')
    A('s_cbranch_scc0 L_x_w2')
    A('s_branch L_timeout')
    A('L_x_go:')
    A(f's_lshl_b32 s{S_t0}, s{S_SEG}, 5')
    A(f's_add_u32 s{S_t0}, s{S_t0}, s{S_H}')
    A(f's_lshl_b32 s{S_t1}, s{S_t0}, 11')
    A(f's_add_u32 s{S_t1}, s{S_t1}, {WS_KM}')
    for s4 in range(4):
        A(f'buffer_load_dwordx4 {vr(V_M+4*s4,4)}, v{V_MA}, {WSR}, s{S_t1} offen offset:{512*s4} sc1')
    A(f's_lshl_b32 s{S_t1}, s{S_t0}, 12')
    A(f's_add_u32 s{S_t1}, s{S_t1}, {WS_VM}')
    for u in range(4):
        A(f's_add_u32 m0, s{S_A}, {8192 + u*1024}')
        A(f's_add_u32 s{S_t2}, s{S_t1}, {u*1024}')
        A(f'buffer_load_dwordx4 v{V_LIN}, {WSR}, s{S_t2} offen sc1 lds')
    SX = {(0,0): V_S, (1,0): V_S+8, (1,1): V_S+12}
    SMm = {0: V_S+4, 1: V_S+16}
    for s4 in range(4):
        for (qt, kt), d in SX.items():
            mfma(A, vr(d,4), vr(V_K+16*kt+4*s4,4), vr(V_Q+16*qt+4*s4,4), '0' if s4 == 0 else vr(d,4))
    for qt in range(2):
        A(f'v_lshlrev_b32 v{V_GT+qt}, 16, v{V_GT+qt}')
        A(f'v_mul_f32 v{V_GT+qt}, 0xbfb8aa3b, v{V_GT+qt}')
        A(f'v_exp_f32 v{V_GT+qt}, v{V_GT+qt}')
        A('s_nop 0')
        A(f'v_add_f32 v{V_GT+qt}, 1.0, v{V_GT+qt}')
    A('s_waitcnt vmcnt(4)')
    for s4 in range(4):
        for qt in range(2):
            mfma(A, vr(SMm[qt],4), vr(V_M+4*s4,4), vr(V_Q+16*qt+4*s4,4), '0' if s4 == 0 else vr(SMm[qt],4))
    A('s_nop 7')
    for r in range(4):
        m = f's[{S_MK+2*r}:{S_MK+2*r+1}]'
        A(f'v_cndmask_b32 v{SX[(0,0)]+r}, v{V_NINF}, v{SX[(0,0)]+r}, {m}')
        A(f'v_cndmask_b32 v{SX[(1,1)]+r}, v{V_NINF}, v{SX[(1,1)]+r}, {m}')
    def allreduce(op, reg, tmp):
        for perm in ('v_permlane16_swap_b32', 'v_permlane32_swap_b32'):
            A(f'v_mov_b32 v{tmp}, v{reg}')
            A('s_nop 1')
            A(f'{perm} v{tmp}, v{reg}')
            A(f'{op} v{reg}, v{reg}, v{tmp}')
    for qt in range(2):
        regs = list(range(V_S, V_S+8)) if qt == 0 else list(range(V_S+8, V_S+20))
        mreg = SMm[qt]
        A(f'v_max3_f32 v{V_MX}, v{regs[0]}, v{regs[1]}, v{regs[2]}')
        rr = regs[3:]
        while len(rr) >= 2:
            A(f'v_max3_f32 v{V_MX}, v{V_MX}, v{rr[0]}, v{rr[1]}'); rr = rr[2:]
        if rr: A(f'v_max_f32 v{V_MX}, v{V_MX}, v{rr[0]}')
        allreduce('v_max_f32', V_MX, V_MX+1)
        A(f'v_mul_f32 v{V_MX}, s{S_SCL}, v{V_MX}')
        for r in regs[::2]:
            A(f'v_pk_fma_f32 {vr(r,2)}, {vr(r,2)}, s[{S_SCL}:{S_SCL+1}], {vr(V_MX,2)} op_sel_hi:[1,1,0] neg_lo:[0,0,1] neg_hi:[0,0,1]')
        for r in regs: A(f'v_exp_f32 v{r}, v{r}')
        A('s_nop 0')
        x0 = SX[(qt,0)]
        A(f'v_cvt_pk_bf16_f32 v{V_PX+4*qt}, v{x0}, v{x0+1}')
        A(f'v_cvt_pk_bf16_f32 v{V_PX+4*qt+1}, v{x0+2}, v{x0+3}')
        if qt == 1:
            x1 = SX[(1,1)]
            A(f'v_cvt_pk_bf16_f32 v{V_PX+6}, v{x1}, v{x1+1}')
            A(f'v_cvt_pk_bf16_f32 v{V_PX+7}, v{x1+2}, v{x1+3}')
        A(f'v_cvt_pk_bf16_f32 v{V_PM+4*qt}, v{mreg}, v{mreg+1}')
        A(f'v_cvt_pk_bf16_f32 v{V_PM+4*qt+1}, v{mreg+2}, v{mreg+3}')
        su = V_SU+qt if False else V_T+4+qt
        A(f'v_add_f32 v{T0}, v{mreg}, v{mreg+1}')
        A(f'v_add_f32 v{T1}, v{mreg+2}, v{mreg+3}')
        A(f'v_add_f32 v{T0}, v{T0}, v{T1}')
        A(f'v_mul_f32 v{su}, 0.5, v{T0}')
        for r in regs:
            if mreg <= r < mreg+4: continue
            A(f'v_add_f32 v{su}, v{su}, v{r}')
        allreduce('v_add_f32', su, T0)
        A(f'v_mul_f32 v{su}, v{su}, v{V_GT+qt}')
        A(f'v_rcp_f32 v{su}, v{su}')
    A('s_waitcnt vmcnt(0)')
    A(f's_mul_i32 s{S_t1}, s{S_SEG}, {O_SEG}')
    A(f's_lshl_b32 s{S_t2}, s{S_H}, 13')
    A(f's_add_u32 s{S_t1}, s{S_t1}, s{S_t2}')
    A(f's_add_u32 s{S_t1}, s{S_t1}, {WS_O}')
    for pp in range(4):
        for tt in range(2):
            q = (2*pp+tt) % 4
            A(f'ds_read_b64_tr_b16 {vr(V_VX+4*q,2)}, v{V_VA} offset:{pp*2048 + tt*8}')
            A(f'ds_read_b64_tr_b16 {vr(V_VX+4*q+2,2)}, v{V_VA} offset:{pp*2048 + tt*8 + 256}')
            A(f'ds_read_b64_tr_b16 {vr(V_VM+4*q,2)}, v{V_VMA} offset:{pp*512 + tt*8}')
        A('s_waitcnt lgkmcnt(0)')
        for tt in range(2):
            q = (2*pp+tt) % 4
            for qt in range(2):
                mfma(A, vr(V_O+4*(2*qt+tt),4), vr(V_VX+4*q,4), vr(V_PX+4*qt,4), '0')
        for tt in range(2):
            q = (2*pp+tt) % 4
            for qt in range(2):
                mfma(A, vr(V_O+4*(2*qt+tt),4), vr(V_VM+4*q,4), vr(V_PM+4*qt,4), vr(V_O+4*(2*qt+tt),4))
        A('s_nop 7')
        for qt in range(2):
            su = V_T+4+qt
            for r in range(8):
                A(f'v_mul_f32 v{V_O+8*qt+r}, v{su}, v{V_O+8*qt+r}')
            for k in range(4):
                A(f'v_cvt_pk_bf16_f32 v{V_OUT+4*qt+k}, v{V_O+8*qt+2*k}, v{V_O+8*qt+2*k+1}')
            A(f's_add_u32 s{S_t2}, s{S_t1}, {pp*4*512 + qt*256}')
            A(f'buffer_store_dwordx4 {vr(V_OUT+4*qt,4)}, v{V_OA}, {WSR}, s{S_t2} offen sc1')
        A('s_nop 1')
    A('s_waitcnt vmcnt(0)')
    A(f's_lshl_b32 s{S_t0}, s{S_SEG}, 7')
    A(f's_add_u32 s{S_t0}, s{S_t0}, {C_XCNT}')
    A(f'v_mov_b32 v{T0}, 0')
    A(f'v_mov_b32 v{T1}, 1')
    A('s_mov_b64 exec, 1')
    A(f'buffer_atomic_add v{T1}, v{T0}, {WSR}, s{S_t0} offen')
    A('s_mov_b64 exec, -1')
    A(f's_add_u32 s{S_SEG}, s{S_SEG}, 6')
    A(f's_cmp_lt_u32 s{S_SEG}, 64')
    A('s_cbranch_scc1 L_x_unit')

def gen_outproj(A):
    V_L = 1
    V_T = 2
    V_LIN, V_RW, V_RR, V_OA = 10, 11, 12, 13
    V_W = 16
    V_X = 64
    V_ACC = 112
    V_R = 128
    NR = 12
    T0, T1, T2, T3 = V_T, V_T+1, V_T+2, V_T+3
    def wreg(t): return ar(4*t,4) if t < 64 else vr(V_W+4*(t-64),4)
    def wreg2(t, hf): return ar(4*t+2*hf,2) if t < 64 else vr(V_W+4*(t-64)+2*hf,2)
    A.c('==== phase 3: out projection ====')
    A(f'v_and_b32 v{V_L}, 63, v0')
    A(f's_load_dwordx2 s[4:5], s[0:1], 40')
    A(f's_load_dwordx2 s[6:7], s[0:1], 72')
    A('s_waitcnt lgkmcnt(0)')
    setsrd(A, S_T, 4, 5242880)
    setsrd(A, S_T2, 6, 640*1280)
    A(f's_mul_i32 s{S_A}, s{S_W}, 38912')
    A(f'v_lshrrev_b32 v{T0}, 2, v{V_L}')
    A(f'v_and_b32 v{T1}, 3, v{V_L}')
    A(f's_lshl_b32 s{S_t0}, s{S_J}, 6')
    A(f'v_lshlrev_b32 v{T1}, 4, v{T1}')
    A(f'v_add_u32 v{T1}, s{S_t0}, v{T1}')
    A(f'v_mul_u32_u24 v{T2}, 1280, v{T0}')
    A(f'v_add_u32 v{T2}, v{T2}, v{T1}')
    R_, CQ, AB, GK, TR = V_T+4, V_T+5, V_T+6, V_T+7, V_LIN
    A(f'v_bfe_u32 v{R_}, v{V_L}, 2, 2')
    A(f'v_and_b32 v{CQ}, 3, v{V_L}')
    A(f'v_bfe_u32 v{AB}, v{V_L}, 4, 1')
    A(f'v_lshrrev_b32 v{GK}, 5, v{V_L}')
    A(f'v_lshl_add_u32 v{TR}, v{GK}, 3, v{R_}')
    A(f'v_lshlrev_b32 v{TR}, 6, v{TR}')
    A(f'v_lshl_add_u32 v{TR}, v{AB}, 5, v{TR}')
    A(f'v_lshl_add_u32 v{TR}, v{CQ}, 3, v{TR}')
    A(f'v_add_u32 v{TR}, s{S_A}, v{TR}')
    for rnd in range(2):
        for i in range(38):
            t = 38*rnd + i
            A(f's_add_u32 m0, s{S_A}, {i*1024}')
            if t < 28:
                A(f's_mul_i32 s{S_t0}, s{S_W}, {76*16*1280}')
                A(f's_add_u32 s{S_t0}, s{S_t0}, {t*16*1280}')
                A(f'buffer_load_dwordx4 v{T2}, s[{S_T}:{S_T+3}], s{S_t0} offen lds')
            else:
                lab = A.label('L_o_b'); lab2 = A.label('L_o_d')
                A(f's_cmp_eq_u32 s{S_W}, 3')
                A(f's_cbranch_scc1 {lab}')
                A(f's_mul_i32 s{S_t0}, s{S_W}, {76*16*1280}')
                A(f's_add_u32 s{S_t0}, s{S_t0}, {t*16*1280}')
                A(f'buffer_load_dwordx4 v{T2}, s[{S_T}:{S_T+3}], s{S_t0} offen lds')
                A(f's_branch {lab2}')
                A(f'{lab}:')
                A(f'v_add_u32 v{T3}, {16*(t-28)}, v{T0}')
                A(f'v_mul_u32_u24 v{V_R}, 2731, v{T3}')
                A(f'v_lshrrev_b32 v{V_R}, 16, v{V_R}')
                A(f'v_mul_u32_u24 v{V_R+1}, 24, v{V_R}')
                A(f'v_sub_u32 v{V_R+1}, v{T3}, v{V_R+1}')
                A(f'v_mul_u32_u24 v{V_R}, 20, v{V_R}')
                A(f'v_add_u32 v{V_R}, v{V_R}, v{V_R+1}')
                A(f'v_mul_u32_u24 v{V_R}, 1280, v{V_R}')
                A(f'v_add_u32 v{V_R}, v{V_R}, v{T1}')
                A(f'v_cmp_gt_u32 vcc, 20, v{V_R+1}')
                A(f'v_mov_b32 v{V_R+1}, {BIG}')
                A('s_nop 0')
                A(f'v_cndmask_b32 v{V_R}, v{V_R+1}, v{V_R}, vcc')
                A(f'buffer_load_dwordx4 v{V_R}, s[{S_T2}:{S_T2+3}], 0 offen lds')
                A(f'{lab2}:')
        A('s_waitcnt vmcnt(0)')
        for i in range(38):
            t = 38*rnd + i
            for hf in range(2):
                A(f'ds_read_b64_tr_b16 {wreg2(t, hf)}, v{TR} offset:{i*1024 + hf*256}')
            if i % 4 == 3: A('s_waitcnt lgkmcnt(0)')
        A('s_waitcnt lgkmcnt(0)')
    A('s_barrier')
    A(f'v_lshlrev_b32 v{V_LIN}, 4, v{V_L}')
    A(f's_lshl_b32 s{S_t0}, s{S_W}, 12')
    A(f'v_add_u32 v{V_RW}, s{S_t0}, v{V_LIN}')
    A(f's_lshl_b32 s{S_t0}, s{S_W}, 10')
    A(f'v_add_u32 v{V_RR}, s{S_t0}, v{V_LIN}')
    A(f'v_and_b32 v{T0}, 31, v{V_L}')
    A(f'v_mul_u32_u24 v{T0}, 1280, v{T0}')
    A(f'v_lshrrev_b32 v{T1}, 5, v{V_L}')
    A(f'v_lshl_add_u32 v{T0}, v{T1}, 3, v{T0}')
    A(f's_lshl_b32 s{S_t0}, s{S_J}, 6')
    A(f's_lshl_b32 s{S_t1}, s{S_W}, 4')
    A(f's_add_u32 s{S_t0}, s{S_t0}, s{S_t1}')
    A(f'v_add_u32 v{V_OA}, s{S_t0}, v{T0}')
    A(f's_load_dwordx2 s[4:5], s[0:1], 88')
    A('s_waitcnt lgkmcnt(0)')
    setsrd(A, S_T, 4, 2048*1280)
    A(f'v_mov_b32 v{T0}, 0')
    A(f's_mov_b32 s{S_t0}, {C_BCNT}')
    A('L_o_wb:')
    A(f'buffer_load_dword v{T1}, v{T0}, {WSR}, s{S_t0} offen sc1')
    A('s_waitcnt vmcnt(0)')
    A(f'v_readfirstlane_b32 s{S_t1}, v{T1}')
    A(f's_cmp_ge_u32 s{S_t1}, 128')
    A('s_cbranch_scc1 L_o_wb_ok')
    A('s_sleep 32')
    A(f's_sub_u32 s{S_TO}, s{S_TO}, 1')
    A('s_cbranch_scc0 L_o_wb')
    A('s_branch L_timeout')
    A('L_o_wb_ok:')
    tl(A, 4)
    A(f's_mov_b32 s{S_SEG}, s{S_XB}')
    A(f's_mov_b32 s{S_C}, 0')
    A('L_o_seg:')
    A(f's_lshl_b32 s{S_t0}, s{S_SEG}, 7')
    A(f's_add_u32 s{S_t0}, s{S_t0}, {C_XCNT}')
    A(f'v_mov_b32 v{T0}, 0')
    A(f's_cmp_lg_u32 s{S_W}, 0')
    A('s_cbranch_scc1 L_o_wx_ok')
    A('L_o_wx:')
    A(f'buffer_load_dword v{T1}, v{T0}, {WSR}, s{S_t0} offen sc1')
    A('s_waitcnt vmcnt(0)')
    A(f'v_readfirstlane_b32 s{S_t1}, v{T1}')
    A(f's_cmp_ge_u32 s{S_t1}, 32')
    A('s_cbranch_scc1 L_o_wx_ok')
    A(f's_cmp_ge_u32 s{S_SEG}, 58')
    A('s_cbranch_scc1 L_o_wx_short')
    A(f's_sleep {SLEEPN[0]}')
    A('L_o_wx_short:')
    A('s_sleep 1')
    A(f's_sub_u32 s{S_TO}, s{S_TO}, 1')
    A('s_cbranch_scc0 L_o_wx')
    A('s_branch L_timeout')
    A('L_o_wx_ok:')
    A('s_barrier')
    A(f's_mul_i32 s{S_B}, s{S_SEG}, {O_SEG}')
    A(f's_mul_i32 s{S_t0}, s{S_W}, {76*1024}')
    A(f's_add_u32 s{S_B}, s{S_B}, s{S_t0}')
    A(f's_add_u32 s{S_B}, s{S_B}, {WS_O}')
    def xload(t):
        if t % 4 == 0 and t: A(f's_add_u32 s{S_B}, s{S_B}, 4096')
        A(f'buffer_load_dwordx4 {vr(V_X+4*(t%NR),4)}, v{V_LIN}, {WSR}, s{S_B} offen offset:{(t%4)*1024} sc1')
    for t in range(NR): xload(t)
    issued = NR
    for t in range(76):
        A(f's_waitcnt vmcnt({issued-(t+1)})')
        mfma32(A, vr(V_ACC,16), wreg(t), vr(V_X+4*(t%NR),4), '0' if t == 0 else vr(V_ACC,16))
        if issued < 76:
            xload(issued); issued += 1
    A('s_nop 11')
    A(f'v_add_u32 v{T0}, s{S_C}, v{V_RW}')
    for q in range(4):
        A(f'ds_write_b128 v{T0}, {vr(V_ACC+4*q,4)} offset:{q*1024}')
    A('s_waitcnt lgkmcnt(0)')
    A('s_barrier')
    A(f'v_add_u32 v{T0}, s{S_C}, v{V_RR}')
    for src in range(4):
        A(f'ds_read_b128 {vr(V_R+4*src,4)}, v{T0} offset:{src*4096}')
    A('s_waitcnt lgkmcnt(0)')
    for r in (0, 2):
        A(f'v_pk_add_f32 {vr(V_R+r,2)}, {vr(V_R+r,2)}, {vr(V_R+4+r,2)}')
        A(f'v_pk_add_f32 {vr(V_R+8+r,2)}, {vr(V_R+8+r,2)}, {vr(V_R+12+r,2)}')
    for r in (0, 2):
        A(f'v_pk_add_f32 {vr(V_R+r,2)}, {vr(V_R+r,2)}, {vr(V_R+8+r,2)}')
    A(f'v_cvt_pk_bf16_f32 v{V_R+4}, v{V_R}, v{V_R+1}')
    A(f'v_cvt_pk_bf16_f32 v{V_R+5}, v{V_R+2}, v{V_R+3}')
    A(f's_mul_i32 s{S_t0}, s{S_SEG}, {32*1280}')
    A(f'buffer_store_dwordx2 {vr(V_R+4,2)}, v{V_OA}, s[{S_T}:{S_T+3}], s{S_t0} offen')
    A(f's_xor_b32 s{S_C}, s{S_C}, 16384')
    A(f's_add_u32 s{S_SEG}, s{S_SEG}, 4')
    A(f's_cmp_lt_u32 s{S_SEG}, 64')
    A('s_cbranch_scc1 L_o_seg')

def gen_phase3(A):
    A(f's_lshr_b32 s{S_XB}, s{S_BID}, 5')
    A(f's_and_b32 s{S_J}, s{S_BID}, 31')
    A('s_barrier')
    A(f's_cmp_lt_u32 s{S_J}, 20')
    A('s_cbranch_scc1 L_p3_out')
    gen_xattn(A)
    A('s_branch L_p3_end')
    A('L_p3_out:')
    gen_outproj(A)
    A('L_p3_end:')

if __name__ == '__main__':
    import bulk1, bulk2
    A = Asm(); K = NAME + '_kernel'
    kernel_begin(A, K)
    A('s_cmp_ge_u32 s2, 128')
    A('s_cbranch_scc1 L_end')
    A('s_load_dwordx2 s[4:5], s[0:1], 104')
    A(f's_load_dwordx2 s[{S_DBG}:{S_DBG+1}], s[0:1], 96')
    A('v_lshrrev_b32 v1, 6, v0')
    A('s_nop 0')
    A(f'v_readfirstlane_b32 s{S_W}, v1')
    A('s_waitcnt lgkmcnt(0)')
    setsrd(A, S_WS, 4, 0x10000000)
    A(f's_mov_b32 s{S_BID}, s2')
    A(f's_mov_b32 s{S_TO}, 0x40000')
    bulk1.gen_phase1_loop(A)
    bulk2.gen_phase2(A)
    gen_phase3(A)
    A('s_waitcnt vmcnt(0)')
    A('L_end:')
    A('s_endpgm')
    A('L_timeout:')
    A('v_mov_b32 v1, 60')
    A('v_mov_b32 v2, 0xdead')
    A(f'global_store_dword v1, v2, s[{S_DBG}:{S_DBG+1}]')
    A('s_waitcnt vmcnt(0)')
    A('s_endpgm')
    open(sys.argv[1], 'w').write(file_text(['; @launch grid=(128,1,1) block=(256,1,1) lds=163840'], A.text(), kernel_desc(K)))
```

```python
from asmlib import *
from ws_layout import *
import struct, sys

NSEG = 64
S_WS   = 8
S_T    = 12
S_X, S_J, S_H, S_C, S_W, S_STEP = 16, 17, 18, 19, 20, 21
S_TO   = 22
S_HASITEM = 23
S_DUM  = 24
S_DBG  = 28
S_t0, S_t1, S_t2, S_t3 = 30, 31, 32, 33
S_PAR  = 34
S_SCL = 38
S_KM, S_VM = 40, 41
S_SEG2 = 42
S_CPO = 44
S_PROF = 48
S_PT   = 64
S_D0   = 68
S_M0   = 72
S_VALID = 76
S_QV, S_PR, S_MR, S_XR = 84, 88, 92, 96
V_QKST, V_VST, V_RLD, V_VLD, V_P4, V_P2, V_RS0, V_RS1 = 1, 2, 3, 4, 5, 6, 7, 8
V_MS   = 9
V_M0   = 10
V_LM0  = 100
V_LB   = 16
V_LRW, V_LRR = 17, 18
V_T    = 20
V_NEG  = 28
V_SEL  = 32
V_LKV  = 36
V_PRG  = 37
V_CPF  = 38
V_CPV  = 39
V_PH   = 99
V_LRK  = 19
V_XP3  = 107
V_B    = 40
V_KPUB, V_VPUB = 80, 81
V_XS   = 82
V_KPL  = 83
V_ACV  = 84
V_RSD  = 88
V_DM3A, V_DM3B = 96, 97
V_VPL  = 98
V_XL   = 104
V_XD   = 108
V_ACC  = 120
V_R    = 128
V_VV   = 144
V_KX   = 160
V_S    = 192
V_VOX  = 204
V_VOM  = 216
V_PX   = 228
V_PM   = 232
V_F    = 236
V_O    = 248
V_PO   = 56
V_PO2  = 254
A_QK, A_V, A_O = 0, 80, 120
A_ONE, A_HALF = 168, 172
HOFF = 768
MEMSTRIDE = 2*HOFF + 32
L_KV  = 0
L_MEM = 65536
L_RAREA = 81920
BIG = 0x40000000
CENSUS = 192
SCALE_LOG2E = (128 ** -0.5) * 1.4426950408889634
def f2u(x): return struct.unpack('<I', struct.pack('<f', x))[0]
OPT = set()
DEFAULTS = {'nS': 3, 'gapS': 15, 'rsdelay': 30, 'nX': 2, 'nR': 2, 'nA': 2, 'bsleep': 100}
WSR = f's[{S_WS}:{S_WS+3}]'
def optval(k, d):
    for o in OPT:
        if o.startswith(k+'='): return o.split('=')[1] if isinstance(d, str) else int(o.split('=')[1])
    return DEFAULTS.get(k, d)
def mfma(A, d, a, b, c):
    A(f'v_mfma_f32_16x16x32_bf16 {d}, {a}, {b}, {c}')
def nops(A, n):
    while n > 0:
        k = min(n, 16); A(f's_nop {k-1}'); n -= k

class Prof:
    def __init__(self, on): self.on = on
    def stamp(self, A, idx, trace_only=False):
        if 'trace' in OPT:
            lab = A.label('L_tr')
            A(f's_cmp_lg_u32 s{S_STEP}, {optval("ts", 30)}')
            A(f's_cbranch_scc1 {lab}')
            A(f's_memrealtime s[{S_PT}:{S_PT+1}]')
            A('s_waitcnt lgkmcnt(0)')
            A(f's_mov_b32 s{S_PROF+idx}, s{S_PT}')
            A(f'{lab}:')
            return
        if not self.on or trace_only: return
        A(f's_memtime s[{S_PT}:{S_PT+1}]')
        A('s_waitcnt lgkmcnt(0)')
        A(f's_sub_u32 s{S_PT+3}, s{S_PT}, s{S_PT+2}')
        A(f's_mov_b32 s{S_PT+2}, s{S_PT}')
        A(f's_add_u32 s{S_PROF+idx}, s{S_PROF+idx}, s{S_PT+3}')

PROFCNT = {}
def check(A, regs, tmp=V_T):
    r = list(regs)
    if len(r) <= 5:
        A(f'v_max3_u32 v{tmp}, v{r[0]}, v{r[1]}, v{r[2]}'); r = r[3:]
        if len(r) == 2: A(f'v_max3_u32 v{tmp}, v{tmp}, v{r[0]}, v{r[1]}')
        elif len(r) == 1: A(f'v_max_u32 v{tmp}, v{tmp}, v{r[0]}')
    else:
        A(f'v_max3_u32 v{tmp}, v{r[0]}, v{r[1]}, v{r[2]}')
        A(f'v_max3_u32 v{tmp+1}, v{r[3]}, v{r[4]}, v{r[5]}'); r = r[6:]; cur = 0
        while len(r) >= 2:
            A(f'v_max3_u32 v{tmp+cur}, v{tmp+cur}, v{r[0]}, v{r[1]}'); r = r[2:]; cur ^= 1
        if r: A(f'v_max3_u32 v{tmp}, v{tmp}, v{tmp+1}, v{r[0]}')
        else: A(f'v_max_u32 v{tmp}, v{tmp}, v{tmp+1}')
    A(f'v_cmp_eq_u32 vcc, -1, v{tmp}')

def retry(A, label, key=None):
    if key in PROFCNT:
        k = PROFCNT[key]; A(f's_add_u32 s{S_PROF+k}, s{S_PROF+k}, 1')
    A(f's_sub_u32 s{S_TO}, s{S_TO}, 1')
    A(f's_cbranch_scc0 {label}')
    A('s_branch L_timeout')

def setsrd(A, lo, size):
    A(f's_mov_b32 s{S_T}, s{lo}')
    A(f's_and_b32 s{S_T+1}, s{lo+1}, 0xffff')
    A(f's_mov_b32 s{S_T+2}, {size}')
    A(f's_mov_b32 s{S_T+3}, 0x20000')

def dbl(A, v, tmp, add=0):
    A(f'v_lshrrev_b32 v{tmp}, 13, v{v}')
    A(f'v_lshlrev_b32 v{tmp}, 14, v{tmp}')
    A(f'v_and_b32 v{v}, 8191, v{v}')
    A(f'v_add_u32 v{v}, v{v}, v{tmp}')
    if add: A(f'v_add_u32 v{v}, {add}, v{v}')

def vox_reads(A, slot):
    for kt in range(2):
        for s4 in range(4):
            A(f'ds_read_b128 {vr(V_KX+16*kt+4*s4,4)}, v{V_LKV} offset:{L_KV + slot*16384 + 8192 + 2048*s4 + 256*kt}')
def vox_compute(A, hook=None):
    A('s_waitcnt lgkmcnt(0)')
    if hook: hook()
    if 'skipvox' in OPT: return
    for tt in range(3):
        acc = V_F if tt % 2 == 0 else V_ACC
        for s4 in range(4):
            for kt in range(2):
                c = '0' if s4 == 0 else vr(acc+4*kt,4)
                mfma(A, vr(acc+4*kt,4), vr(V_KX+16*kt+4*s4,4), ar(A_O+16*tt+4*s4,4), c)
            if tt >= 1 and s4 in (1, 2):
                pacc = V_F if (tt-1) % 2 == 0 else V_ACC
                kt = s4-1
                A(f'v_cvt_pk_bf16_f32 v{V_VOX+4*(tt-1)+2*kt}, v{pacc+4*kt}, v{pacc+4*kt+1}')
                A(f'v_cvt_pk_bf16_f32 v{V_VOX+4*(tt-1)+2*kt+1}, v{pacc+4*kt+2}, v{pacc+4*kt+3}')
    A('s_nop 7')
    for kt in range(2):
        A(f'v_cvt_pk_bf16_f32 v{V_VOX+8+2*kt}, v{V_F+4*kt}, v{V_F+4*kt+1}')
        A(f'v_cvt_pk_bf16_f32 v{V_VOX+8+2*kt+1}, v{V_F+4*kt+2}, v{V_F+4*kt+3}')

def vox_tiles(A, tiles, wait=True):
    if wait: A('s_waitcnt lgkmcnt(0)')
    if 'skipvox' in OPT or not tiles: return
    accs = [V_F, V_ACC]
    for n, tt in enumerate(tiles):
        acc = accs[n % 2]
        for s4 in range(4):
            for kt in range(2):
                c = '0' if s4 == 0 else vr(acc+4*kt,4)
                mfma(A, vr(acc+4*kt,4), vr(V_KX+16*kt+4*s4,4), ar(A_O+16*tt+4*s4,4), c)
            if n >= 1 and s4 in (1, 2):
                pt = tiles[n-1]; pacc = accs[(n-1) % 2]; kt = s4-1
                A(f'v_cvt_pk_bf16_f32 v{V_VOX+4*pt+2*kt}, v{pacc+4*kt}, v{pacc+4*kt+1}')
                A(f'v_cvt_pk_bf16_f32 v{V_VOX+4*pt+2*kt+1}, v{pacc+4*kt+2}, v{pacc+4*kt+3}')
    A('s_nop 6')
    pt = tiles[-1]; pacc = accs[(len(tiles)-1) % 2]
    for kt in range(2):
        A(f'v_cvt_pk_bf16_f32 v{V_VOX+4*pt+2*kt}, v{pacc+4*kt}, v{pacc+4*kt+1}')
        A(f'v_cvt_pk_bf16_f32 v{V_VOX+4*pt+2*kt+1}, v{pacc+4*kt+2}, v{pacc+4*kt+3}')

def gen_prologue(A, P):
    A(f's_lshr_b32 s{S_t0}, s{S_J}, 2')
    A(f's_lshl_b32 s{S_H}, s{S_X}, 3')
    A(f's_add_u32 s{S_H}, s{S_H}, s{S_t0}')
    A(f's_and_b32 s{S_C}, s{S_J}, 3')
    A(f's_mov_b32 s{S_TO}, 0x100000')
    A(f's_mov_b32 s{S_SCL}, {hex(f2u(SCALE_LOG2E))}')
    A(f's_mov_b32 s{S_SCL+1}, {hex(f2u(SCALE_LOG2E))}')
    L, I, G = V_T, V_T+1, V_T+2
    T0, T1, T2 = V_T+3, V_T+4, V_T+5
    I7 = V_T+6; T3 = V_T+7
    A(f'v_and_b32 v{L}, 63, v0')
    A(f'v_and_b32 v{I}, 15, v0')
    A(f'v_bfe_u32 v{G}, v0, 4, 2')
    A(f'v_and_b32 v{I7}, 7, v{I}')
    A.c('weights DMA')
    A(f's_load_dwordx4 s[4:7], s[0:1], 16')
    A(f's_waitcnt lgkmcnt(0)')
    A(f'v_lshrrev_b32 v{T0}, 2, v{L}')
    A(f'v_lshlrev_b32 v{T0}, 13, v{T0}')
    A(f'v_and_b32 v{T1}, 3, v{L}')
    A(f'v_lshlrev_b32 v{T1}, 4, v{T1}')
    A(f'v_add_u32 v{T0}, v{T0}, v{T1}')
    A(f's_lshl_b32 s{S_t0}, s{S_H}, 8')
    A(f's_lshl_b32 s{S_t1}, s{S_C}, 6')
    A(f's_add_u32 s{S_t0}, s{S_t0}, s{S_t1}')
    A(f'v_add_u32 v{T0}, s{S_t0}, v{T0}')
    def dma_w(area):
        A(f's_lshl_b32 s{S_t0}, s{S_W}, 17')
        A(f's_lshl_b32 s{S_t1}, s{S_W}, 10')
        A(f's_add_u32 s{S_t1}, s{S_t1}, {area}')
        for i in range(10):
            A(f's_mov_b32 m0, s{S_t1}')
            A(f's_add_u32 s{S_t1}, s{S_t1}, 4096')
            A(f'buffer_load_dwordx4 v{T0}, s[{S_T}:{S_T+3}], s{S_t0} offen lds')
            A(f's_add_u32 s{S_t0}, s{S_t0}, {4*131072}')
    setsrd(A, 4, 5242880); dma_w(0)
    setsrd(A, 6, 5242880); dma_w(40960)
    A(f's_load_dwordx4 s[4:7], s[0:1], 32')
    A(f's_waitcnt lgkmcnt(0)')
    setsrd(A, 4, 5242880); dma_w(81920)
    setsrd(A, 6, 5242880)
    WO = V_B
    for b in range(5):
        A(f'v_add_u32 v{T1}, {64*b}, v{L}')
        A(f'v_mul_u32_u24 v{T2}, 3277, v{T1}')
        A(f'v_lshrrev_b32 v{T2}, 16, v{T2}')
        A(f'v_mul_u32_u24 v{WO+b}, 20, v{T2}')
        A(f'v_sub_u32 v{WO+b}, v{T1}, v{WO+b}')
        A(f'v_lshlrev_b32 v{WO+b}, 4, v{WO+b}')
        A(f'v_mul_u32_u24 v{T2}, 1280, v{T2}')
        A(f'v_add_u32 v{WO+b}, v{WO+b}, v{T2}')
    A(f's_mul_i32 s{S_t0}, s{S_H}, {128*1280}')
    A(f's_mul_i32 s{S_t1}, s{S_C}, 320')
    A(f's_add_u32 s{S_t0}, s{S_t0}, s{S_t1}')
    A(f's_mul_i32 s{S_t1}, s{S_W}, {16*1280}')
    A(f's_add_u32 s{S_t0}, s{S_t0}, s{S_t1}')
    A(f's_mul_i32 s{S_t1}, s{S_W}, 5120')
    A(f's_add_u32 s{S_t1}, s{S_t1}, 122880')
    for hi in range(2):
        for b in range(5):
            A(f's_add_u32 m0, s{S_t1}, {hi*4*5120 + b*1024}')
            A(f's_add_u32 s{S_t2}, s{S_t0}, {hi*4*16*1280}')
            A(f'buffer_load_dwordx4 v{WO+b}, s[{S_T}:{S_T+3}], s{S_t2} offen lds')
    A.c('address regs')
    VALID = f's[{S_VALID}:{S_VALID+1}]'
    VV_ = f's[{S_M0}:{S_M0+1}]'
    A(f'v_cmp_gt_u32 {VALID}, 8, v{I}')
    A(f'v_mov_b32 v{T2}, {BIG}')
    TO = V_B+8
    A(f's_lshr_b32 s{S_t1}, s{S_W}, 1')
    A(f's_lshl_b32 s{S_t0}, s{S_t1}, 11')
    A(f's_lshl_b32 s{S_t1}, s{S_C}, 9')
    A(f's_add_u32 s{S_t0}, s{S_t0}, s{S_t1}')
    A(f's_and_b32 s{S_t1}, s{S_W}, 1')
    A(f's_lshl_b32 s{S_t1}, s{S_t1}, 8')
    A(f's_add_u32 s{S_t0}, s{S_t0}, s{S_t1}')
    A(f'v_lshlrev_b32 v{TO}, 5, v{I7}')
    A(f'v_lshl_add_u32 v{TO}, v{G}, 3, v{TO}')
    A(f'v_add_u32 v{TO}, s{S_t0}, v{TO}')
    S_HB = S_D0
    A(f's_lshr_b32 s{S_t0}, s{S_H}, 1')
    A(f's_lshl_b32 s{S_t0}, s{S_t0}, 14')
    A(f's_and_b32 s{S_t1}, s{S_H}, 1')
    A(f's_lshl_b32 s{S_t1}, s{S_t1}, 12')
    A(f's_add_u32 s{S_HB}, s{S_t0}, s{S_t1}')
    A(f'v_add_u32 v{T0}, s{S_HB}, v{TO}')
    A(f'v_cndmask_b32 v{V_QKST}, v{T2}, v{T0}, {VALID}')
    A(f's_cmp_ge_u32 s{S_W}, 2')
    A(f's_cselect_b64 {VV_}, -1, 0')
    A(f's_xor_b64 {VV_}, {VV_}, {VALID}')
    A(f'v_add_u32 v{T0}, {V_RING_OFF}, v{T0}')
    A(f'v_cndmask_b32 v{V_VST}, v{T2}, v{T0}, {VV_}')
    A(f'v_lshlrev_b32 v{T0}, 4, v{L}')
    A(f'v_cmp_gt_u32 vcc, 32, v{L}')
    A(f's_lshl_b32 s{S_t0}, s{S_C}, 9')
    A(f's_lshl_b32 s{S_t1}, s{S_H}, 11')
    A(f's_add_u32 s{S_t1}, s{S_t1}, s{S_t0}')
    A(f'v_add_u32 v{T1}, s{S_t1}, v{T0}')
    A(f'v_cndmask_b32 v{V_KPUB}, v{T2}, v{T1}, vcc')
    A(f's_add_u32 s{S_t1}, s{S_HB}, s{S_t0}')
    A(f's_add_u32 s{S_t1}, s{S_t1}, 2048')
    A(f'v_add_u32 v{T1}, s{S_t1}, v{T0}')
    A(f'v_cndmask_b32 v{V_KPL}, v{T2}, v{T1}, vcc')
    A(f's_lshl_b32 s{S_t0}, s{S_C}, 10')
    A(f's_lshl_b32 s{S_t1}, s{S_H}, 12')
    A(f's_add_u32 s{S_t1}, s{S_t1}, s{S_t0}')
    A(f'v_add_u32 v{V_VPUB}, s{S_t1}, v{T0}')
    A(f's_add_u32 s{S_t1}, s{S_HB}, s{S_t0}')
    A(f's_add_u32 s{S_t1}, s{S_t1}, {V_RING_OFF}')
    A(f'v_add_u32 v{V_VPL}, s{S_t1}, v{T0}')
    A(f's_lshl_b32 s{S_t1}, s{S_W}, 10')
    A(f's_add_u32 s{S_t0}, s{S_HB}, s{S_t1}')
    A(f'v_add_u32 v{V_RLD}, s{S_t0}, v{T0}')
    A(f's_add_u32 s{S_t1}, s{S_t1}, {L_RAREA}')
    A(f'v_add_u32 v{V_LRW}, s{S_t1}, v{T0}')
    A(f'v_lshrrev_b32 v{T0}, 3, v{I}')
    A(f'v_lshlrev_b32 v{T0}, 11, v{T0}')
    A(f'v_lshrrev_b32 v{T1}, 1, v{G}')
    A(f'v_lshl_add_u32 v{T0}, v{T1}, 8, v{T0}')
    A(f'v_lshl_add_u32 v{T0}, v{I7}, 5, v{T0}')
    A(f'v_and_b32 v{T1}, 1, v{G}')
    A(f'v_lshl_add_u32 v{T0}, v{T1}, 4, v{T0}')
    A(f'v_add_u32 v{V_LRR}, {L_RAREA}, v{T0}')
    A(f'v_and_b32 v{V_LRK}, 2047, v{T0}')
    A(f'v_add_u32 v{V_LRK}, {L_RAREA + 2048}, v{V_LRK}')
    A(f's_add_u32 s{S_t0}, s{S_HB}, {V_RING_OFF}')
    A(f'v_add_u32 v{V_VLD}, s{S_t0}, v{T0}')
    A(f's_mul_i32 s{S_t0}, s{S_H}, 10240')
    A(f's_mul_i32 s{S_t1}, s{S_C}, 2560')
    A(f's_add_u32 s{S_t0}, s{S_t0}, s{S_t1}')
    A(f's_lshl_b32 s{S_t1}, s{S_W}, 9')
    A(f's_add_u32 s{S_t1}, s{S_t1}, s{S_t0}')
    A(f'v_lshlrev_b32 v{T0}, 6, v{I}')
    A(f'v_lshl_add_u32 v{T0}, v{G}, 4, v{T0}')
    A(f'v_add_u32 v{T0}, s{S_t1}, v{T0}')
    dbl(A, T0, T1)
    A(f'v_cndmask_b32 v{V_P4}, v{T2}, v{T0}, {VALID}')
    A(f's_lshl_b32 s{S_t1}, s{S_W}, 8')
    A(f's_add_u32 s{S_t1}, s{S_t1}, 2048')
    A(f's_add_u32 s{S_t1}, s{S_t1}, s{S_t0}')
    A(f'v_lshlrev_b32 v{T0}, 5, v{I}')
    A(f'v_lshl_add_u32 v{T0}, v{G}, 3, v{T0}')
    A(f'v_add_u32 v{T0}, s{S_t1}, v{T0}')
    dbl(A, T0, T1)
    A(f's_cmp_lt_u32 s{S_W}, 2')
    A(f's_cselect_b64 s[{S_t2}:{S_t3}], {VALID}, 0')
    A(f'v_cndmask_b32 v{V_P2}, v{T2}, v{T0}, s[{S_t2}:{S_t3}]')
    A(f's_lshl_b32 s{S_t0}, s{S_W}, 5')
    A(f's_add_u32 s{S_t0}, s{S_t0}, s{S_J}')
    A(f's_cmp_lt_u32 s{S_t0}, 80')
    A(f's_cselect_b32 s{S_HASITEM}, 1, 0')
    A(f's_cselect_b32 s{S_t0}, s{S_t0}, 0')
    A(f's_lshl_b32 s{S_t1}, s{S_t0}, 7')
    A(f's_cmp_eq_u32 s{S_HASITEM}, 1')
    A(f's_cselect_b64 {VV_}, -1, 0')
    for u, dst in enumerate((V_RS0, V_RS1)):
        A(f'v_add_u32 v{T0}, {4*u}, v{G}')
        A(f's_lshl_b32 s{S_t2}, s{S_X}, 3')
        A(f'v_add_u32 v{T0}, s{S_t2}, v{T0}')
        A(f'v_mul_u32_u24 v{T0}, 10240, v{T0}')
        A(f'v_lshl_add_u32 v{T0}, v{I}, 3, v{T0}')
        A(f'v_add_u32 v{T0}, s{S_t1}, v{T0}')
        dbl(A, T0, T1)
        A(f'v_cndmask_b32 v{dst}, v{T2}, v{T0}, {VV_}')
    A(f'v_cmp_eq_u32 vcc, 0, v{G}')
    A('s_nop 3')
    A(f's_and_b64 {VV_}, {VV_}, vcc')
    A(f's_mul_i32 s{S_t2}, s{S_X}, 10240')
    A(f's_add_u32 s{S_t2}, s{S_t2}, s{S_t1}')
    A(f'v_lshlrev_b32 v{T0}, 3, v{I}')
    A(f'v_add_u32 v{T0}, s{S_t2}, v{T0}')
    dbl(A, T0, T1)
    A(f'v_cndmask_b32 v{V_MS}, v{T2}, v{T0}, {VV_}')
    for k, dst in enumerate((V_XS, V_XL, V_XL+1, V_XL+2)):
        A(f's_add_u32 s{S_t2}, s{S_X}, {k}')
        A(f's_and_b32 s{S_t2}, s{S_t2}, 3')
        A(f's_mul_i32 s{S_t2}, s{S_t2}, 20480')
        A(f's_lshl_b32 s{S_t3}, s{S_t1}, 1')
        A(f's_add_u32 s{S_t2}, s{S_t2}, s{S_t3}')
        A(f'v_lshlrev_b32 v{T0}, 4, v{I}')
        A(f'v_add_u32 v{T0}, s{S_t2}, v{T0}')
        dbl(A, T0, T1)
        if 'xtag' in OPT and k > 0: A(f'v_mov_b32 v{dst}, v{T0}')
        else: A(f'v_cndmask_b32 v{dst}, v{T2}, v{T0}, {VV_}')
    A(f'v_mov_b32 v{V_PH}, 0')
    A(f'v_lshlrev_b32 v{T0}, 5, v{G}')
    A(f'v_add_u32 v{T0}, s{S_J}, v{T0}')
    A(f'v_cmp_gt_u32 vcc, 80, v{T0}')
    A(f'v_lshlrev_b32 v{T0}, 8, v{T0}')
    A(f'v_lshl_add_u32 v{T0}, v{I}, 4, v{T0}')
    A(f's_mul_i32 s{S_t2}, s{S_X}, 20480')
    A(f'v_add_u32 v{T0}, s{S_t2}, v{T0}')
    dbl(A, T0, T1)
    A(f's_cmp_eq_u32 s{S_W}, 3')
    A(f's_cselect_b64 s[{S_t2}:{S_t3}], vcc, 0')
    A(f'v_cndmask_b32 v{V_XP3}, v{T2}, v{T0}, s[{S_t2}:{S_t3}]')
    Q, LN, PT, ROW, COL = V_B+8, V_B+9, V_B+10, V_B+11, V_B+12
    M_, R2, C2 = V_B+13, V_B+14, V_B+15
    NAG = 4 if 'ag3' in OPT else 3
    for k in range(NAG):
        if 'ag3' in OPT:
            A(f's_mul_i32 s{S_t0}, s{S_W}, 214')
            A(f's_add_u32 s{S_t1}, s{S_t0}, 213')
            A(f's_min_u32 s{S_t1}, s{S_t1}, 639')
            A(f's_add_u32 s{S_t0}, s{S_t0}, {64*k}')
            A(f'v_add_u32 v{Q}, s{S_t0}, v{L}')
            A(f'v_min_u32 v{Q}, s{S_t1}, v{Q}')
        else:
            A(f's_mul_i32 s{S_t0}, s{S_W}, 160')
            A(f's_add_u32 s{S_t0}, s{S_t0}, {64*k}')
            A(f'v_add_u32 v{Q}, s{S_t0}, v{L}')
            if k == 2:
                A(f'v_cmp_le_u32 vcc, 32, v{L}')
                A(f'v_subrev_u32 v{T1}, 32, v{Q}')
                A('s_nop 0')
                A(f'v_cndmask_b32 v{Q}, v{Q}, v{T1}, vcc')
        A(f's_mul_i32 s{S_t0}, s{S_X}, 10240')
        A(f'v_lshlrev_b32 v{V_M0+k}, 4, v{Q}')
        A(f'v_add_u32 v{V_M0+k}, s{S_t0}, v{V_M0+k}')
        dbl(A, V_M0+k, T1)
        A(f'v_lshrrev_b32 v{LN}, 3, v{Q}')
        A(f'v_and_b32 v{PT}, 7, v{Q}')
        A(f'v_mul_u32_u24 v{T0}, 3277, v{LN}')
        A(f'v_lshrrev_b32 v{T0}, 16, v{T0}')
        A(f'v_mul_u32_u24 v{T1}, 20, v{T0}')
        A(f'v_sub_u32 v{LN}, v{LN}, v{T1}')
        A(f'v_mul_u32_u24 v{COL}, 160, v{T0}')
        A(f'v_and_b32 v{T0}, 3, v{LN}')
        A(f'v_lshlrev_b32 v{T0}, 1, v{T0}')
        A(f'v_lshrrev_b32 v{T1}, 2, v{PT}')
        A(f'v_add_u32 v{ROW}, v{T0}, v{T1}')
        A(f'v_lshrrev_b32 v{T0}, 2, v{LN}')
        A(f'v_lshlrev_b32 v{T0}, 5, v{T0}')
        A(f'v_and_b32 v{T1}, 3, v{PT}')
        A(f'v_lshl_add_u32 v{T0}, v{T1}, 3, v{T0}')
        A(f'v_subrev_u32 v{M_}, 16, v{LN}')
        A(f'v_and_b32 v{R2}, 1, v{M_}')
        A(f'v_lshlrev_b32 v{R2}, 2, v{R2}')
        A(f'v_lshrrev_b32 v{T1}, 1, v{PT}')
        A(f'v_add_u32 v{R2}, v{R2}, v{T1}')
        A(f'v_lshrrev_b32 v{C2}, 1, v{M_}')
        A(f'v_lshlrev_b32 v{C2}, 4, v{C2}')
        A(f'v_and_b32 v{T1}, 1, v{PT}')
        A(f'v_lshl_add_u32 v{C2}, v{T1}, 3, v{C2}')
        A(f'v_add_u32 v{C2}, 128, v{C2}')
        A(f'v_cmp_le_u32 vcc, 16, v{LN}')
        A('s_nop 1')
        A(f'v_cndmask_b32 v{ROW}, v{ROW}, v{R2}, vcc')
        A(f'v_cndmask_b32 v{T0}, v{T0}, v{C2}, vcc')
        A(f'v_add_u32 v{COL}, v{COL}, v{T0}')
        A(f'v_lshlrev_b32 v{T0}, 1, v{COL}')
        A(f'v_add_u32 v{T1}, {HOFF-640}, v{T0}')
        A(f'v_cmp_le_u32 vcc, 320, v{COL}')
        A(f'v_mul_u32_u24 v{ROW}, {MEMSTRIDE}, v{ROW}')
        A('s_nop 0')
        A(f'v_cndmask_b32 v{T0}, v{T0}, v{T1}, vcc')
        A(f'v_add_u32 v{V_LM0+k}, v{ROW}, v{T0}')
        A(f'v_add_u32 v{V_LM0+k}, {L_MEM}, v{V_LM0+k}')
    A(f'v_mul_u32_u24 v{T0}, {MEMSTRIDE}, v{I7}')
    A(f'v_lshrrev_b32 v{T1}, 3, v{I}')
    A(f'v_mul_u32_u24 v{T1}, {HOFF}, v{T1}')
    A(f'v_add_u32 v{T0}, v{T0}, v{T1}')
    A(f'v_lshl_add_u32 v{V_LB}, v{G}, 4, v{T0}')
    A(f'v_add_u32 v{V_LB}, {L_MEM}, v{V_LB}')
    A(f'v_lshrrev_b32 v{T0}, 1, v{G}')
    A(f'v_lshlrev_b32 v{T0}, 10, v{T0}')
    A(f'v_and_b32 v{T1}, 1, v{G}')
    A(f'v_lshl_add_u32 v{T0}, v{T1}, 9, v{T0}')
    A(f'v_lshl_add_u32 v{V_LKV}, v{I}, 4, v{T0}')
    A(f'v_lshlrev_b32 v{V_DM3A}, 4, v{L}')
    A(f'v_lshlrev_b32 v{T0}, 12, v{L}')
    A(f's_lshl_b32 s{S_t0}, s{S_H}, 7')
    A(f'v_add_u32 v{T0}, s{S_t0}, v{T0}')
    A(f'v_cmp_gt_u32 vcc, 2, v{L}')
    A(f'v_mov_b32 v{T1}, {BIG}')
    A('s_nop 0')
    A(f'v_cndmask_b32 v{V_PRG}, v{T1}, v{T0}, vcc')
    A(f's_lshl_b32 s{S_t0}, s{S_H}, 2')
    A(f's_add_u32 s{S_t0}, s{S_t0}, s{S_C}')
    A(f's_lshl_b32 s{S_t0}, s{S_t0}, 7')
    A(f'v_mov_b32 v{T0}, s{S_t0}')
    A(f'v_cmp_eq_u32 vcc, 192, v0')
    A('s_nop 1')
    A(f'v_cndmask_b32 v{V_CPF}, v{T1}, v{T0}, vcc')
    for k in range(4): A(f'v_mov_b32 v{V_NEG+k}, -1')
    A(f'v_mov_b32 v{V_SEL}, 0')
    A(f'v_mov_b32 v{V_SEL+1}, 0')
    for m, (reg, val) in enumerate(((0, 0x3F80), (0, 0x3F800000), (1, 0x3F80), (1, 0x3F800000))):
        A(f'v_cmp_eq_u32 vcc, {m}, v{I}')
        A(f'v_mov_b32 v{T0}, {hex(val)}')
        A('s_nop 0')
        A(f'v_cndmask_b32 v{V_SEL+reg}, v{V_SEL+reg}, v{T0}, vcc')
    A(f'v_mov_b32 v{V_SEL+2}, v{V_SEL}')
    A(f'v_mov_b32 v{V_SEL+3}, v{V_SEL+1}')
    for tt in range(3):
        A(f'v_mov_b32 v{V_VOM+4*tt+2}, 0')
        A(f'v_mov_b32 v{V_VOM+4*tt+3}, 0')
    A(f'v_mov_b32 v{V_PM+2}, 0')
    A(f'v_mov_b32 v{V_PM+3}, 0')
    A(f'v_mov_b32 v{T0}, 0x3f803f80')
    A(f'v_mov_b32 v{T1}, 0x3f003f00')
    for r in range(4):
        A(f'v_accvgpr_write_b32 a{A_ONE+r}, v{T0}')
        A(f'v_accvgpr_write_b32 a{A_HALF+r}, v{T1}')
    A.c('initial poison (both parities)')
    A(f'v_mov_b32 v{V_CPV}, 0')
    A(f's_mov_b32 s{S_t0}, {C_CPROG}')
    A(f'buffer_store_dword v{V_CPV}, v{V_CPF}, {WSR}, s{S_t0} offen sc1')
    for sl in range(4):
        A(f's_mov_b32 s{S_t0}, {QV_SLOT(sl)[0]}')
        A(f'buffer_store_dwordx2 {vr(V_NEG,2)}, v{V_QKST}, {WSR}, s{S_t0} offen')
        A(f'buffer_store_dwordx2 {vr(V_NEG,2)}, v{V_VST}, {WSR}, s{S_t0} offen')
        A(f's_mov_b32 s{S_t0}, {P_SLOT(sl)[0]}')
        A(f'buffer_store_dwordx4 {vr(V_NEG,4)}, v{V_P4}, {WSR}, s{S_t0} offen')
        A(f'buffer_store_dwordx2 {vr(V_NEG,2)}, v{V_P2}, {WSR}, s{S_t0} offen')
        A(f's_mov_b32 s{S_t0}, {M_SLOT(sl)[0]}')
        A(f'buffer_store_dwordx2 {vr(V_NEG,2)}, v{V_MS}, {WSR}, s{S_t0} offen')
        for par in range(2):
            A(f's_mov_b32 s{S_t0}, {X_SLOT(sl)[0] + par*8192}')
            A(f'buffer_store_dwordx4 {vr(V_NEG,4)}, v{V_XS}, {WSR}, s{S_t0} offen sc1')
        if sl == 2: A('s_waitcnt vmcnt(30)')
    A('s_waitcnt vmcnt(0)')
    A('s_barrier')
    A(f's_cmp_lg_u32 s{S_W}, 0')
    A('s_cbranch_scc1 L_c_arrived')
    A(f'v_mov_b32 v{T0}, {CENSUS}')
    A(f'v_mov_b32 v{T1}, 1')
    A('s_mov_b64 exec, 1')
    A(f'global_atomic_add v{T0}, v{T1}, s[{S_DBG}:{S_DBG+1}]')
    A('s_mov_b64 exec, -1')
    A('L_c_arrived:')
    tl(A, 1)
    A.c('weights tr-read')
    R_, CQ = V_T+6, V_T+7
    A(f'v_bfe_u32 v{R_}, v{L}, 2, 2')
    A(f'v_and_b32 v{CQ}, 3, v{L}')
    A(f'v_lshl_add_u32 v{T0}, v{G}, 3, v{R_}')
    A(f'v_lshlrev_b32 v{T0}, 6, v{T0}')
    A(f'v_lshl_add_u32 v{T0}, v{CQ}, 3, v{T0}')
    A(f's_and_b32 s{S_t0}, s{S_W}, 1')
    A(f's_lshl_b32 s{S_t0}, s{S_t0}, 5')
    A(f'v_add_u32 v{T0}, s{S_t0}, v{T0}')
    A(f's_lshr_b32 s{S_t1}, s{S_W}, 1')
    A(f's_mul_i32 s{S_t2}, s{S_t1}, 40960')
    A(f'v_add_u32 v{T1}, s{S_t2}, v{T0}')
    for t in range(20):
        for hf in range(2):
            A(f'ds_read_b64_tr_b16 {ar(A_QK+4*t+2*hf,2)}, v{T1} offset:{t*2048+hf*256}')
        if t % 4 == 3: A('s_waitcnt lgkmcnt(0)')
    A(f's_mul_i32 s{S_t3}, s{S_t1}, {10*2048}')
    A(f's_add_u32 s{S_t3}, s{S_t3}, 81920')
    A(f'v_add_u32 v{T1}, s{S_t3}, v{T0}')
    for t in range(10):
        for hf in range(2):
            A(f'ds_read_b64_tr_b16 {ar(A_V+4*t+2*hf,2)}, v{T1} offset:{t*2048+hf*256}')
        if t % 4 == 3: A('s_waitcnt lgkmcnt(0)')
    A('s_waitcnt lgkmcnt(0)')
    A(f'v_lshl_add_u32 v{T0}, v{G}, 3, v{R_}')
    A(f'v_mul_u32_u24 v{T0}, 320, v{T0}')
    A(f'v_add_u32 v{T0}, 122880, v{T0}')
    A(f's_lshl_b32 s{S_t0}, s{S_W}, 6')
    A(f'v_lshl_add_u32 v{T1}, v{CQ}, 4, v{T0}')
    A(f'v_add_u32 v{T1}, s{S_t0}, v{T1}')
    A(f's_and_b32 s{S_t0}, s{S_W}, 1')
    A(f's_lshl_b32 s{S_t0}, s{S_t0}, 5')
    A(f's_add_u32 s{S_t0}, s{S_t0}, 256')
    A(f'v_lshl_add_u32 v{T2}, v{CQ}, 3, v{T0}')
    A(f'v_add_u32 v{T2}, s{S_t0}, v{T2}')
    for tt in range(3):
        for s4 in range(4):
            for hf in range(2):
                if tt < 2:
                    A(f'ds_read_b64_tr_b16 {ar(A_O+16*tt+4*s4+2*hf,2)}, v{T1} offset:{(32*s4+4*hf)*320 + 8*tt}')
                else:
                    A(f'ds_read_b64_tr_b16 {ar(A_O+16*tt+4*s4+2*hf,2)}, v{T2} offset:{(32*s4+4*hf)*320}')
        A('s_waitcnt lgkmcnt(0)')
    A('s_barrier')
    A.c('prologue kv + mem0')
    A(f's_mov_b32 s{S_STEP}, 0')
    A(f's_load_dwordx2 s[4:5], s[0:1], 8')
    A('s_waitcnt lgkmcnt(0)')
    setsrd(A, 4, 10240)
    for k in range(3):
        A(f'v_add_u32 v{T0}, {64*k}, v{L}')
        if k == 2:
            A(f'v_cmp_le_u32 vcc, 160, v{T0}')
            A(f'v_subrev_u32 v{T1}, 32, v{T0}')
            A('s_nop 0')
            A(f'v_cndmask_b32 v{T0}, v{T0}, v{T1}, vcc')
        A(f'v_cmp_le_u32 vcc, 80, v{T0}')
        A(f'v_subrev_u32 v{T1}, 80, v{T0}')
        A('s_nop 0')
        A(f'v_cndmask_b32 v{T0}, v{T0}, v{T1}, vcc')
        A(f'v_cndmask_b32 v{T1}, 0, 1, vcc')
        A(f's_lshl_b32 s{S_t0}, s{S_W}, 1')
        A(f'v_add_u32 v{T1}, s{S_t0}, v{T1}')
        A(f'v_lshlrev_b32 v{T0}, 4, v{T0}')
        A(f'v_mul_u32_u24 v{T2}, 1280, v{T1}')
        A(f'v_add_u32 v{T2}, v{T2}, v{T0}')
        A(f'buffer_load_dwordx4 {vr(V_B+4*k,4)}, v{T2}, s[{S_T}:{S_T+3}], 0 offen')
        A(f'v_add_u32 v{V_B+16}, {HOFF-640}, v{T0}')
        A(f'v_cmp_le_u32 vcc, 640, v{T0}')
        A(f'v_mul_u32_u24 v{T1}, {MEMSTRIDE}, v{T1}')
        A('s_nop 0')
        A(f'v_cndmask_b32 v{T0}, v{T0}, v{V_B+16}, vcc')
        A(f'v_add_u32 v{V_B+20+k}, v{T1}, v{T0}')
        A(f'v_add_u32 v{V_B+20+k}, {L_MEM}, v{V_B+20+k}')
    A('s_waitcnt vmcnt(0)')
    for k in range(3):
        A(f'ds_write_b128 v{V_B+20+k}, {vr(V_B+4*k,4)}')
    A('s_waitcnt lgkmcnt(0)')
    A('L_c_census:')
    A(f'v_mov_b32 v{T0}, {CENSUS}')
    A(f'global_load_dword v{T1}, v{T0}, s[{S_DBG}:{S_DBG+1}] sc1')
    A('s_waitcnt vmcnt(0)')
    A(f'v_readfirstlane_b32 s{S_t0}, v{T1}')
    A(f's_cmp_ge_u32 s{S_t0}, 256')
    A('s_cbranch_scc1 L_c_census_done')
    retry(A, 'L_c_census')
    A('L_c_census_done:')
    tl(A, 2)
    A(f'v_mov_b32 v{T0}, 64')
    A(f'global_load_dword v{V_B}, v{T0}, s[{S_DBG}:{S_DBG+1}] sc1')
    A('s_waitcnt vmcnt(0)')
    A(f'v_readfirstlane_b32 s{S_PAR}, v{V_B}')
    A(f's_and_b32 s{S_PAR}, s{S_PAR}, 1')
    if 'xfar' in OPT: A(f's_xor_b32 s{S_PAR}, s{S_PAR}, 1')
    A(f's_lshl_b32 s{S_PAR}, s{S_PAR}, 13')
    for nm, base, fn in (('Q', S_QV, QV_SLOT), ('P', S_PR, P_SLOT), ('M', S_MR, M_SLOT), ('X', S_XR, X_SLOT)):
        for k in range(4):
            addr, pg = fn(k)
            if nm == 'X': A(f's_add_u32 s{base+k}, s{S_PAR}, {addr}')
            else: A(f's_mov_b32 s{base+k}, {addr}')
    if 'noflag' not in OPT:
        A(f's_mov_b32 s{S_t0}, {C_PROG1}')
        A('L_c_w01:')
        A(f'buffer_load_dword v{T1}, v{V_PRG}, {WSR}, s{S_t0} offen sc1')
        A('s_waitcnt vmcnt(0)')
        A(f'v_cmp_gt_u32 vcc, 2, v{T1}')
        A('s_nop 3')
        A('s_and_b64 vcc, vcc, 3')
        A('s_cbranch_vccz L_c_w01_ok')
        A('s_sleep 2')
        retry(A, 'L_c_w01')
        A('L_c_w01_ok:')
    A(f's_lshl_b32 s{S_t3}, s{S_H}, 13')
    A(f's_lshl_b32 s{S_t1}, s{S_W}, 11')
    for seg in range(2):
        for mat in range(2):
            for k in range(2):
                A(f's_add_u32 m0, s{S_t1}, {L_KV + seg*16384 + mat*8192 + k*1024}')
                A(f's_add_u32 s{S_t2}, s{S_t1}, s{S_t3}')
                A(f's_add_u32 s{S_t2}, s{S_t2}, {(WS_KX, WS_VX)[mat] + seg*32*8192 + k*1024}')
                A(f'buffer_load_dwordx4 v{V_DM3A}, {WSR}, s{S_t2} offen sc1 lds')
    A('s_waitcnt vmcnt(0)')
    A('s_barrier')
    vox_reads(A, 0)
    vox_compute(A)
    A(f's_mov_b32 s{S_CPO}, {C_CPROG}')
    A(f's_mov_b32 s{S_KM}, {WS_KM}')
    A(f's_mov_b32 s{S_VM}, {WS_VM}')
    A(f's_lshl_b32 s{S_SEG2}, s{S_H}, 13')
    A(f's_add_u32 s{S_SEG2}, s{S_SEG2}, {2*32*8192}')

def ablate(A, start, kinds):
    keep = []
    for l in A.lines[start:]:
        t = l.strip()
        if any(t.startswith(k) for k in kinds): continue
        keep.append(l)
    A.lines[start:] = keep

def gen_step(A, P, u):
    cur, n1, p2, n3 = u, (u+1) & 3, (u+2) & 3, (u+3) & 3
    QC, QP = S_QV+cur, S_QV+p2
    PC, PP = S_PR+cur, S_PR+p2
    MC, MW, MP = S_MR+cur, S_MR+n1, S_MR+n3
    XC, XPn = S_XR+cur, S_XR+p2
    sf = f'_{u}'
    XLD = {0: 'sc1', 1: 'sc0 sc1', 2: 'sc1 nt', 3: 'nt'}[optval('xld', 0)]
    XST = {0: 'sc1', 1: 'sc0 sc1', 2: 'sc1 nt'}[optval('xst', 0)]
    def pipe_poll(name, nsets, nloads, issue, regs, pre, ok, gap, chk=None):
        lab = f'L_c_{name}{sf}'
        for k in range(nsets):
            issue(k)
            if k < nsets-1: nops(A, gap)
        A(f'{lab}_loop:')
        for k in range(nsets):
            A(f's_waitcnt vmcnt({nloads*(nsets-1)})')
            pre(k)
            (chk or check)(A, regs(k))
            A(f's_cbranch_vccz {lab}_ok{k}')
            issue(k)
        retry(A, f'{lab}_loop', name)
        for k in reversed(range(nsets)):
            A(f'{lab}_ok{k}:')
            ok(k)
            if k > 0: A(f's_branch {lab}_done')
        A(f'{lab}_done:')
    A(f'L_c_loop{sf}:')
    P.stamp(A, 11, True)
    nops(A, optval('adelay', 0))
    NAG = 4 if 'ag3' in OPT else 3
    ASET = [V_VV, V_R, V_XD]
    def a_issue(k):
        for q in range(NAG):
            A(f'buffer_load_dwordx4 {vr(ASET[k]+4*q,4)}, v{V_M0+q}, {WSR}, s{MC} offen sc1')
    def a_pre(k):
        for q in range(NAG):
            A(f'ds_write_b128 v{V_LM0+q}, {vr(ASET[k]+4*q,4)}')
    if 'ag3' in OPT:
        A(f's_cmp_eq_u32 s{S_W}, 3')
        A(f's_cbranch_scc1 L_c_A{sf}_done')
    pipe_poll('A', optval('nA', 1), NAG, a_issue, lambda k: range(ASET[k], ASET[k]+4*NAG), a_pre, lambda k: None, optval('gapA', 40))
    P.stamp(A, 8, True)
    A('s_waitcnt lgkmcnt(0)')
    A('s_barrier')
    P.stamp(A, 0)
    if u == 0: A('L_c_afterA0:')
    A.c('[A1] qk mfma')
    mark = len(A.lines)
    for t in range(10):
        A(f'ds_read_b128 {vr(V_B+4*t,4)}, v{V_LB} offset:{64*t}')
    for t in range(10):
        A(f's_waitcnt lgkmcnt({9-t})')
        mfma(A, vr(V_ACC,4), ar(A_QK+4*t,4), vr(V_B+4*t,4), '0' if t == 0 else vr(V_ACC,4))
        mfma(A, vr(V_ACC+4,4), ar(A_QK+4*(t+10),4), vr(V_B+4*t,4), '0' if t == 0 else vr(V_ACC+4,4))
    NV0 = 0 if 'qkfast' in OPT else 2
    for t in range(NV0):
        mfma(A, vr(V_ACV,4), ar(A_V+4*t,4), vr(V_B+4*t,4), '0' if t == 0 else vr(V_ACV,4))
    A(f's_nop {7-NV0}')
    for r in range(4):
        A(f'v_add_f32_dpp v{V_ACC+r}, v{V_ACC+4+r}, v{V_ACC+r} row_ror:8 row_mask:0xf bank_mask:0xf')
    A(f'v_cvt_pk_bf16_f32 v{V_O}, v{V_ACC}, v{V_ACC+1}')
    A(f'v_cvt_pk_bf16_f32 v{V_O+1}, v{V_ACC+2}, v{V_ACC+3}')
    A(f'buffer_store_dwordx2 {vr(V_O,2)}, v{V_QKST}, {WSR}, s{QC} offen')
    P.stamp(A, 1)
    for t in range(NV0, 10):
        mfma(A, vr(V_ACV,4), ar(A_V+4*t,4), vr(V_B+4*t,4), '0' if t == 0 else vr(V_ACV,4))
    def kx_reads():
        for kt in range(2):
            for s4 in range(4):
                A(f'ds_read_b128 {vr(V_KX+16*kt+4*s4,4)}, v{V_LKV} offset:{L_KV + cur*16384 + 2048*s4 + 256*kt}')
    RE = [V_B+12, V_B+28]
    if 'rearly' in OPT:
        nops(A, optval('re0', 0))
        A(f'buffer_load_dwordx4 {vr(RE[0],4)}, v{V_RLD}, {WSR}, s{QC} offen sc1')
        kx_reads()
    else:
        kx_reads()
    A(f'v_cvt_pk_bf16_f32 v{V_O+2}, v{V_ACV}, v{V_ACV+1}')
    A(f'v_cvt_pk_bf16_f32 v{V_O+3}, v{V_ACV+2}, v{V_ACV+3}')
    if 'rearly' in OPT:
        A(f'buffer_load_dwordx4 {vr(RE[1],4)}, v{V_RLD}, {WSR}, s{QC} offen sc1')
    A(f'buffer_store_dwordx2 {vr(V_O+2,2)}, v{V_VST}, {WSR}, s{QC} offen')
    if 'rearly' in OPT:
        for k, cnt in ((0, 2), (1, 1)):
            A(f's_waitcnt vmcnt({cnt})')
            A(f'ds_write_b128 v{V_LRW}, {vr(RE[k],4)}')
            check(A, range(RE[k], RE[k]+4))
            A(f's_cbranch_vccz L_c_R{sf}_done')
    if 'skipA1' in OPT: ablate(A, mark, ['v_mfma', 'v_add_f32_dpp'])
    P.stamp(A, 2)
    A.c('[B0] R piece -> LDS')
    nops(A, optval('rdelay', 0))
    if 'skipR' in OPT: A(f's_branch L_c_R{sf}_done')
    RSET = [V_B, V_B+4, V_B+8]
    pipe_poll('R', optval('nR', 1), 1,
              lambda k: A(f'buffer_load_dwordx4 {vr(RSET[k],4)}, v{V_RLD}, {WSR}, s{QC} offen sc1'),
              lambda k: range(RSET[k], RSET[k]+4),
              lambda k: A(f'ds_write_b128 v{V_LRW}, {vr(RSET[k],4)}'),
              lambda k: None, optval('gapR', 20))
    if 'skipV' not in OPT:
        for s4 in range(4):
            A(f'buffer_load_dwordx4 {vr(V_VV+4*s4,4)}, v{V_VLD}, {WSR}, s{QC} offen offset:{512*s4} sc1')
    A('s_waitcnt lgkmcnt(0)')
    A('s_barrier')
    P.stamp(A, 3)
    OPT1 = 'noopt1' not in OPT
    V_KD = V_B+20
    late = [f'v_mov_b32 v{V_CPV}, s{S_STEP}',
            f'buffer_store_dword v{V_CPV}, v{V_CPF}, {WSR}, s{S_CPO} offen sc1',
            f'buffer_store_dwordx2 {vr(V_NEG,2)}, v{V_QKST}, {WSR}, s{QP} offen',
            f'buffer_store_dwordx2 {vr(V_NEG,2)}, v{V_VST}, {WSR}, s{QP} offen',
            f'buffer_store_dwordx4 {vr(V_NEG,4)}, v{V_P4}, {WSR}, s{PP} offen',
            f'buffer_store_dwordx2 {vr(V_NEG,2)}, v{V_P2}, {WSR}, s{PP} offen',
            f'buffer_store_dwordx2 {vr(V_NEG,2)}, v{V_MS}, {WSR}, s{MP} offen']
    NLATE = 6
    if 'xplate' in OPT:
        late.append(f'buffer_store_dwordx4 {vr(V_NEG,4)}, v{V_XS}, {WSR}, s{XPn} offen sc1')
        NLATE += 1
    for s4 in range(4):
        A(f'ds_read_b128 {vr(V_R+4*s4,4)}, v{V_LRR} offset:{512*s4}')
        if OPT1: A(f'ds_read_b128 {vr(V_KD+4*s4,4)}, v{V_LRK} offset:{512*s4}')
    if not OPT1:
        for l in late: A(l)
        late = []
    A.c('[B1] scores')
    mark = len(A.lines)
    for s4 in range(4):
        c0 = '0' if s4 == 0 else None
        A(f's_waitcnt lgkmcnt({(6-2*s4) if OPT1 else (3-s4)})')
        mfma(A, vr(V_S,4), vr(V_KX+4*s4,4), vr(V_R+4*s4,4), c0 or vr(V_S,4))
        if late: A(late.pop(0))
        mfma(A, vr(V_S+4,4), vr(V_KX+16+4*s4,4), vr(V_R+4*s4,4), c0 or vr(V_S+4,4))
        if late: A(late.pop(0))
        mfma(A, vr(V_S+8,4), vr((V_KD if OPT1 else V_R)+4*s4,4), vr(V_R+4*s4,4), c0 or vr(V_S+8,4))
    for l in late: A(l)
    if 'skipB' in OPT: ablate(A, mark, ['v_mfma'])
    A(f's_waitcnt vmcnt({NLATE})')
    A.c('[B2] V check')
    if 'skipV' in OPT: A(f's_branch L_c_okV{sf}')
    check(A, range(V_VV, V_VV+16))
    A(f's_cbranch_vccz L_c_okV{sf}')
    A(f'L_c_pollV{sf}:')
    for s4 in range(4):
        A(f'buffer_load_dwordx4 {vr(V_VV+4*s4,4)}, v{V_VLD}, {WSR}, s{QC} offen offset:{512*s4} sc1')
    A('s_waitcnt vmcnt(0)')
    check(A, range(V_VV, V_VV+16))
    A(f's_cbranch_vccz L_c_okV{sf}')
    retry(A, f'L_c_pollV{sf}', 'V')
    A(f'L_c_okV{sf}:')
    P.stamp(A, 10, True)
    if u == 3:
        A(f's_cmp_eq_u32 s{S_STEP}, {NSEG-1}')
        A('s_cbranch_scc1 L_c_final')
    A.c('[B4] softmax (VOm mfma interleaved)')
    mark = len(A.lines)
    SM = V_S+8; MX = V_T+4
    vom = [(s4, tt) for s4 in range(4) for tt in range(3)]
    def vom_next():
        if not vom: return
        s4, tt = vom.pop(0)
        mfma(A, vr(V_F+4*tt,4), vr(V_VV+4*s4,4), ar(A_O+16*tt+4*s4,4), '0' if s4 == 0 else vr(V_F+4*tt,4))
    if not OPT1:
        for r in range(4): A(f'v_mov_b32 v{V_T+r}, v{SM+r}')
    A(f'v_max3_f32 v{MX}, v{V_S}, v{V_S+1}, v{V_S+2}')
    A(f'v_max3_f32 v{MX+1}, v{V_S+3}, v{V_S+4}, v{V_S+5}')
    if not OPT1:
        for r in range(4): A(f'v_permlane32_swap_b32 v{V_T+r}, v{SM+r}')
    vom_next()
    A(f'v_max3_f32 v{MX}, v{MX}, v{V_S+6}, v{V_S+7}')
    A(f'v_max3_f32 v{MX+1}, v{MX+1}, v{SM}, v{SM+1}')
    A(f'v_max3_f32 v{MX}, v{MX}, v{SM+2}, v{SM+3}')
    A(f'v_max_f32 v{MX}, v{MX}, v{MX+1}')
    def allreduce(op, reg, tmp, fill=False):
        for perm in ('v_permlane16_swap_b32', 'v_permlane32_swap_b32'):
            A(f'v_mov_b32 v{tmp}, v{reg}')
            if fill: vom_next(); A('s_nop 0')
            else: A('s_nop 1')
            A(f'{perm} v{tmp}, v{reg}')
            A(f'{op} v{reg}, v{reg}, v{tmp}')
    allreduce('v_max_f32', MX, MX+1, True)
    A(f'v_mul_f32 v{MX}, s{S_SCL}, v{MX}')
    vom_next()
    for r in range(0, 12, 2):
        A(f'v_pk_fma_f32 {vr(V_S+r,2)}, {vr(V_S+r,2)}, s[{S_SCL}:{S_SCL+1}], {vr(MX,2)} op_sel_hi:[1,1,0] neg_lo:[0,0,1] neg_hi:[0,0,1]')
        if r % 4 == 2: vom_next()
    for r in range(12):
        A(f'v_exp_f32 v{V_S+r}, v{V_S+r}')
        if r % 2 == 1: vom_next()
    while vom: vom_next()
    A(f'v_cvt_pk_bf16_f32 v{V_PX}, v{V_S}, v{V_S+1}')
    A(f'v_cvt_pk_bf16_f32 v{V_PX+1}, v{V_S+2}, v{V_S+3}')
    A(f'v_cvt_pk_bf16_f32 v{V_PX+2}, v{V_S+4}, v{V_S+5}')
    A(f'v_cvt_pk_bf16_f32 v{V_PX+3}, v{V_S+6}, v{V_S+7}')
    A(f'v_cvt_pk_bf16_f32 v{V_PM}, v{SM}, v{SM+1}')
    A(f'v_cvt_pk_bf16_f32 v{V_PM+1}, v{SM+2}, v{SM+3}')
    SU = V_T+6; X2 = V_T+7
    FX = [V_ACC, V_ACC+4, V_ACV]
    if OPT1:
        mfma(A, vr(V_T,4), ar(A_ONE,4), vr(V_PX,4), '0')
    for tt in range(3):
        mfma(A, vr(FX[tt],4), vr(V_VOX+4*tt,4), vr(V_PX,4), '0')
    for tt in range(3):
        A(f'v_cvt_pk_bf16_f32 v{V_VOM+4*tt}, v{V_F+4*tt}, v{V_F+4*tt+1}')
        A(f'v_cvt_pk_bf16_f32 v{V_VOM+4*tt+1}, v{V_F+4*tt+2}, v{V_F+4*tt+3}')
    if OPT1:
        mfma(A, vr(V_T,4), ar(A_HALF,4), vr(V_PM,4), vr(V_T,4))
        for tt in range(3):
            mfma(A, vr(FX[tt],4), vr(V_VOM+4*tt,4), vr(V_PM,4), vr(FX[tt],4))
        A('s_nop 4')
        A(f'v_rcp_f32 v{SU}, v{V_T}')
        A('s_nop 1')
    else:
        A(f'v_pk_add_f32 {vr(V_T,2)}, {vr(SM,2)}, {vr(SM+2,2)}')
        A(f'v_pk_add_f32 {vr(V_T+2,2)}, {vr(V_S,2)}, {vr(V_S+2,2)}')
        for tt in range(3):
            mfma(A, vr(FX[tt],4), vr(V_VOM+4*tt,4), vr(V_PM,4), vr(FX[tt],4))
        A(f'v_pk_add_f32 {vr(V_T+4,2)}, {vr(V_S+4,2)}, {vr(V_S+6,2)}')
        A(f'v_pk_add_f32 {vr(V_T+2,2)}, {vr(V_T+2,2)}, {vr(V_T+4,2)}')
        A(f'v_pk_fma_f32 {vr(V_T,2)}, {vr(V_T,2)}, 0.5, {vr(V_T+2,2)} op_sel_hi:[1,0,1]')
        A(f'v_add_f32 v{SU}, v{V_T}, v{V_T+1}')
        allreduce('v_add_f32', SU, X2)
        A(f'v_rcp_f32 v{SU}, v{SU}')
        A('s_nop 0')
    PO = [V_PO, V_PO+2, V_PO2]
    for tt in range(3):
        for r in (0, 2):
            A(f'v_pk_mul_f32 {vr(FX[tt]+r,2)}, {vr(FX[tt]+r,2)}, {vr(SU,2)} op_sel_hi:[1,0]')
        A(f'v_cvt_pk_bf16_f32 v{PO[tt]}, v{FX[tt]}, v{FX[tt]+1}')
        A(f'v_cvt_pk_bf16_f32 v{PO[tt]+1}, v{FX[tt]+2}, v{FX[tt]+3}')
        if tt == 1: A(f'buffer_store_dwordx4 {vr(V_PO,4)}, v{V_P4}, {WSR}, s{PC} offen')
    A(f'buffer_store_dwordx2 {vr(V_PO2,2)}, v{V_P2}, {WSR}, s{PC} offen')
    if 'skipB' in OPT:
        ablate(A, mark, ['v_', 's_nop'])
        for r in (V_PO, V_PO+1, V_PO+2, V_PO+3, V_PO2, V_PO2+1): A.lines.insert(mark, f'    v_mov_b32 v{r}, 0')
    P.stamp(A, 4)
    vox_reads(A, n1)
    A(f's_cmp_eq_u32 s{S_HASITEM}, 0')
    A(f's_cbranch_scc1 L_c_noitem{sf}')
    A.c('[C1] local RS')
    nops(A, optval('rsdelay', 0))
    if 'skipRS' in OPT:
        for r in range(4): A(f'v_mov_b32 v{V_RSD+4+r}, 0')
        A(f's_branch L_c_RS{sf}_done')
    SSET = [V_RSD, V_B+20, V_B+24]
    def rs_issue(k):
        A(f'buffer_load_dwordx2 {vr(SSET[k],2)}, v{V_RS0}, {WSR}, s{PC} offen sc1')
        A(f'buffer_load_dwordx2 {vr(SSET[k]+2,2)}, v{V_RS1}, {WSR}, s{PC} offen sc1')
    pipe_poll('RS', optval('nS', 1), 2, rs_issue, lambda k: range(SSET[k], SSET[k]+4),
              lambda k: mfma(A, vr(V_RSD+4,4), vr(V_SEL,4), vr(SSET[k],4), '0'), lambda k: None, optval('gapS', 20))
    P.stamp(A, 12, True)
    A('s_nop 3')
    if 'xtag' in OPT:
        for r in range(4): A(f'v_and_or_b32 v{V_RSD+4+r}, v{V_RSD+4+r}, -2, v{V_PH}')
    A(f'buffer_store_dwordx4 {vr(V_RSD+4,4)}, v{V_XS}, {WSR}, s{XC} offen {XST}')
    if 'xplate' not in OPT and 'xtag' not in OPT and 'xp3' not in OPT: A(f'buffer_store_dwordx4 {vr(V_NEG,4)}, v{V_XS}, {WSR}, s{XPn} offen sc1')
    P.stamp(A, 5)
    NVX = optval('nvx', 3)
    vox_tiles(A, list(range(NVX)))
    P.stamp(A, 6)
    A.c('[C2] cross')
    nops(A, optval('xdelay', 0))
    if 'skipX' in OPT: A(f's_branch L_c_X{sf}_done')
    XSET = [V_XD, V_B+28, V_R]
    OWN = V_RSD+4
    def x_issue(k):
        for q in range(3):
            A(f'buffer_load_dwordx4 {vr(XSET[k]+4*q,4)}, v{V_XL+q}, {WSR}, s{XC} offen {XLD}')
    def x_ok(k):
        X = XSET[k]
        for r in (0, 2):
            A(f'v_pk_add_f32 {vr(V_T+r,2)}, {vr(X+r,2)}, {vr(X+8+r,2)}')
            A(f'v_pk_add_f32 {vr(OWN+r,2)}, {vr(OWN+r,2)}, {vr(X+4+r,2)}')
    def tagcheck(A, regs):
        r = list(regs)
        A(f'v_bitop3_b32 v{V_T+4}, v{r[0]}, v{r[1]}, v{V_PH} bitop3:0x7e')
        A(f'v_bitop3_b32 v{V_T+5}, v{r[2]}, v{r[3]}, v{V_PH} bitop3:0x7e')
        cur = 0
        for x in r[4:]:
            A(f'v_bitop3_b32 v{V_T+4+cur}, v{V_T+4+cur}, v{x}, v{V_PH} bitop3:0xf6'); cur ^= 1
        A(f'v_or_b32 v{V_T+4}, v{V_T+4}, v{V_T+5}')
        A(f'v_and_b32 v{V_T+4}, 1, v{V_T+4}')
        A(f'v_cmp_ne_u32 vcc, 0, v{V_T+4}')
    pipe_poll('X', optval('nX', 1), 3, x_issue, lambda k: range(XSET[k], XSET[k]+12), lambda k: None, x_ok, optval('gapX', 40), tagcheck if 'xtag' in OPT else None)
    P.stamp(A, 9, True)
    for r in (0, 2):
        A(f'v_pk_add_f32 {vr(OWN+r,2)}, {vr(OWN+r,2)}, {vr(V_T+r,2)}')
    A(f'v_cvt_pk_bf16_f32 v{V_PO2}, v{OWN}, v{OWN+1}')
    A(f'v_cvt_pk_bf16_f32 v{V_PO2+1}, v{OWN+2}, v{OWN+3}')
    A(f'buffer_store_dwordx2 {vr(V_PO2,2)}, v{V_MS}, {WSR}, s{MW} offen')
    vox_tiles(A, list(range(NVX, 3)), wait=False)
    A(f's_branch L_c_stepend{sf}')
    A(f'L_c_noitem{sf}:')
    A(f's_cmp_lg_u32 s{S_W}, 3')
    A(f's_cbranch_scc1 L_c_w2{sf}')
    A(f's_mov_b32 s{S_t0}, {C_PROG1}')
    A(f'buffer_load_dword v{V_T+4}, v{V_PRG}, {WSR}, s{S_t0} offen sc1')
    if 'nopub' not in OPT: publish(A, QC)
    else: A('s_waitcnt vmcnt(0)')
    if 'xp3' in OPT: A(f'buffer_store_dwordx4 {vr(V_NEG,4)}, v{V_XP3}, {WSR}, s{XPn} offen sc1')
    vox_compute(A)
    A(f's_cmp_gt_u32 s{S_STEP}, {NSEG-4}')
    A(f's_cbranch_scc1 L_c_stepend{sf}')
    if 'noflag' not in OPT:
        A(f's_add_u32 s{S_t1}, s{S_STEP}, 3')
        A(f'L_c_wk{sf}:')
        A(f'v_cmp_gt_u32 vcc, s{S_t1}, v{V_T+4}')
        A('s_nop 3')
        A('s_and_b64 vcc, vcc, 3')
        A(f's_cbranch_vccz L_c_wk{sf}_ok')
        A(f's_mov_b32 s{S_t0}, {C_PROG1}')
        A(f'buffer_load_dword v{V_T+4}, v{V_PRG}, {WSR}, s{S_t0} offen sc1')
        A('s_waitcnt vmcnt(0)')
        retry(A, f'L_c_wk{sf}')
        A(f'L_c_wk{sf}_ok:')
    if 'nodma' not in OPT:
        for mat, base in ((0, WS_KX), (1, WS_VX)):
            for uu in range(8):
                A(f's_mov_b32 m0, {L_KV + p2*16384 + mat*8192 + uu*1024}')
                A(f's_add_u32 s{S_t2}, s{S_SEG2}, {base + uu*1024}')
                A(f'buffer_load_dwordx4 v{V_DM3A}, {WSR}, s{S_t2} offen sc1 lds')
    A(f's_branch L_c_stepend{sf}')
    A(f'L_c_w2{sf}:')
    vox_compute(A)
    A(f'L_c_stepend{sf}:')
    P.stamp(A, 7)
    A(f's_add_u32 s{S_KM}, s{S_KM}, 65536')
    A(f's_add_u32 s{S_VM}, s{S_VM}, 131072')
    A(f's_add_u32 s{S_SEG2}, s{S_SEG2}, {32*8192}')
    A(f's_add_u32 s{S_STEP}, s{S_STEP}, 1')
    if u == 3 and 'xtag' in OPT: A(f'v_xor_b32 v{V_PH}, 1, v{V_PH}')
    if 'nobar0' not in OPT: A('s_barrier')
    if u == 3 and TL_ON[0]:
        for k, st in enumerate((16, 32, 48)):
            lab = A.label('L_tlq')
            A(f's_cmp_lg_u32 s{S_STEP}, {st}')
            A(f's_cbranch_scc1 {lab}')
            tl(A, 6+k)
            A(f'{lab}:')
    if u == 3: A('s_branch L_c_loop_0')

def publish(A, QC):
    A(f'buffer_load_dwordx4 {vr(V_B,4)}, v{V_KPL}, {WSR}, s{QC} offen sc1')
    A(f'buffer_load_dwordx4 {vr(V_B+4,4)}, v{V_VPL}, {WSR}, s{QC} offen sc1')
    A('s_waitcnt vmcnt(0)')
    A(f'buffer_store_dwordx4 {vr(V_B,4)}, v{V_KPUB}, {WSR}, s{S_KM} offen sc1')
    A(f'buffer_store_dwordx4 {vr(V_B+4,4)}, v{V_VPUB}, {WSR}, s{S_VM} offen sc1')

def gen_chain(A, prof):
    P = Prof(prof)
    if prof and 'trace' not in OPT: PROFCNT.update({'A': 8, 'R': 9, 'V': 10, 'RS': 11, 'X': 12})
    A.c('==== chain role ====')
    gen_prologue(A, P)
    if prof and 'trace' not in OPT:
        for k in range(16): A(f's_mov_b32 s{S_PROF+k}, 0')
        A(f's_memtime s[{S_PT}:{S_PT+1}]')
        A('s_waitcnt lgkmcnt(0)')
        A(f's_mov_b32 s{S_PT+2}, s{S_PT}')
    if 'tot' in OPT:
        A(f's_memrealtime s[{S_PROF}:{S_PROF+1}]')
        A(f's_memtime s[{S_PROF+4}:{S_PROF+5}]')
        A('s_waitcnt lgkmcnt(0)')
    tl(A, 3)
    A('s_branch L_c_afterA0')
    A('.p2align 6')
    for u in range(4): gen_step(A, P, u)
    A('L_c_final:')
    A(f's_cmp_lg_u32 s{S_W}, 3')
    A('s_cbranch_scc1 L_c_end')
    publish(A, S_QV+3)
    A('s_waitcnt vmcnt(0)')
    A(f'v_mov_b32 v{V_CPV}, 64')
    A(f'buffer_store_dword v{V_CPV}, v{V_CPF}, {WSR}, s{S_CPO} offen sc1')
    A('L_c_end:')
    tl(A, 5)
    if 'tot' in OPT:
        A(f's_memrealtime s[{S_PROF+2}:{S_PROF+3}]')
        A(f's_memtime s[{S_PROF+6}:{S_PROF+7}]')
        A('s_waitcnt lgkmcnt(0)')
        A(f's_sub_u32 s{S_PROF}, s{S_PROF+2}, s{S_PROF}')
        A(f's_sub_u32 s{S_PROF+1}, s{S_PROF+6}, s{S_PROF+4}')
        A(f's_mov_b32 s{S_PROF+2}, s{S_PAR}')
    if prof or 'tot' in OPT:
        A(f's_lshl_b32 s{S_t0}, s{S_X}, 5')
        A(f's_add_u32 s{S_t0}, s{S_t0}, s{S_J}')
        A(f's_lshl_b32 s{S_t0}, s{S_t0}, 2')
        A(f's_add_u32 s{S_t0}, s{S_t0}, s{S_W}')
        A(f's_lshl_b32 s{S_t0}, s{S_t0}, 6')
        A(f's_add_u32 s{S_t0}, s{S_t0}, {WS_PROF}')
        A(f'v_mov_b32 v{V_T}, 0')
        for k in range(16):
            A(f'v_mov_b32 v{V_T+1}, s{S_PROF+k}')
            A(f'buffer_store_dword v{V_T+1}, v{V_T}, {WSR}, s{S_t0} offen offset:{4*k}')
    A('s_waitcnt vmcnt(0)')
    A('s_endpgm')

def gen_calib(A):
    CB = PG2 + 0x1A0000
    A(f's_lshl_b32 s{S_t0}, s{S_W}, 15')
    A(f's_add_u32 s{S_t0}, s{S_t0}, {CB}')
    A('v_and_b32 v1, 3, v0')
    A('v_lshrrev_b32 v2, 1, v1')
    A('v_lshlrev_b32 v2, 14, v2')
    A('v_and_b32 v1, 1, v1')
    A('v_lshl_add_u32 v1, v1, 13, v2')
    A('v_mov_b32 v2, 0')
    A(f'buffer_store_dword v2, v1, {WSR}, s{S_t0} offen sc1')
    A('s_waitcnt vmcnt(0)')
    A(f's_mov_b32 s{S_t1}, -1')
    A(f's_mov_b32 s{S_t2}, -1')
    for rep in range(2):
        for par, acc in ((0, S_t1), (1, S_t2)):
            A(f'v_mov_b32 v1, {rep*16384 + par*8192}')
            A(f's_memtime s[{S_PT}:{S_PT+1}]')
            A('s_waitcnt lgkmcnt(0)')
            A(f'buffer_load_dword v2, v1, {WSR}, s{S_t0} offen sc1')
            A('s_waitcnt vmcnt(0)')
            A(f's_memtime s[{S_PT+2}:{S_PT+3}]')
            A('s_waitcnt lgkmcnt(0)')
            A(f's_sub_u32 s{S_PT}, s{S_PT+2}, s{S_PT}')
            A(f's_min_u32 s{acc}, s{acc}, s{S_PT}')
    A(f's_lshl_b32 s{S_t0}, s{S_W}, 3')
    A(f'v_mov_b32 v1, s{S_t0}')
    A(f'v_mov_b32 v2, s{S_t1}')
    A(f'v_mov_b32 v3, s{S_t2}')
    A('ds_write_b64 v1, v[2:3]')
    A('s_waitcnt lgkmcnt(0)')
    A('s_barrier')
    A('v_mov_b32 v1, 0')
    A('ds_read_b128 v[4:7], v1')
    A('ds_read_b128 v[8:11], v1 offset:16')
    A('s_waitcnt lgkmcnt(0)')
    A('v_min_u32 v4, v4, v6')
    A('v_min_u32 v8, v8, v10')
    A('v_min_u32 v5, v5, v7')
    A('v_min_u32 v9, v9, v11')
    A('v_min_u32 v4, v4, v8')
    A('v_min_u32 v5, v5, v9')
    A('v_cmp_lt_u32 vcc, v4, v5')
    A('v_mov_b32 v2, 0x100')
    A('v_mov_b32 v3, 0x101')
    A('v_cndmask_b32 v2, v2, v3, vcc')
    A('v_mov_b32 v1, 64')
    A(f'global_store_dword v1, v2, s[{S_DBG}:{S_DBG+1}] sc1')
    A('v_mov_b32 v1, 80')
    A(f'global_store_dwordx2 v1, v[4:5], s[{S_DBG}:{S_DBG+1}] sc1')
    A('s_waitcnt vmcnt(0)')
    A('s_barrier')

def gen_common_entry(A, nwg=256):
    A(f's_cmp_ge_u32 s2, {nwg}')
    A('s_cbranch_scc1 L_end')
    A(f's_load_dwordx2 s[{S_DBG}:{S_DBG+1}], s[0:1], 96')
    A(f's_load_dwordx2 s[4:5], s[0:1], 104')
    A(f's_getreg_b32 s{S_X}, hwreg(HW_REG_XCC_ID, 0, 4)')
    A(f'v_lshrrev_b32 v1, 6, v0')
    A('s_nop 0')
    A(f'v_readfirstlane_b32 s{S_W}, v1')
    A('s_waitcnt lgkmcnt(0)')
    A(f's_mov_b32 s{S_WS}, s4')
    A(f's_and_b32 s{S_WS+1}, s5, 0xffff')
    A(f's_mov_b32 s{S_WS+2}, 0x10000000')
    A(f's_mov_b32 s{S_WS+3}, 0x20000')
    A(f's_cmp_lg_u32 s{S_W}, 0')
    A('s_cbranch_scc1 L_noticket')
    A(f's_and_b32 s{S_t0}, s{S_X}, 3')
    A(f's_lshl_b32 s{S_t0}, s{S_t0}, 2')
    A(f's_lshr_b32 s{S_t1}, s{S_X}, 2')
    A(f's_lshl_b32 s{S_t1}, s{S_t1}, 7')
    A(f's_add_u32 s{S_t0}, s{S_t0}, s{S_t1}')
    A(f'v_mov_b32 v1, s{S_t0}')
    A('v_mov_b32 v2, 1')
    A('s_mov_b64 exec, 1')
    A(f'global_atomic_add v3, v1, v2, s[{S_DBG}:{S_DBG+1}] sc0')
    A('s_waitcnt vmcnt(0)')
    A('v_mov_b32 v1, 0')
    A('ds_write_b32 v1, v3')
    A('s_waitcnt lgkmcnt(0)')
    A('s_mov_b64 exec, -1')
    A('L_noticket:')
    A('s_barrier')
    A('v_mov_b32 v1, 0')
    A('ds_read_b32 v2, v1')
    A('s_waitcnt lgkmcnt(0)')
    A(f'v_readfirstlane_b32 s{S_J}, v2')
    A('s_barrier')

def gen_timeout(A):
    A('L_timeout:')
    A('v_mov_b32 v1, 60')
    A('v_mov_b32 v2, 0xdead')
    A(f'global_store_dword v1, v2, s[{S_DBG}:{S_DBG+1}]')
    A('s_waitcnt vmcnt(0)')
    A('s_endpgm')

if __name__ == '__main__':
    out = sys.argv[1]
    OPT.update(sys.argv[2:])
    prof = 'prof' in OPT
    A = Asm()
    K = NAME + '_kernel'
    kernel_begin(A, K)
    gen_common_entry(A)
    A(f's_cmp_lt_u32 s{S_X}, 4')
    A('s_cbranch_scc1 L_chain')
    A(f's_cmp_lg_u32 s{S_W}, 0')
    A('s_cbranch_scc1 L_end')
    gen_calib(A)
    A('v_mov_b32 v1, 32')
    A('v_mov_b32 v2, 1')
    A('s_mov_b64 exec, 1')
    A(f'global_atomic_add v1, v2, s[{S_DBG}:{S_DBG+1}]')
    A('s_waitcnt vmcnt(0)')
    A('L_end:')
    A('s_endpgm')
    A('L_chain:')
    gen_chain(A, prof)
    gen_timeout(A)
    open(out, 'w').write(file_text(['; @launch grid=(256,1,1) block=(256,1,1) lds=163840'], A.text(), kernel_desc(K)))
```

```python
import sys
from asmlib import *
from ws_layout import *
import chain9 as ch
import bulk1, bulk2, bulk3
ch.OPT.update(sys.argv[2:])
import asmlib
asmlib.TL_ON[0] = 'tl' in ch.OPT
bulk3.SLEEPN[0] = ch.optval('bsleep', 32)
S_X, S_J, S_W, S_TO, S_DBG, S_WS = 16, 17, 20, 22, 28, 8
WSR = f's[{S_WS}:{S_WS+3}]'
A = Asm(); K = NAME + '_kernel'
kernel_begin(A, K)
ch.gen_common_entry(A)
tl(A, 0)
A(f's_cmp_lt_u32 s{S_X}, 4')
A('s_cbranch_scc1 L_chain')
A(f's_sub_u32 s{bulk1.S_BID}, s{S_X}, 4')
A(f's_lshl_b32 s{bulk1.S_BID}, s{bulk1.S_BID}, 5')
A(f's_add_u32 s{bulk1.S_BID}, s{bulk1.S_BID}, s{S_J}')
A(f's_mov_b32 s{S_TO}, 0x40000')
A(f's_cmp_lg_u32 s{bulk1.S_BID}, 127')
A('s_cbranch_scc1 L_b_nocal')
ch.gen_calib(A)
A('L_b_nocal:')
A(f's_cmp_lg_u32 s{S_W}, 1')
A('s_cbranch_scc1 L_b_nowarm')
A('s_load_dwordx2 s[4:5], s[0:1], 0')
A('s_waitcnt lgkmcnt(0)')
bulk1.setsrd(A, 12, 4, 2048*1280)
A(f's_mul_i32 s30, s{S_J}, 2560')
A('v_and_b32 v1, 63, v0')
A('v_lshlrev_b32 v1, 4, v1')
for k in range(3):
    A(f'buffer_load_dwordx4 v[240:243], v1, s[12:15], s30 offen offset:{min(k*1024, 1536)}')
A('L_b_nowarm:')
A(f's_cmp_lg_u32 s{S_W}, 0')
A('s_cbranch_scc1 L_b_arrived')
A('v_mov_b32 v1, 0')
A('v_mov_b32 v2, 0')
A(f's_lshl_b32 s30, s{bulk1.S_BID}, 7')
A(f's_add_u32 s30, s30, {C_PROG1}')
A(f'buffer_store_dword v2, v1, {WSR}, s30 offen sc1')
A(f's_cmp_lg_u32 s{bulk1.S_BID}, 127')
A('s_cbranch_scc1 L_b_nozero')
A('v_lshlrev_b32 v1, 7, v0')
A(f's_mov_b32 s30, {C_XCNT}')
A(f'buffer_store_dword v2, v1, {WSR}, s30 offen sc1')
A('v_mov_b32 v1, 0')
A(f's_mov_b32 s30, {C_BCNT}')
A(f'buffer_store_dword v2, v1, {WSR}, s30 offen sc1')
A('L_b_nozero:')
A('s_waitcnt vmcnt(0)')
A(f'v_mov_b32 v1, {ch.CENSUS}')
A('v_mov_b32 v2, 1')
A('s_mov_b64 exec, 1')
A(f'global_atomic_add v1, v2, s[{S_DBG}:{S_DBG+1}]')
A('s_mov_b64 exec, -1')
A('L_b_arrived:')
def census_wait(tag):
    A(f'L_b_census{tag}:')
    A(f'v_mov_b32 v1, {ch.CENSUS}')
    A(f'global_load_dword v2, v1, s[{S_DBG}:{S_DBG+1}] sc1')
    A('s_waitcnt vmcnt(0)')
    A('v_readfirstlane_b32 s30, v2')
    A('s_cmp_ge_u32 s30, 256')
    A(f's_cbranch_scc1 L_b_census{tag}_ok')
    A('s_sleep 16')
    A(f's_sub_u32 s{S_TO}, s{S_TO}, 1')
    A(f's_cbranch_scc0 L_b_census{tag}')
    A('s_branch L_timeout')
    A(f'L_b_census{tag}_ok:')
if 'nobulk' not in ch.OPT:
    if 'nogate' not in ch.OPT:
        A(f's_cmp_lt_u32 s{bulk1.S_BID}, 64')
        A('s_cbranch_scc1 L_b_go')
        census_wait('a')
        A('L_b_go:')
    bulk1.gen_phase1_loop(A)
    tl(A, 2)
    census_wait('b')
    bulk2.gen_phase2(A)
    tl(A, 3)
    bulk3.gen_phase3(A)
    tl(A, 5)
A('s_waitcnt vmcnt(0)')
A('L_end:')
A('s_endpgm')
A('L_chain:')
ch.gen_chain(A, 'prof' in ch.OPT)
ch.gen_timeout(A)
open(sys.argv[1], 'w').write(file_text(['; @launch grid=(256,1,1) block=(256,1,1) lds=163840'], A.text(), kernel_desc(K)))
```

```python
from asmlib import *
from ws_layout import *
import sys
S_WS, S_X, S_J, S_W, S_TO, S_DBG = 8, 16, 17, 20, 22, 28
S_T = 12
S_XS = 24
S_t0, S_t1, S_t2, S_t3 = 30, 31, 32, 33
S_BID = 34
S_SEG = 35
S_OUT = 36
S_OSTR = 37
S_SLOT = 38
S_DSLOT = 39
S_XOFF = 40
S_PROGO = 41
S_KIND = 42
WSR = f's[{S_WS}:{S_WS+3}]'
XSR = f's[{S_XS}:{S_XS+3}]'
BIG = 0x40000000
V_XA = 1
V_RB = 12
V_RD = 13
V_ST = 14
V_FL = 15
V_T = 16
V_PV = 24
V_B = 32
V_ACC = 64
V_O = 96
SLOTB = 45056
NPRE = 8
HOOKS = []

def mfma32(A, d, a, b, c):
    A(f'v_mfma_f32_32x32x16_bf16 {d}, {a}, {b}, {c}')

def setsrd(A, dst, lo, size):
    A(f's_mov_b32 s{dst}, s{lo}')
    A(f's_and_b32 s{dst+1}, s{lo+1}, 0xffff')
    A(f's_mov_b32 s{dst+2}, {size}')
    A(f's_mov_b32 s{dst+3}, 0x20000')

def gen_phase1(A):
    L, T0, T1, T2, T3 = V_T, V_T+1, V_T+2, V_T+3, V_T+4
    A.c('==== phase 1 ====')
    A(f'v_and_b32 v{L}, 63, v0')
    A(f's_mov_b32 s{S_KIND}, 3')
    A(f's_cmp_eq_u32 s{S_BID}, 120')
    A(f's_cselect_b32 s{S_KIND}, 2, s{S_KIND}')
    A(f's_cmp_lt_u32 s{S_BID}, 120')
    A(f's_cselect_b32 s{S_KIND}, 1, s{S_KIND}')
    A(f's_cmp_lt_u32 s{S_BID}, 96')
    A(f's_cselect_b32 s{S_KIND}, 0, s{S_KIND}')
    A(f's_cmp_eq_u32 s{S_KIND}, 3')
    A('s_cbranch_scc1 L_p1_end')
    A(f's_lshl_b32 s{S_PROGO}, s{S_BID}, 7')
    A(f's_add_u32 s{S_PROGO}, s{S_PROGO}, {C_PROG1}')
    A(f'v_mov_b32 v{T2}, {BIG}')
    A(f'v_cmp_eq_u32 vcc, 0, v0')
    A(f'v_mov_b32 v{T0}, 0')
    A('s_nop 0')
    A(f'v_cndmask_b32 v{V_FL}, v{T2}, v{T0}, vcc')
    R_, CQ, AB, GK = V_T+5, V_T+6, V_T+7, V_PV
    A(f'v_bfe_u32 v{R_}, v{L}, 2, 2')
    A(f'v_and_b32 v{CQ}, 3, v{L}')
    A(f'v_bfe_u32 v{AB}, v{L}, 4, 1')
    A(f'v_lshrrev_b32 v{GK}, 5, v{L}')
    A(f'v_and_b32 v{T0}, 1, v{CQ}')
    A(f'v_lshlrev_b32 v{T0}, 3, v{T0}')
    A(f'v_lshrrev_b32 v{T1}, 1, v{CQ}')
    A(f'v_lshl_add_u32 v{T0}, v{T1}, 2, v{T0}')
    A(f'v_lshl_add_u32 v{T3}, v{AB}, 4, v{T0}')
    A(f's_cmp_eq_u32 s{S_KIND}, 0')
    A('s_cbranch_scc0 L_p1_notA')
    A(f's_lshr_b32 s{S_t0}, s{S_BID}, 5')
    A(f's_cmp_eq_u32 s{S_t0}, 0')
    A(f's_cselect_b32 s{S_t1}, 24, 32')
    A(f's_cmp_eq_u32 s{S_t0}, 2')
    A(f's_cselect_b32 s{S_t1}, 16, s{S_t1}')
    A(f's_load_dwordx2 s[4:5], s[0:1], s{S_t1}')
    A(f's_load_dwordx2 s[6:7], s[0:1], 0')
    A(f's_cmp_eq_u32 s{S_t0}, 0')
    A(f's_mov_b32 s{S_OUT}, {WS_VX}')
    A(f's_cselect_b32 s{S_OUT}, {WS_KX}, s{S_OUT}')
    A(f's_cmp_eq_u32 s{S_t0}, 2')
    A(f's_cselect_b32 s{S_OUT}, {WS_QX}, s{S_OUT}')
    A(f's_and_b32 s{S_t2}, s{S_BID}, 31')
    A(f's_lshl_b32 s{S_t3}, s{S_t2}, 13')
    A(f's_add_u32 s{S_OUT}, s{S_OUT}, s{S_t3}')
    A(f's_mov_b32 s{S_OSTR}, {32*8192}')
    A('s_waitcnt lgkmcnt(0)')
    setsrd(A, S_T, 4, 5242880)
    setsrd(A, S_XS, 6, 2048*1280)
    A(f'v_lshrrev_b32 v{T0}, 4, v{L}')
    A(f'v_lshlrev_b32 v{T0}, 13, v{T0}')
    A(f'v_and_b32 v{T1}, 15, v{L}')
    A(f'v_lshl_add_u32 v{T0}, v{T1}, 4, v{T0}')
    A(f's_lshl_b32 s{S_t3}, s{S_t2}, 8')
    A(f'v_add_u32 v{T0}, s{S_t3}, v{T0}')
    A(f's_lshl_b32 s{S_t0}, s{S_W}, 15')
    A(f's_lshl_b32 s{S_t1}, s{S_W}, 10')
    for i in range(40):
        A(f's_mov_b32 m0, s{S_t1}')
        A(f's_add_u32 s{S_t1}, s{S_t1}, 4096')
        A(f'buffer_load_dwordx4 v{T0}, s[{S_T}:{S_T+3}], s{S_t0} offen lds')
        A(f's_add_u32 s{S_t0}, s{S_t0}, {4*32768}')
    A(f'v_lshl_add_u32 v{T0}, v{GK}, 3, v{R_}')
    A(f'v_lshlrev_b32 v{T0}, 8, v{T0}')
    A(f'v_lshl_add_u32 v{T0}, v{T3}, 1, v{T0}')
    A(f's_lshl_b32 s{S_t0}, s{S_W}, 6')
    A(f'v_add_u32 v{T0}, s{S_t0}, v{T0}')
    A(f'v_lshlrev_b32 v{V_ST}, 4, v{L}')
    A(f's_lshl_b32 s{S_t0}, s{S_W}, 11')
    A(f'v_add_u32 v{V_ST}, s{S_t0}, v{V_ST}')
    if HOOKS: HOOKS[0]()
    A('s_waitcnt vmcnt(0)')
    A('s_barrier')
    if HOOKS: HOOKS[1]()
    for s in range(40):
        if s % 10 == 0 and s:
            A(f'v_add_u32 v{T0}, {10*4096}, v{T0}')
        for hf in range(2):
            A(f'ds_read_b64_tr_b16 {ar(4*s+2*hf,2)}, v{T0} offset:{(s%10)*4096 + hf*1024}')
        if s % 4 == 3: A('s_waitcnt lgkmcnt(0)')
    A('s_branch L_p1_wdone')
    A('L_p1_notA:')
    A(f's_cmp_eq_u32 s{S_KIND}, 1')
    A('s_cbranch_scc0 L_p1_gate')
    A(f's_load_dwordx2 s[4:5], s[0:1], 64')
    A(f's_load_dwordx2 s[6:7], s[0:1], 0')
    A(f's_sub_u32 s{S_t0}, s{S_BID}, 96')
    A(f's_lshl_b32 s{S_t0}, s{S_t0}, 2')
    A(f's_add_u32 s{S_t0}, s{S_t0}, s{S_W}')
    A(f's_lshl_b32 s{S_OUT}, s{S_t0}, 11')
    A(f's_add_u32 s{S_OUT}, s{S_OUT}, {WS_QB}')
    A(f's_mov_b32 s{S_OSTR}, {96*2048}')
    A(f's_lshr_b32 s{S_t1}, s{S_t0}, 5')
    A(f's_and_b32 s{S_t2}, s{S_t0}, 31')
    A(f's_mul_i32 s{S_t1}, s{S_t1}, 1280')
    A(f's_mul_i32 s{S_t2}, s{S_t2}, 40')
    A(f's_add_u32 s{S_t2}, s{S_t2}, s{S_t1}')
    A('s_waitcnt lgkmcnt(0)')
    setsrd(A, S_T, 4, 640*3840)
    setsrd(A, S_XS, 6, 2048*1280)
    A(f'v_lshrrev_b32 v{T0}, 2, v{L}')
    A(f'v_mul_u32_u24 v{T0}, 3840, v{T0}')
    A(f'v_and_b32 v{T1}, 3, v{L}')
    A(f'v_lshl_add_u32 v{T0}, v{T1}, 4, v{T0}')
    A(f'v_add_u32 v{T0}, s{S_t2}, v{T0}')
    A(f'v_cmp_eq_u32 vcc, 3, v{T1}')
    A(f's_mul_i32 s{S_t1}, s{S_W}, 40960')
    A(f's_mov_b32 s{S_t0}, 0')
    A(f'v_cndmask_b32 v{T0}, v{T0}, v{T2}, vcc')
    for i in range(40):
        A(f's_mov_b32 m0, s{S_t1}')
        A(f's_add_u32 s{S_t1}, s{S_t1}, 1024')
        A(f'buffer_load_dwordx4 v{T0}, s[{S_T}:{S_T+3}], s{S_t0} offen lds')
        A(f's_add_u32 s{S_t0}, s{S_t0}, {16*3840}')
    A('s_waitcnt vmcnt(0)')
    A('s_branch L_p1_priv')
    A('L_p1_gate:')
    A(f's_load_dwordx2 s[4:5], s[0:1], 80')
    A(f's_load_dwordx2 s[6:7], s[0:1], 0')
    A(f's_mov_b32 s{S_OUT}, {WS_GATE}')
    A(f's_cmp_eq_u32 s{S_W}, 0')
    A(f's_cselect_b32 s{S_OUT}, s{S_OUT}, {BIG}')
    A(f's_mov_b32 s{S_OSTR}, 2048')
    A('s_waitcnt lgkmcnt(0)')
    setsrd(A, S_T, 4, 1280)
    setsrd(A, S_XS, 6, 2048*1280)
    A(f's_mul_i32 s{S_t1}, s{S_W}, 40960')
    A(f'v_lshlrev_b32 v{T0}, 4, v{L}')
    A(f'v_add_u32 v{T0}, s{S_t1}, v{T0}')
    for r in range(4): A(f'v_mov_b32 v{V_B+r}, 0')
    for i in range(40): A(f'ds_write_b128 v{T0}, {vr(V_B,4)} offset:{i*1024}')
    A(f'v_lshlrev_b32 v{T1}, 1, v{L}')
    for i in range(10):
        A(f'buffer_load_ushort v{V_B+4+i}, v{T1}, s[{S_T}:{S_T+3}], 0 offen offset:{128*i}')
    A(f'v_lshlrev_b32 v{T0}, 6, v{L}')
    A(f'v_add_u32 v{T0}, s{S_t1}, v{T0}')
    A('s_waitcnt vmcnt(0) lgkmcnt(0)')
    for i in range(10):
        A(f'ds_write_b16 v{T0}, v{V_B+4+i} offset:{i*4096}')
    A('s_waitcnt lgkmcnt(0)')
    A('L_p1_priv:')
    A(f'v_lshl_add_u32 v{T0}, v{GK}, 3, v{R_}')
    A(f'v_lshlrev_b32 v{T0}, 6, v{T0}')
    A(f'v_lshlrev_b32 v{T1}, 1, v{T3}')
    A(f'v_cmp_le_u32 vcc, 20, v{T3}')
    A(f'v_mov_b32 v{T2}, 48')
    A('s_nop 0')
    A(f'v_cndmask_b32 v{T1}, v{T1}, v{T2}, vcc')
    A(f'v_add_u32 v{T0}, v{T0}, v{T1}')
    A(f's_mul_i32 s{S_t1}, s{S_W}, 40960')
    A(f'v_add_u32 v{T0}, s{S_t1}, v{T0}')
    A(f'v_lshlrev_b32 v{V_ST}, 4, v{L}')
    for s in range(40):
        for hf in range(2):
            A(f'ds_read_b64_tr_b16 {ar(4*s+2*hf,2)}, v{T0} offset:{s*1024 + hf*256}')
        if s % 4 == 3: A('s_waitcnt lgkmcnt(0)')
    A('L_p1_wdone:')
    A('s_waitcnt lgkmcnt(0)')
    A('s_barrier')
    if HOOKS: HOOKS[2]()
    for i in range(11):
        A(f's_lshl_b32 s{S_t0}, s{S_W}, 6')
        A(f's_add_u32 s{S_t0}, s{S_t0}, {256*i}')
        A(f'v_add_u32 v{T0}, s{S_t0}, v{L}')
        A(f'v_mul_u32_u24 v{T1}, 12946, v{T0}')
        A(f'v_lshrrev_b32 v{T1}, 20, v{T1}')
        A(f'v_mul_u32_u24 v{T2}, 81, v{T1}')
        A(f'v_sub_u32 v{T2}, v{T0}, v{T2}')
        A(f'v_mul_u32_u24 v{T3}, 1280, v{T1}')
        A(f'v_lshl_add_u32 v{T3}, v{T2}, 4, v{T3}')
        A(f'v_cmp_gt_u32 vcc, 80, v{T2}')
        A(f'v_cmp_gt_u32 s[{S_t2}:{S_t3}], 32, v{T1}')
        A('s_nop 3')
        A(f's_and_b64 vcc, vcc, s[{S_t2}:{S_t3}]')
        A(f'v_mov_b32 v{T0}, {BIG}')
        A('s_nop 0')
        A(f'v_cndmask_b32 v{V_XA+i}, v{T0}, v{T3}, vcc')
    A(f'v_and_b32 v{T0}, 31, v{L}')
    A(f'v_mul_u32_u24 v{T0}, 1296, v{T0}')
    A(f'v_lshrrev_b32 v{T1}, 5, v{L}')
    A(f'v_lshl_add_u32 v{V_RB}, v{T1}, 4, v{T0}')
    def dma_x(i):
        A(f's_add_u32 m0, s{S_t1}, {4096*i}')
        return f'buffer_load_dwordx4 v{V_XA+i}, {XSR}, s{S_XOFF} offen lds'
    for seg in range(2):
        A(f's_lshl_b32 s{S_t1}, s{S_W}, 10')
        A(f's_add_u32 s{S_t1}, s{S_t1}, {seg*SLOTB}')
        A(f's_mov_b32 s{S_XOFF}, {seg*32*1280}')
        for i in range(11):
            ins = dma_x(i); A('s_nop 0'); A(ins)
        for k in range(3):
            pass
    tl(A, 1)
    A(f's_mov_b32 s{S_SEG}, 0')
    A(f's_mov_b32 s{S_SLOT}, 0')
    A(f's_mov_b32 s{S_DSLOT}, {2*SLOTB}')
    A(f's_mov_b32 s{S_XOFF}, {2*32*1280}')
    A(f's_sub_u32 s{S_OUT}, s{S_OUT}, s{S_OSTR}')
    def body(par, first=False):
        acc, pacc = V_ACC+16*par, V_ACC+16*(1-par)
        if first:
            A('s_waitcnt vmcnt(%d)' % (12 if TL_ON[0] else 11))
        else:
            A('s_waitcnt vmcnt(11)')
        A('s_barrier')
        A(f'v_add_u32 v{V_RD}, s{S_SLOT}, v{V_RB}')
        A(f's_max_i32 s{S_t0}, s{S_SEG}, 1')
        A(f's_sub_u32 s{S_t0}, s{S_t0}, 1')
        A(f'v_mov_b32 v{V_PV}, s{S_t0}')
        A(f's_lshl_b32 s{S_t1}, s{S_W}, 10')
        A(f's_add_u32 s{S_t1}, s{S_t1}, s{S_DSLOT}')
        for t in range(NPRE):
            A(f'ds_read_b128 {vr(V_B+4*t,4)}, v{V_RD} offset:{32*t}')
        A(f'buffer_store_dword v{V_PV}, v{V_FL}, {WSR}, s{S_PROGO} offen sc1')
        issued = NPRE
        extra = []
        for t in range(40):
            A(f's_waitcnt lgkmcnt({min(issued-(t+1), 7)})')
            mfma32(A, vr(acc,16), ar(4*t,4), vr(V_B+4*(t%NPRE),4), '0' if t == 0 else vr(acc,16))
            if issued < 40:
                A(f'ds_read_b128 {vr(V_B+4*(issued%NPRE),4)}, v{V_RD} offset:{32*issued}')
                issued += 1
            if 2 <= t < 6:
                k = t-2
                A(f'v_cvt_pk_bf16_f32 v{V_O+2*k}, v{pacc+4*k}, v{pacc+4*k+1}')
                A(f'v_cvt_pk_bf16_f32 v{V_O+2*k+1}, v{pacc+4*k+2}, v{pacc+4*k+3}')
            if t == 7:
                A(f'buffer_store_dwordx4 {vr(V_O,4)}, v{V_ST}, {WSR}, s{S_OUT} offen sc1')
                A(f'buffer_store_dwordx4 {vr(V_O+4,4)}, v{V_ST}, {WSR}, s{S_OUT} offen offset:1024 sc1')
            if t >= 8 and (t-8) % 3 == 0 and (t-8)//3 < 11:
                ins = dma_x((t-8)//3); A('s_nop 0'); A(ins)
        A(f's_add_u32 s{S_SEG}, s{S_SEG}, 1')
        A(f's_add_u32 s{S_OUT}, s{S_OUT}, s{S_OSTR}')
        A(f's_add_u32 s{S_XOFF}, s{S_XOFF}, {32*1280}')
        for r in (S_SLOT, S_DSLOT):
            A(f's_add_u32 s{r}, s{r}, {SLOTB}')
            A(f's_cmp_eq_u32 s{r}, {3*SLOTB}')
            A(f's_cselect_b32 s{r}, 0, s{r}')
    return body

def gen_phase1_loop(A):
    body = gen_phase1(A)
    L = 'L_p1_loop'
    A(f's_mov_b32 s43, s{S_OUT}')
    A(f's_mov_b32 s{S_OUT}, {BIG}')
    body(0, first=True)
    A(f's_add_u32 s{S_OUT}, s43, s{S_OSTR}')
    body(1, first=False)
    A(f'{L}:')
    body(0)
    body(1)
    A(f's_cmp_lt_u32 s{S_SEG}, 64')
    A(f's_cbranch_scc1 {L}')
    A('s_nop 15')
    pacc = V_ACC+16
    for k in range(4):
        A(f'v_cvt_pk_bf16_f32 v{V_O+2*k}, v{pacc+4*k}, v{pacc+4*k+1}')
        A(f'v_cvt_pk_bf16_f32 v{V_O+2*k+1}, v{pacc+4*k+2}, v{pacc+4*k+3}')
    A(f'buffer_store_dwordx4 {vr(V_O,4)}, v{V_ST}, {WSR}, s{S_OUT} offen sc1')
    A(f'buffer_store_dwordx4 {vr(V_O+4,4)}, v{V_ST}, {WSR}, s{S_OUT} offen offset:1024 sc1')
    A('s_waitcnt vmcnt(0)')
    A('s_barrier')
    A(f'v_mov_b32 v{V_PV}, 64')
    A(f'buffer_store_dword v{V_PV}, v{V_FL}, {WSR}, s{S_PROGO} offen sc1')
    A('L_p1_end:')

if __name__ == '__main__':
    A = Asm(); K = NAME + '_kernel'
    kernel_begin(A, K)
    A('s_cmp_ge_u32 s2, 128')
    A('s_cbranch_scc1 L_end')
    A('s_load_dwordx2 s[4:5], s[0:1], 104')
    A('v_lshrrev_b32 v1, 6, v0')
    A('s_nop 0')
    A(f'v_readfirstlane_b32 s{S_W}, v1')
    A('s_waitcnt lgkmcnt(0)')
    setsrd(A, S_WS, 4, 0x10000000)
    A(f's_mov_b32 s{S_BID}, s2')
    gen_phase1_loop(A)
    A('s_waitcnt vmcnt(0)')
    A('L_end:')
    A('s_endpgm')
    open(sys.argv[1], 'w').write(file_text(['; @launch grid=(128,1,1) block=(256,1,1) lds=163840'], A.text(), kernel_desc(K)))
```

```python
from asmlib import *
from ws_layout import *
import struct, sys

NSEG = 64
S_WS   = 8
S_T    = 12
S_X, S_J, S_H, S_C, S_W, S_STEP = 16, 17, 18, 19, 20, 21
S_TO   = 22
S_HASITEM = 23
S_DUM  = 24
S_DBG  = 28
S_t0, S_t1, S_t2, S_t3 = 30, 31, 32, 33
S_PAR  = 34
S_SCL = 38
S_KM, S_VM = 40, 41
S_SEG2 = 42
S_CPO = 44
S_PROF = 48
S_PT   = 64
S_D0   = 68
S_M0   = 72
S_VALID = 76
S_QV, S_PR, S_MR, S_XR = 84, 88, 92, 96
V_QKST, V_VST, V_RLD, V_VLD, V_P4, V_P2, V_RS0, V_RS1 = 1, 2, 3, 4, 5, 6, 7, 8
V_MS   = 9
V_M0   = 10
V_LM0  = 100
V_LB   = 16
V_LRW, V_LRR = 17, 18
V_T    = 20
V_NEG  = 28
V_SEL  = 32
V_LKV  = 36
V_PRG  = 37
V_CPF  = 38
V_CPV  = 39
V_PH   = 99
V_LRK  = 19
V_XP3  = 107
V_B    = 40
V_KPUB, V_VPUB = 80, 81
V_XS   = 82
V_KPL  = 83
V_ACV  = 84
V_RSD  = 88
V_DM3A, V_DM3B = 96, 97
V_VPL  = 98
V_XL   = 104
V_XD   = 108
V_ACC  = 120
V_R    = 128
V_VV   = 144
V_KX   = 160
V_S    = 192
V_VOX  = 204
V_VOM  = 216
V_PX   = 228
V_PM   = 232
V_F    = 236
V_O    = 248
V_PO   = 56
V_PO2  = 254
A_QK, A_V, A_O = 0, 80, 120
A_ONE, A_HALF = 168, 172
HOFF = 768
MEMSTRIDE = 2*HOFF + 32
L_KV  = 0
L_MEM = 65536
L_RAREA = 81920
BIG = 0x40000000
CENSUS = 192
SCALE_LOG2E = (128 ** -0.5) * 1.4426950408889634
def f2u(x): return struct.unpack('<I', struct.pack('<f', x))[0]
OPT = set()
DEFAULTS = {'nS': 3, 'gapS': 15, 'rsdelay': 30, 'nX': 2, 'nR': 2, 'nA': 2, 'bsleep': 100}
WSR = f's[{S_WS}:{S_WS+3}]'
def optval(k, d):
    for o in OPT:
        if o.startswith(k+'='): return o.split('=')[1] if isinstance(d, str) else int(o.split('=')[1])
    return DEFAULTS.get(k, d)
def mfma(A, d, a, b, c):
    A(f'v_mfma_f32_16x16x32_bf16 {d}, {a}, {b}, {c}')
def nops(A, n):
    while n > 0:
        k = min(n, 16); A(f's_nop {k-1}'); n -= k

class Prof:
    def __init__(self, on): self.on = on
    def stamp(self, A, idx, trace_only=False):
        if 'trace' in OPT:
            lab = A.label('L_tr')
            A(f's_cmp_lg_u32 s{S_STEP}, {optval("ts", 30)}')
            A(f's_cbranch_scc1 {lab}')
            A(f's_memrealtime s[{S_PT}:{S_PT+1}]')
            A('s_waitcnt lgkmcnt(0)')
            A(f's_mov_b32 s{S_PROF+idx}, s{S_PT}')
            A(f'{lab}:')
            return
        if not self.on or trace_only: return
        A(f's_memtime s[{S_PT}:{S_PT+1}]')
        A('s_waitcnt lgkmcnt(0)')
        A(f's_sub_u32 s{S_PT+3}, s{S_PT}, s{S_PT+2}')
        A(f's_mov_b32 s{S_PT+2}, s{S_PT}')
        A(f's_add_u32 s{S_PROF+idx}, s{S_PROF+idx}, s{S_PT+3}')

PROFCNT = {}
def check(A, regs, tmp=V_T):
    r = list(regs)
    if len(r) <= 5:
        A(f'v_max3_u32 v{tmp}, v{r[0]}, v{r[1]}, v{r[2]}'); r = r[3:]
        if len(r) == 2: A(f'v_max3_u32 v{tmp}, v{tmp}, v{r[0]}, v{r[1]}')
        elif len(r) == 1: A(f'v_max_u32 v{tmp}, v{tmp}, v{r[0]}')
    else:
        A(f'v_max3_u32 v{tmp}, v{r[0]}, v{r[1]}, v{r[2]}')
        A(f'v_max3_u32 v{tmp+1}, v{r[3]}, v{r[4]}, v{r[5]}'); r = r[6:]; cur = 0
        while len(r) >= 2:
            A(f'v_max3_u32 v{tmp+cur}, v{tmp+cur}, v{r[0]}, v{r[1]}'); r = r[2:]; cur ^= 1
        if r: A(f'v_max3_u32 v{tmp}, v{tmp}, v{tmp+1}, v{r[0]}')
        else: A(f'v_max_u32 v{tmp}, v{tmp}, v{tmp+1}')
    A(f'v_cmp_eq_u32 vcc, -1, v{tmp}')

def retry(A, label, key=None):
    if key in PROFCNT:
        k = PROFCNT[key]; A(f's_add_u32 s{S_PROF+k}, s{S_PROF+k}, 1')
    A(f's_sub_u32 s{S_TO}, s{S_TO}, 1')
    A(f's_cbranch_scc0 {label}')
    A('s_branch L_timeout')

def setsrd(A, lo, size):
    A(f's_mov_b32 s{S_T}, s{lo}')
    A(f's_and_b32 s{S_T+1}, s{lo+1}, 0xffff')
    A(f's_mov_b32 s{S_T+2}, {size}')
    A(f's_mov_b32 s{S_T+3}, 0x20000')

def dbl(A, v, tmp, add=0):
    A(f'v_lshrrev_b32 v{tmp}, 13, v{v}')
    A(f'v_lshlrev_b32 v{tmp}, 14, v{tmp}')
    A(f'v_and_b32 v{v}, 8191, v{v}')
    A(f'v_add_u32 v{v}, v{v}, v{tmp}')
    if add: A(f'v_add_u32 v{v}, {add}, v{v}')

def vox_reads(A, slot):
    for kt in range(2):
        for s4 in range(4):
            A(f'ds_read_b128 {vr(V_KX+16*kt+4*s4,4)}, v{V_LKV} offset:{L_KV + slot*16384 + 8192 + 2048*s4 + 256*kt}')
def vox_compute(A, hook=None):
    A('s_waitcnt lgkmcnt(0)')
    if hook: hook()
    if 'skipvox' in OPT: return
    for tt in range(3):
        acc = V_F if tt % 2 == 0 else V_ACC
        for s4 in range(4):
            for kt in range(2):
                c = '0' if s4 == 0 else vr(acc+4*kt,4)
                mfma(A, vr(acc+4*kt,4), vr(V_KX+16*kt+4*s4,4), ar(A_O+16*tt+4*s4,4), c)
            if tt >= 1 and s4 in (1, 2):
                pacc = V_F if (tt-1) % 2 == 0 else V_ACC
                kt = s4-1
                A(f'v_cvt_pk_bf16_f32 v{V_VOX+4*(tt-1)+2*kt}, v{pacc+4*kt}, v{pacc+4*kt+1}')
                A(f'v_cvt_pk_bf16_f32 v{V_VOX+4*(tt-1)+2*kt+1}, v{pacc+4*kt+2}, v{pacc+4*kt+3}')
    A('s_nop 7')
    for kt in range(2):
        A(f'v_cvt_pk_bf16_f32 v{V_VOX+8+2*kt}, v{V_F+4*kt}, v{V_F+4*kt+1}')
        A(f'v_cvt_pk_bf16_f32 v{V_VOX+8+2*kt+1}, v{V_F+4*kt+2}, v{V_F+4*kt+3}')

def vox_tiles(A, tiles, wait=True):
    if wait: A('s_waitcnt lgkmcnt(0)')
    if 'skipvox' in OPT or not tiles: return
    accs = [V_F, V_ACC]
    for n, tt in enumerate(tiles):
        acc = accs[n % 2]
        for s4 in range(4):
            for kt in range(2):
                c = '0' if s4 == 0 else vr(acc+4*kt,4)
                mfma(A, vr(acc+4*kt,4), vr(V_KX+16*kt+4*s4,4), ar(A_O+16*tt+4*s4,4), c)
            if n >= 1 and s4 in (1, 2):
                pt = tiles[n-1]; pacc = accs[(n-1) % 2]; kt = s4-1
                A(f'v_cvt_pk_bf16_f32 v{V_VOX+4*pt+2*kt}, v{pacc+4*kt}, v{pacc+4*kt+1}')
                A(f'v_cvt_pk_bf16_f32 v{V_VOX+4*pt+2*kt+1}, v{pacc+4*kt+2}, v{pacc+4*kt+3}')
    A('s_nop 6')
    pt = tiles[-1]; pacc = accs[(len(tiles)-1) % 2]
    for kt in range(2):
        A(f'v_cvt_pk_bf16_f32 v{V_VOX+4*pt+2*kt}, v{pacc+4*kt}, v{pacc+4*kt+1}')
        A(f'v_cvt_pk_bf16_f32 v{V_VOX+4*pt+2*kt+1}, v{pacc+4*kt+2}, v{pacc+4*kt+3}')

def gen_prologue(A, P):
    A(f's_lshr_b32 s{S_t0}, s{S_J}, 2')
    A(f's_lshl_b32 s{S_H}, s{S_X}, 3')
    A(f's_add_u32 s{S_H}, s{S_H}, s{S_t0}')
    A(f's_and_b32 s{S_C}, s{S_J}, 3')
    A(f's_mov_b32 s{S_SCL}, {hex(f2u(SCALE_LOG2E))}')
    A(f's_mov_b32 s{S_SCL+1}, {hex(f2u(SCALE_LOG2E))}')
    L, I, G = V_T, V_T+1, V_T+2
    T0, T1, T2 = V_T+3, V_T+4, V_T+5
    I7 = V_T+6; T3 = V_T+7
    A(f'v_and_b32 v{L}, 63, v0')
    A(f'v_and_b32 v{I}, 15, v0')
    A(f'v_bfe_u32 v{G}, v0, 4, 2')
    A(f'v_and_b32 v{I7}, 7, v{I}')
    A.c('weights DMA')
    A(f's_load_dwordx4 s[4:7], s[0:1], 16')
    A(f's_waitcnt lgkmcnt(0)')
    A(f'v_lshrrev_b32 v{T0}, 2, v{L}')
    A(f'v_lshlrev_b32 v{T0}, 13, v{T0}')
    A(f'v_and_b32 v{T1}, 3, v{L}')
    A(f'v_lshlrev_b32 v{T1}, 4, v{T1}')
    A(f'v_add_u32 v{T0}, v{T0}, v{T1}')
    A(f's_lshl_b32 s{S_t0}, s{S_H}, 8')
    A(f's_lshl_b32 s{S_t1}, s{S_C}, 6')
    A(f's_add_u32 s{S_t0}, s{S_t0}, s{S_t1}')
    A(f'v_add_u32 v{T0}, s{S_t0}, v{T0}')
    def dma_w(area):
        A(f's_lshl_b32 s{S_t0}, s{S_W}, 17')
        A(f's_lshl_b32 s{S_t1}, s{S_W}, 10')
        A(f's_add_u32 s{S_t1}, s{S_t1}, {area}')
        for i in range(10):
            A(f's_mov_b32 m0, s{S_t1}')
            A(f's_add_u32 s{S_t1}, s{S_t1}, 4096')
            A(f'buffer_load_dwordx4 v{T0}, s[{S_T}:{S_T+3}], s{S_t0} offen lds')
            A(f's_add_u32 s{S_t0}, s{S_t0}, {4*131072}')
    setsrd(A, 4, 5242880); dma_w(0)
    setsrd(A, 6, 5242880); dma_w(40960)
    A(f's_load_dwordx4 s[4:7], s[0:1], 32')
    A(f's_waitcnt lgkmcnt(0)')
    setsrd(A, 4, 5242880); dma_w(81920)
    setsrd(A, 6, 5242880)
    WO = V_B
    for b in range(5):
        A(f'v_add_u32 v{T1}, {64*b}, v{L}')
        A(f'v_mul_u32_u24 v{T2}, 3277, v{T1}')
        A(f'v_lshrrev_b32 v{T2}, 16, v{T2}')
        A(f'v_mul_u32_u24 v{WO+b}, 20, v{T2}')
        A(f'v_sub_u32 v{WO+b}, v{T1}, v{WO+b}')
        A(f'v_lshlrev_b32 v{WO+b}, 4, v{WO+b}')
        A(f'v_mul_u32_u24 v{T2}, 1280, v{T2}')
        A(f'v_add_u32 v{WO+b}, v{WO+b}, v{T2}')
    A(f's_mul_i32 s{S_t0}, s{S_H}, {128*1280}')
    A(f's_mul_i32 s{S_t1}, s{S_C}, 320')
    A(f's_add_u32 s{S_t0}, s{S_t0}, s{S_t1}')
    A(f's_mul_i32 s{S_t1}, s{S_W}, {16*1280}')
    A(f's_add_u32 s{S_t0}, s{S_t0}, s{S_t1}')
    A(f's_mul_i32 s{S_t1}, s{S_W}, 5120')
    A(f's_add_u32 s{S_t1}, s{S_t1}, 122880')
    for hi in range(2):
        for b in range(5):
            A(f's_add_u32 m0, s{S_t1}, {hi*4*5120 + b*1024}')
            A(f's_add_u32 s{S_t2}, s{S_t0}, {hi*4*16*1280}')
            A(f'buffer_load_dwordx4 v{WO+b}, s[{S_T}:{S_T+3}], s{S_t2} offen lds')
    A.c('address regs')
    VALID = f's[{S_VALID}:{S_VALID+1}]'
    VV_ = f's[{S_M0}:{S_M0+1}]'
    A(f'v_cmp_gt_u32 {VALID}, 8, v{I}')
    A(f'v_mov_b32 v{T2}, {BIG}')
    TO = V_B+8
    A(f's_lshr_b32 s{S_t1}, s{S_W}, 1')
    A(f's_lshl_b32 s{S_t0}, s{S_t1}, 11')
    A(f's_lshl_b32 s{S_t1}, s{S_C}, 9')
    A(f's_add_u32 s{S_t0}, s{S_t0}, s{S_t1}')
    A(f's_and_b32 s{S_t1}, s{S_W}, 1')
    A(f's_lshl_b32 s{S_t1}, s{S_t1}, 8')
    A(f's_add_u32 s{S_t0}, s{S_t0}, s{S_t1}')
    A(f'v_lshlrev_b32 v{TO}, 5, v{I7}')
    A(f'v_lshl_add_u32 v{TO}, v{G}, 3, v{TO}')
    A(f'v_add_u32 v{TO}, s{S_t0}, v{TO}')
    S_HB = S_D0
    A(f's_lshr_b32 s{S_t0}, s{S_H}, 1')
    A(f's_lshl_b32 s{S_t0}, s{S_t0}, 14')
    A(f's_and_b32 s{S_t1}, s{S_H}, 1')
    A(f's_lshl_b32 s{S_t1}, s{S_t1}, 12')
    A(f's_add_u32 s{S_HB}, s{S_t0}, s{S_t1}')
    A(f'v_add_u32 v{T0}, s{S_HB}, v{TO}')
    A(f'v_cndmask_b32 v{V_QKST}, v{T2}, v{T0}, {VALID}')
    A(f's_cmp_ge_u32 s{S_W}, 2')
    A(f's_cselect_b64 {VV_}, -1, 0')
    A(f's_xor_b64 {VV_}, {VV_}, {VALID}')
    A(f'v_add_u32 v{T0}, {V_RING_OFF}, v{T0}')
    A(f'v_cndmask_b32 v{V_VST}, v{T2}, v{T0}, {VV_}')
    A(f'v_lshlrev_b32 v{T0}, 4, v{L}')
    A(f'v_cmp_gt_u32 vcc, 32, v{L}')
    A(f's_lshl_b32 s{S_t0}, s{S_C}, 9')
    A(f's_lshl_b32 s{S_t1}, s{S_H}, 11')
    A(f's_add_u32 s{S_t1}, s{S_t1}, s{S_t0}')
    A(f'v_add_u32 v{T1}, s{S_t1}, v{T0}')
    A(f'v_cndmask_b32 v{V_KPUB}, v{T2}, v{T1}, vcc')
    A(f's_add_u32 s{S_t1}, s{S_HB}, s{S_t0}')
    A(f's_add_u32 s{S_t1}, s{S_t1}, 2048')
    A(f'v_add_u32 v{T1}, s{S_t1}, v{T0}')
    A(f'v_cndmask_b32 v{V_KPL}, v{T2}, v{T1}, vcc')
    A(f's_lshl_b32 s{S_t0}, s{S_C}, 10')
    A(f's_lshl_b32 s{S_t1}, s{S_H}, 12')
    A(f's_add_u32 s{S_t1}, s{S_t1}, s{S_t0}')
    A(f'v_add_u32 v{V_VPUB}, s{S_t1}, v{T0}')
    A(f's_add_u32 s{S_t1}, s{S_HB}, s{S_t0}')
    A(f's_add_u32 s{S_t1}, s{S_t1}, {V_RING_OFF}')
    A(f'v_add_u32 v{V_VPL}, s{S_t1}, v{T0}')
    A(f's_lshl_b32 s{S_t1}, s{S_W}, 10')
    A(f's_add_u32 s{S_t0}, s{S_HB}, s{S_t1}')
    A(f'v_add_u32 v{V_RLD}, s{S_t0}, v{T0}')
    A(f's_add_u32 s{S_t1}, s{S_t1}, {L_RAREA}')
    A(f'v_add_u32 v{V_LRW}, s{S_t1}, v{T0}')
    A(f'v_lshrrev_b32 v{T0}, 3, v{I}')
    A(f'v_lshlrev_b32 v{T0}, 11, v{T0}')
    A(f'v_lshrrev_b32 v{T1}, 1, v{G}')
    A(f'v_lshl_add_u32 v{T0}, v{T1}, 8, v{T0}')
    A(f'v_lshl_add_u32 v{T0}, v{I7}, 5, v{T0}')
    A(f'v_and_b32 v{T1}, 1, v{G}')
    A(f'v_lshl_add_u32 v{T0}, v{T1}, 4, v{T0}')
    A(f'v_add_u32 v{V_LRR}, {L_RAREA}, v{T0}')
    A(f'v_and_b32 v{V_LRK}, 2047, v{T0}')
    A(f'v_add_u32 v{V_LRK}, {L_RAREA + 2048}, v{V_LRK}')
    A(f's_add_u32 s{S_t0}, s{S_HB}, {V_RING_OFF}')
    A(f'v_add_u32 v{V_VLD}, s{S_t0}, v{T0}')
    A(f's_mul_i32 s{S_t0}, s{S_H}, 10240')
    A(f's_mul_i32 s{S_t1}, s{S_C}, 2560')
    A(f's_add_u32 s{S_t0}, s{S_t0}, s{S_t1}')
    A(f's_lshl_b32 s{S_t1}, s{S_W}, 9')
    A(f's_add_u32 s{S_t1}, s{S_t1}, s{S_t0}')
    A(f'v_lshlrev_b32 v{T0}, 6, v{I}')
    A(f'v_lshl_add_u32 v{T0}, v{G}, 4, v{T0}')
    A(f'v_add_u32 v{T0}, s{S_t1}, v{T0}')
    dbl(A, T0, T1)
    A(f'v_cndmask_b32 v{V_P4}, v{T2}, v{T0}, {VALID}')
    A(f's_lshl_b32 s{S_t1}, s{S_W}, 8')
    A(f's_add_u32 s{S_t1}, s{S_t1}, 2048')
    A(f's_add_u32 s{S_t1}, s{S_t1}, s{S_t0}')
    A(f'v_lshlrev_b32 v{T0}, 5, v{I}')
    A(f'v_lshl_add_u32 v{T0}, v{G}, 3, v{T0}')
    A(f'v_add_u32 v{T0}, s{S_t1}, v{T0}')
    dbl(A, T0, T1)
    A(f's_cmp_lt_u32 s{S_W}, 2')
    A(f's_cselect_b64 s[{S_t2}:{S_t3}], {VALID}, 0')
    A(f'v_cndmask_b32 v{V_P2}, v{T2}, v{T0}, s[{S_t2}:{S_t3}]')
    A(f's_lshl_b32 s{S_t0}, s{S_W}, 5')
    A(f's_add_u32 s{S_t0}, s{S_t0}, s{S_J}')
    A(f's_cmp_lt_u32 s{S_t0}, 80')
    A(f's_cselect_b32 s{S_HASITEM}, 1, 0')
    A(f's_cselect_b32 s{S_t0}, s{S_t0}, 0')
    A(f's_lshl_b32 s{S_t1}, s{S_t0}, 7')
    A(f's_cmp_eq_u32 s{S_HASITEM}, 1')
    A(f's_cselect_b64 {VV_}, -1, 0')
    for u, dst in enumerate((V_RS0, V_RS1)):
        A(f'v_add_u32 v{T0}, {4*u}, v{G}')
        A(f's_lshl_b32 s{S_t2}, s{S_X}, 3')
        A(f'v_add_u32 v{T0}, s{S_t2}, v{T0}')
        A(f'v_mul_u32_u24 v{T0}, 10240, v{T0}')
        A(f'v_lshl_add_u32 v{T0}, v{I}, 3, v{T0}')
        A(f'v_add_u32 v{T0}, s{S_t1}, v{T0}')
        dbl(A, T0, T1)
        A(f'v_cndmask_b32 v{dst}, v{T2}, v{T0}, {VV_}')
    A(f'v_cmp_eq_u32 vcc, 0, v{G}')
    A('s_nop 3')
    A(f's_and_b64 {VV_}, {VV_}, vcc')
    A(f's_mul_i32 s{S_t2}, s{S_X}, 10240')
    A(f's_add_u32 s{S_t2}, s{S_t2}, s{S_t1}')
    A(f'v_lshlrev_b32 v{T0}, 3, v{I}')
    A(f'v_add_u32 v{T0}, s{S_t2}, v{T0}')
    dbl(A, T0, T1)
    A(f'v_cndmask_b32 v{V_MS}, v{T2}, v{T0}, {VV_}')
    for k, dst in enumerate((V_XS, V_XL, V_XL+1, V_XL+2)):
        A(f's_add_u32 s{S_t2}, s{S_X}, {k}')
        A(f's_and_b32 s{S_t2}, s{S_t2}, 3')
        A(f's_mul_i32 s{S_t2}, s{S_t2}, 20480')
        A(f's_lshl_b32 s{S_t3}, s{S_t1}, 1')
        A(f's_add_u32 s{S_t2}, s{S_t2}, s{S_t3}')
        A(f'v_lshlrev_b32 v{T0}, 4, v{I}')
        A(f'v_add_u32 v{T0}, s{S_t2}, v{T0}')
        dbl(A, T0, T1)
        if 'xtag' in OPT and k > 0: A(f'v_mov_b32 v{dst}, v{T0}')
        else: A(f'v_cndmask_b32 v{dst}, v{T2}, v{T0}, {VV_}')
    A(f'v_mov_b32 v{V_PH}, 0')
    A(f'v_lshlrev_b32 v{T0}, 5, v{G}')
    A(f'v_add_u32 v{T0}, s{S_J}, v{T0}')
    A(f'v_cmp_gt_u32 vcc, 80, v{T0}')
    A(f'v_lshlrev_b32 v{T0}, 8, v{T0}')
    A(f'v_lshl_add_u32 v{T0}, v{I}, 4, v{T0}')
    A(f's_mul_i32 s{S_t2}, s{S_X}, 20480')
    A(f'v_add_u32 v{T0}, s{S_t2}, v{T0}')
    dbl(A, T0, T1)
    A(f's_cmp_eq_u32 s{S_W}, 3')
    A(f's_cselect_b64 s[{S_t2}:{S_t3}], vcc, 0')
    A(f'v_cndmask_b32 v{V_XP3}, v{T2}, v{T0}, s[{S_t2}:{S_t3}]')
    Q, LN, PT, ROW, COL = V_B+8, V_B+9, V_B+10, V_B+11, V_B+12
    M_, R2, C2 = V_B+13, V_B+14, V_B+15
    NAG = 4 if 'ag3' in OPT else 3
    for k in range(NAG):
        if 'ag3' in OPT:
            A(f's_mul_i32 s{S_t0}, s{S_W}, 214')
            A(f's_add_u32 s{S_t1}, s{S_t0}, 213')
            A(f's_min_u32 s{S_t1}, s{S_t1}, 639')
            A(f's_add_u32 s{S_t0}, s{S_t0}, {64*k}')
            A(f'v_add_u32 v{Q}, s{S_t0}, v{L}')
            A(f'v_min_u32 v{Q}, s{S_t1}, v{Q}')
        else:
            A(f's_mul_i32 s{S_t0}, s{S_W}, 160')
            A(f's_add_u32 s{S_t0}, s{S_t0}, {64*k}')
            A(f'v_add_u32 v{Q}, s{S_t0}, v{L}')
            if k == 2:
                A(f'v_cmp_le_u32 vcc, 32, v{L}')
                A(f'v_subrev_u32 v{T1}, 32, v{Q}')
                A('s_nop 0')
                A(f'v_cndmask_b32 v{Q}, v{Q}, v{T1}, vcc')
        A(f's_mul_i32 s{S_t0}, s{S_X}, 10240')
        A(f'v_lshlrev_b32 v{V_M0+k}, 4, v{Q}')
        A(f'v_add_u32 v{V_M0+k}, s{S_t0}, v{V_M0+k}')
        dbl(A, V_M0+k, T1)
        A(f'v_lshrrev_b32 v{LN}, 3, v{Q}')
        A(f'v_and_b32 v{PT}, 7, v{Q}')
        A(f'v_mul_u32_u24 v{T0}, 3277, v{LN}')
        A(f'v_lshrrev_b32 v{T0}, 16, v{T0}')
        A(f'v_mul_u32_u24 v{T1}, 20, v{T0}')
        A(f'v_sub_u32 v{LN}, v{LN}, v{T1}')
        A(f'v_mul_u32_u24 v{COL}, 160, v{T0}')
        A(f'v_and_b32 v{T0}, 3, v{LN}')
        A(f'v_lshlrev_b32 v{T0}, 1, v{T0}')
        A(f'v_lshrrev_b32 v{T1}, 2, v{PT}')
        A(f'v_add_u32 v{ROW}, v{T0}, v{T1}')
        A(f'v_lshrrev_b32 v{T0}, 2, v{LN}')
        A(f'v_lshlrev_b32 v{T0}, 5, v{T0}')
        A(f'v_and_b32 v{T1}, 3, v{PT}')
        A(f'v_lshl_add_u32 v{T0}, v{T1}, 3, v{T0}')
        A(f'v_subrev_u32 v{M_}, 16, v{LN}')
        A(f'v_and_b32 v{R2}, 1, v{M_}')
        A(f'v_lshlrev_b32 v{R2}, 2, v{R2}')
        A(f'v_lshrrev_b32 v{T1}, 1, v{PT}')
        A(f'v_add_u32 v{R2}, v{R2}, v{T1}')
        A(f'v_lshrrev_b32 v{C2}, 1, v{M_}')
        A(f'v_lshlrev_b32 v{C2}, 4, v{C2}')
        A(f'v_and_b32 v{T1}, 1, v{PT}')
        A(f'v_lshl_add_u32 v{C2}, v{T1}, 3, v{C2}')
        A(f'v_add_u32 v{C2}, 128, v{C2}')
        A(f'v_cmp_le_u32 vcc, 16, v{LN}')
        A('s_nop 1')
        A(f'v_cndmask_b32 v{ROW}, v{ROW}, v{R2}, vcc')
        A(f'v_cndmask_b32 v{T0}, v{T0}, v{C2}, vcc')
        A(f'v_add_u32 v{COL}, v{COL}, v{T0}')
        A(f'v_lshlrev_b32 v{T0}, 1, v{COL}')
        A(f'v_add_u32 v{T1}, {HOFF-640}, v{T0}')
        A(f'v_cmp_le_u32 vcc, 320, v{COL}')
        A(f'v_mul_u32_u24 v{ROW}, {MEMSTRIDE}, v{ROW}')
        A('s_nop 0')
        A(f'v_cndmask_b32 v{T0}, v{T0}, v{T1}, vcc')
        A(f'v_add_u32 v{V_LM0+k}, v{ROW}, v{T0}')
        A(f'v_add_u32 v{V_LM0+k}, {L_MEM}, v{V_LM0+k}')
    A(f'v_mul_u32_u24 v{T0}, {MEMSTRIDE}, v{I7}')
    A(f'v_lshrrev_b32 v{T1}, 3, v{I}')
    A(f'v_mul_u32_u24 v{T1}, {HOFF}, v{T1}')
    A(f'v_add_u32 v{T0}, v{T0}, v{T1}')
    A(f'v_lshl_add_u32 v{V_LB}, v{G}, 4, v{T0}')
    A(f'v_add_u32 v{V_LB}, {L_MEM}, v{V_LB}')
    A(f'v_lshrrev_b32 v{T0}, 1, v{G}')
    A(f'v_lshlrev_b32 v{T0}, 10, v{T0}')
    A(f'v_and_b32 v{T1}, 1, v{G}')
    A(f'v_lshl_add_u32 v{T0}, v{T1}, 9, v{T0}')
    A(f'v_lshl_add_u32 v{V_LKV}, v{I}, 4, v{T0}')
    A(f'v_lshlrev_b32 v{V_DM3A}, 4, v{L}')
    A(f'v_lshlrev_b32 v{T0}, 12, v{L}')
    A(f's_lshl_b32 s{S_t0}, s{S_H}, 7')
    A(f'v_add_u32 v{T0}, s{S_t0}, v{T0}')
    A(f'v_cmp_gt_u32 vcc, 2, v{L}')
    A(f'v_mov_b32 v{T1}, {BIG}')
    A('s_nop 0')
    A(f'v_cndmask_b32 v{V_PRG}, v{T1}, v{T0}, vcc')
    A(f's_lshl_b32 s{S_t0}, s{S_H}, 2')
    A(f's_add_u32 s{S_t0}, s{S_t0}, s{S_C}')
    A(f's_lshl_b32 s{S_t0}, s{S_t0}, 7')
    A(f'v_mov_b32 v{T0}, s{S_t0}')
    A(f'v_cmp_eq_u32 vcc, 192, v0')
    A('s_nop 1')
    A(f'v_cndmask_b32 v{V_CPF}, v{T1}, v{T0}, vcc')
    for k in range(4): A(f'v_mov_b32 v{V_NEG+k}, -1')
    A(f'v_mov_b32 v{V_SEL}, 0')
    A(f'v_mov_b32 v{V_SEL+1}, 0')
    for m, (reg, val) in enumerate(((0, 0x3F80), (0, 0x3F800000), (1, 0x3F80), (1, 0x3F800000))):
        A(f'v_cmp_eq_u32 vcc, {m}, v{I}')
        A(f'v_mov_b32 v{T0}, {hex(val)}')
        A('s_nop 0')
        A(f'v_cndmask_b32 v{V_SEL+reg}, v{V_SEL+reg}, v{T0}, vcc')
    A(f'v_mov_b32 v{V_SEL+2}, v{V_SEL}')
    A(f'v_mov_b32 v{V_SEL+3}, v{V_SEL+1}')
    for tt in range(3):
        A(f'v_mov_b32 v{V_VOM+4*tt+2}, 0')
        A(f'v_mov_b32 v{V_VOM+4*tt+3}, 0')
    A(f'v_mov_b32 v{V_PM+2}, 0')
    A(f'v_mov_b32 v{V_PM+3}, 0')
    A(f'v_mov_b32 v{T0}, 0x3f803f80')
    A(f'v_mov_b32 v{T1}, 0x3f003f00')
    for r in range(4):
        A(f'v_accvgpr_write_b32 a{A_ONE+r}, v{T0}')
        A(f'v_accvgpr_write_b32 a{A_HALF+r}, v{T1}')
    A.c('initial poison (both parities)')
    A(f'v_mov_b32 v{V_CPV}, 0')
    A(f's_mov_b32 s{S_t0}, {C_CPROG}')
    A(f'buffer_store_dword v{V_CPV}, v{V_CPF}, {WSR}, s{S_t0} offen sc1')
    for sl in range(4):
        A(f's_mov_b32 s{S_t0}, {QV_SLOT(sl)[0]}')
        A(f'buffer_store_dwordx2 {vr(V_NEG,2)}, v{V_QKST}, {WSR}, s{S_t0} offen sc1')
        A(f'buffer_store_dwordx2 {vr(V_NEG,2)}, v{V_VST}, {WSR}, s{S_t0} offen sc1')
        A(f's_mov_b32 s{S_t0}, {P_SLOT(sl)[0]}')
        A(f'buffer_store_dwordx4 {vr(V_NEG,4)}, v{V_P4}, {WSR}, s{S_t0} offen sc1')
        A(f'buffer_store_dwordx2 {vr(V_NEG,2)}, v{V_P2}, {WSR}, s{S_t0} offen sc1')
        A(f's_mov_b32 s{S_t0}, {M_SLOT(sl)[0]}')
        A(f'buffer_store_dwordx2 {vr(V_NEG,2)}, v{V_MS}, {WSR}, s{S_t0} offen sc1')
        for par in range(2):
            A(f's_mov_b32 s{S_t0}, {X_SLOT(sl)[0] + par*8192}')
            A(f'buffer_store_dwordx4 {vr(V_NEG,4)}, v{V_XS}, {WSR}, s{S_t0} offen sc1')
        if sl == 2: A('s_waitcnt vmcnt(30)')
    A('s_waitcnt vmcnt(6)')
    verdict_issue(A, 'c')
    A('s_waitcnt vmcnt(0)')
    A('s_barrier')
    A(f's_cmp_lg_u32 s{S_W}, 0')
    A('s_cbranch_scc1 L_c_arrived')
    verdict_eval(A, 'c')
    A('s_cmp_lg_u32 s79, 0')
    A('s_cbranch_scc1 L_c_arrived')
    A(f'v_mov_b32 v{T0}, {CENSUS}')
    A(f'v_mov_b32 v{T1}, 1')
    A('s_mov_b64 exec, 1')
    A(f'global_atomic_add v{T0}, v{T1}, s[{S_DBG}:{S_DBG+1}]')
    A('s_mov_b64 exec, -1')
    A('L_c_arrived:')
    tl(A, 1)
    A.c('weights tr-read')
    R_, CQ = V_T+6, V_T+7
    A(f'v_bfe_u32 v{R_}, v{L}, 2, 2')
    A(f'v_and_b32 v{CQ}, 3, v{L}')
    A(f'v_lshl_add_u32 v{T0}, v{G}, 3, v{R_}')
    A(f'v_lshlrev_b32 v{T0}, 6, v{T0}')
    A(f'v_lshl_add_u32 v{T0}, v{CQ}, 3, v{T0}')
    A(f's_and_b32 s{S_t0}, s{S_W}, 1')
    A(f's_lshl_b32 s{S_t0}, s{S_t0}, 5')
    A(f'v_add_u32 v{T0}, s{S_t0}, v{T0}')
    A(f's_lshr_b32 s{S_t1}, s{S_W}, 1')
    A(f's_mul_i32 s{S_t2}, s{S_t1}, 40960')
    A(f'v_add_u32 v{T1}, s{S_t2}, v{T0}')
    for t in range(20):
        for hf in range(2):
            A(f'ds_read_b64_tr_b16 {ar(A_QK+4*t+2*hf,2)}, v{T1} offset:{t*2048+hf*256}')
        if t % 4 == 3: A('s_waitcnt lgkmcnt(0)')
    A(f's_mul_i32 s{S_t3}, s{S_t1}, {10*2048}')
    A(f's_add_u32 s{S_t3}, s{S_t3}, 81920')
    A(f'v_add_u32 v{T1}, s{S_t3}, v{T0}')
    for t in range(10):
        for hf in range(2):
            A(f'ds_read_b64_tr_b16 {ar(A_V+4*t+2*hf,2)}, v{T1} offset:{t*2048+hf*256}')
        if t % 4 == 3: A('s_waitcnt lgkmcnt(0)')
    A('s_waitcnt lgkmcnt(0)')
    A(f'v_lshl_add_u32 v{T0}, v{G}, 3, v{R_}')
    A(f'v_mul_u32_u24 v{T0}, 320, v{T0}')
    A(f'v_add_u32 v{T0}, 122880, v{T0}')
    A(f's_lshl_b32 s{S_t0}, s{S_W}, 6')
    A(f'v_lshl_add_u32 v{T1}, v{CQ}, 4, v{T0}')
    A(f'v_add_u32 v{T1}, s{S_t0}, v{T1}')
    A(f's_and_b32 s{S_t0}, s{S_W}, 1')
    A(f's_lshl_b32 s{S_t0}, s{S_t0}, 5')
    A(f's_add_u32 s{S_t0}, s{S_t0}, 256')
    A(f'v_lshl_add_u32 v{T2}, v{CQ}, 3, v{T0}')
    A(f'v_add_u32 v{T2}, s{S_t0}, v{T2}')
    for tt in range(3):
        for s4 in range(4):
            for hf in range(2):
                if tt < 2:
                    A(f'ds_read_b64_tr_b16 {ar(A_O+16*tt+4*s4+2*hf,2)}, v{T1} offset:{(32*s4+4*hf)*320 + 8*tt}')
                else:
                    A(f'ds_read_b64_tr_b16 {ar(A_O+16*tt+4*s4+2*hf,2)}, v{T2} offset:{(32*s4+4*hf)*320}')
        A('s_waitcnt lgkmcnt(0)')
    A('s_barrier')
    verdict_bcast(A, 'c')
    A.c('prologue kv + mem0')
    A(f's_mov_b32 s{S_STEP}, 0')
    A(f's_load_dwordx2 s[4:5], s[0:1], 8')
    A('s_waitcnt lgkmcnt(0)')
    setsrd(A, 4, 10240)
    for k in range(3):
        A(f'v_add_u32 v{T0}, {64*k}, v{L}')
        if k == 2:
            A(f'v_cmp_le_u32 vcc, 160, v{T0}')
            A(f'v_subrev_u32 v{T1}, 32, v{T0}')
            A('s_nop 0')
            A(f'v_cndmask_b32 v{T0}, v{T0}, v{T1}, vcc')
        A(f'v_cmp_le_u32 vcc, 80, v{T0}')
        A(f'v_subrev_u32 v{T1}, 80, v{T0}')
        A('s_nop 0')
        A(f'v_cndmask_b32 v{T0}, v{T0}, v{T1}, vcc')
        A(f'v_cndmask_b32 v{T1}, 0, 1, vcc')
        A(f's_lshl_b32 s{S_t0}, s{S_W}, 1')
        A(f'v_add_u32 v{T1}, s{S_t0}, v{T1}')
        A(f'v_lshlrev_b32 v{T0}, 4, v{T0}')
        A(f'v_mul_u32_u24 v{T2}, 1280, v{T1}')
        A(f'v_add_u32 v{T2}, v{T2}, v{T0}')
        A(f'buffer_load_dwordx4 {vr(V_B+4*k,4)}, v{T2}, s[{S_T}:{S_T+3}], 0 offen')
        A(f'v_add_u32 v{V_B+16}, {HOFF-640}, v{T0}')
        A(f'v_cmp_le_u32 vcc, 640, v{T0}')
        A(f'v_mul_u32_u24 v{T1}, {MEMSTRIDE}, v{T1}')
        A('s_nop 0')
        A(f'v_cndmask_b32 v{T0}, v{T0}, v{V_B+16}, vcc')
        A(f'v_add_u32 v{V_B+20+k}, v{T1}, v{T0}')
        A(f'v_add_u32 v{V_B+20+k}, {L_MEM}, v{V_B+20+k}')
    A('s_waitcnt vmcnt(0)')
    for k in range(3):
        A(f'ds_write_b128 v{V_B+20+k}, {vr(V_B+4*k,4)}')
    A('s_waitcnt lgkmcnt(0)')
    A(f's_cmp_lg_u32 s{S_W}, 0')
    A('s_cbranch_scc1 L_c_census_done')
    A('L_c_census:')
    A(f'v_mov_b32 v{T0}, {CENSUS}')
    A(f'global_load_dword v{T1}, v{T0}, s[{S_DBG}:{S_DBG+1}] sc1')
    A('s_waitcnt vmcnt(0)')
    A(f'v_readfirstlane_b32 s{S_t0}, v{T1}')
    A(f's_cmp_ge_u32 s{S_t0}, 256')
    A('s_cbranch_scc1 L_c_census_done')
    A('s_sleep 4')
    retry(A, 'L_c_census')
    A('L_c_census_done:')
    A('s_barrier')
    tl(A, 2)
    A(f'v_mov_b32 v{T0}, 64')
    A(f'global_load_dword v{V_B}, v{T0}, s[{S_DBG}:{S_DBG+1}] sc1')
    A('s_waitcnt vmcnt(0)')
    A(f'v_readfirstlane_b32 s{S_PAR}, v{V_B}')
    A(f's_and_b32 s{S_PAR}, s{S_PAR}, 1')
    if 'xfar' in OPT: A(f's_xor_b32 s{S_PAR}, s{S_PAR}, 1')
    A(f's_lshl_b32 s{S_PAR}, s{S_PAR}, 13')
    for nm, base, fn in (('Q', S_QV, QV_SLOT), ('P', S_PR, P_SLOT), ('M', S_MR, M_SLOT), ('X', S_XR, X_SLOT)):
        for k in range(4):
            addr, pg = fn(k)
            if nm == 'X': A(f's_add_u32 s{base+k}, s{S_PAR}, {addr}')
            else: A(f's_mov_b32 s{base+k}, {addr}')
    if 'noflag' not in OPT:
        A(f's_mov_b32 s{S_t0}, {C_PROG1}')
        A('L_c_w01:')
        A(f'buffer_load_dword v{T1}, v{V_PRG}, {WSR}, s{S_t0} offen sc1')
        A('s_waitcnt vmcnt(0)')
        A(f'v_cmp_gt_u32 vcc, 2, v{T1}')
        A('s_nop 3')
        A('s_and_b64 vcc, vcc, 3')
        A('s_cbranch_vccz L_c_w01_ok')
        A('s_sleep 2')
        retry(A, 'L_c_w01')
        A('L_c_w01_ok:')
    A(f's_lshl_b32 s{S_t3}, s{S_H}, 13')
    A(f's_lshl_b32 s{S_t1}, s{S_W}, 11')
    for seg in range(2):
        for mat in range(2):
            for k in range(2):
                A(f's_add_u32 m0, s{S_t1}, {L_KV + seg*16384 + mat*8192 + k*1024}')
                A(f's_add_u32 s{S_t2}, s{S_t1}, s{S_t3}')
                A(f's_add_u32 s{S_t2}, s{S_t2}, {(WS_KX, WS_VX)[mat] + seg*32*8192 + k*1024}')
                A(f'buffer_load_dwordx4 v{V_DM3A}, {WSR}, s{S_t2} offen sc1 lds')
    A('s_waitcnt vmcnt(0)')
    A('s_barrier')
    vox_reads(A, 0)
    vox_compute(A)
    A(f's_mov_b32 s{S_CPO}, {C_CPROG}')
    A(f's_mov_b32 s{S_KM}, {WS_KM}')
    A(f's_mov_b32 s{S_VM}, {WS_VM}')
    A(f's_lshl_b32 s{S_SEG2}, s{S_H}, 13')
    A(f's_add_u32 s{S_SEG2}, s{S_SEG2}, {2*32*8192}')

def ablate(A, start, kinds):
    keep = []
    for l in A.lines[start:]:
        t = l.strip()
        if any(t.startswith(k) for k in kinds): continue
        keep.append(l)
    A.lines[start:] = keep

def gen_step(A, P, u, safe=False):
    cur, n1, p2, n3 = u, (u+1) & 3, (u+2) & 3, (u+3) & 3
    QC, QP = S_QV+cur, S_QV+p2
    PC, PP = S_PR+cur, S_PR+p2
    MC, MW, MP = S_MR+cur, S_MR+n1, S_MR+n3
    XC, XPn = S_XR+cur, S_XR+p2
    sf = f'_{u}' if not safe else f'_s{u}'
    SC = ' sc1' if safe else ''
    pre = 's' if safe else ''
    XLD = {0: 'sc1', 1: 'sc0 sc1', 2: 'sc1 nt', 3: 'nt'}[optval('xld', 0)]
    XST = {0: 'sc1', 1: 'sc0 sc1', 2: 'sc1 nt'}[optval('xst', 0)]
    def pipe_poll(name, nsets, nloads, issue, regs, pre, ok, gap, chk=None):
        lab = f'L_c_{name}{sf}'
        for k in range(nsets):
            issue(k)
            if k < nsets-1: nops(A, gap)
        A(f'{lab}_loop:')
        for k in range(nsets):
            A(f's_waitcnt vmcnt({nloads*(nsets-1)})')
            pre(k)
            (chk or check)(A, regs(k))
            A(f's_cbranch_vccz {lab}_ok{k}')
            issue(k)
        retry(A, f'{lab}_loop', name)
        for k in reversed(range(nsets)):
            A(f'{lab}_ok{k}:')
            ok(k)
            if k > 0: A(f's_branch {lab}_done')
        A(f'{lab}_done:')
    A(f'L_c_loop{sf}:')
    P.stamp(A, 11, True)
    nops(A, optval('adelay', 0))
    NAG = 4 if 'ag3' in OPT else 3
    ASET = [V_VV, V_R, V_XD]
    def a_issue(k):
        for q in range(NAG):
            A(f'buffer_load_dwordx4 {vr(ASET[k]+4*q,4)}, v{V_M0+q}, {WSR}, s{MC} offen sc1')
    def a_pre(k):
        for q in range(NAG):
            A(f'ds_write_b128 v{V_LM0+q}, {vr(ASET[k]+4*q,4)}')
    if 'ag3' in OPT:
        A(f's_cmp_eq_u32 s{S_W}, 3')
        A(f's_cbranch_scc1 L_c_A{sf}_done')
    pipe_poll('A', optval('nA', 1), NAG, a_issue, lambda k: range(ASET[k], ASET[k]+4*NAG), a_pre, lambda k: None, optval('gapA', 40))
    P.stamp(A, 8, True)
    A('s_waitcnt lgkmcnt(0)')
    A('s_barrier')
    P.stamp(A, 0)
    if u == 0: A(f'L_c_afterA0{pre}:')
    A.c('[A1] qk mfma')
    mark = len(A.lines)
    for t in range(10):
        A(f'ds_read_b128 {vr(V_B+4*t,4)}, v{V_LB} offset:{64*t}')
    for t in range(10):
        A(f's_waitcnt lgkmcnt({9-t})')
        mfma(A, vr(V_ACC,4), ar(A_QK+4*t,4), vr(V_B+4*t,4), '0' if t == 0 else vr(V_ACC,4))
        mfma(A, vr(V_ACC+4,4), ar(A_QK+4*(t+10),4), vr(V_B+4*t,4), '0' if t == 0 else vr(V_ACC+4,4))
    NV0 = 0 if 'qkfast' in OPT else 2
    for t in range(NV0):
        mfma(A, vr(V_ACV,4), ar(A_V+4*t,4), vr(V_B+4*t,4), '0' if t == 0 else vr(V_ACV,4))
    A(f's_nop {7-NV0}')
    for r in range(4):
        A(f'v_add_f32_dpp v{V_ACC+r}, v{V_ACC+4+r}, v{V_ACC+r} row_ror:8 row_mask:0xf bank_mask:0xf')
    A(f'v_cvt_pk_bf16_f32 v{V_O}, v{V_ACC}, v{V_ACC+1}')
    A(f'v_cvt_pk_bf16_f32 v{V_O+1}, v{V_ACC+2}, v{V_ACC+3}')
    A(f'buffer_store_dwordx2 {vr(V_O,2)}, v{V_QKST}, {WSR}, s{QC} offen{SC}')
    P.stamp(A, 1)
    for t in range(NV0, 10):
        mfma(A, vr(V_ACV,4), ar(A_V+4*t,4), vr(V_B+4*t,4), '0' if t == 0 else vr(V_ACV,4))
    def kx_reads():
        for kt in range(2):
            for s4 in range(4):
                A(f'ds_read_b128 {vr(V_KX+16*kt+4*s4,4)}, v{V_LKV} offset:{L_KV + cur*16384 + 2048*s4 + 256*kt}')
    RE = [V_B+12, V_B+28]
    if 'rearly' in OPT:
        nops(A, optval('re0', 0))
        A(f'buffer_load_dwordx4 {vr(RE[0],4)}, v{V_RLD}, {WSR}, s{QC} offen sc1')
        kx_reads()
    else:
        kx_reads()
    A(f'v_cvt_pk_bf16_f32 v{V_O+2}, v{V_ACV}, v{V_ACV+1}')
    A(f'v_cvt_pk_bf16_f32 v{V_O+3}, v{V_ACV+2}, v{V_ACV+3}')
    if 'rearly' in OPT:
        A(f'buffer_load_dwordx4 {vr(RE[1],4)}, v{V_RLD}, {WSR}, s{QC} offen sc1')
    A(f'buffer_store_dwordx2 {vr(V_O+2,2)}, v{V_VST}, {WSR}, s{QC} offen{SC}')
    if 'rearly' in OPT:
        for k, cnt in ((0, 2), (1, 1)):
            A(f's_waitcnt vmcnt({cnt})')
            A(f'ds_write_b128 v{V_LRW}, {vr(RE[k],4)}')
            check(A, range(RE[k], RE[k]+4))
            A(f's_cbranch_vccz L_c_R{sf}_done')
    if 'skipA1' in OPT: ablate(A, mark, ['v_mfma', 'v_add_f32_dpp'])
    P.stamp(A, 2)
    A.c('[B0] R piece -> LDS')
    nops(A, optval('rdelay', 0))
    if 'skipR' in OPT: A(f's_branch L_c_R{sf}_done')
    RSET = [V_B, V_B+4, V_B+8]
    pipe_poll('R', optval('nR', 1), 1,
              lambda k: A(f'buffer_load_dwordx4 {vr(RSET[k],4)}, v{V_RLD}, {WSR}, s{QC} offen sc1'),
              lambda k: range(RSET[k], RSET[k]+4),
              lambda k: A(f'ds_write_b128 v{V_LRW}, {vr(RSET[k],4)}'),
              lambda k: None, optval('gapR', 20))
    if 'skipV' not in OPT:
        for s4 in range(4):
            A(f'buffer_load_dwordx4 {vr(V_VV+4*s4,4)}, v{V_VLD}, {WSR}, s{QC} offen offset:{512*s4} sc1')
    A('s_waitcnt lgkmcnt(0)')
    A('s_barrier')
    P.stamp(A, 3)
    OPT1 = 'noopt1' not in OPT
    V_KD = V_B+20
    late = [f'v_mov_b32 v{V_CPV}, s{S_STEP}',
            f'buffer_store_dword v{V_CPV}, v{V_CPF}, {WSR}, s{S_CPO} offen sc1',
            f'buffer_store_dwordx2 {vr(V_NEG,2)}, v{V_QKST}, {WSR}, s{QP} offen{SC}',
            f'buffer_store_dwordx2 {vr(V_NEG,2)}, v{V_VST}, {WSR}, s{QP} offen{SC}',
            f'buffer_store_dwordx4 {vr(V_NEG,4)}, v{V_P4}, {WSR}, s{PP} offen{SC}',
            f'buffer_store_dwordx2 {vr(V_NEG,2)}, v{V_P2}, {WSR}, s{PP} offen{SC}',
            f'buffer_store_dwordx2 {vr(V_NEG,2)}, v{V_MS}, {WSR}, s{MP} offen{SC}']
    NLATE = 6
    if 'xplate' in OPT:
        late.append(f'buffer_store_dwordx4 {vr(V_NEG,4)}, v{V_XS}, {WSR}, s{XPn} offen sc1')
        NLATE += 1
    for s4 in range(4):
        A(f'ds_read_b128 {vr(V_R+4*s4,4)}, v{V_LRR} offset:{512*s4}')
        if OPT1: A(f'ds_read_b128 {vr(V_KD+4*s4,4)}, v{V_LRK} offset:{512*s4}')
    if not OPT1:
        for l in late: A(l)
        late = []
    A.c('[B1] scores')
    mark = len(A.lines)
    for s4 in range(4):
        c0 = '0' if s4 == 0 else None
        A(f's_waitcnt lgkmcnt({(6-2*s4) if OPT1 else (3-s4)})')
        mfma(A, vr(V_S,4), vr(V_KX+4*s4,4), vr(V_R+4*s4,4), c0 or vr(V_S,4))
        if late: A(late.pop(0))
        mfma(A, vr(V_S+4,4), vr(V_KX+16+4*s4,4), vr(V_R+4*s4,4), c0 or vr(V_S+4,4))
        if late: A(late.pop(0))
        mfma(A, vr(V_S+8,4), vr((V_KD if OPT1 else V_R)+4*s4,4), vr(V_R+4*s4,4), c0 or vr(V_S+8,4))
    for l in late: A(l)
    if 'skipB' in OPT: ablate(A, mark, ['v_mfma'])
    A(f's_waitcnt vmcnt({NLATE})')
    A.c('[B2] V check')
    if 'skipV' in OPT: A(f's_branch L_c_okV{sf}')
    check(A, range(V_VV, V_VV+16))
    A(f's_cbranch_vccz L_c_okV{sf}')
    A(f'L_c_pollV{sf}:')
    for s4 in range(4):
        A(f'buffer_load_dwordx4 {vr(V_VV+4*s4,4)}, v{V_VLD}, {WSR}, s{QC} offen offset:{512*s4} sc1')
    A('s_waitcnt vmcnt(0)')
    check(A, range(V_VV, V_VV+16))
    A(f's_cbranch_vccz L_c_okV{sf}')
    retry(A, f'L_c_pollV{sf}', 'V')
    A(f'L_c_okV{sf}:')
    P.stamp(A, 10, True)
    if u == 3:
        A(f's_cmp_eq_u32 s{S_STEP}, {NSEG-1}')
        A(f's_cbranch_scc1 L_c_final')
    A.c('[B4] softmax (VOm mfma interleaved)')
    mark = len(A.lines)
    SM = V_S+8; MX = V_T+4
    vom = [(s4, tt) for s4 in range(4) for tt in range(3)]
    def vom_next():
        if not vom: return
        s4, tt = vom.pop(0)
        mfma(A, vr(V_F+4*tt,4), vr(V_VV+4*s4,4), ar(A_O+16*tt+4*s4,4), '0' if s4 == 0 else vr(V_F+4*tt,4))
    if not OPT1:
        for r in range(4): A(f'v_mov_b32 v{V_T+r}, v{SM+r}')
    A(f'v_max3_f32 v{MX}, v{V_S}, v{V_S+1}, v{V_S+2}')
    A(f'v_max3_f32 v{MX+1}, v{V_S+3}, v{V_S+4}, v{V_S+5}')
    if not OPT1:
        for r in range(4): A(f'v_permlane32_swap_b32 v{V_T+r}, v{SM+r}')
    vom_next()
    A(f'v_max3_f32 v{MX}, v{MX}, v{V_S+6}, v{V_S+7}')
    A(f'v_max3_f32 v{MX+1}, v{MX+1}, v{SM}, v{SM+1}')
    A(f'v_max3_f32 v{MX}, v{MX}, v{SM+2}, v{SM+3}')
    A(f'v_max_f32 v{MX}, v{MX}, v{MX+1}')
    def allreduce(op, reg, tmp, fill=False):
        for perm in ('v_permlane16_swap_b32', 'v_permlane32_swap_b32'):
            A(f'v_mov_b32 v{tmp}, v{reg}')
            if fill: vom_next(); A('s_nop 0')
            else: A('s_nop 1')
            A(f'{perm} v{tmp}, v{reg}')
            A(f'{op} v{reg}, v{reg}, v{tmp}')
    allreduce('v_max_f32', MX, MX+1, True)
    A(f'v_mul_f32 v{MX}, s{S_SCL}, v{MX}')
    vom_next()
    for r in range(0, 12, 2):
        A(f'v_pk_fma_f32 {vr(V_S+r,2)}, {vr(V_S+r,2)}, s[{S_SCL}:{S_SCL+1}], {vr(MX,2)} op_sel_hi:[1,1,0] neg_lo:[0,0,1] neg_hi:[0,0,1]')
        if r % 4 == 2: vom_next()
    for r in range(12):
        A(f'v_exp_f32 v{V_S+r}, v{V_S+r}')
        if r % 2 == 1: vom_next()
    while vom: vom_next()
    A(f'v_cvt_pk_bf16_f32 v{V_PX}, v{V_S}, v{V_S+1}')
    A(f'v_cvt_pk_bf16_f32 v{V_PX+1}, v{V_S+2}, v{V_S+3}')
    A(f'v_cvt_pk_bf16_f32 v{V_PX+2}, v{V_S+4}, v{V_S+5}')
    A(f'v_cvt_pk_bf16_f32 v{V_PX+3}, v{V_S+6}, v{V_S+7}')
    A(f'v_cvt_pk_bf16_f32 v{V_PM}, v{SM}, v{SM+1}')
    A(f'v_cvt_pk_bf16_f32 v{V_PM+1}, v{SM+2}, v{SM+3}')
    SU = V_T+6; X2 = V_T+7
    FX = [V_ACC, V_ACC+4, V_ACV]
    if OPT1:
        mfma(A, vr(V_T,4), ar(A_ONE,4), vr(V_PX,4), '0')
    for tt in range(3):
        mfma(A, vr(FX[tt],4), vr(V_VOX+4*tt,4), vr(V_PX,4), '0')
    for tt in range(3):
        A(f'v_cvt_pk_bf16_f32 v{V_VOM+4*tt}, v{V_F+4*tt}, v{V_F+4*tt+1}')
        A(f'v_cvt_pk_bf16_f32 v{V_VOM+4*tt+1}, v{V_F+4*tt+2}, v{V_F+4*tt+3}')
    if OPT1:
        mfma(A, vr(V_T,4), ar(A_HALF,4), vr(V_PM,4), vr(V_T,4))
        for tt in range(3):
            mfma(A, vr(FX[tt],4), vr(V_VOM+4*tt,4), vr(V_PM,4), vr(FX[tt],4))
        A('s_nop 4')
        A(f'v_rcp_f32 v{SU}, v{V_T}')
        A('s_nop 1')
    else:
        A(f'v_pk_add_f32 {vr(V_T,2)}, {vr(SM,2)}, {vr(SM+2,2)}')
        A(f'v_pk_add_f32 {vr(V_T+2,2)}, {vr(V_S,2)}, {vr(V_S+2,2)}')
        for tt in range(3):
            mfma(A, vr(FX[tt],4), vr(V_VOM+4*tt,4), vr(V_PM,4), vr(FX[tt],4))
        A(f'v_pk_add_f32 {vr(V_T+4,2)}, {vr(V_S+4,2)}, {vr(V_S+6,2)}')
        A(f'v_pk_add_f32 {vr(V_T+2,2)}, {vr(V_T+2,2)}, {vr(V_T+4,2)}')
        A(f'v_pk_fma_f32 {vr(V_T,2)}, {vr(V_T,2)}, 0.5, {vr(V_T+2,2)} op_sel_hi:[1,0,1]')
        A(f'v_add_f32 v{SU}, v{V_T}, v{V_T+1}')
        allreduce('v_add_f32', SU, X2)
        A(f'v_rcp_f32 v{SU}, v{SU}')
        A('s_nop 0')
    PO = [V_PO, V_PO+2, V_PO2]
    for tt in range(3):
        for r in (0, 2):
            A(f'v_pk_mul_f32 {vr(FX[tt]+r,2)}, {vr(FX[tt]+r,2)}, {vr(SU,2)} op_sel_hi:[1,0]')
        A(f'v_cvt_pk_bf16_f32 v{PO[tt]}, v{FX[tt]}, v{FX[tt]+1}')
        A(f'v_cvt_pk_bf16_f32 v{PO[tt]+1}, v{FX[tt]+2}, v{FX[tt]+3}')
        if tt == 1: A(f'buffer_store_dwordx4 {vr(V_PO,4)}, v{V_P4}, {WSR}, s{PC} offen{SC}')
    A(f'buffer_store_dwordx2 {vr(V_PO2,2)}, v{V_P2}, {WSR}, s{PC} offen{SC}')
    if 'skipB' in OPT:
        ablate(A, mark, ['v_', 's_nop'])
        for r in (V_PO, V_PO+1, V_PO+2, V_PO+3, V_PO2, V_PO2+1): A.lines.insert(mark, f'    v_mov_b32 v{r}, 0')
    P.stamp(A, 4)
    vox_reads(A, n1)
    A(f's_cmp_eq_u32 s{S_HASITEM}, 0')
    A(f's_cbranch_scc1 L_c_noitem{sf}')
    A.c('[C1] local RS')
    nops(A, optval('rsdelay', 0))
    if 'skipRS' in OPT:
        for r in range(4): A(f'v_mov_b32 v{V_RSD+4+r}, 0')
        A(f's_branch L_c_RS{sf}_done')
    SSET = [V_RSD, V_B+20, V_B+24]
    def rs_issue(k):
        A(f'buffer_load_dwordx2 {vr(SSET[k],2)}, v{V_RS0}, {WSR}, s{PC} offen sc1')
        A(f'buffer_load_dwordx2 {vr(SSET[k]+2,2)}, v{V_RS1}, {WSR}, s{PC} offen sc1')
    pipe_poll('RS', optval('nS', 1), 2, rs_issue, lambda k: range(SSET[k], SSET[k]+4),
              lambda k: mfma(A, vr(V_RSD+4,4), vr(V_SEL,4), vr(SSET[k],4), '0'), lambda k: None, optval('gapS', 20))
    P.stamp(A, 12, True)
    A('s_nop 3')
    if 'xtag' in OPT:
        for r in range(4): A(f'v_and_or_b32 v{V_RSD+4+r}, v{V_RSD+4+r}, -2, v{V_PH}')
    A(f'buffer_store_dwordx4 {vr(V_RSD+4,4)}, v{V_XS}, {WSR}, s{XC} offen {XST}')
    if 'xplate' not in OPT and 'xtag' not in OPT and 'xp3' not in OPT: A(f'buffer_store_dwordx4 {vr(V_NEG,4)}, v{V_XS}, {WSR}, s{XPn} offen sc1')
    P.stamp(A, 5)
    NVX = optval('nvx', 3)
    vox_tiles(A, list(range(NVX)))
    P.stamp(A, 6)
    A.c('[C2] cross')
    nops(A, optval('xdelay', 0))
    if 'skipX' in OPT: A(f's_branch L_c_X{sf}_done')
    XSET = [V_XD, V_B+28, V_R]
    OWN = V_RSD+4
    def x_issue(k):
        for q in range(3):
            A(f'buffer_load_dwordx4 {vr(XSET[k]+4*q,4)}, v{V_XL+q}, {WSR}, s{XC} offen {XLD}')
    def x_ok(k):
        X = XSET[k]
        for r in (0, 2):
            A(f'v_pk_add_f32 {vr(V_T+r,2)}, {vr(X+r,2)}, {vr(X+8+r,2)}')
            A(f'v_pk_add_f32 {vr(OWN+r,2)}, {vr(OWN+r,2)}, {vr(X+4+r,2)}')
    def tagcheck(A, regs):
        r = list(regs)
        A(f'v_bitop3_b32 v{V_T+4}, v{r[0]}, v{r[1]}, v{V_PH} bitop3:0x7e')
        A(f'v_bitop3_b32 v{V_T+5}, v{r[2]}, v{r[3]}, v{V_PH} bitop3:0x7e')
        cur = 0
        for x in r[4:]:
            A(f'v_bitop3_b32 v{V_T+4+cur}, v{V_T+4+cur}, v{x}, v{V_PH} bitop3:0xf6'); cur ^= 1
        A(f'v_or_b32 v{V_T+4}, v{V_T+4}, v{V_T+5}')
        A(f'v_and_b32 v{V_T+4}, 1, v{V_T+4}')
        A(f'v_cmp_ne_u32 vcc, 0, v{V_T+4}')
    pipe_poll('X', optval('nX', 1), 3, x_issue, lambda k: range(XSET[k], XSET[k]+12), lambda k: None, x_ok, optval('gapX', 40), tagcheck if 'xtag' in OPT else None)
    P.stamp(A, 9, True)
    for r in (0, 2):
        A(f'v_pk_add_f32 {vr(OWN+r,2)}, {vr(OWN+r,2)}, {vr(V_T+r,2)}')
    A(f'v_cvt_pk_bf16_f32 v{V_PO2}, v{OWN}, v{OWN+1}')
    A(f'v_cvt_pk_bf16_f32 v{V_PO2+1}, v{OWN+2}, v{OWN+3}')
    A(f'buffer_store_dwordx2 {vr(V_PO2,2)}, v{V_MS}, {WSR}, s{MW} offen{SC}')
    vox_tiles(A, list(range(NVX, 3)), wait=False)
    A(f's_branch L_c_stepend{sf}')
    A(f'L_c_noitem{sf}:')
    A(f's_cmp_lg_u32 s{S_W}, 3')
    A(f's_cbranch_scc1 L_c_w2{sf}')
    A(f's_mov_b32 s{S_t0}, {C_PROG1}')
    A(f'buffer_load_dword v{V_T+4}, v{V_PRG}, {WSR}, s{S_t0} offen sc1')
    if 'nopub' not in OPT: publish(A, QC)
    else: A('s_waitcnt vmcnt(0)')
    if 'xp3' in OPT: A(f'buffer_store_dwordx4 {vr(V_NEG,4)}, v{V_XP3}, {WSR}, s{XPn} offen sc1')
    vox_compute(A)
    A(f's_cmp_gt_u32 s{S_STEP}, {NSEG-4}')
    A(f's_cbranch_scc1 L_c_stepend{sf}')
    if 'noflag' not in OPT:
        A(f's_add_u32 s{S_t1}, s{S_STEP}, 3')
        A(f'L_c_wk{sf}:')
        A(f'v_cmp_gt_u32 vcc, s{S_t1}, v{V_T+4}')
        A('s_nop 3')
        A('s_and_b64 vcc, vcc, 3')
        A(f's_cbranch_vccz L_c_wk{sf}_ok')
        A(f's_mov_b32 s{S_t0}, {C_PROG1}')
        A(f'buffer_load_dword v{V_T+4}, v{V_PRG}, {WSR}, s{S_t0} offen sc1')
        A('s_waitcnt vmcnt(0)')
        retry(A, f'L_c_wk{sf}')
        A(f'L_c_wk{sf}_ok:')
    if 'nodma' not in OPT:
        for mat, base in ((0, WS_KX), (1, WS_VX)):
            for uu in range(8):
                A(f's_mov_b32 m0, {L_KV + p2*16384 + mat*8192 + uu*1024}')
                A(f's_add_u32 s{S_t2}, s{S_SEG2}, {base + uu*1024}')
                A(f'buffer_load_dwordx4 v{V_DM3A}, {WSR}, s{S_t2} offen sc1 lds')
    A(f's_branch L_c_stepend{sf}')
    A(f'L_c_w2{sf}:')
    vox_compute(A)
    A(f'L_c_stepend{sf}:')
    P.stamp(A, 7)
    A(f's_add_u32 s{S_KM}, s{S_KM}, 65536')
    A(f's_add_u32 s{S_VM}, s{S_VM}, 131072')
    A(f's_add_u32 s{S_SEG2}, s{S_SEG2}, {32*8192}')
    A(f's_add_u32 s{S_STEP}, s{S_STEP}, 1')
    if u == 3 and 'xtag' in OPT: A(f'v_xor_b32 v{V_PH}, 1, v{V_PH}')
    if 'nobar0' not in OPT: A('s_barrier')
    if u == 3 and TL_ON[0]:
        for k, st in enumerate((16, 32, 48)):
            lab = A.label('L_tlq')
            A(f's_cmp_lg_u32 s{S_STEP}, {st}')
            A(f's_cbranch_scc1 {lab}')
            tl(A, 6+k)
            A(f'{lab}:')
    if u == 3: A('s_branch L_c_loop_s0' if safe else 's_branch L_c_loop_0')

def publish(A, QC):
    A(f'buffer_load_dwordx4 {vr(V_B,4)}, v{V_KPL}, {WSR}, s{QC} offen sc1')
    A(f'buffer_load_dwordx4 {vr(V_B+4,4)}, v{V_VPL}, {WSR}, s{QC} offen sc1')
    A('s_waitcnt vmcnt(0)')
    A(f'buffer_store_dwordx4 {vr(V_B,4)}, v{V_KPUB}, {WSR}, s{S_KM} offen sc1')
    A(f'buffer_store_dwordx4 {vr(V_B+4,4)}, v{V_VPUB}, {WSR}, s{S_VM} offen sc1')

def gen_chain(A, prof):
    P = Prof(prof)
    if prof and 'trace' not in OPT: PROFCNT.update({'A': 8, 'R': 9, 'V': 10, 'RS': 11, 'X': 12})
    A.c('==== chain role ====')
    gen_prologue(A, P)
    if prof and 'trace' not in OPT:
        for k in range(16): A(f's_mov_b32 s{S_PROF+k}, 0')
        A(f's_memtime s[{S_PT}:{S_PT+1}]')
        A('s_waitcnt lgkmcnt(0)')
        A(f's_mov_b32 s{S_PT+2}, s{S_PT}')
    if 'tot' in OPT:
        A(f's_memrealtime s[{S_PROF}:{S_PROF+1}]')
        A(f's_memtime s[{S_PROF+4}:{S_PROF+5}]')
        A('s_waitcnt lgkmcnt(0)')
    tl(A, 3)
    A(f's_cmp_eq_u32 s{S_MODE}, 1')
    A('s_cbranch_scc1 L_c_afterA0s_far')
    A('s_branch L_c_afterA0')
    A('L_c_afterA0s_far:')
    A('s_branch L_c_afterA0s')
    A('.p2align 6')
    for u in range(4): gen_step(A, P, u)
    A('.p2align 6')
    for u in range(4): gen_step(A, P, u, safe=True)
    A('L_c_final:')
    A(f's_cmp_lg_u32 s{S_W}, 3')
    A('s_cbranch_scc1 L_c_end')
    publish(A, S_QV+3)
    A('s_waitcnt vmcnt(0)')
    A(f'v_mov_b32 v{V_CPV}, 64')
    A(f'buffer_store_dword v{V_CPV}, v{V_CPF}, {WSR}, s{S_CPO} offen sc1')
    A('L_c_end:')
    tl(A, 5)
    if 'tot' in OPT:
        A(f's_memrealtime s[{S_PROF+2}:{S_PROF+3}]')
        A(f's_memtime s[{S_PROF+6}:{S_PROF+7}]')
        A('s_waitcnt lgkmcnt(0)')
        A(f's_sub_u32 s{S_PROF}, s{S_PROF+2}, s{S_PROF}')
        A(f's_sub_u32 s{S_PROF+1}, s{S_PROF+6}, s{S_PROF+4}')
        A(f's_mov_b32 s{S_PROF+2}, s{S_PAR}')
    if prof or 'tot' in OPT:
        A(f's_lshl_b32 s{S_t0}, s{S_X}, 5')
        A(f's_add_u32 s{S_t0}, s{S_t0}, s{S_J}')
        A(f's_lshl_b32 s{S_t0}, s{S_t0}, 2')
        A(f's_add_u32 s{S_t0}, s{S_t0}, s{S_W}')
        A(f's_lshl_b32 s{S_t0}, s{S_t0}, 6')
        A(f's_add_u32 s{S_t0}, s{S_t0}, {WS_PROF}')
        A(f'v_mov_b32 v{V_T}, 0')
        for k in range(16):
            A(f'v_mov_b32 v{V_T+1}, s{S_PROF+k}')
            A(f'buffer_store_dword v{V_T+1}, v{V_T}, {WSR}, s{S_t0} offen offset:{4*k}')
    A('s_waitcnt vmcnt(0)')
    A('s_endpgm')

def gen_calib(A):
    CB = PG2 + 0x1A0000
    A(f's_lshl_b32 s{S_t0}, s{S_W}, 15')
    A(f's_add_u32 s{S_t0}, s{S_t0}, {CB}')
    A('v_and_b32 v1, 3, v0')
    A('v_lshrrev_b32 v2, 1, v1')
    A('v_lshlrev_b32 v2, 14, v2')
    A('v_and_b32 v1, 1, v1')
    A('v_lshl_add_u32 v1, v1, 13, v2')
    A('v_mov_b32 v2, 0')
    A(f'buffer_store_dword v2, v1, {WSR}, s{S_t0} offen sc1')
    A('s_waitcnt vmcnt(0)')
    A(f's_mov_b32 s{S_t1}, -1')
    A(f's_mov_b32 s{S_t2}, -1')
    for rep in range(2):
        for par, acc in ((0, S_t1), (1, S_t2)):
            A(f'v_mov_b32 v1, {rep*16384 + par*8192}')
            A(f's_memtime s[{S_PT}:{S_PT+1}]')
            A('s_waitcnt lgkmcnt(0)')
            A(f'buffer_load_dword v2, v1, {WSR}, s{S_t0} offen sc1')
            A('s_waitcnt vmcnt(0)')
            A(f's_memtime s[{S_PT+2}:{S_PT+3}]')
            A('s_waitcnt lgkmcnt(0)')
            A(f's_sub_u32 s{S_PT}, s{S_PT+2}, s{S_PT}')
            A(f's_min_u32 s{acc}, s{acc}, s{S_PT}')
    A(f's_lshl_b32 s{S_t0}, s{S_W}, 3')
    A(f'v_mov_b32 v1, s{S_t0}')
    A(f'v_mov_b32 v2, s{S_t1}')
    A(f'v_mov_b32 v3, s{S_t2}')
    A('ds_write_b64 v1, v[2:3]')
    A('s_waitcnt lgkmcnt(0)')
    A('s_barrier')
    A('v_mov_b32 v1, 0')
    A('ds_read_b128 v[4:7], v1')
    A('ds_read_b128 v[8:11], v1 offset:16')
    A('s_waitcnt lgkmcnt(0)')
    A('v_min_u32 v4, v4, v6')
    A('v_min_u32 v8, v8, v10')
    A('v_min_u32 v5, v5, v7')
    A('v_min_u32 v9, v9, v11')
    A('v_min_u32 v4, v4, v8')
    A('v_min_u32 v5, v5, v9')
    A('v_cmp_lt_u32 vcc, v4, v5')
    A('v_mov_b32 v2, 0x100')
    A('v_mov_b32 v3, 0x101')
    A('v_cndmask_b32 v2, v2, v3, vcc')
    A('v_mov_b32 v1, 64')
    A(f'global_store_dword v1, v2, s[{S_DBG}:{S_DBG+1}] sc1')
    A('v_mov_b32 v1, 80')
    A(f'global_store_dwordx2 v1, v[4:5], s[{S_DBG}:{S_DBG+1}] sc1')
    A('s_waitcnt vmcnt(0)')
    A('s_barrier')

def gen_common_entry(A, nwg=256):
    A(f's_cmp_ge_u32 s2, {nwg}')
    A('s_cbranch_scc1 L_end')
    A(f's_load_dwordx2 s[{S_DBG}:{S_DBG+1}], s[0:1], 96')
    A(f's_load_dwordx2 s[4:5], s[0:1], 104')
    A(f's_getreg_b32 s{S_X}, hwreg(HW_REG_XCC_ID, 0, 4)')
    A(f'v_lshrrev_b32 v1, 6, v0')
    A('s_nop 0')
    A(f'v_readfirstlane_b32 s{S_W}, v1')
    A('s_waitcnt lgkmcnt(0)')
    A(f's_mov_b32 s{S_WS}, s4')
    A(f's_and_b32 s{S_WS+1}, s5, 0xffff')
    A(f's_mov_b32 s{S_WS+2}, 0x10000000')
    A(f's_mov_b32 s{S_WS+3}, 0x20000')
    A(f's_cmp_lg_u32 s{S_W}, 0')
    A('s_cbranch_scc1 L_noticket')
    A(f's_lshl_b32 s{S_t0}, s{S_X}, 2')
    A(f'v_mov_b32 v1, s{S_t0}')
    A('v_mov_b32 v2, 1')
    A('s_mov_b64 exec, 1')
    A(f'global_atomic_add v3, v1, v2, s[{S_DBG}:{S_DBG+1}] sc0')
    A('s_waitcnt vmcnt(0)')
    A('v_mov_b32 v1, 0')
    A('ds_write_b32 v1, v3')
    A('s_waitcnt lgkmcnt(0)')
    A('s_mov_b64 exec, -1')
    A('L_noticket:')
    A('s_barrier')
    A('v_mov_b32 v1, 0')
    A('ds_read_b32 v2, v1')
    A('s_waitcnt lgkmcnt(0)')
    A(f'v_readfirstlane_b32 s{S_J}, v2')
    A('s_barrier')
    A(f's_mov_b32 s{S_MODE}, 0')
    A(f's_mov_b32 s{S_TO}, 0x100000')

S_MODE = 3
VR = [4, 5, 6, 7, 80, 81, 82, 83]
def counters_load(A):
    A('v_and_b32 v240, 7, v0')
    A('v_lshlrev_b32 v240, 2, v240')
    A(f'global_load_dword v241, v240, s[{S_DBG}:{S_DBG+1}] sc1')
def counters_sum(A):
    for k in range(8): A(f'v_readlane_b32 s{VR[k]}, v241, {k}')
    A(f's_add_u32 s78, s{VR[0]}, s{VR[1]}')
    for k in range(2, 8): A(f's_add_u32 s78, s78, s{VR[k]}')
def verdict_issue(A, tag):
    A(f's_cmp_lg_u32 s{S_W}, 0')
    A(f's_cbranch_scc1 L_vi{tag}')
    counters_load(A)
    A(f'L_vi{tag}:')
def verdict_eval(A, tag):
    A('s_mov_b32 s79, 0')
    A(f's_cmp_eq_u32 s{S_MODE}, 1')
    A(f's_cbranch_scc1 L_vd{tag}_ok')
    A(f'L_vd{tag}:')
    counters_sum(A)
    A('s_cmp_ge_u32 s78, 256')
    A(f's_cbranch_scc1 L_vd{tag}_full')
    A('s_sleep 16')
    counters_load(A)
    A('s_waitcnt vmcnt(0)')
    A(f's_sub_u32 s{S_TO}, s{S_TO}, 1')
    A(f's_cbranch_scc0 L_vd{tag}')
    A('s_branch L_timeout')
    A(f'L_vd{tag}_full:')
    if 'forcefb' in OPT: A('s_mov_b32 s79, 1')
    for k in range(8):
        A(f's_cmp_lg_u32 s{VR[k]}, 32')
        A('s_cselect_b32 s79, 1, s79')
    A(f'L_vd{tag}_ok:')
def verdict_bcast(A, tag, lds=0):
    A(f's_cmp_lg_u32 s{S_W}, 0')
    A(f's_cbranch_scc1 L_vb{tag}')
    A(f'v_mov_b32 v240, {lds}')
    A('v_mov_b32 v241, s79')
    A('ds_write_b32 v240, v241')
    A('s_waitcnt lgkmcnt(0)')
    A(f'L_vb{tag}:')
    A('s_barrier')
    A(f'v_mov_b32 v240, {lds}')
    A('ds_read_b32 v241, v240')
    A('s_waitcnt lgkmcnt(0)')
    A('v_readfirstlane_b32 s79, v241')
    A('s_barrier')
    A('s_cmp_lg_u32 s79, 0')
    A('s_cbranch_scc1 L_fallback')

def gen_fallback(A):
    A('L_fallback:')
    A('s_waitcnt vmcnt(0) lgkmcnt(0)')
    A('L_fb_poll:')
    counters_load(A)
    A('s_waitcnt vmcnt(0)')
    counters_sum(A)
    A('s_cmp_ge_u32 s78, 256')
    A('s_cbranch_scc1 L_fb_full')
    A('s_sleep 4')
    A(f's_sub_u32 s{S_TO}, s{S_TO}, 1')
    A('s_cbranch_scc0 L_fb_poll')
    A('s_branch L_timeout')
    A('L_fb_full:')
    if 'forcefb' in OPT:
        A('s_mov_b32 s78, s2')
    else:
        A(f's_mov_b32 s78, s{S_J}')
        for k in range(7):
            A(f's_cmp_gt_u32 s{S_X}, {k}')
            A(f's_cselect_b32 s79, s{VR[k]}, 0')
            A('s_add_u32 s78, s78, s79')
    A(f's_lshr_b32 s{S_X}, s78, 5')
    A(f's_and_b32 s{S_J}, s78, 31')
    A(f's_mov_b32 s{S_MODE}, 1')
    A('s_barrier')
    A('s_branch L_role')

def gen_timeout(A):
    A('L_timeout:')
    A('v_mov_b32 v1, 60')
    A('v_mov_b32 v2, 0xdead')
    A(f'global_store_dword v1, v2, s[{S_DBG}:{S_DBG+1}]')
    A('s_waitcnt vmcnt(0)')
    A('s_endpgm')

if __name__ == '__main__':
    out = sys.argv[1]
    OPT.update(sys.argv[2:])
    prof = 'prof' in OPT
    A = Asm()
    K = NAME + '_kernel'
    kernel_begin(A, K)
    gen_common_entry(A)
    A(f's_cmp_lt_u32 s{S_X}, 4')
    A('s_cbranch_scc1 L_chain')
    A(f's_cmp_lg_u32 s{S_W}, 0')
    A('s_cbranch_scc1 L_end')
    gen_calib(A)
    A('v_mov_b32 v1, 32')
    A('v_mov_b32 v2, 1')
    A('s_mov_b64 exec, 1')
    A(f'global_atomic_add v1, v2, s[{S_DBG}:{S_DBG+1}]')
    A('s_waitcnt vmcnt(0)')
    A('L_end:')
    A('s_endpgm')
    A('L_chain:')
    gen_chain(A, prof)
    gen_timeout(A)
    open(out, 'w').write(file_text(['; @launch grid=(256,1,1) block=(256,1,1) lds=163840'], A.text(), kernel_desc(K)))
```

```python
import sys
from asmlib import *
from ws_layout import *
import chain9 as ch
import bulk1, bulk2, bulk3
ch.OPT.update(sys.argv[2:])
import asmlib
asmlib.TL_ON[0] = 'tl' in ch.OPT
bulk3.SLEEPN[0] = ch.optval('bsleep', 32)
S_X, S_J, S_W, S_TO, S_DBG, S_WS = 16, 17, 20, 22, 28, 8
WSR = f's[{S_WS}:{S_WS+3}]'
A = Asm(); K = NAME + '_kernel'
kernel_begin(A, K)
ch.gen_common_entry(A)
tl(A, 0)
A('L_role:')
A(f's_cmp_ge_u32 s{S_J}, 32')
A('s_cbranch_scc1 L_overfull')
A(f's_cmp_lt_u32 s{S_X}, 4')
A('s_cbranch_scc1 L_chain')
A(f's_sub_u32 s{bulk1.S_BID}, s{S_X}, 4')
A(f's_lshl_b32 s{bulk1.S_BID}, s{bulk1.S_BID}, 5')
A(f's_add_u32 s{bulk1.S_BID}, s{bulk1.S_BID}, s{S_J}')
def bulk_zero(tag):
    A(f's_cmp_lg_u32 s{S_W}, 0')
    A(f's_cbranch_scc1 L_b_zeroed{tag}')
    A('v_mov_b32 v242, 0')
    A('v_mov_b32 v243, 0')
    A(f's_lshl_b32 s30, s{bulk1.S_BID}, 7')
    A(f's_add_u32 s30, s30, {C_PROG1}')
    A(f'buffer_store_dword v243, v242, {WSR}, s30 offen sc1')
    if tag == 'q':
        A(f's_cmp_lg_u32 s{bulk1.S_BID}, 127')
        A('s_cbranch_scc1 L_b_zeroedq')
        A('v_lshlrev_b32 v242, 7, v0')
        A(f's_mov_b32 s30, {C_XCNT}')
        A(f'buffer_store_dword v243, v242, {WSR}, s30 offen sc1')
        A('v_mov_b32 v242, 0')
        A(f's_mov_b32 s30, {C_BCNT}')
        A(f'buffer_store_dword v243, v242, {WSR}, s30 offen sc1')
    A(f'L_b_zeroed{tag}:')
def bulk_init(tag):
    A(f's_cmp_lg_u32 s{S_W}, 0')
    A(f's_cbranch_scc1 L_b_arrived{tag}')
    ch.verdict_eval(A, tag)
    A('s_cmp_lg_u32 s79, 0')
    A(f's_cbranch_scc1 L_b_arrived{tag}')
    A(f'v_mov_b32 v240, {ch.CENSUS}')
    A('v_mov_b32 v241, 1')
    A('s_mov_b64 exec, 1')
    A(f'global_atomic_add v240, v241, s[{S_DBG}:{S_DBG+1}]')
    A('s_mov_b64 exec, -1')
    A(f'L_b_arrived{tag}:')
A(f's_cmp_lg_u32 s{S_W}, 1')
A('s_cbranch_scc1 L_b_nowarm')
A('s_load_dwordx2 s[4:5], s[0:1], 0')
A('s_waitcnt lgkmcnt(0)')
bulk1.setsrd(A, 12, 4, 2048*1280)
A(f's_mul_i32 s30, s{S_J}, 2560')
A('v_and_b32 v1, 63, v0')
A('v_lshlrev_b32 v1, 4, v1')
for k in range(3):
    A(f'buffer_load_dwordx4 v[244:247], v1, s[12:15], s30 offen offset:{min(k*1024, 1536)}')
A('L_b_nowarm:')
def census_wait(tag):
    A(f's_cmp_lg_u32 s{S_W}, 0')
    A(f's_cbranch_scc1 L_b_census{tag}_ok')
    A(f'L_b_census{tag}:')
    A(f'v_mov_b32 v240, {ch.CENSUS}')
    A(f'global_load_dword v241, v240, s[{S_DBG}:{S_DBG+1}] sc1')
    A('s_waitcnt vmcnt(0)')
    A('v_readfirstlane_b32 s30, v241')
    A('s_cmp_ge_u32 s30, 256')
    A(f's_cbranch_scc1 L_b_census{tag}_ok')
    A('s_sleep 32')
    A(f's_sub_u32 s{S_TO}, s{S_TO}, 1')
    A(f's_cbranch_scc0 L_b_census{tag}')
    A('s_branch L_timeout')
    A(f'L_b_census{tag}_ok:')
    A('s_barrier')
A(f's_cmp_lt_u32 s{bulk1.S_BID}, 64')
A('s_cbranch_scc1 L_b_go')
A(f's_cmp_lg_u32 s{bulk1.S_BID}, 127')
A('s_cbranch_scc1 L_b_nocal')
ch.gen_calib(A)
A('L_b_nocal:')
bulk_zero('q')
A('s_sleep 64')
ch.verdict_issue(A, 'q')
A('s_waitcnt vmcnt(0)')
bulk_init('q')
ch.verdict_bcast(A, 'q')
if 'nobulk' not in ch.OPT: census_wait('a')
A('L_b_go:')
def kv_hook1():
    A(f's_cmp_ge_u32 s{bulk1.S_BID}, 64')
    A('s_cbranch_scc1 L_b_hook1')
    bulk_zero('k')
    A('s_waitcnt vmcnt(8)')
    ch.verdict_issue(A, 'k')
    A('L_b_hook1:')
def kv_hook2():
    A(f's_cmp_ge_u32 s{bulk1.S_BID}, 64')
    A('s_cbranch_scc1 L_b_hook2')
    bulk_init('k')
    A('L_b_hook2:')
def kv_hook3():
    A(f's_cmp_ge_u32 s{bulk1.S_BID}, 64')
    A('s_cbranch_scc1 L_b_hook3')
    ch.verdict_bcast(A, 'k')
    A(f's_cmp_eq_u32 s{ch.S_MODE}, 0')
    A('s_cbranch_scc1 L_b_hook3')
    census_wait('k')
    A('L_b_hook3:')
if 'nobulk' in ch.OPT:
    kv_hook1(); A('s_waitcnt vmcnt(0)'); kv_hook2(); kv_hook3()
if 'nobulk' not in ch.OPT:
    bulk1.HOOKS[:] = [kv_hook1, kv_hook2, kv_hook3]
    bulk1.gen_phase1_loop(A)
    tl(A, 2)
    census_wait('b')
    bulk2.gen_phase2(A)
    tl(A, 3)
    bulk3.gen_phase3(A)
    tl(A, 5)
A('s_waitcnt vmcnt(0)')
A('L_end:')
A('s_endpgm')
A('L_overfull:')
ch.gen_fallback(A)
A('L_chain:')
ch.gen_chain(A, 'prof' in ch.OPT)
ch.gen_timeout(A)
open(sys.argv[1], 'w').write(file_text(['; @launch grid=(256,1,1) block=(256,1,1) lds=163840'], A.text(), kernel_desc(K)))
```

```python
from asmlib import *
from ws_layout import *
import sys, struct
from bulk2 import wait_words, f2u
from bulk1 import setsrd
S_WS, S_X, S_J, S_W, S_TO, S_DBG = 8, 16, 17, 20, 22, 28
S_T = 12
S_T2 = 24
S_t0, S_t1, S_t2, S_t3 = 30, 31, 32, 33
S_BID = 34
S_H, S_SEG, S_STEP6, S_XB = 36, 37, 38, 39
S_SCL = 42
S_MK = 44
S_A, S_B, S_C = 52, 53, 54
SLEEPN = [32]
NOOUT = [False]
NRING = [40]
OSHORT = [8]
TAILN = [60]
WSR = f's[{S_WS}:{S_WS+3}]'
BIG = 0x40000000
SCL = (128 ** -0.5) * 1.4426950408889634
def mfma(A, d, a, b, c): A(f'v_mfma_f32_16x16x32_bf16 {d}, {a}, {b}, {c}')
def mfma32(A, d, a, b, c): A(f'v_mfma_f32_32x32x16_bf16 {d}, {a}, {b}, {c}')

def gen_xattn(A):
    V_L, V_I, V_G = 1, 2, 3
    V_T = 4
    V_QA, V_MA, V_VA, V_VMA, V_OA, V_LIN, V_PA = 12, 13, 14, 15, 16, 17, 18
    V_GT = 20
    V_MX, V_SU = 22, 24
    V_NINF = 26
    V_Q = 32
    V_K = 64
    V_M = 96
    V_S = 112
    V_PX = 132
    V_PM = 140
    V_VX = 148
    V_VM = 164
    V_O = 180
    V_OUT = 196
    T0, T1, T2, T3 = V_T, V_T+1, V_T+2, V_T+3
    A.c('==== phase 3: x attention ====')
    A(f'v_and_b32 v{V_L}, 63, v0')
    A(f'v_and_b32 v{V_I}, 15, v0')
    A(f'v_bfe_u32 v{V_G}, v0, 4, 2')
    A(f's_mul_i32 s{S_t0}, s{S_XB}, 48')
    A(f's_sub_u32 s{S_t1}, s{S_J}, 20')
    A(f's_lshl_b32 s{S_t1}, s{S_t1}, 2')
    A(f's_add_u32 s{S_t0}, s{S_t0}, s{S_t1}')
    A(f's_add_u32 s{S_t0}, s{S_t0}, s{S_W}')
    A(f's_and_b32 s{S_H}, s{S_t0}, 31')
    A(f's_lshr_b32 s{S_SEG}, s{S_t0}, 5')
    A(f's_mov_b32 s{S_SCL}, {hex(f2u(SCL))}')
    A(f's_mov_b32 s{S_SCL+1}, {hex(f2u(SCL))}')
    A(f'v_mov_b32 v{V_NINF}, 0xff800000')
    A(f'v_lshrrev_b32 v{T0}, 1, v{V_G}')
    A(f'v_lshlrev_b32 v{T1}, 10, v{T0}')
    A(f'v_and_b32 v{T2}, 1, v{V_G}')
    A(f'v_lshl_add_u32 v{T1}, v{T2}, 9, v{T1}')
    A(f'v_lshl_add_u32 v{V_QA}, v{V_I}, 4, v{T1}')
    A(f'v_and_b32 v{T3}, 7, v{V_I}')
    A(f'v_lshlrev_b32 v{T1}, 8, v{T0}')
    A(f'v_lshl_add_u32 v{T1}, v{T3}, 5, v{T1}')
    A(f'v_lshl_add_u32 v{V_MA}, v{T2}, 4, v{T1}')
    A(f's_mul_i32 s{S_A}, s{S_W}, 12288')
    A(f'v_bfe_u32 v{T0}, v{V_L}, 2, 2')
    A(f'v_and_b32 v{T1}, 3, v{V_L}')
    A(f'v_lshl_add_u32 v{T2}, v{V_G}, 2, v{T0}')
    A(f'v_lshlrev_b32 v{T2}, 4, v{T2}')
    A(f'v_lshrrev_b32 v{T3}, 1, v{T1}')
    A(f'v_lshl_add_u32 v{T2}, v{T3}, 10, v{T2}')
    A(f'v_and_b32 v{T3}, 1, v{T1}')
    A(f'v_lshl_add_u32 v{T2}, v{T3}, 9, v{T2}')
    A(f'v_add_u32 v{V_VA}, s{S_A}, v{T2}')
    A(f'v_and_b32 v{T2}, 1, v{V_G}')
    A(f'v_lshl_add_u32 v{T2}, v{T2}, 2, v{T0}')
    A(f'v_lshlrev_b32 v{T2}, 5, v{T2}')
    A(f'v_lshrrev_b32 v{T3}, 1, v{V_G}')
    A(f'v_lshl_add_u32 v{T2}, v{T3}, 11, v{T2}')
    A(f'v_lshrrev_b32 v{T3}, 1, v{T1}')
    A(f'v_lshl_add_u32 v{T2}, v{T3}, 8, v{T2}')
    A(f'v_and_b32 v{T3}, 1, v{T1}')
    A(f'v_lshl_add_u32 v{T2}, v{T3}, 4, v{T2}')
    A(f'v_add_u32 v{T2}, s{S_A}, v{T2}')
    A(f'v_add_u32 v{V_VMA}, 8192, v{T2}')
    A(f'v_lshlrev_b32 v{T0}, 9, v{V_G}')
    A(f'v_lshl_add_u32 v{V_OA}, v{V_I}, 4, v{T0}')
    A(f'v_lshlrev_b32 v{V_LIN}, 4, v{V_L}')
    A(f'v_cmp_gt_u32 vcc, 4, v{V_L}')
    A(f's_lshl_b32 s{S_t0}, s{S_H}, 9')
    A(f'v_lshlrev_b32 v{T0}, 7, v{V_L}')
    A(f'v_add_u32 v{T0}, s{S_t0}, v{T0}')
    A(f'v_mov_b32 v{T1}, {BIG}')
    A(f'v_cndmask_b32 v{V_PA}, v{T1}, v{T0}, vcc')
    for q in range(4):
        A(f'v_mov_b32 v{V_VM+4*q+2}, 0'); A(f'v_mov_b32 v{V_VM+4*q+3}, 0')
    for qt in range(2):
        A(f'v_mov_b32 v{V_PM+4*qt+2}, 0'); A(f'v_mov_b32 v{V_PM+4*qt+3}, 0')
    A(f'v_mov_b32 v{V_PX+2}, 0'); A(f'v_mov_b32 v{V_PX+3}, 0')
    A(f'v_lshlrev_b32 v{T0}, 2, v{V_G}')
    A(f'v_sub_u32 v{T0}, v{V_I}, v{T0}')
    for r in range(4):
        A(f'v_cmp_le_i32 s[{S_MK+2*r}:{S_MK+2*r+1}], {r}, v{T0}')
    A(f'v_cmp_gt_u32 vcc, 3, v{V_L}')
    A(f'v_lshlrev_b32 v{T0}, 12, v{V_L}')
    A(f's_lshl_b32 s{S_t0}, s{S_H}, 7')
    A(f'v_add_u32 v{T0}, s{S_t0}, v{T0}')
    A(f'v_mov_b32 v{T1}, {BIG}')
    A(f'v_cndmask_b32 v{T0}, v{T1}, v{T0}, vcc')
    A(f's_mov_b64 s[{S_t2}:{S_t3}], vcc')
    A(f's_mov_b32 s{S_t0}, {C_PROG1}')
    A('L_x_w1:')
    A(f'buffer_load_dword v{T1}, v{T0}, {WSR}, s{S_t0} offen sc1')
    A('s_waitcnt vmcnt(0)')
    A(f'v_cmp_gt_u32 vcc, 64, v{T1}')
    A('s_nop 3')
    A(f's_and_b64 vcc, vcc, s[{S_t2}:{S_t3}]')
    A('s_cbranch_vccz L_x_unit')
    A('s_sleep 32')
    A(f's_sub_u32 s{S_TO}, s{S_TO}, 1')
    A('s_cbranch_scc0 L_x_w1')
    A('s_branch L_timeout')
    tl(A, 4)
    A('L_x_unit:')
    A(f's_lshl_b32 s{S_t0}, s{S_SEG}, 5')
    A(f's_add_u32 s{S_t0}, s{S_t0}, s{S_H}')
    A(f's_lshl_b32 s{S_B}, s{S_t0}, 13')
    A(f's_add_u32 s{S_t1}, s{S_B}, {WS_QX}')
    for qt in range(2):
        for s4 in range(4):
            A(f's_add_u32 s{S_t2}, s{S_t1}, {s4*2048 + qt*256}')
            A(f'buffer_load_dwordx4 {vr(V_Q+16*qt+4*s4,4)}, v{V_QA}, {WSR}, s{S_t2} offen sc1')
    A(f's_add_u32 s{S_t1}, s{S_B}, {WS_KX}')
    for kt in range(2):
        for s4 in range(4):
            A(f's_add_u32 s{S_t2}, s{S_t1}, {s4*2048 + kt*256}')
            A(f'buffer_load_dwordx4 {vr(V_K+16*kt+4*s4,4)}, v{V_QA}, {WSR}, s{S_t2} offen sc1')
    A(f's_add_u32 s{S_t1}, s{S_B}, {WS_VX}')
    for u in range(8):
        A(f's_add_u32 m0, s{S_A}, {u*1024}')
        A(f's_add_u32 s{S_t2}, s{S_t1}, {u*1024}')
        A(f'buffer_load_dwordx4 v{V_LIN}, {WSR}, s{S_t2} offen sc1 lds')
    A(f's_lshl_b32 s{S_t1}, s{S_SEG}, 11')
    A(f's_add_u32 s{S_t1}, s{S_t1}, {WS_GATE}')
    A(f'v_lshlrev_b32 v{T0}, 4, v{V_I}')
    A(f'buffer_load_ushort v{V_GT}, v{T0}, {WSR}, s{S_t1} offen sc1')
    A(f'buffer_load_ushort v{V_GT+1}, v{T0}, {WSR}, s{S_t1} offen offset:256 sc1')
    A(f's_add_u32 s{S_C}, s{S_SEG}, 1')
    A(f's_mov_b32 s{S_t0}, {C_CPROG}')
    A('L_x_w2:')
    A(f'buffer_load_dword v{T1}, v{V_PA}, {WSR}, s{S_t0} offen sc1')
    A('s_waitcnt vmcnt(0)')
    A(f'v_cmp_gt_u32 vcc, s{S_C}, v{T1}')
    A('s_nop 3')
    A('s_and_b64 vcc, vcc, 15')
    A('s_cbranch_vccz L_x_go')
    A(f's_cmp_ge_u32 s{S_SEG}, 58')
    A('s_cbranch_scc1 L_x_w2_short')
    A(f's_sleep {SLEEPN[0]}')
    A('L_x_w2_short:')
    A('s_sleep 1')
    A(f's_sub_u32 s{S_TO}, s{S_TO}, 1')
    A('s_cbranch_scc0 L_x_w2')
    A('s_branch L_timeout')
    A('L_x_go:')
    A(f's_lshl_b32 s{S_t0}, s{S_SEG}, 5')
    A(f's_add_u32 s{S_t0}, s{S_t0}, s{S_H}')
    A(f's_lshl_b32 s{S_t1}, s{S_t0}, 11')
    A(f's_add_u32 s{S_t1}, s{S_t1}, {WS_KM}')
    for s4 in range(4):
        A(f'buffer_load_dwordx4 {vr(V_M+4*s4,4)}, v{V_MA}, {WSR}, s{S_t1} offen offset:{512*s4} sc1')
    A(f's_lshl_b32 s{S_t1}, s{S_t0}, 12')
    A(f's_add_u32 s{S_t1}, s{S_t1}, {WS_VM}')
    for u in range(4):
        A(f's_add_u32 m0, s{S_A}, {8192 + u*1024}')
        A(f's_add_u32 s{S_t2}, s{S_t1}, {u*1024}')
        A(f'buffer_load_dwordx4 v{V_LIN}, {WSR}, s{S_t2} offen sc1 lds')
    SX = {(0,0): V_S, (1,0): V_S+8, (1,1): V_S+12}
    SMm = {0: V_S+4, 1: V_S+16}
    for s4 in range(4):
        for (qt, kt), d in SX.items():
            mfma(A, vr(d,4), vr(V_K+16*kt+4*s4,4), vr(V_Q+16*qt+4*s4,4), '0' if s4 == 0 else vr(d,4))
    for qt in range(2):
        A(f'v_lshlrev_b32 v{V_GT+qt}, 16, v{V_GT+qt}')
        A(f'v_mul_f32 v{V_GT+qt}, 0xbfb8aa3b, v{V_GT+qt}')
        A(f'v_exp_f32 v{V_GT+qt}, v{V_GT+qt}')
        A('s_nop 0')
        A(f'v_add_f32 v{V_GT+qt}, 1.0, v{V_GT+qt}')
    A('s_waitcnt vmcnt(4)')
    for s4 in range(4):
        for qt in range(2):
            mfma(A, vr(SMm[qt],4), vr(V_M+4*s4,4), vr(V_Q+16*qt+4*s4,4), '0' if s4 == 0 else vr(SMm[qt],4))
    A('s_nop 7')
    for r in range(4):
        m = f's[{S_MK+2*r}:{S_MK+2*r+1}]'
        A(f'v_cndmask_b32 v{SX[(0,0)]+r}, v{V_NINF}, v{SX[(0,0)]+r}, {m}')
        A(f'v_cndmask_b32 v{SX[(1,1)]+r}, v{V_NINF}, v{SX[(1,1)]+r}, {m}')
    def allreduce(op, reg, tmp):
        for perm in ('v_permlane16_swap_b32', 'v_permlane32_swap_b32'):
            A(f'v_mov_b32 v{tmp}, v{reg}')
            A('s_nop 1')
            A(f'{perm} v{tmp}, v{reg}')
            A(f'{op} v{reg}, v{reg}, v{tmp}')
    for qt in range(2):
        regs = list(range(V_S, V_S+8)) if qt == 0 else list(range(V_S+8, V_S+20))
        mreg = SMm[qt]
        A(f'v_max3_f32 v{V_MX}, v{regs[0]}, v{regs[1]}, v{regs[2]}')
        rr = regs[3:]
        while len(rr) >= 2:
            A(f'v_max3_f32 v{V_MX}, v{V_MX}, v{rr[0]}, v{rr[1]}'); rr = rr[2:]
        if rr: A(f'v_max_f32 v{V_MX}, v{V_MX}, v{rr[0]}')
        allreduce('v_max_f32', V_MX, V_MX+1)
        A(f'v_mul_f32 v{V_MX}, s{S_SCL}, v{V_MX}')
        for r in regs[::2]:
            A(f'v_pk_fma_f32 {vr(r,2)}, {vr(r,2)}, s[{S_SCL}:{S_SCL+1}], {vr(V_MX,2)} op_sel_hi:[1,1,0] neg_lo:[0,0,1] neg_hi:[0,0,1]')
        for r in regs: A(f'v_exp_f32 v{r}, v{r}')
        A('s_nop 0')
        x0 = SX[(qt,0)]
        A(f'v_cvt_pk_bf16_f32 v{V_PX+4*qt}, v{x0}, v{x0+1}')
        A(f'v_cvt_pk_bf16_f32 v{V_PX+4*qt+1}, v{x0+2}, v{x0+3}')
        if qt == 1:
            x1 = SX[(1,1)]
            A(f'v_cvt_pk_bf16_f32 v{V_PX+6}, v{x1}, v{x1+1}')
            A(f'v_cvt_pk_bf16_f32 v{V_PX+7}, v{x1+2}, v{x1+3}')
        A(f'v_cvt_pk_bf16_f32 v{V_PM+4*qt}, v{mreg}, v{mreg+1}')
        A(f'v_cvt_pk_bf16_f32 v{V_PM+4*qt+1}, v{mreg+2}, v{mreg+3}')
        su = V_SU+qt if False else V_T+4+qt
        A(f'v_add_f32 v{T0}, v{mreg}, v{mreg+1}')
        A(f'v_add_f32 v{T1}, v{mreg+2}, v{mreg+3}')
        A(f'v_add_f32 v{T0}, v{T0}, v{T1}')
        A(f'v_mul_f32 v{su}, 0.5, v{T0}')
        for r in regs:
            if mreg <= r < mreg+4: continue
            A(f'v_add_f32 v{su}, v{su}, v{r}')
        allreduce('v_add_f32', su, T0)
        A(f'v_mul_f32 v{su}, v{su}, v{V_GT+qt}')
        A(f'v_rcp_f32 v{su}, v{su}')
    A('s_waitcnt vmcnt(0)')
    A(f's_mul_i32 s{S_t1}, s{S_SEG}, {O_SEG}')
    A(f's_lshl_b32 s{S_t2}, s{S_H}, 13')
    A(f's_add_u32 s{S_t1}, s{S_t1}, s{S_t2}')
    A(f's_add_u32 s{S_t1}, s{S_t1}, {WS_O}')
    for pp in range(4):
        for tt in range(2):
            q = (2*pp+tt) % 4
            A(f'ds_read_b64_tr_b16 {vr(V_VX+4*q,2)}, v{V_VA} offset:{pp*2048 + tt*8}')
            A(f'ds_read_b64_tr_b16 {vr(V_VX+4*q+2,2)}, v{V_VA} offset:{pp*2048 + tt*8 + 256}')
            A(f'ds_read_b64_tr_b16 {vr(V_VM+4*q,2)}, v{V_VMA} offset:{pp*512 + tt*8}')
        A('s_waitcnt lgkmcnt(0)')
        for tt in range(2):
            q = (2*pp+tt) % 4
            for qt in range(2):
                mfma(A, vr(V_O+4*(2*qt+tt),4), vr(V_VX+4*q,4), vr(V_PX+4*qt,4), '0')
        for tt in range(2):
            q = (2*pp+tt) % 4
            for qt in range(2):
                mfma(A, vr(V_O+4*(2*qt+tt),4), vr(V_VM+4*q,4), vr(V_PM+4*qt,4), vr(V_O+4*(2*qt+tt),4))
        A('s_nop 7')
        for qt in range(2):
            su = V_T+4+qt
            for r in range(8):
                A(f'v_mul_f32 v{V_O+8*qt+r}, v{su}, v{V_O+8*qt+r}')
            for k in range(4):
                A(f'v_cvt_pk_bf16_f32 v{V_OUT+4*qt+k}, v{V_O+8*qt+2*k}, v{V_O+8*qt+2*k+1}')
            A(f's_add_u32 s{S_t2}, s{S_t1}, {pp*4*512 + qt*256}')
            A(f'buffer_store_dwordx4 {vr(V_OUT+4*qt,4)}, v{V_OA}, {WSR}, s{S_t2} offen sc1')
        A('s_nop 1')
    A('s_waitcnt vmcnt(0)')
    A(f's_lshl_b32 s{S_t0}, s{S_SEG}, 7')
    A(f's_add_u32 s{S_t0}, s{S_t0}, {C_XCNT}')
    A(f'v_mov_b32 v{T0}, 0')
    A(f'v_mov_b32 v{T1}, 1')
    A('s_mov_b64 exec, 1')
    A(f'buffer_atomic_add v{T1}, v{T0}, {WSR}, s{S_t0} offen')
    A('s_mov_b64 exec, -1')
    A(f's_add_u32 s{S_SEG}, s{S_SEG}, 6')
    A(f's_cmp_lt_u32 s{S_SEG}, 64')
    A('s_cbranch_scc1 L_x_unit')

def gen_outproj(A):
    V_L = 1
    V_T = 2
    V_LIN, V_RW, V_RR, V_OA = 10, 11, 12, 13
    V_W = 16
    V_X = 64
    V_ACC = 224
    V_R = 240
    NR = NRING[0]
    T0, T1, T2, T3 = V_T, V_T+1, V_T+2, V_T+3
    def wreg(t): return ar(4*t,4) if t < 64 else vr(V_W+4*(t-64),4)
    def wreg2(t, hf): return ar(4*t+2*hf,2) if t < 64 else vr(V_W+4*(t-64)+2*hf,2)
    A.c('==== phase 3: out projection ====')
    A(f'v_and_b32 v{V_L}, 63, v0')
    A(f's_load_dwordx2 s[4:5], s[0:1], 40')
    A(f's_load_dwordx2 s[6:7], s[0:1], 72')
    A('s_waitcnt lgkmcnt(0)')
    setsrd(A, S_T, 4, 5242880)
    setsrd(A, S_T2, 6, 640*1280)
    A(f's_mul_i32 s{S_A}, s{S_W}, 38912')
    A(f'v_lshrrev_b32 v{T0}, 2, v{V_L}')
    A(f'v_and_b32 v{T1}, 3, v{V_L}')
    A(f's_lshl_b32 s{S_t0}, s{S_J}, 6')
    A(f'v_lshlrev_b32 v{T1}, 4, v{T1}')
    A(f'v_add_u32 v{T1}, s{S_t0}, v{T1}')
    A(f'v_mul_u32_u24 v{T2}, 1280, v{T0}')
    A(f'v_add_u32 v{T2}, v{T2}, v{T1}')
    R_, CQ, AB, GK, TR = V_T+4, V_T+5, V_T+6, V_T+7, V_LIN
    A(f'v_bfe_u32 v{R_}, v{V_L}, 2, 2')
    A(f'v_and_b32 v{CQ}, 3, v{V_L}')
    A(f'v_bfe_u32 v{AB}, v{V_L}, 4, 1')
    A(f'v_lshrrev_b32 v{GK}, 5, v{V_L}')
    A(f'v_lshl_add_u32 v{TR}, v{GK}, 3, v{R_}')
    A(f'v_lshlrev_b32 v{TR}, 6, v{TR}')
    A(f'v_lshl_add_u32 v{TR}, v{AB}, 5, v{TR}')
    A(f'v_lshl_add_u32 v{TR}, v{CQ}, 3, v{TR}')
    A(f'v_add_u32 v{TR}, s{S_A}, v{TR}')
    for rnd in range(2):
        for i in range(38):
            t = 38*rnd + i
            A(f's_add_u32 m0, s{S_A}, {i*1024}')
            if t < 28:
                A(f's_mul_i32 s{S_t0}, s{S_W}, {76*16*1280}')
                A(f's_add_u32 s{S_t0}, s{S_t0}, {t*16*1280}')
                A(f'buffer_load_dwordx4 v{T2}, s[{S_T}:{S_T+3}], s{S_t0} offen lds')
            else:
                lab = A.label('L_o_b'); lab2 = A.label('L_o_d')
                A(f's_cmp_eq_u32 s{S_W}, 3')
                A(f's_cbranch_scc1 {lab}')
                A(f's_mul_i32 s{S_t0}, s{S_W}, {76*16*1280}')
                A(f's_add_u32 s{S_t0}, s{S_t0}, {t*16*1280}')
                A(f'buffer_load_dwordx4 v{T2}, s[{S_T}:{S_T+3}], s{S_t0} offen lds')
                A(f's_branch {lab2}')
                A(f'{lab}:')
                A(f'v_add_u32 v{T3}, {16*(t-28)}, v{T0}')
                A(f'v_mul_u32_u24 v{V_R}, 2731, v{T3}')
                A(f'v_lshrrev_b32 v{V_R}, 16, v{V_R}')
                A(f'v_mul_u32_u24 v{V_R+1}, 24, v{V_R}')
                A(f'v_sub_u32 v{V_R+1}, v{T3}, v{V_R+1}')
                A(f'v_mul_u32_u24 v{V_R}, 20, v{V_R}')
                A(f'v_add_u32 v{V_R}, v{V_R}, v{V_R+1}')
                A(f'v_mul_u32_u24 v{V_R}, 1280, v{V_R}')
                A(f'v_add_u32 v{V_R}, v{V_R}, v{T1}')
                A(f'v_cmp_gt_u32 vcc, 20, v{V_R+1}')
                A(f'v_mov_b32 v{V_R+1}, {BIG}')
                A('s_nop 0')
                A(f'v_cndmask_b32 v{V_R}, v{V_R+1}, v{V_R}, vcc')
                A(f'buffer_load_dwordx4 v{V_R}, s[{S_T2}:{S_T2+3}], 0 offen lds')
                A(f'{lab2}:')
        A('s_waitcnt vmcnt(0)')
        for i in range(38):
            t = 38*rnd + i
            for hf in range(2):
                A(f'ds_read_b64_tr_b16 {wreg2(t, hf)}, v{TR} offset:{i*1024 + hf*256}')
            if i % 4 == 3: A('s_waitcnt lgkmcnt(0)')
        A('s_waitcnt lgkmcnt(0)')
    A('s_barrier')
    A(f'v_lshlrev_b32 v{V_LIN}, 4, v{V_L}')
    A(f's_lshl_b32 s{S_t0}, s{S_W}, 12')
    A(f'v_add_u32 v{V_RW}, s{S_t0}, v{V_LIN}')
    A(f's_lshl_b32 s{S_t0}, s{S_W}, 10')
    A(f'v_add_u32 v{V_RR}, s{S_t0}, v{V_LIN}')
    A(f'v_and_b32 v{T0}, 31, v{V_L}')
    A(f'v_mul_u32_u24 v{T0}, 1280, v{T0}')
    A(f'v_lshrrev_b32 v{T1}, 5, v{V_L}')
    A(f'v_lshl_add_u32 v{T0}, v{T1}, 3, v{T0}')
    A(f's_lshl_b32 s{S_t0}, s{S_J}, 6')
    A(f's_lshl_b32 s{S_t1}, s{S_W}, 4')
    A(f's_add_u32 s{S_t0}, s{S_t0}, s{S_t1}')
    A(f'v_add_u32 v{V_OA}, s{S_t0}, v{T0}')
    A(f's_load_dwordx2 s[4:5], s[0:1], 88')
    A('s_waitcnt lgkmcnt(0)')
    setsrd(A, S_T, 4, 2048*1280)
    A(f'v_mov_b32 v{T0}, 0')
    A(f's_mov_b32 s{S_t0}, {C_BCNT}')
    A('L_o_wb:')
    A(f'buffer_load_dword v{T1}, v{T0}, {WSR}, s{S_t0} offen sc1')
    A('s_waitcnt vmcnt(0)')
    A(f'v_readfirstlane_b32 s{S_t1}, v{T1}')
    A(f's_cmp_ge_u32 s{S_t1}, 128')
    A('s_cbranch_scc1 L_o_wb_ok')
    A('s_sleep 32')
    A(f's_sub_u32 s{S_TO}, s{S_TO}, 1')
    A('s_cbranch_scc0 L_o_wb')
    A('s_branch L_timeout')
    A('L_o_wb_ok:')
    tl(A, 4)
    A(f's_mov_b32 s{S_SEG}, s{S_XB}')
    A(f's_mov_b32 s{S_C}, 0')
    A(f's_mov_b32 s{S_STEP6}, 4')
    A('s_mov_b64 s[56:57], -1')
    A('L_o_seg:')
    A(f's_lshl_b32 s{S_t0}, s{S_SEG}, 7')
    A(f's_add_u32 s{S_t0}, s{S_t0}, {C_XCNT}')
    A(f'v_mov_b32 v{T0}, 0')
    A(f's_cmp_lg_u32 s{S_W}, 0')
    A('s_cbranch_scc1 L_o_wx_ok')
    A('L_o_wx:')
    A(f'buffer_load_dword v{T1}, v{T0}, {WSR}, s{S_t0} offen sc1')
    A('s_waitcnt vmcnt(0)')
    A(f'v_readfirstlane_b32 s{S_t1}, v{T1}')
    A(f's_cmp_ge_u32 s{S_t1}, 32')
    A('s_cbranch_scc1 L_o_wx_ok')
    A(f's_cmp_ge_u32 s{S_SEG}, 58')
    A('s_cbranch_scc1 L_o_wx_short')
    A(f's_sleep {SLEEPN[0]}')
    A('L_o_wx_short:')
    A(f's_sleep {OSHORT[0]}')
    A(f's_sub_u32 s{S_TO}, s{S_TO}, 1')
    A('s_cbranch_scc0 L_o_wx')
    A('s_branch L_timeout')
    A('L_o_wx_ok:')
    A('s_barrier')
    A(f's_mul_i32 s{S_B}, s{S_SEG}, {O_SEG}')
    A(f's_mul_i32 s{S_t0}, s{S_W}, {76*1024}')
    A(f's_add_u32 s{S_B}, s{S_B}, s{S_t0}')
    A(f's_add_u32 s{S_B}, s{S_B}, {WS_O}')
    def xload(t):
        if t % 4 == 0 and t: A(f's_add_u32 s{S_B}, s{S_B}, 4096')
        A(f'buffer_load_dwordx4 {vr(V_X+4*(t%NR),4)}, v{V_LIN}, {WSR}, s{S_B} offen offset:{(t%4)*1024} sc1')
    A('s_mov_b64 exec, s[56:57]')
    for t in range(NR): xload(t)
    issued = NR
    for t in range(76):
        A(f's_waitcnt vmcnt({issued-(t+1)})')
        mfma32(A, vr(V_ACC,16), wreg(t), vr(V_X+4*(t%NR),4), '0' if t == 0 else vr(V_ACC,16))
        if issued < 76:
            xload(issued); issued += 1
    A('s_mov_b64 exec, -1')
    A('s_nop 11')
    A(f'v_add_u32 v{T0}, s{S_C}, v{V_RW}')
    for q in range(4):
        A(f'ds_write_b128 v{T0}, {vr(V_ACC+4*q,4)} offset:{q*1024}')
    A('s_waitcnt lgkmcnt(0)')
    A('s_barrier')
    A(f'v_add_u32 v{T0}, s{S_C}, v{V_RR}')
    for src in range(4):
        A(f'ds_read_b128 {vr(V_R+4*src,4)}, v{T0} offset:{src*4096}')
    A('s_waitcnt lgkmcnt(0)')
    for r in (0, 2):
        A(f'v_pk_add_f32 {vr(V_R+r,2)}, {vr(V_R+r,2)}, {vr(V_R+4+r,2)}')
        A(f'v_pk_add_f32 {vr(V_R+8+r,2)}, {vr(V_R+8+r,2)}, {vr(V_R+12+r,2)}')
    for r in (0, 2):
        A(f'v_pk_add_f32 {vr(V_R+r,2)}, {vr(V_R+r,2)}, {vr(V_R+8+r,2)}')
    A(f'v_cvt_pk_bf16_f32 v{V_R+4}, v{V_R}, v{V_R+1}')
    A(f'v_cvt_pk_bf16_f32 v{V_R+5}, v{V_R+2}, v{V_R+3}')
    A(f's_mul_i32 s{S_t0}, s{S_SEG}, {32*1280}')
    A(f'buffer_store_dwordx2 {vr(V_R+4,2)}, v{V_OA}, s[{S_T}:{S_T+3}], s{S_t0} offen')
    A(f's_xor_b32 s{S_C}, s{S_C}, 16384')
    A(f's_add_u32 s{S_SEG}, s{S_SEG}, s{S_STEP6}')
    A(f's_cmp_eq_u32 s{S_STEP6}, 1')
    A('s_cbranch_scc1 L_o_next')
    A(f's_cmp_lt_u32 s{S_SEG}, {TAILN[0]}')
    A('s_cbranch_scc1 L_o_seg')
    A(f's_mov_b32 s{S_SEG}, {TAILN[0]}')
    A(f's_mov_b32 s{S_STEP6}, 1')
    A(f'v_bfe_u32 v{T0}, v{V_L}, 3, 2')
    A(f'v_cmp_eq_u32 vcc, s{S_XB}, v{T0}')
    A(f'v_mov_b32 v{T1}, {BIG}')
    A('s_nop 0')
    A('s_mov_b64 s[56:57], vcc')
    A(f'v_cndmask_b32 v{V_OA}, v{T1}, v{V_OA}, vcc')
    A('L_o_next:')
    A(f's_cmp_lt_u32 s{S_SEG}, 64')
    A('s_cbranch_scc1 L_o_seg')

def gen_phase3(A):
    A(f's_lshr_b32 s{S_XB}, s{S_BID}, 5')
    A(f's_and_b32 s{S_J}, s{S_BID}, 31')
    A('s_barrier')
    A(f's_cmp_lt_u32 s{S_J}, 20')
    A('s_cbranch_scc1 L_p3_end' if NOOUT[0] else 's_cbranch_scc1 L_p3_out')
    gen_xattn(A)
    A('s_branch L_p3_end')
    A('L_p3_out:')
    gen_outproj(A)
    A('L_p3_end:')

if __name__ == '__main__':
    import bulk1, bulk2
    A = Asm(); K = NAME + '_kernel'
    kernel_begin(A, K)
    A('s_cmp_ge_u32 s2, 128')
    A('s_cbranch_scc1 L_end')
    A('s_load_dwordx2 s[4:5], s[0:1], 104')
    A(f's_load_dwordx2 s[{S_DBG}:{S_DBG+1}], s[0:1], 96')
    A('v_lshrrev_b32 v1, 6, v0')
    A('s_nop 0')
    A(f'v_readfirstlane_b32 s{S_W}, v1')
    A('s_waitcnt lgkmcnt(0)')
    setsrd(A, S_WS, 4, 0x10000000)
    A(f's_mov_b32 s{S_BID}, s2')
    A(f's_mov_b32 s{S_TO}, 0x40000')
    bulk1.gen_phase1_loop(A)
    bulk2.gen_phase2(A)
    gen_phase3(A)
    A('s_waitcnt vmcnt(0)')
    A('L_end:')
    A('s_endpgm')
    A('L_timeout:')
    A('v_mov_b32 v1, 60')
    A('v_mov_b32 v2, 0xdead')
    A(f'global_store_dword v1, v2, s[{S_DBG}:{S_DBG+1}]')
    A('s_waitcnt vmcnt(0)')
    A('s_endpgm')
    open(sys.argv[1], 'w').write(file_text(['; @launch grid=(128,1,1) block=(256,1,1) lds=163840'], A.text(), kernel_desc(K)))
```

```python
from asmlib import *
from ws_layout import *
import struct, sys

NSEG = 64
S_WS   = 8
S_T    = 12
S_X, S_J, S_H, S_C, S_W, S_STEP = 16, 17, 18, 19, 20, 21
S_TO   = 22
S_HASITEM = 23
S_DUM  = 24
S_DBG  = 28
S_t0, S_t1, S_t2, S_t3 = 30, 31, 32, 33
S_PAR  = 34
S_SCL = 38
S_KM, S_VM = 40, 41
S_SEG2 = 42
S_CPO = 44
S_PROF = 48
S_PT   = 64
S_D0   = 68
S_M0   = 72
S_VALID = 76
S_QV, S_PR, S_MR, S_XR = 84, 88, 92, 96
V_QKST, V_VST, V_RLD, V_VLD, V_P4, V_P2, V_RS0, V_RS1 = 1, 2, 3, 4, 5, 6, 7, 8
V_MS   = 9
V_M0   = 10
V_LM0  = 100
V_LB   = 16
V_LRW, V_LRR = 17, 18
V_T    = 20
V_NEG  = 28
V_SEL  = 32
V_LKV  = 36
V_PRG  = 37
V_CPF  = 38
V_CPV  = 39
V_PH   = 99
V_LRK  = 19
V_XP3  = 107
V_B    = 40
V_KPUB, V_VPUB = 80, 81
V_XS   = 82
V_KPL  = 83
V_ACV  = 84
V_RSD  = 88
V_DM3A, V_DM3B = 96, 97
V_VPL  = 98
V_XL   = 104
V_XD   = 108
V_ACC  = 120
V_R    = 128
V_VV   = 144
V_KX   = 160
V_S    = 192
V_VOX  = 204
V_VOM  = 216
V_PX   = 228
V_PM   = 232
V_F    = 236
V_O    = 248
V_PO   = 56
V_PO2  = 254
A_QK, A_V, A_O = 0, 80, 120
A_ONE, A_HALF = 168, 172
HOFF = 768
MEMSTRIDE = 2*HOFF + 32
L_KV  = 0
L_MEM = 65536
L_RAREA = 81920
BIG = 0x40000000
CENSUS = 192
SCALE_LOG2E = (128 ** -0.5) * 1.4426950408889634
def f2u(x): return struct.unpack('<I', struct.pack('<f', x))[0]
OPT = set()
DEFAULTS = {'xp3on': 0, 'nS': 3, 'gapS': 15, 'rsdelay': 30, 'nX': 2, 'nR': 2, 'nA': 2, 'bsleep': 100}
WSR = f's[{S_WS}:{S_WS+3}]'
def optval(k, d):
    for o in OPT:
        if o.startswith(k+'='): return o.split('=')[1] if isinstance(d, str) else int(o.split('=')[1])
    return DEFAULTS.get(k, d)
def mfma(A, d, a, b, c):
    A(f'v_mfma_f32_16x16x32_bf16 {d}, {a}, {b}, {c}')
def nops(A, n):
    while n > 0:
        k = min(n, 16); A(f's_nop {k-1}'); n -= k

class Prof:
    def __init__(self, on): self.on = on
    def stamp(self, A, idx, trace_only=False):
        if 'trace' in OPT:
            lab = A.label('L_tr')
            A(f's_cmp_lg_u32 s{S_STEP}, {optval("ts", 30)}')
            A(f's_cbranch_scc1 {lab}')
            A(f's_memrealtime s[{S_PT}:{S_PT+1}]')
            A('s_waitcnt lgkmcnt(0)')
            A(f's_mov_b32 s{S_PROF+idx}, s{S_PT}')
            A(f'{lab}:')
            return
        if not self.on or trace_only: return
        A(f's_memtime s[{S_PT}:{S_PT+1}]')
        A('s_waitcnt lgkmcnt(0)')
        A(f's_sub_u32 s{S_PT+3}, s{S_PT}, s{S_PT+2}')
        A(f's_mov_b32 s{S_PT+2}, s{S_PT}')
        A(f's_add_u32 s{S_PROF+idx}, s{S_PROF+idx}, s{S_PT+3}')

PROFCNT = {}
def check(A, regs, tmp=V_T):
    r = list(regs)
    if len(r) <= 5:
        A(f'v_max3_u32 v{tmp}, v{r[0]}, v{r[1]}, v{r[2]}'); r = r[3:]
        if len(r) == 2: A(f'v_max3_u32 v{tmp}, v{tmp}, v{r[0]}, v{r[1]}')
        elif len(r) == 1: A(f'v_max_u32 v{tmp}, v{tmp}, v{r[0]}')
    else:
        A(f'v_max3_u32 v{tmp}, v{r[0]}, v{r[1]}, v{r[2]}')
        A(f'v_max3_u32 v{tmp+1}, v{r[3]}, v{r[4]}, v{r[5]}'); r = r[6:]; cur = 0
        while len(r) >= 2:
            A(f'v_max3_u32 v{tmp+cur}, v{tmp+cur}, v{r[0]}, v{r[1]}'); r = r[2:]; cur ^= 1
        if r: A(f'v_max3_u32 v{tmp}, v{tmp}, v{tmp+1}, v{r[0]}')
        else: A(f'v_max_u32 v{tmp}, v{tmp}, v{tmp+1}')
    A(f'v_cmp_eq_u32 vcc, -1, v{tmp}')

def retry(A, label, key=None):
    if key in PROFCNT:
        k = PROFCNT[key]; A(f's_add_u32 s{S_PROF+k}, s{S_PROF+k}, 1')
    A(f's_sub_u32 s{S_TO}, s{S_TO}, 1')
    A(f's_cbranch_scc0 {label}')
    A('s_branch L_timeout')

def setsrd(A, lo, size):
    A(f's_mov_b32 s{S_T}, s{lo}')
    A(f's_and_b32 s{S_T+1}, s{lo+1}, 0xffff')
    A(f's_mov_b32 s{S_T+2}, {size}')
    A(f's_mov_b32 s{S_T+3}, 0x20000')

def dbl(A, v, tmp, add=0):
    A(f'v_lshrrev_b32 v{tmp}, 13, v{v}')
    A(f'v_lshlrev_b32 v{tmp}, 14, v{tmp}')
    A(f'v_and_b32 v{v}, 8191, v{v}')
    A(f'v_add_u32 v{v}, v{v}, v{tmp}')
    if add: A(f'v_add_u32 v{v}, {add}, v{v}')

def vox_reads(A, slot):
    for kt in range(2):
        for s4 in range(4):
            A(f'ds_read_b128 {vr(V_KX+16*kt+4*s4,4)}, v{V_LKV} offset:{L_KV + slot*16384 + 8192 + 2048*s4 + 256*kt}')
def vox_compute(A, hook=None):
    A('s_waitcnt lgkmcnt(0)')
    if hook: hook()
    if 'skipvox' in OPT: return
    for tt in range(3):
        acc = V_F if tt % 2 == 0 else V_ACC
        for s4 in range(4):
            for kt in range(2):
                c = '0' if s4 == 0 else vr(acc+4*kt,4)
                mfma(A, vr(acc+4*kt,4), vr(V_KX+16*kt+4*s4,4), ar(A_O+16*tt+4*s4,4), c)
            if tt >= 1 and s4 in (1, 2):
                pacc = V_F if (tt-1) % 2 == 0 else V_ACC
                kt = s4-1
                A(f'v_cvt_pk_bf16_f32 v{V_VOX+4*(tt-1)+2*kt}, v{pacc+4*kt}, v{pacc+4*kt+1}')
                A(f'v_cvt_pk_bf16_f32 v{V_VOX+4*(tt-1)+2*kt+1}, v{pacc+4*kt+2}, v{pacc+4*kt+3}')
    A('s_nop 7')
    for kt in range(2):
        A(f'v_cvt_pk_bf16_f32 v{V_VOX+8+2*kt}, v{V_F+4*kt}, v{V_F+4*kt+1}')
        A(f'v_cvt_pk_bf16_f32 v{V_VOX+8+2*kt+1}, v{V_F+4*kt+2}, v{V_F+4*kt+3}')

def vox_tiles(A, tiles, wait=True):
    if wait: A('s_waitcnt lgkmcnt(0)')
    if 'skipvox' in OPT or not tiles: return
    accs = [V_F, V_ACC]
    for n, tt in enumerate(tiles):
        acc = accs[n % 2]
        for s4 in range(4):
            for kt in range(2):
                c = '0' if s4 == 0 else vr(acc+4*kt,4)
                mfma(A, vr(acc+4*kt,4), vr(V_KX+16*kt+4*s4,4), ar(A_O+16*tt+4*s4,4), c)
            if n >= 1 and s4 in (1, 2):
                pt = tiles[n-1]; pacc = accs[(n-1) % 2]; kt = s4-1
                A(f'v_cvt_pk_bf16_f32 v{V_VOX+4*pt+2*kt}, v{pacc+4*kt}, v{pacc+4*kt+1}')
                A(f'v_cvt_pk_bf16_f32 v{V_VOX+4*pt+2*kt+1}, v{pacc+4*kt+2}, v{pacc+4*kt+3}')
    A('s_nop 6')
    pt = tiles[-1]; pacc = accs[(len(tiles)-1) % 2]
    for kt in range(2):
        A(f'v_cvt_pk_bf16_f32 v{V_VOX+4*pt+2*kt}, v{pacc+4*kt}, v{pacc+4*kt+1}')
        A(f'v_cvt_pk_bf16_f32 v{V_VOX+4*pt+2*kt+1}, v{pacc+4*kt+2}, v{pacc+4*kt+3}')

def gen_prologue(A, P):
    A(f's_lshr_b32 s{S_t0}, s{S_J}, 2')
    A(f's_lshl_b32 s{S_H}, s{S_X}, 3')
    A(f's_add_u32 s{S_H}, s{S_H}, s{S_t0}')
    A(f's_and_b32 s{S_C}, s{S_J}, 3')
    A(f's_mov_b32 s{S_SCL}, {hex(f2u(SCALE_LOG2E))}')
    A(f's_mov_b32 s{S_SCL+1}, {hex(f2u(SCALE_LOG2E))}')
    L, I, G = V_T, V_T+1, V_T+2
    T0, T1, T2 = V_T+3, V_T+4, V_T+5
    I7 = V_T+6; T3 = V_T+7
    A(f'v_and_b32 v{L}, 63, v0')
    A(f'v_and_b32 v{I}, 15, v0')
    A(f'v_bfe_u32 v{G}, v0, 4, 2')
    A(f'v_and_b32 v{I7}, 7, v{I}')
    A.c('weights DMA')
    A(f's_load_dwordx4 s[4:7], s[0:1], 16')
    A(f's_waitcnt lgkmcnt(0)')
    A(f'v_lshrrev_b32 v{T0}, 2, v{L}')
    A(f'v_lshlrev_b32 v{T0}, 13, v{T0}')
    A(f'v_and_b32 v{T1}, 3, v{L}')
    A(f'v_lshlrev_b32 v{T1}, 4, v{T1}')
    A(f'v_add_u32 v{T0}, v{T0}, v{T1}')
    A(f's_lshl_b32 s{S_t0}, s{S_H}, 8')
    A(f's_lshl_b32 s{S_t1}, s{S_C}, 6')
    A(f's_add_u32 s{S_t0}, s{S_t0}, s{S_t1}')
    A(f'v_add_u32 v{T0}, s{S_t0}, v{T0}')
    def dma_w(area):
        A(f's_lshl_b32 s{S_t0}, s{S_W}, 17')
        A(f's_lshl_b32 s{S_t1}, s{S_W}, 10')
        A(f's_add_u32 s{S_t1}, s{S_t1}, {area}')
        for i in range(10):
            A(f's_mov_b32 m0, s{S_t1}')
            A(f's_add_u32 s{S_t1}, s{S_t1}, 4096')
            A(f'buffer_load_dwordx4 v{T0}, s[{S_T}:{S_T+3}], s{S_t0} offen lds')
            A(f's_add_u32 s{S_t0}, s{S_t0}, {4*131072}')
    setsrd(A, 4, 5242880); dma_w(0)
    setsrd(A, 6, 5242880); dma_w(40960)
    A(f's_load_dwordx4 s[4:7], s[0:1], 32')
    A(f's_waitcnt lgkmcnt(0)')
    setsrd(A, 4, 5242880); dma_w(81920)
    setsrd(A, 6, 5242880)
    WO = V_B
    for b in range(5):
        A(f'v_add_u32 v{T1}, {64*b}, v{L}')
        A(f'v_mul_u32_u24 v{T2}, 3277, v{T1}')
        A(f'v_lshrrev_b32 v{T2}, 16, v{T2}')
        A(f'v_mul_u32_u24 v{WO+b}, 20, v{T2}')
        A(f'v_sub_u32 v{WO+b}, v{T1}, v{WO+b}')
        A(f'v_lshlrev_b32 v{WO+b}, 4, v{WO+b}')
        A(f'v_mul_u32_u24 v{T2}, 1280, v{T2}')
        A(f'v_add_u32 v{WO+b}, v{WO+b}, v{T2}')
    A(f's_mul_i32 s{S_t0}, s{S_H}, {128*1280}')
    A(f's_mul_i32 s{S_t1}, s{S_C}, 320')
    A(f's_add_u32 s{S_t0}, s{S_t0}, s{S_t1}')
    A(f's_mul_i32 s{S_t1}, s{S_W}, {16*1280}')
    A(f's_add_u32 s{S_t0}, s{S_t0}, s{S_t1}')
    A(f's_mul_i32 s{S_t1}, s{S_W}, 5120')
    A(f's_add_u32 s{S_t1}, s{S_t1}, 122880')
    for hi in range(2):
        for b in range(5):
            A(f's_add_u32 m0, s{S_t1}, {hi*4*5120 + b*1024}')
            A(f's_add_u32 s{S_t2}, s{S_t0}, {hi*4*16*1280}')
            A(f'buffer_load_dwordx4 v{WO+b}, s[{S_T}:{S_T+3}], s{S_t2} offen lds')
    A.c('address regs')
    VALID = f's[{S_VALID}:{S_VALID+1}]'
    VV_ = f's[{S_M0}:{S_M0+1}]'
    A(f'v_cmp_gt_u32 {VALID}, 8, v{I}')
    A(f'v_mov_b32 v{T2}, {BIG}')
    TO = V_B+8
    A(f's_lshr_b32 s{S_t1}, s{S_W}, 1')
    A(f's_lshl_b32 s{S_t0}, s{S_t1}, 11')
    A(f's_lshl_b32 s{S_t1}, s{S_C}, 9')
    A(f's_add_u32 s{S_t0}, s{S_t0}, s{S_t1}')
    A(f's_and_b32 s{S_t1}, s{S_W}, 1')
    A(f's_lshl_b32 s{S_t1}, s{S_t1}, 8')
    A(f's_add_u32 s{S_t0}, s{S_t0}, s{S_t1}')
    A(f'v_lshlrev_b32 v{TO}, 5, v{I7}')
    A(f'v_lshl_add_u32 v{TO}, v{G}, 3, v{TO}')
    A(f'v_add_u32 v{TO}, s{S_t0}, v{TO}')
    S_HB = S_D0
    A(f's_lshr_b32 s{S_t0}, s{S_H}, 1')
    A(f's_lshl_b32 s{S_t0}, s{S_t0}, 14')
    A(f's_and_b32 s{S_t1}, s{S_H}, 1')
    A(f's_lshl_b32 s{S_t1}, s{S_t1}, 12')
    A(f's_add_u32 s{S_HB}, s{S_t0}, s{S_t1}')
    A(f'v_add_u32 v{T0}, s{S_HB}, v{TO}')
    A(f'v_cndmask_b32 v{V_QKST}, v{T2}, v{T0}, {VALID}')
    A(f's_cmp_ge_u32 s{S_W}, 2')
    A(f's_cselect_b64 {VV_}, -1, 0')
    A(f's_xor_b64 {VV_}, {VV_}, {VALID}')
    A(f'v_add_u32 v{T0}, {V_RING_OFF}, v{T0}')
    A(f'v_cndmask_b32 v{V_VST}, v{T2}, v{T0}, {VV_}')
    A(f'v_lshlrev_b32 v{T0}, 4, v{L}')
    A(f'v_cmp_gt_u32 vcc, 32, v{L}')
    A(f's_lshl_b32 s{S_t0}, s{S_C}, 9')
    A(f's_lshl_b32 s{S_t1}, s{S_H}, 11')
    A(f's_add_u32 s{S_t1}, s{S_t1}, s{S_t0}')
    A(f'v_add_u32 v{T1}, s{S_t1}, v{T0}')
    A(f'v_cndmask_b32 v{V_KPUB}, v{T2}, v{T1}, vcc')
    A(f's_add_u32 s{S_t1}, s{S_HB}, s{S_t0}')
    A(f's_add_u32 s{S_t1}, s{S_t1}, 2048')
    A(f'v_add_u32 v{T1}, s{S_t1}, v{T0}')
    A(f'v_cndmask_b32 v{V_KPL}, v{T2}, v{T1}, vcc')
    A(f's_lshl_b32 s{S_t0}, s{S_C}, 10')
    A(f's_lshl_b32 s{S_t1}, s{S_H}, 12')
    A(f's_add_u32 s{S_t1}, s{S_t1}, s{S_t0}')
    A(f'v_add_u32 v{V_VPUB}, s{S_t1}, v{T0}')
    A(f's_add_u32 s{S_t1}, s{S_HB}, s{S_t0}')
    A(f's_add_u32 s{S_t1}, s{S_t1}, {V_RING_OFF}')
    A(f'v_add_u32 v{V_VPL}, s{S_t1}, v{T0}')
    A(f's_lshl_b32 s{S_t1}, s{S_W}, 10')
    A(f's_add_u32 s{S_t0}, s{S_HB}, s{S_t1}')
    A(f'v_add_u32 v{V_RLD}, s{S_t0}, v{T0}')
    A(f's_add_u32 s{S_t1}, s{S_t1}, {L_RAREA}')
    A(f'v_add_u32 v{V_LRW}, s{S_t1}, v{T0}')
    A(f'v_lshrrev_b32 v{T0}, 3, v{I}')
    A(f'v_lshlrev_b32 v{T0}, 11, v{T0}')
    A(f'v_lshrrev_b32 v{T1}, 1, v{G}')
    A(f'v_lshl_add_u32 v{T0}, v{T1}, 8, v{T0}')
    A(f'v_lshl_add_u32 v{T0}, v{I7}, 5, v{T0}')
    A(f'v_and_b32 v{T1}, 1, v{G}')
    A(f'v_lshl_add_u32 v{T0}, v{T1}, 4, v{T0}')
    A(f'v_add_u32 v{V_LRR}, {L_RAREA}, v{T0}')
    A(f'v_and_b32 v{V_LRK}, 2047, v{T0}')
    A(f'v_add_u32 v{V_LRK}, {L_RAREA + 2048}, v{V_LRK}')
    A(f's_add_u32 s{S_t0}, s{S_HB}, {V_RING_OFF}')
    A(f'v_add_u32 v{V_VLD}, s{S_t0}, v{T0}')
    A(f's_mul_i32 s{S_t0}, s{S_H}, 10240')
    A(f's_mul_i32 s{S_t1}, s{S_C}, 2560')
    A(f's_add_u32 s{S_t0}, s{S_t0}, s{S_t1}')
    A(f's_lshl_b32 s{S_t1}, s{S_W}, 9')
    A(f's_add_u32 s{S_t1}, s{S_t1}, s{S_t0}')
    A(f'v_lshlrev_b32 v{T0}, 6, v{I}')
    A(f'v_lshl_add_u32 v{T0}, v{G}, 4, v{T0}')
    A(f'v_add_u32 v{T0}, s{S_t1}, v{T0}')
    dbl(A, T0, T1)
    A(f'v_cndmask_b32 v{V_P4}, v{T2}, v{T0}, {VALID}')
    A(f's_lshl_b32 s{S_t1}, s{S_W}, 8')
    A(f's_add_u32 s{S_t1}, s{S_t1}, 2048')
    A(f's_add_u32 s{S_t1}, s{S_t1}, s{S_t0}')
    A(f'v_lshlrev_b32 v{T0}, 5, v{I}')
    A(f'v_lshl_add_u32 v{T0}, v{G}, 3, v{T0}')
    A(f'v_add_u32 v{T0}, s{S_t1}, v{T0}')
    dbl(A, T0, T1)
    A(f's_cmp_lt_u32 s{S_W}, 2')
    A(f's_cselect_b64 s[{S_t2}:{S_t3}], {VALID}, 0')
    A(f'v_cndmask_b32 v{V_P2}, v{T2}, v{T0}, s[{S_t2}:{S_t3}]')
    A(f's_lshl_b32 s{S_t0}, s{S_W}, 5')
    A(f's_add_u32 s{S_t0}, s{S_t0}, s{S_J}')
    A(f's_cmp_lt_u32 s{S_t0}, 80')
    A(f's_cselect_b32 s{S_HASITEM}, 1, 0')
    A(f's_cselect_b32 s{S_t0}, s{S_t0}, 0')
    A(f's_lshl_b32 s{S_t1}, s{S_t0}, 7')
    A(f's_cmp_eq_u32 s{S_HASITEM}, 1')
    A(f's_cselect_b64 {VV_}, -1, 0')
    for u, dst in enumerate((V_RS0, V_RS1)):
        A(f'v_add_u32 v{T0}, {4*u}, v{G}')
        A(f's_lshl_b32 s{S_t2}, s{S_X}, 3')
        A(f'v_add_u32 v{T0}, s{S_t2}, v{T0}')
        A(f'v_mul_u32_u24 v{T0}, 10240, v{T0}')
        A(f'v_lshl_add_u32 v{T0}, v{I}, 3, v{T0}')
        A(f'v_add_u32 v{T0}, s{S_t1}, v{T0}')
        dbl(A, T0, T1)
        A(f'v_cndmask_b32 v{dst}, v{T2}, v{T0}, {VV_}')
    A(f'v_cmp_eq_u32 vcc, 0, v{G}')
    A('s_nop 3')
    A(f's_and_b64 {VV_}, {VV_}, vcc')
    A(f's_mul_i32 s{S_t2}, s{S_X}, 10240')
    A(f's_add_u32 s{S_t2}, s{S_t2}, s{S_t1}')
    A(f'v_lshlrev_b32 v{T0}, 3, v{I}')
    A(f'v_add_u32 v{T0}, s{S_t2}, v{T0}')
    dbl(A, T0, T1)
    A(f'v_cndmask_b32 v{V_MS}, v{T2}, v{T0}, {VV_}')
    for k, dst in enumerate((V_XS, V_XL, V_XL+1, V_XL+2)):
        A(f's_add_u32 s{S_t2}, s{S_X}, {k}')
        A(f's_and_b32 s{S_t2}, s{S_t2}, 3')
        A(f's_mul_i32 s{S_t2}, s{S_t2}, 20480')
        A(f's_lshl_b32 s{S_t3}, s{S_t1}, 1')
        A(f's_add_u32 s{S_t2}, s{S_t2}, s{S_t3}')
        A(f'v_lshlrev_b32 v{T0}, 4, v{I}')
        A(f'v_add_u32 v{T0}, s{S_t2}, v{T0}')
        dbl(A, T0, T1)
        if 'xtag' in OPT and k > 0: A(f'v_mov_b32 v{dst}, v{T0}')
        else: A(f'v_cndmask_b32 v{dst}, v{T2}, v{T0}, {VV_}')
    A(f'v_mov_b32 v{V_PH}, 0')
    A(f'v_lshlrev_b32 v{T0}, 5, v{G}')
    A(f'v_add_u32 v{T0}, s{S_J}, v{T0}')
    A(f'v_cmp_gt_u32 vcc, 80, v{T0}')
    A(f'v_lshlrev_b32 v{T0}, 8, v{T0}')
    A(f'v_lshl_add_u32 v{T0}, v{I}, 4, v{T0}')
    A(f's_mul_i32 s{S_t2}, s{S_X}, 20480')
    A(f'v_add_u32 v{T0}, s{S_t2}, v{T0}')
    dbl(A, T0, T1)
    A(f's_cmp_eq_u32 s{S_W}, 3')
    A(f's_cselect_b64 s[{S_t2}:{S_t3}], vcc, 0')
    A(f'v_cndmask_b32 v{V_XP3}, v{T2}, v{T0}, s[{S_t2}:{S_t3}]')
    Q, LN, PT, ROW, COL = V_B+8, V_B+9, V_B+10, V_B+11, V_B+12
    M_, R2, C2 = V_B+13, V_B+14, V_B+15
    NAG = 4 if 'ag3' in OPT else 3
    for k in range(NAG):
        if 'ag3' in OPT:
            A(f's_mul_i32 s{S_t0}, s{S_W}, 214')
            A(f's_add_u32 s{S_t1}, s{S_t0}, 213')
            A(f's_min_u32 s{S_t1}, s{S_t1}, 639')
            A(f's_add_u32 s{S_t0}, s{S_t0}, {64*k}')
            A(f'v_add_u32 v{Q}, s{S_t0}, v{L}')
            A(f'v_min_u32 v{Q}, s{S_t1}, v{Q}')
        else:
            A(f's_mul_i32 s{S_t0}, s{S_W}, 160')
            A(f's_add_u32 s{S_t0}, s{S_t0}, {64*k}')
            A(f'v_add_u32 v{Q}, s{S_t0}, v{L}')
            if k == 2:
                A(f'v_cmp_le_u32 vcc, 32, v{L}')
                A(f'v_subrev_u32 v{T1}, 32, v{Q}')
                A('s_nop 0')
                A(f'v_cndmask_b32 v{Q}, v{Q}, v{T1}, vcc')
        A(f's_mul_i32 s{S_t0}, s{S_X}, 10240')
        A(f'v_lshlrev_b32 v{V_M0+k}, 4, v{Q}')
        A(f'v_add_u32 v{V_M0+k}, s{S_t0}, v{V_M0+k}')
        dbl(A, V_M0+k, T1)
        A(f'v_lshrrev_b32 v{LN}, 3, v{Q}')
        A(f'v_and_b32 v{PT}, 7, v{Q}')
        A(f'v_mul_u32_u24 v{T0}, 3277, v{LN}')
        A(f'v_lshrrev_b32 v{T0}, 16, v{T0}')
        A(f'v_mul_u32_u24 v{T1}, 20, v{T0}')
        A(f'v_sub_u32 v{LN}, v{LN}, v{T1}')
        A(f'v_mul_u32_u24 v{COL}, 160, v{T0}')
        A(f'v_and_b32 v{T0}, 3, v{LN}')
        A(f'v_lshlrev_b32 v{T0}, 1, v{T0}')
        A(f'v_lshrrev_b32 v{T1}, 2, v{PT}')
        A(f'v_add_u32 v{ROW}, v{T0}, v{T1}')
        A(f'v_lshrrev_b32 v{T0}, 2, v{LN}')
        A(f'v_lshlrev_b32 v{T0}, 5, v{T0}')
        A(f'v_and_b32 v{T1}, 3, v{PT}')
        A(f'v_lshl_add_u32 v{T0}, v{T1}, 3, v{T0}')
        A(f'v_subrev_u32 v{M_}, 16, v{LN}')
        A(f'v_and_b32 v{R2}, 1, v{M_}')
        A(f'v_lshlrev_b32 v{R2}, 2, v{R2}')
        A(f'v_lshrrev_b32 v{T1}, 1, v{PT}')
        A(f'v_add_u32 v{R2}, v{R2}, v{T1}')
        A(f'v_lshrrev_b32 v{C2}, 1, v{M_}')
        A(f'v_lshlrev_b32 v{C2}, 4, v{C2}')
        A(f'v_and_b32 v{T1}, 1, v{PT}')
        A(f'v_lshl_add_u32 v{C2}, v{T1}, 3, v{C2}')
        A(f'v_add_u32 v{C2}, 128, v{C2}')
        A(f'v_cmp_le_u32 vcc, 16, v{LN}')
        A('s_nop 1')
        A(f'v_cndmask_b32 v{ROW}, v{ROW}, v{R2}, vcc')
        A(f'v_cndmask_b32 v{T0}, v{T0}, v{C2}, vcc')
        A(f'v_add_u32 v{COL}, v{COL}, v{T0}')
        A(f'v_lshlrev_b32 v{T0}, 1, v{COL}')
        A(f'v_add_u32 v{T1}, {HOFF-640}, v{T0}')
        A(f'v_cmp_le_u32 vcc, 320, v{COL}')
        A(f'v_mul_u32_u24 v{ROW}, {MEMSTRIDE}, v{ROW}')
        A('s_nop 0')
        A(f'v_cndmask_b32 v{T0}, v{T0}, v{T1}, vcc')
        A(f'v_add_u32 v{V_LM0+k}, v{ROW}, v{T0}')
        A(f'v_add_u32 v{V_LM0+k}, {L_MEM}, v{V_LM0+k}')
    A(f'v_mul_u32_u24 v{T0}, {MEMSTRIDE}, v{I7}')
    A(f'v_lshrrev_b32 v{T1}, 3, v{I}')
    A(f'v_mul_u32_u24 v{T1}, {HOFF}, v{T1}')
    A(f'v_add_u32 v{T0}, v{T0}, v{T1}')
    A(f'v_lshl_add_u32 v{V_LB}, v{G}, 4, v{T0}')
    A(f'v_add_u32 v{V_LB}, {L_MEM}, v{V_LB}')
    A(f'v_lshrrev_b32 v{T0}, 1, v{G}')
    A(f'v_lshlrev_b32 v{T0}, 10, v{T0}')
    A(f'v_and_b32 v{T1}, 1, v{G}')
    A(f'v_lshl_add_u32 v{T0}, v{T1}, 9, v{T0}')
    A(f'v_lshl_add_u32 v{V_LKV}, v{I}, 4, v{T0}')
    A(f'v_lshlrev_b32 v{V_DM3A}, 4, v{L}')
    A(f'v_lshlrev_b32 v{T0}, 12, v{L}')
    A(f's_lshl_b32 s{S_t0}, s{S_H}, 7')
    A(f'v_add_u32 v{T0}, s{S_t0}, v{T0}')
    A(f'v_cmp_gt_u32 vcc, 2, v{L}')
    A(f'v_mov_b32 v{T1}, {BIG}')
    A('s_nop 0')
    A(f'v_cndmask_b32 v{V_PRG}, v{T1}, v{T0}, vcc')
    A(f's_lshl_b32 s{S_t0}, s{S_H}, 2')
    A(f's_add_u32 s{S_t0}, s{S_t0}, s{S_C}')
    A(f's_lshl_b32 s{S_t0}, s{S_t0}, 7')
    A(f'v_mov_b32 v{T0}, s{S_t0}')
    A(f'v_cmp_eq_u32 vcc, 192, v0')
    A('s_nop 1')
    A(f'v_cndmask_b32 v{V_CPF}, v{T1}, v{T0}, vcc')
    for k in range(4): A(f'v_mov_b32 v{V_NEG+k}, -1')
    A(f'v_mov_b32 v{V_SEL}, 0')
    A(f'v_mov_b32 v{V_SEL+1}, 0')
    for m, (reg, val) in enumerate(((0, 0x3F80), (0, 0x3F800000), (1, 0x3F80), (1, 0x3F800000))):
        A(f'v_cmp_eq_u32 vcc, {m}, v{I}')
        A(f'v_mov_b32 v{T0}, {hex(val)}')
        A('s_nop 0')
        A(f'v_cndmask_b32 v{V_SEL+reg}, v{V_SEL+reg}, v{T0}, vcc')
    A(f'v_mov_b32 v{V_SEL+2}, v{V_SEL}')
    A(f'v_mov_b32 v{V_SEL+3}, v{V_SEL+1}')
    for tt in range(3):
        A(f'v_mov_b32 v{V_VOM+4*tt+2}, 0')
        A(f'v_mov_b32 v{V_VOM+4*tt+3}, 0')
    A(f'v_mov_b32 v{V_PM+2}, 0')
    A(f'v_mov_b32 v{V_PM+3}, 0')
    A(f'v_mov_b32 v{T0}, 0x3f803f80')
    A(f'v_mov_b32 v{T1}, 0x3f003f00')
    for r in range(4):
        A(f'v_accvgpr_write_b32 a{A_ONE+r}, v{T0}')
        A(f'v_accvgpr_write_b32 a{A_HALF+r}, v{T1}')
    A.c('initial poison (both parities)')
    A(f'v_mov_b32 v{V_CPV}, 0')
    A(f's_mov_b32 s{S_t0}, {C_CPROG}')
    A(f'buffer_store_dword v{V_CPV}, v{V_CPF}, {WSR}, s{S_t0} offen sc1')
    for sl in range(4):
        A(f's_mov_b32 s{S_t0}, {QV_SLOT(sl)[0]}')
        A(f'buffer_store_dwordx2 {vr(V_NEG,2)}, v{V_QKST}, {WSR}, s{S_t0} offen sc1')
        A(f'buffer_store_dwordx2 {vr(V_NEG,2)}, v{V_VST}, {WSR}, s{S_t0} offen sc1')
        A(f's_mov_b32 s{S_t0}, {P_SLOT(sl)[0]}')
        A(f'buffer_store_dwordx4 {vr(V_NEG,4)}, v{V_P4}, {WSR}, s{S_t0} offen sc1')
        A(f'buffer_store_dwordx2 {vr(V_NEG,2)}, v{V_P2}, {WSR}, s{S_t0} offen sc1')
        A(f's_mov_b32 s{S_t0}, {M_SLOT(sl)[0]}')
        A(f'buffer_store_dwordx2 {vr(V_NEG,2)}, v{V_MS}, {WSR}, s{S_t0} offen sc1')
        for par in range(2):
            A(f's_mov_b32 s{S_t0}, {X_SLOT(sl)[0] + par*8192}')
            A(f'buffer_store_dwordx4 {vr(V_NEG,4)}, v{V_XS}, {WSR}, s{S_t0} offen sc1')
        if sl == 2: A('s_waitcnt vmcnt(30)')
    tl(A, 9)
    A('s_waitcnt vmcnt(%d)' % (7 if TL_ON[0] else 6))
    tl(A, 10)
    verdict_issue(A, 'c')
    A('s_waitcnt vmcnt(0)')
    tl(A, 11)
    A('s_barrier')
    A(f's_cmp_lg_u32 s{S_W}, 0')
    A('s_cbranch_scc1 L_c_arrived')
    verdict_eval(A, 'c')
    A('s_cmp_lg_u32 s79, 0')
    A('s_cbranch_scc1 L_c_arrived')
    A(f'v_mov_b32 v{T0}, {CENSUS}')
    A(f'v_mov_b32 v{T1}, 1')
    A('s_mov_b64 exec, 1')
    A(f'global_atomic_add v{T0}, v{T1}, s[{S_DBG}:{S_DBG+1}]')
    A('s_mov_b64 exec, -1')
    A('L_c_arrived:')
    tl(A, 1)
    A.c('weights tr-read')
    R_, CQ = V_T+6, V_T+7
    A(f'v_bfe_u32 v{R_}, v{L}, 2, 2')
    A(f'v_and_b32 v{CQ}, 3, v{L}')
    A(f'v_lshl_add_u32 v{T0}, v{G}, 3, v{R_}')
    A(f'v_lshlrev_b32 v{T0}, 6, v{T0}')
    A(f'v_lshl_add_u32 v{T0}, v{CQ}, 3, v{T0}')
    A(f's_and_b32 s{S_t0}, s{S_W}, 1')
    A(f's_lshl_b32 s{S_t0}, s{S_t0}, 5')
    A(f'v_add_u32 v{T0}, s{S_t0}, v{T0}')
    A(f's_lshr_b32 s{S_t1}, s{S_W}, 1')
    A(f's_mul_i32 s{S_t2}, s{S_t1}, 40960')
    A(f'v_add_u32 v{T1}, s{S_t2}, v{T0}')
    for t in range(20):
        for hf in range(2):
            A(f'ds_read_b64_tr_b16 {ar(A_QK+4*t+2*hf,2)}, v{T1} offset:{t*2048+hf*256}')
        if t % 4 == 3: A('s_waitcnt lgkmcnt(0)')
    A(f's_mul_i32 s{S_t3}, s{S_t1}, {10*2048}')
    A(f's_add_u32 s{S_t3}, s{S_t3}, 81920')
    A(f'v_add_u32 v{T1}, s{S_t3}, v{T0}')
    for t in range(10):
        for hf in range(2):
            A(f'ds_read_b64_tr_b16 {ar(A_V+4*t+2*hf,2)}, v{T1} offset:{t*2048+hf*256}')
        if t % 4 == 3: A('s_waitcnt lgkmcnt(0)')
    A('s_waitcnt lgkmcnt(0)')
    A(f'v_lshl_add_u32 v{T0}, v{G}, 3, v{R_}')
    A(f'v_mul_u32_u24 v{T0}, 320, v{T0}')
    A(f'v_add_u32 v{T0}, 122880, v{T0}')
    A(f's_lshl_b32 s{S_t0}, s{S_W}, 6')
    A(f'v_lshl_add_u32 v{T1}, v{CQ}, 4, v{T0}')
    A(f'v_add_u32 v{T1}, s{S_t0}, v{T1}')
    A(f's_and_b32 s{S_t0}, s{S_W}, 1')
    A(f's_lshl_b32 s{S_t0}, s{S_t0}, 5')
    A(f's_add_u32 s{S_t0}, s{S_t0}, 256')
    A(f'v_lshl_add_u32 v{T2}, v{CQ}, 3, v{T0}')
    A(f'v_add_u32 v{T2}, s{S_t0}, v{T2}')
    for tt in range(3):
        for s4 in range(4):
            for hf in range(2):
                if tt < 2:
                    A(f'ds_read_b64_tr_b16 {ar(A_O+16*tt+4*s4+2*hf,2)}, v{T1} offset:{(32*s4+4*hf)*320 + 8*tt}')
                else:
                    A(f'ds_read_b64_tr_b16 {ar(A_O+16*tt+4*s4+2*hf,2)}, v{T2} offset:{(32*s4+4*hf)*320}')
        A('s_waitcnt lgkmcnt(0)')
    A('s_barrier')
    tl(A, 12)
    verdict_bcast(A, 'c')
    A.c('prologue kv + mem0')
    A(f's_mov_b32 s{S_STEP}, 0')
    A(f's_load_dwordx2 s[4:5], s[0:1], 8')
    A('s_waitcnt lgkmcnt(0)')
    setsrd(A, 4, 10240)
    for k in range(3):
        A(f'v_add_u32 v{T0}, {64*k}, v{L}')
        if k == 2:
            A(f'v_cmp_le_u32 vcc, 160, v{T0}')
            A(f'v_subrev_u32 v{T1}, 32, v{T0}')
            A('s_nop 0')
            A(f'v_cndmask_b32 v{T0}, v{T0}, v{T1}, vcc')
        A(f'v_cmp_le_u32 vcc, 80, v{T0}')
        A(f'v_subrev_u32 v{T1}, 80, v{T0}')
        A('s_nop 0')
        A(f'v_cndmask_b32 v{T0}, v{T0}, v{T1}, vcc')
        A(f'v_cndmask_b32 v{T1}, 0, 1, vcc')
        A(f's_lshl_b32 s{S_t0}, s{S_W}, 1')
        A(f'v_add_u32 v{T1}, s{S_t0}, v{T1}')
        A(f'v_lshlrev_b32 v{T0}, 4, v{T0}')
        A(f'v_mul_u32_u24 v{T2}, 1280, v{T1}')
        A(f'v_add_u32 v{T2}, v{T2}, v{T0}')
        A(f'buffer_load_dwordx4 {vr(V_B+4*k,4)}, v{T2}, s[{S_T}:{S_T+3}], 0 offen')
        A(f'v_add_u32 v{V_B+16}, {HOFF-640}, v{T0}')
        A(f'v_cmp_le_u32 vcc, 640, v{T0}')
        A(f'v_mul_u32_u24 v{T1}, {MEMSTRIDE}, v{T1}')
        A('s_nop 0')
        A(f'v_cndmask_b32 v{T0}, v{T0}, v{V_B+16}, vcc')
        A(f'v_add_u32 v{V_B+20+k}, v{T1}, v{T0}')
        A(f'v_add_u32 v{V_B+20+k}, {L_MEM}, v{V_B+20+k}')
    A('s_waitcnt vmcnt(0)')
    for k in range(3):
        A(f'ds_write_b128 v{V_B+20+k}, {vr(V_B+4*k,4)}')
    A('s_waitcnt lgkmcnt(0)')
    A(f's_cmp_lg_u32 s{S_W}, 0')
    A('s_cbranch_scc1 L_c_census_done')
    A('L_c_census:')
    A(f'v_mov_b32 v{T0}, {CENSUS}')
    A(f'global_load_dword v{T1}, v{T0}, s[{S_DBG}:{S_DBG+1}] sc1')
    A('s_waitcnt vmcnt(0)')
    A(f'v_readfirstlane_b32 s{S_t0}, v{T1}')
    A(f's_cmp_ge_u32 s{S_t0}, 256')
    A('s_cbranch_scc1 L_c_census_done')
    A('s_sleep 4')
    retry(A, 'L_c_census')
    A('L_c_census_done:')
    A('s_barrier')
    tl(A, 2)
    A(f'v_mov_b32 v{T0}, 64')
    A(f'global_load_dword v{V_B}, v{T0}, s[{S_DBG}:{S_DBG+1}] sc1')
    A('s_waitcnt vmcnt(0)')
    A(f'v_readfirstlane_b32 s{S_PAR}, v{V_B}')
    A(f's_and_b32 s{S_PAR}, s{S_PAR}, 1')
    if 'xfar' in OPT: A(f's_xor_b32 s{S_PAR}, s{S_PAR}, 1')
    A(f's_lshl_b32 s{S_PAR}, s{S_PAR}, 13')
    for nm, base, fn in (('Q', S_QV, QV_SLOT), ('P', S_PR, P_SLOT), ('M', S_MR, M_SLOT), ('X', S_XR, X_SLOT)):
        for k in range(4):
            addr, pg = fn(k)
            if nm == 'X': A(f's_add_u32 s{base+k}, s{S_PAR}, {addr}')
            else: A(f's_mov_b32 s{base+k}, {addr}')
    if 'noflag' not in OPT:
        A(f's_mov_b32 s{S_t0}, {C_PROG1}')
        A('L_c_w01:')
        A(f'buffer_load_dword v{T1}, v{V_PRG}, {WSR}, s{S_t0} offen sc1')
        A('s_waitcnt vmcnt(0)')
        A(f'v_cmp_gt_u32 vcc, 2, v{T1}')
        A('s_nop 3')
        A('s_and_b64 vcc, vcc, 3')
        A('s_cbranch_vccz L_c_w01_ok')
        A('s_sleep 2')
        retry(A, 'L_c_w01')
        A('L_c_w01_ok:')
        tl(A, 13)
    A(f's_lshl_b32 s{S_t3}, s{S_H}, 13')
    A(f's_lshl_b32 s{S_t1}, s{S_W}, 11')
    for seg in range(2):
        for mat in range(2):
            for k in range(2):
                A(f's_add_u32 m0, s{S_t1}, {L_KV + seg*16384 + mat*8192 + k*1024}')
                A(f's_add_u32 s{S_t2}, s{S_t1}, s{S_t3}')
                A(f's_add_u32 s{S_t2}, s{S_t2}, {(WS_KX, WS_VX)[mat] + seg*32*8192 + k*1024}')
                A(f'buffer_load_dwordx4 v{V_DM3A}, {WSR}, s{S_t2} offen sc1 lds')
    A('s_waitcnt vmcnt(0)')
    A('s_barrier')
    vox_reads(A, 0)
    vox_compute(A)
    A(f's_mov_b32 s{S_CPO}, {C_CPROG}')
    A(f's_mov_b32 s{S_KM}, {WS_KM}')
    A(f's_mov_b32 s{S_VM}, {WS_VM}')
    A(f's_lshl_b32 s{S_SEG2}, s{S_H}, 13')
    A(f's_add_u32 s{S_SEG2}, s{S_SEG2}, {2*32*8192}')

def ablate(A, start, kinds):
    keep = []
    for l in A.lines[start:]:
        t = l.strip()
        if any(t.startswith(k) for k in kinds): continue
        keep.append(l)
    A.lines[start:] = keep

def gen_step(A, P, u, safe=False):
    cur, n1, p2, n3 = u, (u+1) & 3, (u+2) & 3, (u+3) & 3
    QC, QP = S_QV+cur, S_QV+p2
    PC, PP = S_PR+cur, S_PR+p2
    MC, MW, MP = S_MR+cur, S_MR+n1, S_MR+n3
    XC, XPn = S_XR+cur, S_XR+p2
    sf = f'_{u}' if not safe else f'_s{u}'
    SC = ' sc1' if safe else ''
    pre = 's' if safe else ''
    XLD = {0: 'sc1', 1: 'sc0 sc1', 2: 'sc1 nt', 3: 'nt'}[optval('xld', 0)]
    XST = {0: 'sc1', 1: 'sc0 sc1', 2: 'sc1 nt'}[optval('xst', 0)]
    def pipe_poll(name, nsets, nloads, issue, regs, pre, ok, gap, chk=None):
        lab = f'L_c_{name}{sf}'
        for k in range(nsets):
            issue(k)
            if k < nsets-1: nops(A, gap)
        A(f'{lab}_loop:')
        for k in range(nsets):
            A(f's_waitcnt vmcnt({nloads*(nsets-1)})')
            pre(k)
            (chk or check)(A, regs(k))
            A(f's_cbranch_vccz {lab}_ok{k}')
            issue(k)
        retry(A, f'{lab}_loop', name)
        for k in reversed(range(nsets)):
            A(f'{lab}_ok{k}:')
            ok(k)
            if k > 0: A(f's_branch {lab}_done')
        A(f'{lab}_done:')
    A(f'L_c_loop{sf}:')
    P.stamp(A, 11, True)
    nops(A, optval('adelay', 0))
    NAG = 4 if 'ag3' in OPT else 3
    ASET = [V_VV, V_R, V_XD]
    def a_issue(k):
        for q in range(NAG):
            A(f'buffer_load_dwordx4 {vr(ASET[k]+4*q,4)}, v{V_M0+q}, {WSR}, s{MC} offen sc1')
    def a_pre(k):
        for q in range(NAG):
            A(f'ds_write_b128 v{V_LM0+q}, {vr(ASET[k]+4*q,4)}')
    if 'ag3' in OPT:
        A(f's_cmp_eq_u32 s{S_W}, 3')
        A(f's_cbranch_scc1 L_c_A{sf}_done')
    pipe_poll('A', optval('nA', 1), NAG, a_issue, lambda k: range(ASET[k], ASET[k]+4*NAG), a_pre, lambda k: None, optval('gapA', 40))
    P.stamp(A, 8, True)
    A('s_waitcnt lgkmcnt(0)')
    A('s_barrier')
    P.stamp(A, 0)
    if u == 0: A(f'L_c_afterA0{pre}:')
    A.c('[A1] qk mfma')
    mark = len(A.lines)
    for t in range(10):
        A(f'ds_read_b128 {vr(V_B+4*t,4)}, v{V_LB} offset:{64*t}')
    for t in range(10):
        A(f's_waitcnt lgkmcnt({9-t})')
        mfma(A, vr(V_ACC,4), ar(A_QK+4*t,4), vr(V_B+4*t,4), '0' if t == 0 else vr(V_ACC,4))
        mfma(A, vr(V_ACC+4,4), ar(A_QK+4*(t+10),4), vr(V_B+4*t,4), '0' if t == 0 else vr(V_ACC+4,4))
    NV0 = 0 if 'qkfast' in OPT else 2
    for t in range(NV0):
        mfma(A, vr(V_ACV,4), ar(A_V+4*t,4), vr(V_B+4*t,4), '0' if t == 0 else vr(V_ACV,4))
    A(f's_nop {7-NV0}')
    for r in range(4):
        A(f'v_add_f32_dpp v{V_ACC+r}, v{V_ACC+4+r}, v{V_ACC+r} row_ror:8 row_mask:0xf bank_mask:0xf')
    A(f'v_cvt_pk_bf16_f32 v{V_O}, v{V_ACC}, v{V_ACC+1}')
    A(f'v_cvt_pk_bf16_f32 v{V_O+1}, v{V_ACC+2}, v{V_ACC+3}')
    A(f'buffer_store_dwordx2 {vr(V_O,2)}, v{V_QKST}, {WSR}, s{QC} offen{SC}')
    P.stamp(A, 1)
    for t in range(NV0, 10):
        mfma(A, vr(V_ACV,4), ar(A_V+4*t,4), vr(V_B+4*t,4), '0' if t == 0 else vr(V_ACV,4))
    def kx_reads():
        for kt in range(2):
            for s4 in range(4):
                A(f'ds_read_b128 {vr(V_KX+16*kt+4*s4,4)}, v{V_LKV} offset:{L_KV + cur*16384 + 2048*s4 + 256*kt}')
    RE = [V_B+12, V_B+28]
    if 'rearly' in OPT:
        nops(A, optval('re0', 0))
        A(f'buffer_load_dwordx4 {vr(RE[0],4)}, v{V_RLD}, {WSR}, s{QC} offen sc1')
        kx_reads()
    else:
        kx_reads()
    A(f'v_cvt_pk_bf16_f32 v{V_O+2}, v{V_ACV}, v{V_ACV+1}')
    A(f'v_cvt_pk_bf16_f32 v{V_O+3}, v{V_ACV+2}, v{V_ACV+3}')
    if 'rearly' in OPT:
        A(f'buffer_load_dwordx4 {vr(RE[1],4)}, v{V_RLD}, {WSR}, s{QC} offen sc1')
    A(f'buffer_store_dwordx2 {vr(V_O+2,2)}, v{V_VST}, {WSR}, s{QC} offen{SC}')
    if 'rearly' in OPT:
        for k, cnt in ((0, 2), (1, 1)):
            A(f's_waitcnt vmcnt({cnt})')
            A(f'ds_write_b128 v{V_LRW}, {vr(RE[k],4)}')
            check(A, range(RE[k], RE[k]+4))
            A(f's_cbranch_vccz L_c_R{sf}_done')
    if 'skipA1' in OPT: ablate(A, mark, ['v_mfma', 'v_add_f32_dpp'])
    P.stamp(A, 2)
    A.c('[B0] R piece -> LDS')
    nops(A, optval('rdelay', 0))
    if 'skipR' in OPT: A(f's_branch L_c_R{sf}_done')
    RSET = [V_B, V_B+4, V_B+8]
    def vloads():
        for s4 in range(4):
            A(f'buffer_load_dwordx4 {vr(V_VV+4*s4,4)}, v{V_VLD}, {WSR}, s{QC} offen offset:{512*s4} sc1')
    rld = lambda k: A(f'buffer_load_dwordx4 {vr(RSET[k],4)}, v{V_RLD}, {WSR}, s{QC} offen sc1')
    if 'vearly' in OPT:
        rld(0); nops(A, optval('gapR', 20)); rld(1); nops(A, optval('gapV', 16)); vloads()
        for k, cnt in ((0, 5), (1, 4)):
            A(f's_waitcnt vmcnt({cnt})')
            A(f'ds_write_b128 v{V_LRW}, {vr(RSET[k],4)}')
            check(A, range(RSET[k], RSET[k]+4))
            A(f's_cbranch_vccz L_c_Rv{sf}')
    pipe_poll('R', optval('nR', 1), 1, rld,
              lambda k: range(RSET[k], RSET[k]+4),
              lambda k: A(f'ds_write_b128 v{V_LRW}, {vr(RSET[k],4)}'),
              lambda k: None, optval('gapR', 20))
    if 'skipV' not in OPT and 'vearly' not in OPT: vloads()
    A(f'L_c_Rv{sf}:')
    A('s_waitcnt lgkmcnt(0)')
    A('s_barrier')
    P.stamp(A, 3)
    OPT1 = 'noopt1' not in OPT
    V_KD = V_B+20
    late = [f'v_mov_b32 v{V_CPV}, s{S_STEP}',
            f'buffer_store_dword v{V_CPV}, v{V_CPF}, {WSR}, s{S_CPO} offen sc1',
            f'buffer_store_dwordx2 {vr(V_NEG,2)}, v{V_QKST}, {WSR}, s{QP} offen{SC}',
            f'buffer_store_dwordx2 {vr(V_NEG,2)}, v{V_VST}, {WSR}, s{QP} offen{SC}',
            f'buffer_store_dwordx4 {vr(V_NEG,4)}, v{V_P4}, {WSR}, s{PP} offen{SC}',
            f'buffer_store_dwordx2 {vr(V_NEG,2)}, v{V_P2}, {WSR}, s{PP} offen{SC}',
            f'buffer_store_dwordx2 {vr(V_NEG,2)}, v{V_MS}, {WSR}, s{MP} offen{SC}']
    NLATE = 6
    if 'xplate' in OPT:
        late.append(f'buffer_store_dwordx4 {vr(V_NEG,4)}, v{V_XS}, {WSR}, s{XPn} offen sc1')
        NLATE += 1
    for s4 in range(4):
        A(f'ds_read_b128 {vr(V_R+4*s4,4)}, v{V_LRR} offset:{512*s4}')
        if OPT1: A(f'ds_read_b128 {vr(V_KD+4*s4,4)}, v{V_LRK} offset:{512*s4}')
    if not OPT1:
        for l in late: A(l)
        late = []
    A.c('[B1] scores')
    mark = len(A.lines)
    for s4 in range(4):
        c0 = '0' if s4 == 0 else None
        A(f's_waitcnt lgkmcnt({(6-2*s4) if OPT1 else (3-s4)})')
        mfma(A, vr(V_S,4), vr(V_KX+4*s4,4), vr(V_R+4*s4,4), c0 or vr(V_S,4))
        if late: A(late.pop(0))
        mfma(A, vr(V_S+4,4), vr(V_KX+16+4*s4,4), vr(V_R+4*s4,4), c0 or vr(V_S+4,4))
        if late: A(late.pop(0))
        mfma(A, vr(V_S+8,4), vr((V_KD if OPT1 else V_R)+4*s4,4), vr(V_R+4*s4,4), c0 or vr(V_S+8,4))
    for l in late: A(l)
    if 'skipB' in OPT: ablate(A, mark, ['v_mfma'])
    def vcheck():
        A(f's_waitcnt vmcnt({NLATE})')
        A.c('[B2] V check')
        if 'skipV' in OPT: A(f's_branch L_c_okV{sf}')
        check(A, range(V_VV, V_VV+16))
        A(f's_cbranch_vccz L_c_okV{sf}')
        A(f'L_c_pollV{sf}:')
        for s4 in range(4):
            A(f'buffer_load_dwordx4 {vr(V_VV+4*s4,4)}, v{V_VLD}, {WSR}, s{QC} offen offset:{512*s4} sc1')
        A('s_waitcnt vmcnt(0)')
        check(A, range(V_VV, V_VV+16))
        A(f's_cbranch_vccz L_c_okV{sf}')
        retry(A, f'L_c_pollV{sf}', 'V')
        A(f'L_c_okV{sf}:')
    VLATE = 'vlate' in OPT
    if not VLATE: vcheck()
    P.stamp(A, 10, True)
    if u == 3:
        A(f's_cmp_eq_u32 s{S_STEP}, {NSEG-1}')
        A(f's_cbranch_scc1 L_c_final')
    if VLATE: A('s_nop 5')
    A.c('[B4] softmax (VOm mfma interleaved)')
    mark = len(A.lines)
    SM = V_S+8; MX = V_T+4
    vom = [(s4, tt) for s4 in range(4) for tt in range(3)]
    vom_on = [not VLATE]
    def vom_next():
        if not vom or not vom_on[0]: return
        s4, tt = vom.pop(0)
        mfma(A, vr(V_F+4*tt,4), vr(V_VV+4*s4,4), ar(A_O+16*tt+4*s4,4), '0' if s4 == 0 else vr(V_F+4*tt,4))
    if not OPT1:
        for r in range(4): A(f'v_mov_b32 v{V_T+r}, v{SM+r}')
    A(f'v_max3_f32 v{MX}, v{V_S}, v{V_S+1}, v{V_S+2}')
    A(f'v_max3_f32 v{MX+1}, v{V_S+3}, v{V_S+4}, v{V_S+5}')
    if not OPT1:
        for r in range(4): A(f'v_permlane32_swap_b32 v{V_T+r}, v{SM+r}')
    vom_next()
    A(f'v_max3_f32 v{MX}, v{MX}, v{V_S+6}, v{V_S+7}')
    A(f'v_max3_f32 v{MX+1}, v{MX+1}, v{SM}, v{SM+1}')
    A(f'v_max3_f32 v{MX}, v{MX}, v{SM+2}, v{SM+3}')
    A(f'v_max_f32 v{MX}, v{MX}, v{MX+1}')
    def allreduce(op, reg, tmp, fill=False):
        for perm in ('v_permlane16_swap_b32', 'v_permlane32_swap_b32'):
            A(f'v_mov_b32 v{tmp}, v{reg}')
            if fill and vom_on[0]: vom_next(); A('s_nop 0')
            else: A('s_nop 1')
            A(f'{perm} v{tmp}, v{reg}')
            A(f'{op} v{reg}, v{reg}, v{tmp}')
    allreduce('v_max_f32', MX, MX+1, True)
    A(f'v_mul_f32 v{MX}, s{S_SCL}, v{MX}')
    if VLATE:
        vcheck(); vom_on[0] = True
    vom_next()
    for r in range(0, 12, 2):
        A(f'v_pk_fma_f32 {vr(V_S+r,2)}, {vr(V_S+r,2)}, s[{S_SCL}:{S_SCL+1}], {vr(MX,2)} op_sel_hi:[1,1,0] neg_lo:[0,0,1] neg_hi:[0,0,1]')
        if r % 4 == 2 or VLATE: vom_next()
    for r in range(12):
        A(f'v_exp_f32 v{V_S+r}, v{V_S+r}')
        if r % 2 == 1 or (VLATE and r < 2): vom_next()
    while vom: vom_next()
    A(f'v_cvt_pk_bf16_f32 v{V_PX}, v{V_S}, v{V_S+1}')
    A(f'v_cvt_pk_bf16_f32 v{V_PX+1}, v{V_S+2}, v{V_S+3}')
    A(f'v_cvt_pk_bf16_f32 v{V_PX+2}, v{V_S+4}, v{V_S+5}')
    A(f'v_cvt_pk_bf16_f32 v{V_PX+3}, v{V_S+6}, v{V_S+7}')
    A(f'v_cvt_pk_bf16_f32 v{V_PM}, v{SM}, v{SM+1}')
    A(f'v_cvt_pk_bf16_f32 v{V_PM+1}, v{SM+2}, v{SM+3}')
    SU = V_T+6; X2 = V_T+7
    FX = [V_ACC, V_ACC+4, V_ACV]
    if OPT1:
        mfma(A, vr(V_T,4), ar(A_ONE,4), vr(V_PX,4), '0')
    for tt in range(3):
        mfma(A, vr(FX[tt],4), vr(V_VOX+4*tt,4), vr(V_PX,4), '0')
    for tt in range(3):
        A(f'v_cvt_pk_bf16_f32 v{V_VOM+4*tt}, v{V_F+4*tt}, v{V_F+4*tt+1}')
        A(f'v_cvt_pk_bf16_f32 v{V_VOM+4*tt+1}, v{V_F+4*tt+2}, v{V_F+4*tt+3}')
    if OPT1:
        mfma(A, vr(V_T,4), ar(A_HALF,4), vr(V_PM,4), vr(V_T,4))
        for tt in range(3):
            mfma(A, vr(FX[tt],4), vr(V_VOM+4*tt,4), vr(V_PM,4), vr(FX[tt],4))
        A('s_nop 4')
        A(f'v_rcp_f32 v{SU}, v{V_T}')
        A('s_nop 1')
    else:
        A(f'v_pk_add_f32 {vr(V_T,2)}, {vr(SM,2)}, {vr(SM+2,2)}')
        A(f'v_pk_add_f32 {vr(V_T+2,2)}, {vr(V_S,2)}, {vr(V_S+2,2)}')
        for tt in range(3):
            mfma(A, vr(FX[tt],4), vr(V_VOM+4*tt,4), vr(V_PM,4), vr(FX[tt],4))
        A(f'v_pk_add_f32 {vr(V_T+4,2)}, {vr(V_S+4,2)}, {vr(V_S+6,2)}')
        A(f'v_pk_add_f32 {vr(V_T+2,2)}, {vr(V_T+2,2)}, {vr(V_T+4,2)}')
        A(f'v_pk_fma_f32 {vr(V_T,2)}, {vr(V_T,2)}, 0.5, {vr(V_T+2,2)} op_sel_hi:[1,0,1]')
        A(f'v_add_f32 v{SU}, v{V_T}, v{V_T+1}')
        allreduce('v_add_f32', SU, X2)
        A(f'v_rcp_f32 v{SU}, v{SU}')
        A('s_nop 0')
    PO = [V_PO, V_PO+2, V_PO2]
    for tt in range(3):
        for r in (0, 2):
            A(f'v_pk_mul_f32 {vr(FX[tt]+r,2)}, {vr(FX[tt]+r,2)}, {vr(SU,2)} op_sel_hi:[1,0]')
        A(f'v_cvt_pk_bf16_f32 v{PO[tt]}, v{FX[tt]}, v{FX[tt]+1}')
        A(f'v_cvt_pk_bf16_f32 v{PO[tt]+1}, v{FX[tt]+2}, v{FX[tt]+3}')
        if tt == 1: A(f'buffer_store_dwordx4 {vr(V_PO,4)}, v{V_P4}, {WSR}, s{PC} offen{SC}')
    A(f'buffer_store_dwordx2 {vr(V_PO2,2)}, v{V_P2}, {WSR}, s{PC} offen{SC}')
    if 'skipB' in OPT:
        ablate(A, mark, ['v_', 's_nop'])
        for r in (V_PO, V_PO+1, V_PO+2, V_PO+3, V_PO2, V_PO2+1): A.lines.insert(mark, f'    v_mov_b32 v{r}, 0')
    P.stamp(A, 4)
    vox_reads(A, n1)
    A(f's_cmp_eq_u32 s{S_HASITEM}, 0')
    A(f's_cbranch_scc1 L_c_noitem{sf}')
    A.c('[C1] local RS')
    nops(A, optval('rsdelay', 0))
    if 'skipRS' in OPT:
        for r in range(4): A(f'v_mov_b32 v{V_RSD+4+r}, 0')
        A(f's_branch L_c_RS{sf}_done')
    SSET = [V_RSD, V_B+20, V_B+24]
    def rs_issue(k):
        A(f'buffer_load_dwordx2 {vr(SSET[k],2)}, v{V_RS0}, {WSR}, s{PC} offen sc1')
        A(f'buffer_load_dwordx2 {vr(SSET[k]+2,2)}, v{V_RS1}, {WSR}, s{PC} offen sc1')
    pipe_poll('RS', optval('nS', 1), 2, rs_issue, lambda k: range(SSET[k], SSET[k]+4),
              lambda k: mfma(A, vr(V_RSD+4,4), vr(V_SEL,4), vr(SSET[k],4), '0'), lambda k: None, optval('gapS', 20))
    P.stamp(A, 12, True)
    A('s_nop 3')
    if 'xtag' in OPT:
        for r in range(4): A(f'v_and_or_b32 v{V_RSD+4+r}, v{V_RSD+4+r}, -2, v{V_PH}')
    A(f'buffer_store_dwordx4 {vr(V_RSD+4,4)}, v{V_XS}, {WSR}, s{XC} offen {XST}')
    if 'xplate' not in OPT and 'xtag' not in OPT and optval('xp3on', 0) != 1: A(f'buffer_store_dwordx4 {vr(V_NEG,4)}, v{V_XS}, {WSR}, s{XPn} offen sc1')
    P.stamp(A, 5)
    NVX = optval('nvx', 3)
    vox_tiles(A, list(range(NVX)))
    P.stamp(A, 6)
    A.c('[C2] cross')
    nops(A, optval('xdelay', 0))
    if 'skipX' in OPT: A(f's_branch L_c_X{sf}_done')
    XSET = [V_XD, V_B+28, V_R]
    OWN = V_RSD+4
    def x_issue(k):
        for q in range(3):
            A(f'buffer_load_dwordx4 {vr(XSET[k]+4*q,4)}, v{V_XL+q}, {WSR}, s{XC} offen {XLD}')
    def x_ok(k):
        X = XSET[k]
        for r in (0, 2):
            A(f'v_pk_add_f32 {vr(V_T+r,2)}, {vr(X+r,2)}, {vr(X+8+r,2)}')
            A(f'v_pk_add_f32 {vr(OWN+r,2)}, {vr(OWN+r,2)}, {vr(X+4+r,2)}')
    def tagcheck(A, regs):
        r = list(regs)
        A(f'v_bitop3_b32 v{V_T+4}, v{r[0]}, v{r[1]}, v{V_PH} bitop3:0x7e')
        A(f'v_bitop3_b32 v{V_T+5}, v{r[2]}, v{r[3]}, v{V_PH} bitop3:0x7e')
        cur = 0
        for x in r[4:]:
            A(f'v_bitop3_b32 v{V_T+4+cur}, v{V_T+4+cur}, v{x}, v{V_PH} bitop3:0xf6'); cur ^= 1
        A(f'v_or_b32 v{V_T+4}, v{V_T+4}, v{V_T+5}')
        A(f'v_and_b32 v{V_T+4}, 1, v{V_T+4}')
        A(f'v_cmp_ne_u32 vcc, 0, v{V_T+4}')
    pipe_poll('X', optval('nX', 1), 3, x_issue, lambda k: range(XSET[k], XSET[k]+12), lambda k: None, x_ok, optval('gapX', 40), tagcheck if 'xtag' in OPT else None)
    P.stamp(A, 9, True)
    for r in (0, 2):
        A(f'v_pk_add_f32 {vr(OWN+r,2)}, {vr(OWN+r,2)}, {vr(V_T+r,2)}')
    A(f'v_cvt_pk_bf16_f32 v{V_PO2}, v{OWN}, v{OWN+1}')
    A(f'v_cvt_pk_bf16_f32 v{V_PO2+1}, v{OWN+2}, v{OWN+3}')
    A(f'buffer_store_dwordx2 {vr(V_PO2,2)}, v{V_MS}, {WSR}, s{MW} offen{SC}')
    vox_tiles(A, list(range(NVX, 3)), wait=False)
    A(f's_branch L_c_stepend{sf}')
    A(f'L_c_noitem{sf}:')
    A(f's_cmp_lg_u32 s{S_W}, 3')
    A(f's_cbranch_scc1 L_c_w2{sf}')
    A(f's_mov_b32 s{S_t0}, {C_PROG1}')
    A(f'buffer_load_dword v{V_T+4}, v{V_PRG}, {WSR}, s{S_t0} offen sc1')
    if 'nopub' not in OPT: publish(A, QC)
    else: A('s_waitcnt vmcnt(0)')
    if optval('xp3on', 0) == 1 and 'xplate' not in OPT and 'xtag' not in OPT: A(f'buffer_store_dwordx4 {vr(V_NEG,4)}, v{V_XP3}, {WSR}, s{XPn} offen sc1')
    vox_compute(A)
    A(f's_cmp_gt_u32 s{S_STEP}, {NSEG-4}')
    A(f's_cbranch_scc1 L_c_stepend{sf}')
    if 'noflag' not in OPT:
        A(f's_add_u32 s{S_t1}, s{S_STEP}, 3')
        A(f'L_c_wk{sf}:')
        A(f'v_cmp_gt_u32 vcc, s{S_t1}, v{V_T+4}')
        A('s_nop 3')
        A('s_and_b64 vcc, vcc, 3')
        A(f's_cbranch_vccz L_c_wk{sf}_ok')
        A(f's_mov_b32 s{S_t0}, {C_PROG1}')
        A(f'buffer_load_dword v{V_T+4}, v{V_PRG}, {WSR}, s{S_t0} offen sc1')
        A('s_waitcnt vmcnt(0)')
        retry(A, f'L_c_wk{sf}')
        A(f'L_c_wk{sf}_ok:')
    if 'nodma' not in OPT:
        for mat, base in ((0, WS_KX), (1, WS_VX)):
            for uu in range(8):
                A(f's_mov_b32 m0, {L_KV + p2*16384 + mat*8192 + uu*1024}')
                A(f's_add_u32 s{S_t2}, s{S_SEG2}, {base + uu*1024}')
                A(f'buffer_load_dwordx4 v{V_DM3A}, {WSR}, s{S_t2} offen sc1 lds')
    A(f's_branch L_c_stepend{sf}')
    A(f'L_c_w2{sf}:')
    vox_compute(A)
    A(f'L_c_stepend{sf}:')
    P.stamp(A, 7)
    A(f's_add_u32 s{S_KM}, s{S_KM}, 65536')
    A(f's_add_u32 s{S_VM}, s{S_VM}, 131072')
    A(f's_add_u32 s{S_SEG2}, s{S_SEG2}, {32*8192}')
    A(f's_add_u32 s{S_STEP}, s{S_STEP}, 1')
    if u == 3 and 'xtag' in OPT: A(f'v_xor_b32 v{V_PH}, 1, v{V_PH}')
    if 'nobar0' not in OPT: A('s_barrier')
    if u == 3 and TL_ON[0]:
        for k, st in enumerate((16, 32, 48)):
            lab = A.label('L_tlq')
            A(f's_cmp_lg_u32 s{S_STEP}, {st}')
            A(f's_cbranch_scc1 {lab}')
            tl(A, 6+k)
            A(f'{lab}:')
    if u == 3: A('s_branch L_c_loop_s0' if safe else 's_branch L_c_loop_0')

def publish(A, QC):
    A(f'buffer_load_dwordx4 {vr(V_B,4)}, v{V_KPL}, {WSR}, s{QC} offen sc1')
    A(f'buffer_load_dwordx4 {vr(V_B+4,4)}, v{V_VPL}, {WSR}, s{QC} offen sc1')
    A('s_waitcnt vmcnt(0)')
    A(f'buffer_store_dwordx4 {vr(V_B,4)}, v{V_KPUB}, {WSR}, s{S_KM} offen sc1')
    A(f'buffer_store_dwordx4 {vr(V_B+4,4)}, v{V_VPUB}, {WSR}, s{S_VM} offen sc1')

def gen_chain(A, prof):
    P = Prof(prof)
    if prof and 'trace' not in OPT: PROFCNT.update({'A': 8, 'R': 9, 'V': 10, 'RS': 11, 'X': 12})
    A.c('==== chain role ====')
    gen_prologue(A, P)
    if prof and 'trace' not in OPT:
        for k in range(16): A(f's_mov_b32 s{S_PROF+k}, 0')
        A(f's_memtime s[{S_PT}:{S_PT+1}]')
        A('s_waitcnt lgkmcnt(0)')
        A(f's_mov_b32 s{S_PT+2}, s{S_PT}')
    if 'tot' in OPT:
        A(f's_memrealtime s[{S_PROF}:{S_PROF+1}]')
        A(f's_memtime s[{S_PROF+4}:{S_PROF+5}]')
        A('s_waitcnt lgkmcnt(0)')
    tl(A, 3)
    A(f's_cmp_eq_u32 s{S_MODE}, 1')
    A('s_cbranch_scc1 L_c_afterA0s_far')
    A('s_branch L_c_afterA0')
    A('L_c_afterA0s_far:')
    A('s_branch L_c_afterA0s')
    A('.p2align 6')
    for u in range(4): gen_step(A, P, u)
    if 'nosafe' in OPT:
        A('L_c_afterA0s:')
        A('s_branch L_timeout')
    else:
        A('.p2align 6')
        for u in range(4): gen_step(A, P, u, safe=True)
    A('L_c_finals:')
    A('L_c_final:')
    if 'vlate' in OPT:
        A('L_c_fv:')
        for s4 in range(4):
            A(f'buffer_load_dwordx4 {vr(V_VV+4*s4,4)}, v{V_VLD}, {WSR}, s{S_QV+3} offen offset:{512*s4} sc1')
        A('s_waitcnt vmcnt(0)')
        check(A, range(V_VV, V_VV+16))
        A('s_cbranch_vccz L_c_fv_ok')
        retry(A, 'L_c_fv')
        A('L_c_fv_ok:')
    A(f's_cmp_lg_u32 s{S_W}, 3')
    A('s_cbranch_scc1 L_c_end')
    publish(A, S_QV+3)
    A('s_waitcnt vmcnt(0)')
    A(f'v_mov_b32 v{V_CPV}, 64')
    A(f'buffer_store_dword v{V_CPV}, v{V_CPF}, {WSR}, s{S_CPO} offen sc1')
    A('L_c_end:')
    tl(A, 5)
    if 'tot' in OPT:
        A(f's_memrealtime s[{S_PROF+2}:{S_PROF+3}]')
        A(f's_memtime s[{S_PROF+6}:{S_PROF+7}]')
        A('s_waitcnt lgkmcnt(0)')
        A(f's_sub_u32 s{S_PROF}, s{S_PROF+2}, s{S_PROF}')
        A(f's_sub_u32 s{S_PROF+1}, s{S_PROF+6}, s{S_PROF+4}')
        A(f's_mov_b32 s{S_PROF+2}, s{S_PAR}')
    if prof or 'tot' in OPT:
        A(f's_lshl_b32 s{S_t0}, s{S_X}, 5')
        A(f's_add_u32 s{S_t0}, s{S_t0}, s{S_J}')
        A(f's_lshl_b32 s{S_t0}, s{S_t0}, 2')
        A(f's_add_u32 s{S_t0}, s{S_t0}, s{S_W}')
        A(f's_lshl_b32 s{S_t0}, s{S_t0}, 6')
        A(f's_add_u32 s{S_t0}, s{S_t0}, {WS_PROF}')
        A(f'v_mov_b32 v{V_T}, 0')
        for k in range(16):
            A(f'v_mov_b32 v{V_T+1}, s{S_PROF+k}')
            A(f'buffer_store_dword v{V_T+1}, v{V_T}, {WSR}, s{S_t0} offen offset:{4*k}')
    A('s_waitcnt vmcnt(0)')
    A('s_endpgm')

def gen_calib(A):
    CB = PG2 + 0x1A0000
    A(f's_lshl_b32 s{S_t0}, s{S_W}, 15')
    A(f's_add_u32 s{S_t0}, s{S_t0}, {CB}')
    A(f's_mov_b32 s{S_t1}, -1')
    A(f's_mov_b32 s{S_t2}, -1')
    A('s_mov_b32 s78, 4')
    A('L_cal_round:')
    A('v_and_b32 v1, 3, v0')
    A('v_lshrrev_b32 v2, 1, v1')
    A('v_lshlrev_b32 v2, 14, v2')
    A('v_and_b32 v1, 1, v1')
    A('v_lshl_add_u32 v1, v1, 13, v2')
    A('v_mov_b32 v2, 0')
    A(f'buffer_store_dword v2, v1, {WSR}, s{S_t0} offen sc1')
    A('s_waitcnt vmcnt(0)')
    for rep in range(2):
        for par, acc in ((0, S_t1), (1, S_t2)):
            A(f'v_mov_b32 v1, {rep*16384 + par*8192}')
            A(f's_memtime s[{S_PT}:{S_PT+1}]')
            A('s_waitcnt lgkmcnt(0)')
            A(f'buffer_load_dword v2, v1, {WSR}, s{S_t0} offen sc1')
            A('s_waitcnt vmcnt(0)')
            A(f's_memtime s[{S_PT+2}:{S_PT+3}]')
            A('s_waitcnt lgkmcnt(0)')
            A(f's_sub_u32 s{S_PT}, s{S_PT+2}, s{S_PT}')
            A(f's_min_u32 s{acc}, s{acc}, s{S_PT}')
    A(f's_lshl_b32 s79, s{S_W}, 3')
    A('v_mov_b32 v1, s79')
    A(f'v_mov_b32 v2, s{S_t1}')
    A(f'v_mov_b32 v3, s{S_t2}')
    A('ds_write_b64 v1, v[2:3]')
    A('s_waitcnt lgkmcnt(0)')
    A('s_barrier')
    A('v_mov_b32 v1, 0')
    A('ds_read_b128 v[4:7], v1')
    A('ds_read_b128 v[8:11], v1 offset:16')
    A('s_waitcnt lgkmcnt(0)')
    A('s_barrier')
    A('v_min_u32 v4, v4, v6')
    A('v_min_u32 v8, v8, v10')
    A('v_min_u32 v5, v5, v7')
    A('v_min_u32 v9, v9, v11')
    A('v_min_u32 v4, v4, v8')
    A('v_min_u32 v5, v5, v9')
    A('s_nop 0')
    A(f'v_readfirstlane_b32 s{S_t1}, v4')
    A(f'v_readfirstlane_b32 s{S_t2}, v5')
    A(f's_min_u32 s79, s{S_t1}, s{S_t2}')
    A(f's_max_u32 s80, s{S_t1}, s{S_t2}')
    A('s_sub_u32 s80, s80, s79')
    A('s_cmp_ge_u32 s80, 100')
    A('s_cselect_b32 s80, 1, 0')
    A('s_cmp_lt_u32 s79, 560')
    A('s_cselect_b32 s80, s80, 0')
    A('s_cmp_eq_u32 s80, 1')
    A('s_cbranch_scc1 L_cal_done')
    A('s_sub_u32 s78, s78, 1')
    A('s_cmp_lg_u32 s78, 0')
    A('s_cbranch_scc1 L_cal_round')
    A('L_cal_done:')
    A(f's_cmp_lt_u32 s{S_t1}, s{S_t2}')
    A('s_cselect_b32 s79, 1, 0')
    A('s_or_b32 s79, s79, 0x100')
    A('v_mov_b32 v2, s79')
    A('v_mov_b32 v1, 64')
    A(f'global_store_dword v1, v2, s[{S_DBG}:{S_DBG+1}] sc1')
    A('v_mov_b32 v1, 80')
    A(f'global_store_dwordx2 v1, v[4:5], s[{S_DBG}:{S_DBG+1}] sc1')
    A('s_waitcnt vmcnt(0)')

def gen_common_entry(A, nwg=256):
    A(f's_cmp_ge_u32 s2, {nwg}')
    A('s_cbranch_scc1 L_end')
    A(f's_load_dwordx2 s[{S_DBG}:{S_DBG+1}], s[0:1], 96')
    A(f's_load_dwordx2 s[4:5], s[0:1], 104')
    A(f's_getreg_b32 s{S_X}, hwreg(HW_REG_XCC_ID, 0, 4)')
    A(f'v_lshrrev_b32 v1, 6, v0')
    A('s_nop 0')
    A(f'v_readfirstlane_b32 s{S_W}, v1')
    A('s_waitcnt lgkmcnt(0)')
    A(f's_mov_b32 s{S_WS}, s4')
    A(f's_and_b32 s{S_WS+1}, s5, 0xffff')
    A(f's_mov_b32 s{S_WS+2}, 0x10000000')
    A(f's_mov_b32 s{S_WS+3}, 0x20000')
    A(f's_cmp_lg_u32 s{S_W}, 0')
    A('s_cbranch_scc1 L_noticket')
    A(f's_lshl_b32 s{S_t0}, s{S_X}, 2')
    A(f'v_mov_b32 v1, s{S_t0}')
    A('v_mov_b32 v2, 1')
    A('s_mov_b64 exec, 1')
    A(f'global_atomic_add v3, v1, v2, s[{S_DBG}:{S_DBG+1}] sc0')
    A('s_waitcnt vmcnt(0)')
    A('v_mov_b32 v1, 0')
    A('ds_write_b32 v1, v3')
    A('s_waitcnt lgkmcnt(0)')
    A('s_mov_b64 exec, -1')
    A('L_noticket:')
    A('s_barrier')
    A('v_mov_b32 v1, 0')
    A('ds_read_b32 v2, v1')
    A('s_waitcnt lgkmcnt(0)')
    A(f'v_readfirstlane_b32 s{S_J}, v2')
    A('s_barrier')
    A(f's_mov_b32 s{S_MODE}, 0')
    A(f's_mov_b32 s{S_TO}, 0x100000')

S_MODE = 3
VR = [4, 5, 6, 7, 80, 81, 82, 83]
def counters_load(A):
    A('v_and_b32 v240, 7, v0')
    A('v_lshlrev_b32 v240, 2, v240')
    A(f'global_load_dword v241, v240, s[{S_DBG}:{S_DBG+1}] sc1')
def counters_sum(A):
    for k in range(8): A(f'v_readlane_b32 s{VR[k]}, v241, {k}')
    A(f's_add_u32 s78, s{VR[0]}, s{VR[1]}')
    for k in range(2, 8): A(f's_add_u32 s78, s78, s{VR[k]}')
def verdict_issue(A, tag):
    A(f's_cmp_lg_u32 s{S_W}, 0')
    A(f's_cbranch_scc1 L_vi{tag}')
    counters_load(A)
    A(f'L_vi{tag}:')
def verdict_eval(A, tag):
    A('s_mov_b32 s79, 0')
    A(f's_cmp_eq_u32 s{S_MODE}, 1')
    A(f's_cbranch_scc1 L_vd{tag}_ok')
    A(f'L_vd{tag}:')
    counters_sum(A)
    A('s_cmp_ge_u32 s78, 256')
    A(f's_cbranch_scc1 L_vd{tag}_full')
    A('s_sleep 16')
    counters_load(A)
    A('s_waitcnt vmcnt(0)')
    A(f's_sub_u32 s{S_TO}, s{S_TO}, 1')
    A(f's_cbranch_scc0 L_vd{tag}')
    A('s_branch L_timeout')
    A(f'L_vd{tag}_full:')
    if 'forcefb' in OPT: A('s_mov_b32 s79, 1')
    for k in range(8):
        A(f's_cmp_lg_u32 s{VR[k]}, 32')
        A('s_cselect_b32 s79, 1, s79')
    A(f'L_vd{tag}_ok:')
def verdict_bcast(A, tag, lds=0):
    A(f's_cmp_lg_u32 s{S_W}, 0')
    A(f's_cbranch_scc1 L_vb{tag}')
    A(f'v_mov_b32 v240, {lds}')
    A('v_mov_b32 v241, s79')
    A('ds_write_b32 v240, v241')
    A('s_waitcnt lgkmcnt(0)')
    A(f'L_vb{tag}:')
    A('s_barrier')
    A(f'v_mov_b32 v240, {lds}')
    A('ds_read_b32 v241, v240')
    A('s_waitcnt lgkmcnt(0)')
    A('v_readfirstlane_b32 s79, v241')
    A('s_barrier')
    A('s_cmp_lg_u32 s79, 0')
    A('s_cbranch_scc1 L_fallback')

def gen_fallback(A):
    A('L_fallback:')
    A('s_waitcnt vmcnt(0) lgkmcnt(0)')
    A('L_fb_poll:')
    counters_load(A)
    A('s_waitcnt vmcnt(0)')
    counters_sum(A)
    A('s_cmp_ge_u32 s78, 256')
    A('s_cbranch_scc1 L_fb_full')
    A('s_sleep 4')
    A(f's_sub_u32 s{S_TO}, s{S_TO}, 1')
    A('s_cbranch_scc0 L_fb_poll')
    A('s_branch L_timeout')
    A('L_fb_full:')
    if 'forcefb' in OPT:
        A('s_mov_b32 s78, s2')
    else:
        A(f's_mov_b32 s78, s{S_J}')
        for k in range(7):
            A(f's_cmp_gt_u32 s{S_X}, {k}')
            A(f's_cselect_b32 s79, s{VR[k]}, 0')
            A('s_add_u32 s78, s78, s79')
    A(f's_lshr_b32 s{S_X}, s78, 5')
    A(f's_and_b32 s{S_J}, s78, 31')
    A(f's_mov_b32 s{S_MODE}, 1')
    A('s_barrier')
    A('s_branch L_role')

def gen_timeout(A):
    A('L_timeout:')
    A('v_mov_b32 v1, 60')
    A('v_mov_b32 v2, 0xdead')
    A(f'global_store_dword v1, v2, s[{S_DBG}:{S_DBG+1}]')
    A('s_waitcnt vmcnt(0)')
    A('s_endpgm')

if __name__ == '__main__':
    out = sys.argv[1]
    OPT.update(sys.argv[2:])
    prof = 'prof' in OPT
    A = Asm()
    K = NAME + '_kernel'
    kernel_begin(A, K)
    gen_common_entry(A)
    A(f's_cmp_lt_u32 s{S_X}, 4')
    A('s_cbranch_scc1 L_chain')
    A(f's_cmp_lg_u32 s{S_W}, 0')
    A('s_cbranch_scc1 L_end')
    gen_calib(A)
    A('v_mov_b32 v1, 32')
    A('v_mov_b32 v2, 1')
    A('s_mov_b64 exec, 1')
    A(f'global_atomic_add v1, v2, s[{S_DBG}:{S_DBG+1}]')
    A('s_waitcnt vmcnt(0)')
    A('L_end:')
    A('s_endpgm')
    A('L_chain:')
    gen_chain(A, prof)
    gen_timeout(A)
    open(out, 'w').write(file_text(['; @launch grid=(256,1,1) block=(256,1,1) lds=163840'], A.text(), kernel_desc(K)))
```

```python
import sys
from asmlib import *
from ws_layout import *
import chain9 as ch
import bulk1, bulk2, bulk3
ch.OPT.update(sys.argv[2:])
import asmlib
asmlib.TL_ON[0] = 'tl' in ch.OPT
bulk3.OSHORT[0] = ch.optval('oshort', 3)
bulk3.TAILN[0] = ch.optval('tail0', 64)
bulk3.NRING[0] = ch.optval('nring', 40)
bulk3.NOOUT[0] = 'noout' in ch.OPT
bulk3.SLEEPN[0] = ch.optval('bsleep', 32)
S_X, S_J, S_W, S_TO, S_DBG, S_WS = 16, 17, 20, 22, 28, 8
WSR = f's[{S_WS}:{S_WS+3}]'
A = Asm(); K = NAME + '_kernel'
kernel_begin(A, K)
ch.gen_common_entry(A)
tl(A, 0)
A('L_role:')
A(f's_cmp_ge_u32 s{S_J}, 32')
A('s_cbranch_scc1 L_overfull')
A(f's_cmp_lt_u32 s{S_X}, 4')
A('s_cbranch_scc1 L_chain')
A(f's_sub_u32 s{bulk1.S_BID}, s{S_X}, 4')
A(f's_lshl_b32 s{bulk1.S_BID}, s{bulk1.S_BID}, 5')
A(f's_add_u32 s{bulk1.S_BID}, s{bulk1.S_BID}, s{S_J}')
def bulk_zero(tag):
    A(f's_cmp_lg_u32 s{S_W}, 0')
    A(f's_cbranch_scc1 L_b_zeroed{tag}')
    A('v_mov_b32 v242, 0')
    A('v_mov_b32 v243, 0')
    A(f's_lshl_b32 s30, s{bulk1.S_BID}, 7')
    A(f's_add_u32 s30, s30, {C_PROG1}')
    A(f'buffer_store_dword v243, v242, {WSR}, s30 offen sc1')
    if tag == 'q':
        A(f's_cmp_lg_u32 s{bulk1.S_BID}, 127')
        A('s_cbranch_scc1 L_b_zeroedq')
        A('v_lshlrev_b32 v242, 7, v0')
        A(f's_mov_b32 s30, {C_XCNT}')
        A(f'buffer_store_dword v243, v242, {WSR}, s30 offen sc1')
        A('v_mov_b32 v242, 0')
        A(f's_mov_b32 s30, {C_BCNT}')
        A(f'buffer_store_dword v243, v242, {WSR}, s30 offen sc1')
    A(f'L_b_zeroed{tag}:')
def bulk_init(tag):
    A(f's_cmp_lg_u32 s{S_W}, 0')
    A(f's_cbranch_scc1 L_b_arrived{tag}')
    ch.verdict_eval(A, tag)
    A('s_cmp_lg_u32 s79, 0')
    A(f's_cbranch_scc1 L_b_arrived{tag}')
    A(f'v_mov_b32 v240, {ch.CENSUS}')
    A('v_mov_b32 v241, 1')
    A('s_mov_b64 exec, 1')
    A(f'global_atomic_add v240, v241, s[{S_DBG}:{S_DBG+1}]')
    A('s_mov_b64 exec, -1')
    A(f'L_b_arrived{tag}:')
A(f's_cmp_lg_u32 s{S_W}, 1')
A('s_cbranch_scc1 L_b_nowarm')
A('s_load_dwordx2 s[4:5], s[0:1], 0')
A('s_waitcnt lgkmcnt(0)')
bulk1.setsrd(A, 12, 4, 2048*1280)
A(f's_mul_i32 s30, s{S_J}, 2560')
A('v_and_b32 v1, 63, v0')
A('v_lshlrev_b32 v1, 4, v1')
for k in range(3):
    A(f'buffer_load_dwordx4 v[244:247], v1, s[12:15], s30 offen offset:{min(k*1024, 1536)}')
A('L_b_nowarm:')
def census_wait(tag):
    A(f's_cmp_lg_u32 s{S_W}, 0')
    A(f's_cbranch_scc1 L_b_census{tag}_ok')
    A(f'L_b_census{tag}:')
    A(f'v_mov_b32 v240, {ch.CENSUS}')
    A(f'global_load_dword v241, v240, s[{S_DBG}:{S_DBG+1}] sc1')
    A('s_waitcnt vmcnt(0)')
    A('v_readfirstlane_b32 s30, v241')
    A('s_cmp_ge_u32 s30, 256')
    A(f's_cbranch_scc1 L_b_census{tag}_ok')
    A('s_sleep 32')
    A(f's_sub_u32 s{S_TO}, s{S_TO}, 1')
    A(f's_cbranch_scc0 L_b_census{tag}')
    A('s_branch L_timeout')
    A(f'L_b_census{tag}_ok:')
    A('s_barrier')
A(f's_cmp_lt_u32 s{bulk1.S_BID}, 64')
A('s_cbranch_scc1 L_b_go')
A(f's_cmp_lg_u32 s{bulk1.S_BID}, 127')
A('s_cbranch_scc1 L_b_nocal')
ch.gen_calib(A)
A('L_b_nocal:')
bulk_zero('q')
A('s_sleep 64')
ch.verdict_issue(A, 'q')
A('s_waitcnt vmcnt(0)')
bulk_init('q')
ch.verdict_bcast(A, 'q')
if 'nobulk' not in ch.OPT: census_wait('a')
A('L_b_go:')
def kv_hook1():
    A(f's_cmp_ge_u32 s{bulk1.S_BID}, 64')
    A('s_cbranch_scc1 L_b_hook1')
    bulk_zero('k')
    A('s_waitcnt vmcnt(8)')
    ch.verdict_issue(A, 'k')
    A('L_b_hook1:')
def kv_hook2():
    A(f's_cmp_ge_u32 s{bulk1.S_BID}, 64')
    A('s_cbranch_scc1 L_b_hook2')
    bulk_init('k')
    A('L_b_hook2:')
def kv_hook3():
    A(f's_cmp_ge_u32 s{bulk1.S_BID}, 64')
    A('s_cbranch_scc1 L_b_hook3')
    ch.verdict_bcast(A, 'k')
    A(f's_cmp_eq_u32 s{ch.S_MODE}, 0')
    A('s_cbranch_scc1 L_b_hook3')
    census_wait('k')
    A('L_b_hook3:')
if 'nobulk' in ch.OPT:
    kv_hook1(); A('s_waitcnt vmcnt(0)'); kv_hook2(); kv_hook3()
if 'nobulk' not in ch.OPT:
    bulk1.HOOKS[:] = [kv_hook1, kv_hook2, kv_hook3]
    bulk1.gen_phase1_loop(A)
    tl(A, 2)
    census_wait('b')
    if 'nop2' not in ch.OPT: bulk2.gen_phase2(A)
    tl(A, 3)
    if 'nop3' not in ch.OPT: bulk3.gen_phase3(A)
    tl(A, 5)
A('s_waitcnt vmcnt(0)')
A('L_end:')
A('s_endpgm')
A('L_overfull:')
ch.gen_fallback(A)
A('L_chain:')
ch.gen_chain(A, 'prof' in ch.OPT)
ch.gen_timeout(A)
open(sys.argv[1], 'w').write(file_text(['; @launch grid=(256,1,1) block=(256,1,1) lds=163840'], A.text(), kernel_desc(K)))
```

```python
from asmlib import *
from ws_layout import *
import struct, sys

NSEG = 64
S_WS   = 8
S_T    = 12
S_X, S_J, S_H, S_C, S_W, S_STEP = 16, 17, 18, 19, 20, 21
S_TO   = 22
S_HASITEM = 23
S_DUM  = 24
S_DBG  = 28
S_t0, S_t1, S_t2, S_t3 = 30, 31, 32, 33
S_PAR  = 34
S_SCL = 38
S_KM, S_VM = 40, 41
S_SEG2 = 42
S_CPO = 44
S_PROF = 48
S_PT   = 64
S_D0   = 68
S_M0   = 72
S_VALID = 76
S_QV, S_PR, S_MR, S_XR = 84, 88, 92, 96
V_QKST, V_VST, V_RLD, V_VLD, V_P4, V_P2, V_RS0, V_RS1 = 1, 2, 3, 4, 5, 6, 7, 8
V_MS   = 9
V_M0   = 10
V_LM0  = 100
V_LB   = 16
V_LRW, V_LRR = 17, 18
V_T    = 20
V_NEG  = 28
V_SEL  = 32
V_LKV  = 36
V_PRG  = 37
V_CPF  = 38
V_CPV  = 39
V_PH   = 99
V_LRK  = 19
V_XP3  = 107
V_B    = 40
V_KPUB, V_VPUB = 80, 81
V_XS   = 82
V_KPL  = 83
V_ACV  = 84
V_RSD  = 88
V_DM3A, V_DM3B = 96, 97
V_VPL  = 98
V_XL   = 104
V_XD   = 108
V_ACC  = 120
V_R    = 128
V_VV   = 144
V_KX   = 160
V_S    = 192
V_VOX  = 204
V_VOM  = 216
V_PX   = 228
V_PM   = 232
V_F    = 236
V_O    = 248
V_PO   = 56
V_PO2  = 254
A_QK, A_V, A_O = 0, 80, 120
A_ONE, A_HALF = 168, 172
HOFF = 768
MEMSTRIDE = 2*HOFF + 32
L_KV  = 0
L_MEM = 65536
L_RAREA = 81920
BIG = 0x40000000
CENSUS = 192
SCALE_LOG2E = (128 ** -0.5) * 1.4426950408889634
def f2u(x): return struct.unpack('<I', struct.pack('<f', x))[0]
OPT = set()
DEFAULTS = {'xp3on': 0, 'nS': 3, 'gapS': 15, 'rsdelay': 30, 'nX': 2, 'nR': 2, 'nA': 2, 'bsleep': 100, 'vdelay': 12}
WSR = f's[{S_WS}:{S_WS+3}]'
def optval(k, d):
    for o in OPT:
        if o.startswith(k+'='): return o.split('=')[1] if isinstance(d, str) else int(o.split('=')[1])
    return DEFAULTS.get(k, d)
def mfma(A, d, a, b, c):
    A(f'v_mfma_f32_16x16x32_bf16 {d}, {a}, {b}, {c}')
def nops(A, n):
    while n > 0:
        k = min(n, 16); A(f's_nop {k-1}'); n -= k

class Prof:
    def __init__(self, on): self.on = on
    def stamp(self, A, idx, trace_only=False):
        if 'trace' in OPT:
            lab = A.label('L_tr')
            A(f's_cmp_lg_u32 s{S_STEP}, {optval("ts", 30)}')
            A(f's_cbranch_scc1 {lab}')
            A(f's_memrealtime s[{S_PT}:{S_PT+1}]')
            A('s_waitcnt lgkmcnt(0)')
            A(f's_mov_b32 s{S_PROF+idx}, s{S_PT}')
            A(f'{lab}:')
            return
        if not self.on or trace_only: return
        A(f's_memtime s[{S_PT}:{S_PT+1}]')
        A('s_waitcnt lgkmcnt(0)')
        A(f's_sub_u32 s{S_PT+3}, s{S_PT}, s{S_PT+2}')
        A(f's_mov_b32 s{S_PT+2}, s{S_PT}')
        A(f's_add_u32 s{S_PROF+idx}, s{S_PROF+idx}, s{S_PT+3}')

PROFCNT = {}
def check(A, regs, tmp=V_T):
    r = list(regs)
    if len(r) <= 5:
        A(f'v_max3_u32 v{tmp}, v{r[0]}, v{r[1]}, v{r[2]}'); r = r[3:]
        if len(r) == 2: A(f'v_max3_u32 v{tmp}, v{tmp}, v{r[0]}, v{r[1]}')
        elif len(r) == 1: A(f'v_max_u32 v{tmp}, v{tmp}, v{r[0]}')
    else:
        A(f'v_max3_u32 v{tmp}, v{r[0]}, v{r[1]}, v{r[2]}')
        A(f'v_max3_u32 v{tmp+1}, v{r[3]}, v{r[4]}, v{r[5]}'); r = r[6:]; cur = 0
        while len(r) >= 2:
            A(f'v_max3_u32 v{tmp+cur}, v{tmp+cur}, v{r[0]}, v{r[1]}'); r = r[2:]; cur ^= 1
        if r: A(f'v_max3_u32 v{tmp}, v{tmp}, v{tmp+1}, v{r[0]}')
        else: A(f'v_max_u32 v{tmp}, v{tmp}, v{tmp+1}')
    A(f'v_cmp_eq_u32 vcc, -1, v{tmp}')

def retry(A, label, key=None):
    if key in PROFCNT:
        k = PROFCNT[key]; A(f's_add_u32 s{S_PROF+k}, s{S_PROF+k}, 1')
    A(f's_sub_u32 s{S_TO}, s{S_TO}, 1')
    A(f's_cbranch_scc0 {label}')
    A('s_branch L_timeout')

def setsrd(A, lo, size):
    A(f's_mov_b32 s{S_T}, s{lo}')
    A(f's_and_b32 s{S_T+1}, s{lo+1}, 0xffff')
    A(f's_mov_b32 s{S_T+2}, {size}')
    A(f's_mov_b32 s{S_T+3}, 0x20000')

def dbl(A, v, tmp, add=0):
    A(f'v_lshrrev_b32 v{tmp}, 13, v{v}')
    A(f'v_lshlrev_b32 v{tmp}, 14, v{tmp}')
    A(f'v_and_b32 v{v}, 8191, v{v}')
    A(f'v_add_u32 v{v}, v{v}, v{tmp}')
    if add: A(f'v_add_u32 v{v}, {add}, v{v}')

def vox_reads(A, slot):
    for kt in range(2):
        for s4 in range(4):
            A(f'ds_read_b128 {vr(V_KX+16*kt+4*s4,4)}, v{V_LKV} offset:{L_KV + slot*16384 + 8192 + 2048*s4 + 256*kt}')
def vox_compute(A, hook=None):
    A('s_waitcnt lgkmcnt(0)')
    if hook: hook()
    if 'skipvox' in OPT: return
    for tt in range(3):
        acc = V_F if tt % 2 == 0 else V_ACC
        for s4 in range(4):
            for kt in range(2):
                c = '0' if s4 == 0 else vr(acc+4*kt,4)
                mfma(A, vr(acc+4*kt,4), vr(V_KX+16*kt+4*s4,4), ar(A_O+16*tt+4*s4,4), c)
            if tt >= 1 and s4 == 3:
                pacc = V_F if (tt-1) % 2 == 0 else V_ACC
                for kt in range(2):
                    A(f'v_cvt_pk_bf16_f32 v{V_VOX+4*(tt-1)+2*kt}, v{pacc+4*kt}, v{pacc+4*kt+1}')
                    A(f'v_cvt_pk_bf16_f32 v{V_VOX+4*(tt-1)+2*kt+1}, v{pacc+4*kt+2}, v{pacc+4*kt+3}')
    A('s_nop 7')
    for kt in range(2):
        A(f'v_cvt_pk_bf16_f32 v{V_VOX+8+2*kt}, v{V_F+4*kt}, v{V_F+4*kt+1}')
        A(f'v_cvt_pk_bf16_f32 v{V_VOX+8+2*kt+1}, v{V_F+4*kt+2}, v{V_F+4*kt+3}')

def vox_tiles(A, tiles, wait=True):
    if wait: A('s_waitcnt lgkmcnt(0)')
    if 'skipvox' in OPT or not tiles: return
    accs = [V_F, V_ACC]
    for n, tt in enumerate(tiles):
        acc = accs[n % 2]
        for s4 in range(4):
            for kt in range(2):
                c = '0' if s4 == 0 else vr(acc+4*kt,4)
                mfma(A, vr(acc+4*kt,4), vr(V_KX+16*kt+4*s4,4), ar(A_O+16*tt+4*s4,4), c)
            if n >= 1 and s4 == 3:
                pt = tiles[n-1]; pacc = accs[(n-1) % 2]
                for kt in range(2):
                    A(f'v_cvt_pk_bf16_f32 v{V_VOX+4*pt+2*kt}, v{pacc+4*kt}, v{pacc+4*kt+1}')
                    A(f'v_cvt_pk_bf16_f32 v{V_VOX+4*pt+2*kt+1}, v{pacc+4*kt+2}, v{pacc+4*kt+3}')
    A('s_nop 6')
    pt = tiles[-1]; pacc = accs[(len(tiles)-1) % 2]
    for kt in range(2):
        A(f'v_cvt_pk_bf16_f32 v{V_VOX+4*pt+2*kt}, v{pacc+4*kt}, v{pacc+4*kt+1}')
        A(f'v_cvt_pk_bf16_f32 v{V_VOX+4*pt+2*kt+1}, v{pacc+4*kt+2}, v{pacc+4*kt+3}')

def gen_prologue(A, P):
    A(f's_lshr_b32 s{S_t0}, s{S_J}, 2')
    A(f's_lshl_b32 s{S_H}, s{S_X}, 3')
    A(f's_add_u32 s{S_H}, s{S_H}, s{S_t0}')
    A(f's_and_b32 s{S_C}, s{S_J}, 3')
    A(f's_mov_b32 s{S_SCL}, {hex(f2u(SCALE_LOG2E))}')
    A(f's_mov_b32 s{S_SCL+1}, {hex(f2u(SCALE_LOG2E))}')
    L, I, G = V_T, V_T+1, V_T+2
    T0, T1, T2 = V_T+3, V_T+4, V_T+5
    I7 = V_T+6; T3 = V_T+7
    A(f'v_and_b32 v{L}, 63, v0')
    A(f'v_and_b32 v{I}, 15, v0')
    A(f'v_bfe_u32 v{G}, v0, 4, 2')
    A(f'v_and_b32 v{I7}, 7, v{I}')
    A.c('weights DMA')
    A(f's_load_dwordx4 s[4:7], s[0:1], 16')
    A(f's_waitcnt lgkmcnt(0)')
    A(f'v_lshrrev_b32 v{T0}, 2, v{L}')
    A(f'v_lshlrev_b32 v{T0}, 13, v{T0}')
    A(f'v_and_b32 v{T1}, 3, v{L}')
    A(f'v_lshlrev_b32 v{T1}, 4, v{T1}')
    A(f'v_add_u32 v{T0}, v{T0}, v{T1}')
    A(f's_lshl_b32 s{S_t0}, s{S_H}, 8')
    A(f's_lshl_b32 s{S_t1}, s{S_C}, 6')
    A(f's_add_u32 s{S_t0}, s{S_t0}, s{S_t1}')
    A(f'v_add_u32 v{T0}, s{S_t0}, v{T0}')
    def dma_w(area):
        A(f's_lshl_b32 s{S_t0}, s{S_W}, 17')
        A(f's_lshl_b32 s{S_t1}, s{S_W}, 10')
        A(f's_add_u32 s{S_t1}, s{S_t1}, {area}')
        for i in range(10):
            A(f's_mov_b32 m0, s{S_t1}')
            A(f's_add_u32 s{S_t1}, s{S_t1}, 4096')
            A(f'buffer_load_dwordx4 v{T0}, s[{S_T}:{S_T+3}], s{S_t0} offen lds')
            A(f's_add_u32 s{S_t0}, s{S_t0}, {4*131072}')
    setsrd(A, 4, 5242880); dma_w(0)
    setsrd(A, 6, 5242880); dma_w(40960)
    A(f's_load_dwordx4 s[4:7], s[0:1], 32')
    A(f's_waitcnt lgkmcnt(0)')
    setsrd(A, 4, 5242880); dma_w(81920)
    setsrd(A, 6, 5242880)
    WO = V_B
    for b in range(5):
        A(f'v_add_u32 v{T1}, {64*b}, v{L}')
        A(f'v_mul_u32_u24 v{T2}, 3277, v{T1}')
        A(f'v_lshrrev_b32 v{T2}, 16, v{T2}')
        A(f'v_mul_u32_u24 v{WO+b}, 20, v{T2}')
        A(f'v_sub_u32 v{WO+b}, v{T1}, v{WO+b}')
        A(f'v_lshlrev_b32 v{WO+b}, 4, v{WO+b}')
        A(f'v_mul_u32_u24 v{T2}, 1280, v{T2}')
        A(f'v_add_u32 v{WO+b}, v{WO+b}, v{T2}')
    A(f's_mul_i32 s{S_t0}, s{S_H}, {128*1280}')
    A(f's_mul_i32 s{S_t1}, s{S_C}, 320')
    A(f's_add_u32 s{S_t0}, s{S_t0}, s{S_t1}')
    A(f's_mul_i32 s{S_t1}, s{S_W}, {16*1280}')
    A(f's_add_u32 s{S_t0}, s{S_t0}, s{S_t1}')
    A(f's_mul_i32 s{S_t1}, s{S_W}, 5120')
    A(f's_add_u32 s{S_t1}, s{S_t1}, 122880')
    for hi in range(2):
        for b in range(5):
            A(f's_add_u32 m0, s{S_t1}, {hi*4*5120 + b*1024}')
            A(f's_add_u32 s{S_t2}, s{S_t0}, {hi*4*16*1280}')
            A(f'buffer_load_dwordx4 v{WO+b}, s[{S_T}:{S_T+3}], s{S_t2} offen lds')
    A.c('address regs')
    VALID = f's[{S_VALID}:{S_VALID+1}]'
    VV_ = f's[{S_M0}:{S_M0+1}]'
    A(f'v_cmp_gt_u32 {VALID}, 8, v{I}')
    A(f'v_mov_b32 v{T2}, {BIG}')
    TO = V_B+8
    A(f's_lshr_b32 s{S_t1}, s{S_W}, 1')
    A(f's_lshl_b32 s{S_t0}, s{S_t1}, 11')
    A(f's_lshl_b32 s{S_t1}, s{S_C}, 9')
    A(f's_add_u32 s{S_t0}, s{S_t0}, s{S_t1}')
    A(f's_and_b32 s{S_t1}, s{S_W}, 1')
    A(f's_lshl_b32 s{S_t1}, s{S_t1}, 8')
    A(f's_add_u32 s{S_t0}, s{S_t0}, s{S_t1}')
    A(f'v_lshlrev_b32 v{TO}, 5, v{I7}')
    A(f'v_lshl_add_u32 v{TO}, v{G}, 3, v{TO}')
    A(f'v_add_u32 v{TO}, s{S_t0}, v{TO}')
    S_HB = S_D0
    A(f's_lshr_b32 s{S_t0}, s{S_H}, 1')
    A(f's_lshl_b32 s{S_t0}, s{S_t0}, 14')
    A(f's_and_b32 s{S_t1}, s{S_H}, 1')
    A(f's_lshl_b32 s{S_t1}, s{S_t1}, 12')
    A(f's_add_u32 s{S_HB}, s{S_t0}, s{S_t1}')
    A(f'v_add_u32 v{T0}, s{S_HB}, v{TO}')
    A(f'v_cndmask_b32 v{V_QKST}, v{T2}, v{T0}, {VALID}')
    A(f's_cmp_ge_u32 s{S_W}, 2')
    A(f's_cselect_b64 {VV_}, -1, 0')
    A(f's_xor_b64 {VV_}, {VV_}, {VALID}')
    A(f'v_add_u32 v{T0}, {V_RING_OFF}, v{T0}')
    A(f'v_cndmask_b32 v{V_VST}, v{T2}, v{T0}, {VV_}')
    A(f'v_lshlrev_b32 v{T0}, 4, v{L}')
    A(f'v_cmp_gt_u32 vcc, 32, v{L}')
    A(f's_lshl_b32 s{S_t0}, s{S_C}, 9')
    A(f's_lshl_b32 s{S_t1}, s{S_H}, 11')
    A(f's_add_u32 s{S_t1}, s{S_t1}, s{S_t0}')
    A(f'v_add_u32 v{T1}, s{S_t1}, v{T0}')
    A(f'v_cndmask_b32 v{V_KPUB}, v{T2}, v{T1}, vcc')
    A(f's_add_u32 s{S_t1}, s{S_HB}, s{S_t0}')
    A(f's_add_u32 s{S_t1}, s{S_t1}, 2048')
    A(f'v_add_u32 v{T1}, s{S_t1}, v{T0}')
    A(f'v_cndmask_b32 v{V_KPL}, v{T2}, v{T1}, vcc')
    A(f's_lshl_b32 s{S_t0}, s{S_C}, 10')
    A(f's_lshl_b32 s{S_t1}, s{S_H}, 12')
    A(f's_add_u32 s{S_t1}, s{S_t1}, s{S_t0}')
    A(f'v_add_u32 v{V_VPUB}, s{S_t1}, v{T0}')
    A(f's_add_u32 s{S_t1}, s{S_HB}, s{S_t0}')
    A(f's_add_u32 s{S_t1}, s{S_t1}, {V_RING_OFF}')
    A(f'v_add_u32 v{V_VPL}, s{S_t1}, v{T0}')
    A(f's_lshl_b32 s{S_t1}, s{S_W}, 10')
    A(f's_add_u32 s{S_t0}, s{S_HB}, s{S_t1}')
    A(f'v_add_u32 v{V_RLD}, s{S_t0}, v{T0}')
    A(f's_add_u32 s{S_t1}, s{S_t1}, {L_RAREA}')
    A(f'v_add_u32 v{V_LRW}, s{S_t1}, v{T0}')
    A(f'v_lshrrev_b32 v{T0}, 3, v{I}')
    A(f'v_lshlrev_b32 v{T0}, 11, v{T0}')
    A(f'v_lshrrev_b32 v{T1}, 1, v{G}')
    A(f'v_lshl_add_u32 v{T0}, v{T1}, 8, v{T0}')
    A(f'v_lshl_add_u32 v{T0}, v{I7}, 5, v{T0}')
    A(f'v_and_b32 v{T1}, 1, v{G}')
    A(f'v_lshl_add_u32 v{T0}, v{T1}, 4, v{T0}')
    A(f'v_add_u32 v{V_LRR}, {L_RAREA}, v{T0}')
    A(f'v_and_b32 v{V_LRK}, 2047, v{T0}')
    A(f'v_add_u32 v{V_LRK}, {L_RAREA + 2048}, v{V_LRK}')
    A(f's_add_u32 s{S_t0}, s{S_HB}, {V_RING_OFF}')
    A(f'v_add_u32 v{V_VLD}, s{S_t0}, v{T0}')
    A(f's_mul_i32 s{S_t0}, s{S_H}, 10240')
    A(f's_mul_i32 s{S_t1}, s{S_C}, 2560')
    A(f's_add_u32 s{S_t0}, s{S_t0}, s{S_t1}')
    A(f's_lshl_b32 s{S_t1}, s{S_W}, 9')
    A(f's_add_u32 s{S_t1}, s{S_t1}, s{S_t0}')
    A(f'v_lshlrev_b32 v{T0}, 6, v{I}')
    A(f'v_lshl_add_u32 v{T0}, v{G}, 4, v{T0}')
    A(f'v_add_u32 v{T0}, s{S_t1}, v{T0}')
    dbl(A, T0, T1)
    A(f'v_cndmask_b32 v{V_P4}, v{T2}, v{T0}, {VALID}')
    A(f's_lshl_b32 s{S_t1}, s{S_W}, 8')
    A(f's_add_u32 s{S_t1}, s{S_t1}, 2048')
    A(f's_add_u32 s{S_t1}, s{S_t1}, s{S_t0}')
    A(f'v_lshlrev_b32 v{T0}, 5, v{I}')
    A(f'v_lshl_add_u32 v{T0}, v{G}, 3, v{T0}')
    A(f'v_add_u32 v{T0}, s{S_t1}, v{T0}')
    dbl(A, T0, T1)
    A(f's_cmp_lt_u32 s{S_W}, 2')
    A(f's_cselect_b64 s[{S_t2}:{S_t3}], {VALID}, 0')
    A(f'v_cndmask_b32 v{V_P2}, v{T2}, v{T0}, s[{S_t2}:{S_t3}]')
    A(f's_lshl_b32 s{S_t0}, s{S_W}, 5')
    A(f's_add_u32 s{S_t0}, s{S_t0}, s{S_J}')
    A(f's_cmp_lt_u32 s{S_t0}, 80')
    A(f's_cselect_b32 s{S_HASITEM}, 1, 0')
    A(f's_cselect_b32 s{S_t0}, s{S_t0}, 0')
    A(f's_lshl_b32 s{S_t1}, s{S_t0}, 7')
    A(f's_cmp_eq_u32 s{S_HASITEM}, 1')
    A(f's_cselect_b64 {VV_}, -1, 0')
    for u, dst in enumerate((V_RS0, V_RS1)):
        A(f'v_add_u32 v{T0}, {4*u}, v{G}')
        A(f's_lshl_b32 s{S_t2}, s{S_X}, 3')
        A(f'v_add_u32 v{T0}, s{S_t2}, v{T0}')
        A(f'v_mul_u32_u24 v{T0}, 10240, v{T0}')
        A(f'v_lshl_add_u32 v{T0}, v{I}, 3, v{T0}')
        A(f'v_add_u32 v{T0}, s{S_t1}, v{T0}')
        dbl(A, T0, T1)
        A(f'v_cndmask_b32 v{dst}, v{T2}, v{T0}, {VV_}')
    A(f'v_cmp_eq_u32 vcc, 0, v{G}')
    A('s_nop 3')
    A(f's_and_b64 {VV_}, {VV_}, vcc')
    A(f's_mul_i32 s{S_t2}, s{S_X}, 10240')
    A(f's_add_u32 s{S_t2}, s{S_t2}, s{S_t1}')
    A(f'v_lshlrev_b32 v{T0}, 3, v{I}')
    A(f'v_add_u32 v{T0}, s{S_t2}, v{T0}')
    dbl(A, T0, T1)
    A(f'v_cndmask_b32 v{V_MS}, v{T2}, v{T0}, {VV_}')
    for k, dst in enumerate((V_XS, V_XL, V_XL+1, V_XL+2)):
        A(f's_add_u32 s{S_t2}, s{S_X}, {k}')
        A(f's_and_b32 s{S_t2}, s{S_t2}, 3')
        A(f's_mul_i32 s{S_t2}, s{S_t2}, 20480')
        A(f's_lshl_b32 s{S_t3}, s{S_t1}, 1')
        A(f's_add_u32 s{S_t2}, s{S_t2}, s{S_t3}')
        A(f'v_lshlrev_b32 v{T0}, 4, v{I}')
        A(f'v_add_u32 v{T0}, s{S_t2}, v{T0}')
        dbl(A, T0, T1)
        if 'xtag' in OPT and k > 0: A(f'v_mov_b32 v{dst}, v{T0}')
        else: A(f'v_cndmask_b32 v{dst}, v{T2}, v{T0}, {VV_}')
    A(f'v_mov_b32 v{V_PH}, 0')
    A(f'v_lshlrev_b32 v{T0}, 5, v{G}')
    A(f'v_add_u32 v{T0}, s{S_J}, v{T0}')
    A(f'v_cmp_gt_u32 vcc, 80, v{T0}')
    A(f'v_lshlrev_b32 v{T0}, 8, v{T0}')
    A(f'v_lshl_add_u32 v{T0}, v{I}, 4, v{T0}')
    A(f's_mul_i32 s{S_t2}, s{S_X}, 20480')
    A(f'v_add_u32 v{T0}, s{S_t2}, v{T0}')
    dbl(A, T0, T1)
    A(f's_cmp_eq_u32 s{S_W}, 3')
    A(f's_cselect_b64 s[{S_t2}:{S_t3}], vcc, 0')
    A(f'v_cndmask_b32 v{V_XP3}, v{T2}, v{T0}, s[{S_t2}:{S_t3}]')
    Q, LN, PT, ROW, COL = V_B+8, V_B+9, V_B+10, V_B+11, V_B+12
    M_, R2, C2 = V_B+13, V_B+14, V_B+15
    NAG = 4 if 'ag3' in OPT else 3
    for k in range(NAG):
        if 'ag3' in OPT:
            A(f's_mul_i32 s{S_t0}, s{S_W}, 214')
            A(f's_add_u32 s{S_t1}, s{S_t0}, 213')
            A(f's_min_u32 s{S_t1}, s{S_t1}, 639')
            A(f's_add_u32 s{S_t0}, s{S_t0}, {64*k}')
            A(f'v_add_u32 v{Q}, s{S_t0}, v{L}')
            A(f'v_min_u32 v{Q}, s{S_t1}, v{Q}')
        else:
            A(f's_mul_i32 s{S_t0}, s{S_W}, 160')
            A(f's_add_u32 s{S_t0}, s{S_t0}, {64*k}')
            A(f'v_add_u32 v{Q}, s{S_t0}, v{L}')
            if k == 2:
                A(f'v_cmp_le_u32 vcc, 32, v{L}')
                A(f'v_subrev_u32 v{T1}, 32, v{Q}')
                A('s_nop 0')
                A(f'v_cndmask_b32 v{Q}, v{Q}, v{T1}, vcc')
        A(f's_mul_i32 s{S_t0}, s{S_X}, 10240')
        A(f'v_lshlrev_b32 v{V_M0+k}, 4, v{Q}')
        A(f'v_add_u32 v{V_M0+k}, s{S_t0}, v{V_M0+k}')
        dbl(A, V_M0+k, T1)
        A(f'v_lshrrev_b32 v{LN}, 3, v{Q}')
        A(f'v_and_b32 v{PT}, 7, v{Q}')
        A(f'v_mul_u32_u24 v{T0}, 3277, v{LN}')
        A(f'v_lshrrev_b32 v{T0}, 16, v{T0}')
        A(f'v_mul_u32_u24 v{T1}, 20, v{T0}')
        A(f'v_sub_u32 v{LN}, v{LN}, v{T1}')
        A(f'v_mul_u32_u24 v{COL}, 160, v{T0}')
        A(f'v_and_b32 v{T0}, 3, v{LN}')
        A(f'v_lshlrev_b32 v{T0}, 1, v{T0}')
        A(f'v_lshrrev_b32 v{T1}, 2, v{PT}')
        A(f'v_add_u32 v{ROW}, v{T0}, v{T1}')
        A(f'v_lshrrev_b32 v{T0}, 2, v{LN}')
        A(f'v_lshlrev_b32 v{T0}, 5, v{T0}')
        A(f'v_and_b32 v{T1}, 3, v{PT}')
        A(f'v_lshl_add_u32 v{T0}, v{T1}, 3, v{T0}')
        A(f'v_subrev_u32 v{M_}, 16, v{LN}')
        A(f'v_and_b32 v{R2}, 1, v{M_}')
        A(f'v_lshlrev_b32 v{R2}, 2, v{R2}')
        A(f'v_lshrrev_b32 v{T1}, 1, v{PT}')
        A(f'v_add_u32 v{R2}, v{R2}, v{T1}')
        A(f'v_lshrrev_b32 v{C2}, 1, v{M_}')
        A(f'v_lshlrev_b32 v{C2}, 4, v{C2}')
        A(f'v_and_b32 v{T1}, 1, v{PT}')
        A(f'v_lshl_add_u32 v{C2}, v{T1}, 3, v{C2}')
        A(f'v_add_u32 v{C2}, 128, v{C2}')
        A(f'v_cmp_le_u32 vcc, 16, v{LN}')
        A('s_nop 1')
        A(f'v_cndmask_b32 v{ROW}, v{ROW}, v{R2}, vcc')
        A(f'v_cndmask_b32 v{T0}, v{T0}, v{C2}, vcc')
        A(f'v_add_u32 v{COL}, v{COL}, v{T0}')
        A(f'v_lshlrev_b32 v{T0}, 1, v{COL}')
        A(f'v_add_u32 v{T1}, {HOFF-640}, v{T0}')
        A(f'v_cmp_le_u32 vcc, 320, v{COL}')
        A(f'v_mul_u32_u24 v{ROW}, {MEMSTRIDE}, v{ROW}')
        A('s_nop 0')
        A(f'v_cndmask_b32 v{T0}, v{T0}, v{T1}, vcc')
        A(f'v_add_u32 v{V_LM0+k}, v{ROW}, v{T0}')
        A(f'v_add_u32 v{V_LM0+k}, {L_MEM}, v{V_LM0+k}')
    A(f'v_mul_u32_u24 v{T0}, {MEMSTRIDE}, v{I7}')
    A(f'v_lshrrev_b32 v{T1}, 3, v{I}')
    A(f'v_mul_u32_u24 v{T1}, {HOFF}, v{T1}')
    A(f'v_add_u32 v{T0}, v{T0}, v{T1}')
    A(f'v_lshl_add_u32 v{V_LB}, v{G}, 4, v{T0}')
    A(f'v_add_u32 v{V_LB}, {L_MEM}, v{V_LB}')
    A(f'v_lshrrev_b32 v{T0}, 1, v{G}')
    A(f'v_lshlrev_b32 v{T0}, 10, v{T0}')
    A(f'v_and_b32 v{T1}, 1, v{G}')
    A(f'v_lshl_add_u32 v{T0}, v{T1}, 9, v{T0}')
    A(f'v_lshl_add_u32 v{V_LKV}, v{I}, 4, v{T0}')
    A(f'v_lshlrev_b32 v{V_DM3A}, 4, v{L}')
    A(f'v_lshlrev_b32 v{T0}, 12, v{L}')
    A(f's_lshl_b32 s{S_t0}, s{S_H}, 7')
    A(f'v_add_u32 v{T0}, s{S_t0}, v{T0}')
    A(f'v_cmp_gt_u32 vcc, 2, v{L}')
    A(f'v_mov_b32 v{T1}, {BIG}')
    A('s_nop 0')
    A(f'v_cndmask_b32 v{V_PRG}, v{T1}, v{T0}, vcc')
    A(f's_lshl_b32 s{S_t0}, s{S_H}, 2')
    A(f's_add_u32 s{S_t0}, s{S_t0}, s{S_C}')
    A(f's_lshl_b32 s{S_t0}, s{S_t0}, 7')
    A(f'v_mov_b32 v{T0}, s{S_t0}')
    A(f'v_cmp_eq_u32 vcc, 192, v0')
    A('s_nop 1')
    A(f'v_cndmask_b32 v{V_CPF}, v{T1}, v{T0}, vcc')
    for k in range(4): A(f'v_mov_b32 v{V_NEG+k}, -1')
    A(f'v_mov_b32 v{V_SEL}, 0')
    A(f'v_mov_b32 v{V_SEL+1}, 0')
    for m, (reg, val) in enumerate(((0, 0x3F80), (0, 0x3F800000), (1, 0x3F80), (1, 0x3F800000))):
        A(f'v_cmp_eq_u32 vcc, {m}, v{I}')
        A(f'v_mov_b32 v{T0}, {hex(val)}')
        A('s_nop 0')
        A(f'v_cndmask_b32 v{V_SEL+reg}, v{V_SEL+reg}, v{T0}, vcc')
    A(f'v_mov_b32 v{V_SEL+2}, v{V_SEL}')
    A(f'v_mov_b32 v{V_SEL+3}, v{V_SEL+1}')
    for tt in range(3):
        A(f'v_mov_b32 v{V_VOM+4*tt+2}, 0')
        A(f'v_mov_b32 v{V_VOM+4*tt+3}, 0')
    A(f'v_mov_b32 v{V_PM+2}, 0')
    A(f'v_mov_b32 v{V_PM+3}, 0')
    A(f'v_mov_b32 v{T0}, 0x3f803f80')
    A(f'v_mov_b32 v{T1}, 0x3f003f00')
    for r in range(4):
        A(f'v_accvgpr_write_b32 a{A_ONE+r}, v{T0}')
        A(f'v_accvgpr_write_b32 a{A_HALF+r}, v{T1}')
    A.c('initial poison (both parities)')
    A(f'v_mov_b32 v{V_CPV}, 0')
    A(f's_mov_b32 s{S_t0}, {C_CPROG}')
    A(f'buffer_store_dword v{V_CPV}, v{V_CPF}, {WSR}, s{S_t0} offen sc1')
    for sl in range(4):
        A(f's_mov_b32 s{S_t0}, {QV_SLOT(sl)[0]}')
        A(f'buffer_store_dwordx2 {vr(V_NEG,2)}, v{V_QKST}, {WSR}, s{S_t0} offen sc1')
        A(f'buffer_store_dwordx2 {vr(V_NEG,2)}, v{V_VST}, {WSR}, s{S_t0} offen sc1')
        A(f's_mov_b32 s{S_t0}, {P_SLOT(sl)[0]}')
        A(f'buffer_store_dwordx4 {vr(V_NEG,4)}, v{V_P4}, {WSR}, s{S_t0} offen sc1')
        A(f'buffer_store_dwordx2 {vr(V_NEG,2)}, v{V_P2}, {WSR}, s{S_t0} offen sc1')
        A(f's_mov_b32 s{S_t0}, {M_SLOT(sl)[0]}')
        A(f'buffer_store_dwordx2 {vr(V_NEG,2)}, v{V_MS}, {WSR}, s{S_t0} offen sc1')
        for par in range(2):
            A(f's_mov_b32 s{S_t0}, {X_SLOT(sl)[0] + par*8192}')
            A(f'buffer_store_dwordx4 {vr(V_NEG,4)}, v{V_XS}, {WSR}, s{S_t0} offen sc1')
        if sl == 2: A('s_waitcnt vmcnt(30)')
    tl(A, 9)
    A('s_waitcnt vmcnt(%d)' % (7 if TL_ON[0] else 6))
    tl(A, 10)
    verdict_issue(A, 'c')
    A('s_waitcnt vmcnt(0)')
    tl(A, 11)
    A('s_barrier')
    A(f's_cmp_lg_u32 s{S_W}, 0')
    A('s_cbranch_scc1 L_c_arrived')
    verdict_eval(A, 'c')
    A('s_cmp_lg_u32 s79, 0')
    A('s_cbranch_scc1 L_c_arrived')
    A(f'v_mov_b32 v{T0}, {CENSUS}')
    A(f'v_mov_b32 v{T1}, 1')
    A('s_mov_b64 exec, 1')
    A(f'global_atomic_add v{T0}, v{T1}, s[{S_DBG}:{S_DBG+1}]')
    A('s_mov_b64 exec, -1')
    A('L_c_arrived:')
    tl(A, 1)
    A.c('weights tr-read')
    R_, CQ = V_T+6, V_T+7
    A(f'v_bfe_u32 v{R_}, v{L}, 2, 2')
    A(f'v_and_b32 v{CQ}, 3, v{L}')
    A(f'v_lshl_add_u32 v{T0}, v{G}, 3, v{R_}')
    A(f'v_lshlrev_b32 v{T0}, 6, v{T0}')
    A(f'v_lshl_add_u32 v{T0}, v{CQ}, 3, v{T0}')
    A(f's_and_b32 s{S_t0}, s{S_W}, 1')
    A(f's_lshl_b32 s{S_t0}, s{S_t0}, 5')
    A(f'v_add_u32 v{T0}, s{S_t0}, v{T0}')
    A(f's_lshr_b32 s{S_t1}, s{S_W}, 1')
    A(f's_mul_i32 s{S_t2}, s{S_t1}, 40960')
    A(f'v_add_u32 v{T1}, s{S_t2}, v{T0}')
    for t in range(20):
        for hf in range(2):
            A(f'ds_read_b64_tr_b16 {ar(A_QK+4*t+2*hf,2)}, v{T1} offset:{t*2048+hf*256}')
        if t % 4 == 3: A('s_waitcnt lgkmcnt(0)')
    A(f's_mul_i32 s{S_t3}, s{S_t1}, {10*2048}')
    A(f's_add_u32 s{S_t3}, s{S_t3}, 81920')
    A(f'v_add_u32 v{T1}, s{S_t3}, v{T0}')
    for t in range(10):
        for hf in range(2):
            A(f'ds_read_b64_tr_b16 {ar(A_V+4*t+2*hf,2)}, v{T1} offset:{t*2048+hf*256}')
        if t % 4 == 3: A('s_waitcnt lgkmcnt(0)')
    A('s_waitcnt lgkmcnt(0)')
    A(f'v_lshl_add_u32 v{T0}, v{G}, 3, v{R_}')
    A(f'v_mul_u32_u24 v{T0}, 320, v{T0}')
    A(f'v_add_u32 v{T0}, 122880, v{T0}')
    A(f's_lshl_b32 s{S_t0}, s{S_W}, 6')
    A(f'v_lshl_add_u32 v{T1}, v{CQ}, 4, v{T0}')
    A(f'v_add_u32 v{T1}, s{S_t0}, v{T1}')
    A(f's_and_b32 s{S_t0}, s{S_W}, 1')
    A(f's_lshl_b32 s{S_t0}, s{S_t0}, 5')
    A(f's_add_u32 s{S_t0}, s{S_t0}, 256')
    A(f'v_lshl_add_u32 v{T2}, v{CQ}, 3, v{T0}')
    A(f'v_add_u32 v{T2}, s{S_t0}, v{T2}')
    for tt in range(3):
        for s4 in range(4):
            for hf in range(2):
                if tt < 2:
                    A(f'ds_read_b64_tr_b16 {ar(A_O+16*tt+4*s4+2*hf,2)}, v{T1} offset:{(32*s4+4*hf)*320 + 8*tt}')
                else:
                    A(f'ds_read_b64_tr_b16 {ar(A_O+16*tt+4*s4+2*hf,2)}, v{T2} offset:{(32*s4+4*hf)*320}')
        A('s_waitcnt lgkmcnt(0)')
    A('s_barrier')
    tl(A, 12)
    verdict_bcast(A, 'c')
    A.c('prologue kv + mem0')
    A(f's_mov_b32 s{S_STEP}, 0')
    A(f's_load_dwordx2 s[4:5], s[0:1], 8')
    A('s_waitcnt lgkmcnt(0)')
    setsrd(A, 4, 10240)
    for k in range(3):
        A(f'v_add_u32 v{T0}, {64*k}, v{L}')
        if k == 2:
            A(f'v_cmp_le_u32 vcc, 160, v{T0}')
            A(f'v_subrev_u32 v{T1}, 32, v{T0}')
            A('s_nop 0')
            A(f'v_cndmask_b32 v{T0}, v{T0}, v{T1}, vcc')
        A(f'v_cmp_le_u32 vcc, 80, v{T0}')
        A(f'v_subrev_u32 v{T1}, 80, v{T0}')
        A('s_nop 0')
        A(f'v_cndmask_b32 v{T0}, v{T0}, v{T1}, vcc')
        A(f'v_cndmask_b32 v{T1}, 0, 1, vcc')
        A(f's_lshl_b32 s{S_t0}, s{S_W}, 1')
        A(f'v_add_u32 v{T1}, s{S_t0}, v{T1}')
        A(f'v_lshlrev_b32 v{T0}, 4, v{T0}')
        A(f'v_mul_u32_u24 v{T2}, 1280, v{T1}')
        A(f'v_add_u32 v{T2}, v{T2}, v{T0}')
        A(f'buffer_load_dwordx4 {vr(V_B+4*k,4)}, v{T2}, s[{S_T}:{S_T+3}], 0 offen')
        A(f'v_add_u32 v{V_B+16}, {HOFF-640}, v{T0}')
        A(f'v_cmp_le_u32 vcc, 640, v{T0}')
        A(f'v_mul_u32_u24 v{T1}, {MEMSTRIDE}, v{T1}')
        A('s_nop 0')
        A(f'v_cndmask_b32 v{T0}, v{T0}, v{V_B+16}, vcc')
        A(f'v_add_u32 v{V_B+20+k}, v{T1}, v{T0}')
        A(f'v_add_u32 v{V_B+20+k}, {L_MEM}, v{V_B+20+k}')
    A('s_waitcnt vmcnt(0)')
    for k in range(3):
        A(f'ds_write_b128 v{V_B+20+k}, {vr(V_B+4*k,4)}')
    A('s_waitcnt lgkmcnt(0)')
    A(f's_cmp_lg_u32 s{S_W}, 0')
    A('s_cbranch_scc1 L_c_census_done')
    A('L_c_census:')
    A(f'v_mov_b32 v{T0}, {CENSUS}')
    A(f'global_load_dword v{T1}, v{T0}, s[{S_DBG}:{S_DBG+1}] sc1')
    A('s_waitcnt vmcnt(0)')
    A(f'v_readfirstlane_b32 s{S_t0}, v{T1}')
    A(f's_cmp_ge_u32 s{S_t0}, 256')
    A('s_cbranch_scc1 L_c_census_done')
    A('s_sleep 4')
    retry(A, 'L_c_census')
    A('L_c_census_done:')
    A('s_barrier')
    tl(A, 2)
    A(f'v_mov_b32 v{T0}, 64')
    A(f'global_load_dword v{V_B}, v{T0}, s[{S_DBG}:{S_DBG+1}] sc1')
    A('s_waitcnt vmcnt(0)')
    A(f'v_readfirstlane_b32 s{S_PAR}, v{V_B}')
    A(f's_and_b32 s{S_PAR}, s{S_PAR}, 1')
    if 'xfar' in OPT: A(f's_xor_b32 s{S_PAR}, s{S_PAR}, 1')
    A(f's_lshl_b32 s{S_PAR}, s{S_PAR}, 13')
    for nm, base, fn in (('Q', S_QV, QV_SLOT), ('P', S_PR, P_SLOT), ('M', S_MR, M_SLOT), ('X', S_XR, X_SLOT)):
        for k in range(4):
            addr, pg = fn(k)
            if nm == 'X': A(f's_add_u32 s{base+k}, s{S_PAR}, {addr}')
            else: A(f's_mov_b32 s{base+k}, {addr}')
    if 'noflag' not in OPT:
        A(f's_mov_b32 s{S_t0}, {C_PROG1}')
        A('L_c_w01:')
        A(f'buffer_load_dword v{T1}, v{V_PRG}, {WSR}, s{S_t0} offen sc1')
        A('s_waitcnt vmcnt(0)')
        A(f'v_cmp_gt_u32 vcc, 2, v{T1}')
        A('s_nop 3')
        A('s_and_b64 vcc, vcc, 3')
        A('s_cbranch_vccz L_c_w01_ok')
        A('s_sleep 2')
        retry(A, 'L_c_w01')
        A('L_c_w01_ok:')
        tl(A, 13)
    A(f's_lshl_b32 s{S_t3}, s{S_H}, 13')
    A(f's_lshl_b32 s{S_t1}, s{S_W}, 11')
    for seg in range(2):
        for mat in range(2):
            for k in range(2):
                A(f's_add_u32 m0, s{S_t1}, {L_KV + seg*16384 + mat*8192 + k*1024}')
                A(f's_add_u32 s{S_t2}, s{S_t1}, s{S_t3}')
                A(f's_add_u32 s{S_t2}, s{S_t2}, {(WS_KX, WS_VX)[mat] + seg*32*8192 + k*1024}')
                A(f'buffer_load_dwordx4 v{V_DM3A}, {WSR}, s{S_t2} offen sc1 lds')
    A('s_waitcnt vmcnt(0)')
    A('s_barrier')
    vox_reads(A, 0)
    vox_compute(A)
    A(f's_mov_b32 s{S_CPO}, {C_CPROG}')
    A(f's_mov_b32 s{S_KM}, {WS_KM}')
    A(f's_mov_b32 s{S_VM}, {WS_VM}')
    A(f's_lshl_b32 s{S_SEG2}, s{S_H}, 13')
    A(f's_add_u32 s{S_SEG2}, s{S_SEG2}, {2*32*8192}')

def ablate(A, start, kinds):
    keep = []
    for l in A.lines[start:]:
        t = l.strip()
        if any(t.startswith(k) for k in kinds): continue
        keep.append(l)
    A.lines[start:] = keep

DEFERRED = []
def flush_deferred():
    while DEFERRED: DEFERRED.pop(0)()

def gen_step(A, P, u, safe=False):
    cur, n1, p2, n3 = u, (u+1) & 3, (u+2) & 3, (u+3) & 3
    QC, QP = S_QV+cur, S_QV+p2
    PC, PP = S_PR+cur, S_PR+p2
    MC, MW, MP = S_MR+cur, S_MR+n1, S_MR+n3
    XC, XPn = S_XR+cur, S_XR+p2
    sf = f'_{u}' if not safe else f'_s{u}'
    SC = ' sc1' if safe else ''
    pre = 's' if safe else ''
    XLD = {0: 'sc1', 1: 'sc0 sc1', 2: 'sc1 nt', 3: 'nt'}[optval('xld', 0)]
    XST = {0: 'sc1', 1: 'sc0 sc1', 2: 'sc1 nt'}[optval('xst', 0)]
    def pipe_poll(name, nsets, nloads, issue, regs, pre, ok, gap, chk=None):
        lab = f'L_c_{name}{sf}'
        for k in range(nsets):
            issue(k)
            if k < nsets-1: nops(A, gap)
        if 'inlinepoll' in OPT:
            A(f'{lab}_loop:')
            for k in range(nsets):
                A(f's_waitcnt vmcnt({nloads*(nsets-1)})')
                pre(k)
                (chk or check)(A, regs(k))
                A(f's_cbranch_vccz {lab}_ok{k}')
                issue(k)
            retry(A, f'{lab}_loop', name)
            for k in reversed(range(nsets)):
                A(f'{lab}_ok{k}:')
                if 'cntset' in OPT:
                    idx = {'A': 0, 'R': 3, 'RS': 6, 'X': 9}[name] + k
                    A(f's_add_u32 s{S_PROF+idx}, s{S_PROF+idx}, 1')
                ok(k)
                if k > 0: A(f's_branch {lab}_done')
            A(f'{lab}_done:')
            return
        A(f's_waitcnt vmcnt({nloads*(nsets-1)})')
        pre(0)
        (chk or check)(A, regs(0))
        A(f's_cbranch_vccnz {lab}_retry')
        if 'cntset' in OPT:
            idx = {'A': 0, 'R': 3, 'RS': 6, 'X': 9}[name]
            A(f's_add_u32 s{S_PROF+idx}, s{S_PROF+idx}, 1')
        ok(0)
        A(f'{lab}_done:')
        def tail():
            A(f'{lab}_retry:')
            issue(0)
            A(f'{lab}_loop:')
            order = list(range(1, nsets)) + [0]
            for k in order:
                A(f's_waitcnt vmcnt({nloads*(nsets-1)})')
                pre(k)
                (chk or check)(A, regs(k))
                A(f's_cbranch_vccz {lab}_ok{k}')
                issue(k)
            retry(A, f'{lab}_loop', name)
            for k in range(nsets):
                A(f'{lab}_ok{k}:')
                ok(k)
                A(f's_branch {lab}_done')
        DEFERRED.append(tail)
    A(f'L_c_loop{sf}:')
    P.stamp(A, 11, True)
    nops(A, optval('adelay', 0))
    NAG = 4 if 'ag3' in OPT else 3
    ASET = [V_VV, V_R, V_XD]
    def a_issue(k):
        for q in range(NAG):
            A(f'buffer_load_dwordx4 {vr(ASET[k]+4*q,4)}, v{V_M0+q}, {WSR}, s{MC} offen sc1')
    def a_pre(k):
        for q in range(NAG):
            A(f'ds_write_b128 v{V_LM0+q}, {vr(ASET[k]+4*q,4)}')
    if 'ag3' in OPT:
        A(f's_cmp_eq_u32 s{S_W}, 3')
        A(f's_cbranch_scc1 L_c_A{sf}_done')
    pipe_poll('A', optval('nA', 1), NAG, a_issue, lambda k: range(ASET[k], ASET[k]+4*NAG), a_pre, lambda k: None, optval('gapA', 40))
    P.stamp(A, 8, True)
    A('s_waitcnt lgkmcnt(0)')
    A('s_barrier')
    P.stamp(A, 0)
    if u == 0: A(f'L_c_afterA0{pre}:')
    A.c('[A1] qk mfma')
    mark = len(A.lines)
    for t in range(10):
        A(f'ds_read_b128 {vr(V_B+4*t,4)}, v{V_LB} offset:{64*t}')
    for t in range(10):
        A(f's_waitcnt lgkmcnt({9-t})')
        mfma(A, vr(V_ACC,4), ar(A_QK+4*t,4), vr(V_B+4*t,4), '0' if t == 0 else vr(V_ACC,4))
        mfma(A, vr(V_ACC+4,4), ar(A_QK+4*(t+10),4), vr(V_B+4*t,4), '0' if t == 0 else vr(V_ACC+4,4))
    NV0 = 0 if 'qkfast' in OPT else 2
    for t in range(NV0):
        mfma(A, vr(V_ACV,4), ar(A_V+4*t,4), vr(V_B+4*t,4), '0' if t == 0 else vr(V_ACV,4))
    A(f's_nop {7-NV0}')
    for r in range(4):
        A(f'v_add_f32_dpp v{V_ACC+r}, v{V_ACC+4+r}, v{V_ACC+r} row_ror:8 row_mask:0xf bank_mask:0xf')
    A(f'v_cvt_pk_bf16_f32 v{V_O}, v{V_ACC}, v{V_ACC+1}')
    A(f'v_cvt_pk_bf16_f32 v{V_O+1}, v{V_ACC+2}, v{V_ACC+3}')
    A(f'buffer_store_dwordx2 {vr(V_O,2)}, v{V_QKST}, {WSR}, s{QC} offen{SC}')
    P.stamp(A, 1)
    for t in range(NV0, 10):
        mfma(A, vr(V_ACV,4), ar(A_V+4*t,4), vr(V_B+4*t,4), '0' if t == 0 else vr(V_ACV,4))
    def kx_reads():
        for kt in range(2):
            for s4 in range(4):
                A(f'ds_read_b128 {vr(V_KX+16*kt+4*s4,4)}, v{V_LKV} offset:{L_KV + cur*16384 + 2048*s4 + 256*kt}')
    RE = [V_B+12, V_B+28]
    if 'rearly' in OPT:
        nops(A, optval('re0', 0))
        A(f'buffer_load_dwordx4 {vr(RE[0],4)}, v{V_RLD}, {WSR}, s{QC} offen sc1')
        kx_reads()
    else:
        kx_reads()
    A(f'v_cvt_pk_bf16_f32 v{V_O+2}, v{V_ACV}, v{V_ACV+1}')
    A(f'v_cvt_pk_bf16_f32 v{V_O+3}, v{V_ACV+2}, v{V_ACV+3}')
    if 'rearly' in OPT:
        A(f'buffer_load_dwordx4 {vr(RE[1],4)}, v{V_RLD}, {WSR}, s{QC} offen sc1')
    A(f'buffer_store_dwordx2 {vr(V_O+2,2)}, v{V_VST}, {WSR}, s{QC} offen{SC}')
    if 'rearly' in OPT:
        for k, cnt in ((0, 2), (1, 1)):
            A(f's_waitcnt vmcnt({cnt})')
            A(f'ds_write_b128 v{V_LRW}, {vr(RE[k],4)}')
            check(A, range(RE[k], RE[k]+4))
            A(f's_cbranch_vccz L_c_R{sf}_done')
    if 'skipA1' in OPT: ablate(A, mark, ['v_mfma', 'v_add_f32_dpp'])
    P.stamp(A, 2)
    A.c('[B0] R piece -> LDS')
    nops(A, optval('rdelay', 0))
    if 'skipR' in OPT: A(f's_branch L_c_R{sf}_done')
    RSET = [V_B, V_B+4, V_B+8]
    def vloads():
        for s4 in range(4):
            A(f'buffer_load_dwordx4 {vr(V_VV+4*s4,4)}, v{V_VLD}, {WSR}, s{QC} offen offset:{512*s4} sc1')
    rld = lambda k: A(f'buffer_load_dwordx4 {vr(RSET[k],4)}, v{V_RLD}, {WSR}, s{QC} offen sc1')
    if 'vearly' in OPT:
        rld(0); nops(A, optval('gapR', 20)); rld(1); nops(A, optval('gapV', 16)); vloads()
        for k, cnt in ((0, 5), (1, 4)):
            A(f's_waitcnt vmcnt({cnt})')
            A(f'ds_write_b128 v{V_LRW}, {vr(RSET[k],4)}')
            check(A, range(RSET[k], RSET[k]+4))
            A(f's_cbranch_vccz L_c_Rv{sf}')
    pipe_poll('R', optval('nR', 1), 1, rld,
              lambda k: range(RSET[k], RSET[k]+4),
              lambda k: A(f'ds_write_b128 v{V_LRW}, {vr(RSET[k],4)}'),
              lambda k: None, optval('gapR', 20))
    nops(A, optval('vdelay', 0))
    if 'skipV' not in OPT and 'vearly' not in OPT and 'vafter' not in OPT: vloads()
    A(f'L_c_Rv{sf}:')
    A('s_waitcnt lgkmcnt(0)')
    A('s_barrier')
    P.stamp(A, 3)
    if 'vafter' in OPT: vloads()
    OPT1 = 'noopt1' not in OPT
    V_KD = V_B+20
    late = [f'v_mov_b32 v{V_CPV}, s{S_STEP}',
            f'buffer_store_dword v{V_CPV}, v{V_CPF}, {WSR}, s{S_CPO} offen sc1',
            f'buffer_store_dwordx2 {vr(V_NEG,2)}, v{V_QKST}, {WSR}, s{QP} offen{SC}',
            f'buffer_store_dwordx2 {vr(V_NEG,2)}, v{V_VST}, {WSR}, s{QP} offen{SC}',
            f'buffer_store_dwordx4 {vr(V_NEG,4)}, v{V_P4}, {WSR}, s{PP} offen{SC}',
            f'buffer_store_dwordx2 {vr(V_NEG,2)}, v{V_P2}, {WSR}, s{PP} offen{SC}',
            f'buffer_store_dwordx2 {vr(V_NEG,2)}, v{V_MS}, {WSR}, s{MP} offen{SC}']
    NLATE = 6
    if 'xplate' in OPT:
        late.append(f'buffer_store_dwordx4 {vr(V_NEG,4)}, v{V_XS}, {WSR}, s{XPn} offen sc1')
        NLATE += 1
    for s4 in range(4):
        A(f'ds_read_b128 {vr(V_R+4*s4,4)}, v{V_LRR} offset:{512*s4}')
        if OPT1: A(f'ds_read_b128 {vr(V_KD+4*s4,4)}, v{V_LRK} offset:{512*s4}')
    if not OPT1:
        for l in late: A(l)
        late = []
    A.c('[B1] scores')
    mark = len(A.lines)
    for s4 in range(4):
        c0 = '0' if s4 == 0 else None
        A(f's_waitcnt lgkmcnt({(6-2*s4) if OPT1 else (3-s4)})')
        mfma(A, vr(V_S,4), vr(V_KX+4*s4,4), vr(V_R+4*s4,4), c0 or vr(V_S,4))
        if late: A(late.pop(0))
        mfma(A, vr(V_S+4,4), vr(V_KX+16+4*s4,4), vr(V_R+4*s4,4), c0 or vr(V_S+4,4))
        if late: A(late.pop(0))
        mfma(A, vr(V_S+8,4), vr((V_KD if OPT1 else V_R)+4*s4,4), vr(V_R+4*s4,4), c0 or vr(V_S+8,4))
    for l in late: A(l)
    if 'skipB' in OPT: ablate(A, mark, ['v_mfma'])
    def vcheck():
        A(f's_waitcnt vmcnt({NLATE})')
        A.c('[B2] V check')
        if 'skipV' in OPT: A(f's_branch L_c_okV{sf}')
        check(A, range(V_VV, V_VV+16))
        A(f's_cbranch_vccnz L_c_pollV{sf}')
        A(f'L_c_okV{sf}:')
        def tail():
            A(f'L_c_pollV{sf}:')
            if 'cntset' in OPT: A(f's_add_u32 s{S_PROF+12}, s{S_PROF+12}, 1')
            for s4 in range(4):
                A(f'buffer_load_dwordx4 {vr(V_VV+4*s4,4)}, v{V_VLD}, {WSR}, s{QC} offen offset:{512*s4} sc1')
            A('s_waitcnt vmcnt(0)')
            check(A, range(V_VV, V_VV+16))
            A(f's_cbranch_vccz L_c_okV{sf}')
            retry(A, f'L_c_pollV{sf}', 'V')
        DEFERRED.append(tail)
    VLATE = 'vlate' in OPT
    if not VLATE: vcheck()
    P.stamp(A, 10, True)
    if u == 3:
        A(f's_cmp_eq_u32 s{S_STEP}, {NSEG-1}')
        A(f's_cbranch_scc1 L_c_final')
    if VLATE: A('s_nop 5')
    A.c('[B4] softmax (VOm mfma interleaved)')
    mark = len(A.lines)
    SM = V_S+8; MX = V_T+4
    vom = [(s4, tt) for s4 in range(4) for tt in range(3)]
    vom_on = [not VLATE]
    def vom_next():
        if not vom or not vom_on[0]: return
        s4, tt = vom.pop(0)
        mfma(A, vr(V_F+4*tt,4), vr(V_VV+4*s4,4), ar(A_O+16*tt+4*s4,4), '0' if s4 == 0 else vr(V_F+4*tt,4))
    if not OPT1:
        for r in range(4): A(f'v_mov_b32 v{V_T+r}, v{SM+r}')
    A(f'v_max3_f32 v{MX}, v{V_S}, v{V_S+1}, v{V_S+2}')
    A(f'v_max3_f32 v{MX+1}, v{V_S+3}, v{V_S+4}, v{V_S+5}')
    if not OPT1:
        for r in range(4): A(f'v_permlane32_swap_b32 v{V_T+r}, v{SM+r}')
    vom_next()
    A(f'v_max3_f32 v{MX}, v{MX}, v{V_S+6}, v{V_S+7}')
    A(f'v_max3_f32 v{MX+1}, v{MX+1}, v{SM}, v{SM+1}')
    A(f'v_max3_f32 v{MX}, v{MX}, v{SM+2}, v{SM+3}')
    A(f'v_max_f32 v{MX}, v{MX}, v{MX+1}')
    def allreduce(op, reg, tmp, fill=False):
        for perm in ('v_permlane16_swap_b32', 'v_permlane32_swap_b32'):
            A(f'v_mov_b32 v{tmp}, v{reg}')
            if fill and vom_on[0]: vom_next(); A('s_nop 0')
            else: A('s_nop 1')
            A(f'{perm} v{tmp}, v{reg}')
            A(f'{op} v{reg}, v{reg}, v{tmp}')
    allreduce('v_max_f32', MX, MX+1, True)
    A(f'v_mul_f32 v{MX}, s{S_SCL}, v{MX}')
    if VLATE:
        vcheck(); vom_on[0] = True
    vom_next()
    for r in range(0, 12, 2):
        A(f'v_pk_fma_f32 {vr(V_S+r,2)}, {vr(V_S+r,2)}, s[{S_SCL}:{S_SCL+1}], {vr(MX,2)} op_sel_hi:[1,1,0] neg_lo:[0,0,1] neg_hi:[0,0,1]')
        if r % 4 == 2 or VLATE: vom_next()
    for r in range(12):
        A(f'v_exp_f32 v{V_S+r}, v{V_S+r}')
        if r % 2 == 1 or (VLATE and r < 2): vom_next()
    while vom: vom_next()
    A(f'v_cvt_pk_bf16_f32 v{V_PX}, v{V_S}, v{V_S+1}')
    A(f'v_cvt_pk_bf16_f32 v{V_PX+1}, v{V_S+2}, v{V_S+3}')
    A(f'v_cvt_pk_bf16_f32 v{V_PX+2}, v{V_S+4}, v{V_S+5}')
    A(f'v_cvt_pk_bf16_f32 v{V_PX+3}, v{V_S+6}, v{V_S+7}')
    A(f'v_cvt_pk_bf16_f32 v{V_PM}, v{SM}, v{SM+1}')
    A(f'v_cvt_pk_bf16_f32 v{V_PM+1}, v{SM+2}, v{SM+3}')
    SU = V_T+6; X2 = V_T+7
    FX = [V_ACC, V_ACC+4, V_ACV]
    if OPT1:
        mfma(A, vr(V_T,4), ar(A_ONE,4), vr(V_PX,4), '0')
    for tt in range(3):
        mfma(A, vr(FX[tt],4), vr(V_VOX+4*tt,4), vr(V_PX,4), '0')
    for tt in range(3):
        A(f'v_cvt_pk_bf16_f32 v{V_VOM+4*tt}, v{V_F+4*tt}, v{V_F+4*tt+1}')
        A(f'v_cvt_pk_bf16_f32 v{V_VOM+4*tt+1}, v{V_F+4*tt+2}, v{V_F+4*tt+3}')
    if OPT1:
        mfma(A, vr(V_T,4), ar(A_HALF,4), vr(V_PM,4), vr(V_T,4))
        for tt in range(3):
            mfma(A, vr(FX[tt],4), vr(V_VOM+4*tt,4), vr(V_PM,4), vr(FX[tt],4))
        A('s_nop 4')
        A(f'v_rcp_f32 v{SU}, v{V_T}')
        A('s_nop 1')
    else:
        A(f'v_pk_add_f32 {vr(V_T,2)}, {vr(SM,2)}, {vr(SM+2,2)}')
        A(f'v_pk_add_f32 {vr(V_T+2,2)}, {vr(V_S,2)}, {vr(V_S+2,2)}')
        for tt in range(3):
            mfma(A, vr(FX[tt],4), vr(V_VOM+4*tt,4), vr(V_PM,4), vr(FX[tt],4))
        A(f'v_pk_add_f32 {vr(V_T+4,2)}, {vr(V_S+4,2)}, {vr(V_S+6,2)}')
        A(f'v_pk_add_f32 {vr(V_T+2,2)}, {vr(V_T+2,2)}, {vr(V_T+4,2)}')
        A(f'v_pk_fma_f32 {vr(V_T,2)}, {vr(V_T,2)}, 0.5, {vr(V_T+2,2)} op_sel_hi:[1,0,1]')
        A(f'v_add_f32 v{SU}, v{V_T}, v{V_T+1}')
        allreduce('v_add_f32', SU, X2)
        A(f'v_rcp_f32 v{SU}, v{SU}')
        A('s_nop 0')
    PO = [V_PO, V_PO+2, V_PO2]
    for tt in range(3):
        for r in (0, 2):
            A(f'v_pk_mul_f32 {vr(FX[tt]+r,2)}, {vr(FX[tt]+r,2)}, {vr(SU,2)} op_sel_hi:[1,0]')
        A(f'v_cvt_pk_bf16_f32 v{PO[tt]}, v{FX[tt]}, v{FX[tt]+1}')
        A(f'v_cvt_pk_bf16_f32 v{PO[tt]+1}, v{FX[tt]+2}, v{FX[tt]+3}')
        if tt == 1: A(f'buffer_store_dwordx4 {vr(V_PO,4)}, v{V_P4}, {WSR}, s{PC} offen{SC}')
    A(f'buffer_store_dwordx2 {vr(V_PO2,2)}, v{V_P2}, {WSR}, s{PC} offen{SC}')
    if 'skipB' in OPT:
        ablate(A, mark, ['v_', 's_nop'])
        for r in (V_PO, V_PO+1, V_PO+2, V_PO+3, V_PO2, V_PO2+1): A.lines.insert(mark, f'    v_mov_b32 v{r}, 0')
    P.stamp(A, 4)
    vox_reads(A, n1)
    A(f's_cmp_eq_u32 s{S_HASITEM}, 0')
    A(f's_cbranch_scc1 L_c_noitem{sf}')
    A.c('[C1] local RS')
    nops(A, optval('rsdelay', 0))
    if 'skipRS' in OPT:
        for r in range(4): A(f'v_mov_b32 v{V_RSD+4+r}, 0')
        A(f's_branch L_c_RS{sf}_done')
    SSET = [V_RSD, V_B+20, V_B+24]
    def rs_issue(k):
        A(f'buffer_load_dwordx2 {vr(SSET[k],2)}, v{V_RS0}, {WSR}, s{PC} offen sc1')
        A(f'buffer_load_dwordx2 {vr(SSET[k]+2,2)}, v{V_RS1}, {WSR}, s{PC} offen sc1')
    pipe_poll('RS', optval('nS', 1), 2, rs_issue, lambda k: range(SSET[k], SSET[k]+4),
              lambda k: mfma(A, vr(V_RSD+4,4), vr(V_SEL,4), vr(SSET[k],4), '0'), lambda k: None, optval('gapS', 20))
    P.stamp(A, 12, True)
    A('s_nop 3')
    if 'xtag' in OPT:
        for r in range(4): A(f'v_and_or_b32 v{V_RSD+4+r}, v{V_RSD+4+r}, -2, v{V_PH}')
    A(f'buffer_store_dwordx4 {vr(V_RSD+4,4)}, v{V_XS}, {WSR}, s{XC} offen {XST}')
    if 'xplate' not in OPT and 'xtag' not in OPT and optval('xp3on', 0) != 1: A(f'buffer_store_dwordx4 {vr(V_NEG,4)}, v{V_XS}, {WSR}, s{XPn} offen sc1')
    P.stamp(A, 5)
    NVX = optval('nvx', 3)
    vox_tiles(A, list(range(NVX)))
    P.stamp(A, 6)
    A.c('[C2] cross')
    nops(A, optval('xdelay', 0))
    if 'skipX' in OPT: A(f's_branch L_c_X{sf}_done')
    XLS = (S_XR+n3) if 'xfake' in OPT else XC
    XSET = [V_XD, V_B+28, V_R]
    OWN = V_RSD+4
    def x_issue(k):
        for q in range(3):
            A(f'buffer_load_dwordx4 {vr(XSET[k]+4*q,4)}, v{V_XL+q}, {WSR}, s{XLS} offen {XLD}')
    def x_ok(k):
        X = XSET[k]
        for r in (0, 2):
            A(f'v_pk_add_f32 {vr(V_T+r,2)}, {vr(X+r,2)}, {vr(X+8+r,2)}')
            A(f'v_pk_add_f32 {vr(OWN+r,2)}, {vr(OWN+r,2)}, {vr(X+4+r,2)}')
    def tagcheck(A, regs):
        r = list(regs)
        A(f'v_bitop3_b32 v{V_T+4}, v{r[0]}, v{r[1]}, v{V_PH} bitop3:0x7e')
        A(f'v_bitop3_b32 v{V_T+5}, v{r[2]}, v{r[3]}, v{V_PH} bitop3:0x7e')
        cur = 0
        for x in r[4:]:
            A(f'v_bitop3_b32 v{V_T+4+cur}, v{V_T+4+cur}, v{x}, v{V_PH} bitop3:0xf6'); cur ^= 1
        A(f'v_or_b32 v{V_T+4}, v{V_T+4}, v{V_T+5}')
        A(f'v_and_b32 v{V_T+4}, 1, v{V_T+4}')
        A(f'v_cmp_ne_u32 vcc, 0, v{V_T+4}')
    pipe_poll('X', optval('nX', 1), 3, x_issue, lambda k: range(XSET[k], XSET[k]+12), lambda k: None, x_ok, optval('gapX', 40), (lambda A_, r_: A_('s_mov_b64 vcc, 0')) if 'xfake' in OPT else (tagcheck if 'xtag' in OPT else None))
    P.stamp(A, 9, True)
    for r in (0, 2):
        A(f'v_pk_add_f32 {vr(OWN+r,2)}, {vr(OWN+r,2)}, {vr(V_T+r,2)}')
    A(f'v_cvt_pk_bf16_f32 v{V_PO2}, v{OWN}, v{OWN+1}')
    A(f'v_cvt_pk_bf16_f32 v{V_PO2+1}, v{OWN+2}, v{OWN+3}')
    A(f'buffer_store_dwordx2 {vr(V_PO2,2)}, v{V_MS}, {WSR}, s{MW} offen{SC}')
    vox_tiles(A, list(range(NVX, 3)), wait=False)
    def noitem_path():
        A(f'L_c_noitem{sf}:')
        A(f's_cmp_lg_u32 s{S_W}, 3')
        A(f's_cbranch_scc1 L_c_w2{sf}')
        A(f's_mov_b32 s{S_t0}, {C_PROG1}')
        A(f'buffer_load_dword v{V_T+4}, v{V_PRG}, {WSR}, s{S_t0} offen sc1')
        if 'nopub' not in OPT: publish(A, QC)
        else: A('s_waitcnt vmcnt(0)')
        if optval('xp3on', 0) == 1 and 'xplate' not in OPT and 'xtag' not in OPT: A(f'buffer_store_dwordx4 {vr(V_NEG,4)}, v{V_XP3}, {WSR}, s{XPn} offen sc1')
        vox_compute(A)
        A(f's_cmp_gt_u32 s{S_STEP}, {NSEG-4}')
        A(f's_cbranch_scc1 L_c_stepend{sf}')
        if 'noflag' not in OPT:
            A(f's_add_u32 s{S_t1}, s{S_STEP}, 3')
            A(f'L_c_wk{sf}:')
            A(f'v_cmp_gt_u32 vcc, s{S_t1}, v{V_T+4}')
            A('s_nop 3')
            A('s_and_b64 vcc, vcc, 3')
            A(f's_cbranch_vccz L_c_wk{sf}_ok')
            A(f's_mov_b32 s{S_t0}, {C_PROG1}')
            A(f'buffer_load_dword v{V_T+4}, v{V_PRG}, {WSR}, s{S_t0} offen sc1')
            A('s_waitcnt vmcnt(0)')
            retry(A, f'L_c_wk{sf}')
            A(f'L_c_wk{sf}_ok:')
        if 'nodma' not in OPT:
            for mat, base in ((0, WS_KX), (1, WS_VX)):
                for uu in range(8):
                    A(f's_mov_b32 m0, {L_KV + p2*16384 + mat*8192 + uu*1024}')
                    A(f's_add_u32 s{S_t2}, s{S_SEG2}, {base + uu*1024}')
                    A(f'buffer_load_dwordx4 v{V_DM3A}, {WSR}, s{S_t2} offen sc1 lds')
        A(f's_branch L_c_stepend{sf}')
        A(f'L_c_w2{sf}:')
        vox_compute(A)
        A(f's_branch L_c_stepend{sf}')
    DEFERRED.append(noitem_path)
    A(f'L_c_stepend{sf}:')
    P.stamp(A, 7)
    A(f's_add_u32 s{S_KM}, s{S_KM}, 65536')
    A(f's_add_u32 s{S_VM}, s{S_VM}, 131072')
    A(f's_add_u32 s{S_SEG2}, s{S_SEG2}, {32*8192}')
    A(f's_add_u32 s{S_STEP}, s{S_STEP}, 1')
    if u == 3 and 'xtag' in OPT: A(f'v_xor_b32 v{V_PH}, 1, v{V_PH}')
    if 'nobar0' not in OPT: A('s_barrier')
    if u == 3 and TL_ON[0]:
        for k, st in enumerate((16, 32, 48)):
            lab = A.label('L_tlq')
            A(f's_cmp_lg_u32 s{S_STEP}, {st}')
            A(f's_cbranch_scc1 {lab}')
            tl(A, 6+k)
            A(f'{lab}:')
    if u == 3: A('s_branch L_c_loop_s0' if safe else 's_branch L_c_loop_0')

def publish(A, QC):
    A(f'buffer_load_dwordx4 {vr(V_B,4)}, v{V_KPL}, {WSR}, s{QC} offen sc1')
    A(f'buffer_load_dwordx4 {vr(V_B+4,4)}, v{V_VPL}, {WSR}, s{QC} offen sc1')
    A('s_waitcnt vmcnt(0)')
    A(f'buffer_store_dwordx4 {vr(V_B,4)}, v{V_KPUB}, {WSR}, s{S_KM} offen sc1')
    A(f'buffer_store_dwordx4 {vr(V_B+4,4)}, v{V_VPUB}, {WSR}, s{S_VM} offen sc1')

def gen_chain(A, prof):
    P = Prof(prof)
    if prof and 'trace' not in OPT: PROFCNT.update({'A': 8, 'R': 9, 'V': 10, 'RS': 11, 'X': 12})
    A.c('==== chain role ====')
    gen_prologue(A, P)
    if prof and 'trace' not in OPT:
        for k in range(16): A(f's_mov_b32 s{S_PROF+k}, 0')
        A(f's_memtime s[{S_PT}:{S_PT+1}]')
        A('s_waitcnt lgkmcnt(0)')
        A(f's_mov_b32 s{S_PT+2}, s{S_PT}')
    if 'cntset' in OPT:
        for k in range(16): A(f's_mov_b32 s{S_PROF+k}, 0')
    if 'tot' in OPT:
        A(f's_memrealtime s[{S_PROF}:{S_PROF+1}]')
        A(f's_memtime s[{S_PROF+4}:{S_PROF+5}]')
        A('s_waitcnt lgkmcnt(0)')
    tl(A, 3)
    A(f's_cmp_eq_u32 s{S_MODE}, 1')
    A('s_cbranch_scc1 L_c_afterA0s_far')
    A('s_branch L_c_afterA0')
    A('L_c_afterA0s_far:')
    A('s_branch L_c_afterA0s')
    A('.p2align 6')
    for k in range(optval('shift', 0)): A('s_nop 0')
    for u in range(4): gen_step(A, P, u)
    flush_deferred()
    if 'nosafe' in OPT:
        A('L_c_afterA0s:')
        A('s_branch L_timeout')
    else:
        A('.p2align 6')
        for u in range(4): gen_step(A, P, u, safe=True)
        flush_deferred()
    A('L_c_finals:')
    A('L_c_final:')
    if 'vlate' in OPT:
        A('L_c_fv:')
        for s4 in range(4):
            A(f'buffer_load_dwordx4 {vr(V_VV+4*s4,4)}, v{V_VLD}, {WSR}, s{S_QV+3} offen offset:{512*s4} sc1')
        A('s_waitcnt vmcnt(0)')
        check(A, range(V_VV, V_VV+16))
        A('s_cbranch_vccz L_c_fv_ok')
        retry(A, 'L_c_fv')
        A('L_c_fv_ok:')
    A(f's_cmp_lg_u32 s{S_W}, 3')
    A('s_cbranch_scc1 L_c_end')
    publish(A, S_QV+3)
    A('s_waitcnt vmcnt(0)')
    A(f'v_mov_b32 v{V_CPV}, 64')
    A(f'buffer_store_dword v{V_CPV}, v{V_CPF}, {WSR}, s{S_CPO} offen sc1')
    A('L_c_end:')
    tl(A, 5)
    if 'tot' in OPT:
        A(f's_memrealtime s[{S_PROF+2}:{S_PROF+3}]')
        A(f's_memtime s[{S_PROF+6}:{S_PROF+7}]')
        A('s_waitcnt lgkmcnt(0)')
        A(f's_sub_u32 s{S_PROF}, s{S_PROF+2}, s{S_PROF}')
        A(f's_sub_u32 s{S_PROF+1}, s{S_PROF+6}, s{S_PROF+4}')
        A(f's_mov_b32 s{S_PROF+2}, s{S_PAR}')
    if prof or 'tot' in OPT or 'cntset' in OPT:
        A(f's_lshl_b32 s{S_t0}, s{S_X}, 5')
        A(f's_add_u32 s{S_t0}, s{S_t0}, s{S_J}')
        A(f's_lshl_b32 s{S_t0}, s{S_t0}, 2')
        A(f's_add_u32 s{S_t0}, s{S_t0}, s{S_W}')
        A(f's_lshl_b32 s{S_t0}, s{S_t0}, 6')
        A(f's_add_u32 s{S_t0}, s{S_t0}, {WS_PROF}')
        A(f'v_mov_b32 v{V_T}, 0')
        for k in range(16):
            A(f'v_mov_b32 v{V_T+1}, s{S_PROF+k}')
            A(f'buffer_store_dword v{V_T+1}, v{V_T}, {WSR}, s{S_t0} offen offset:{4*k}')
    A('s_waitcnt vmcnt(0)')
    A('s_endpgm')

def gen_calib(A):
    CB = PG2 + 0x1A0000
    A(f's_lshl_b32 s{S_t0}, s{S_W}, 15')
    A(f's_add_u32 s{S_t0}, s{S_t0}, {CB}')
    A(f's_mov_b32 s{S_t1}, -1')
    A(f's_mov_b32 s{S_t2}, -1')
    A('s_mov_b32 s78, 4')
    A('L_cal_round:')
    A('v_and_b32 v1, 3, v0')
    A('v_lshrrev_b32 v2, 1, v1')
    A('v_lshlrev_b32 v2, 14, v2')
    A('v_and_b32 v1, 1, v1')
    A('v_lshl_add_u32 v1, v1, 13, v2')
    A('v_mov_b32 v2, 0')
    A(f'buffer_store_dword v2, v1, {WSR}, s{S_t0} offen sc1')
    A('s_waitcnt vmcnt(0)')
    for rep in range(2):
        for par, acc in ((0, S_t1), (1, S_t2)):
            A(f'v_mov_b32 v1, {rep*16384 + par*8192}')
            A(f's_memtime s[{S_PT}:{S_PT+1}]')
            A('s_waitcnt lgkmcnt(0)')
            A(f'buffer_load_dword v2, v1, {WSR}, s{S_t0} offen sc1')
            A('s_waitcnt vmcnt(0)')
            A(f's_memtime s[{S_PT+2}:{S_PT+3}]')
            A('s_waitcnt lgkmcnt(0)')
            A(f's_sub_u32 s{S_PT}, s{S_PT+2}, s{S_PT}')
            A(f's_min_u32 s{acc}, s{acc}, s{S_PT}')
    A(f's_lshl_b32 s79, s{S_W}, 3')
    A('v_mov_b32 v1, s79')
    A(f'v_mov_b32 v2, s{S_t1}')
    A(f'v_mov_b32 v3, s{S_t2}')
    A('ds_write_b64 v1, v[2:3]')
    A('s_waitcnt lgkmcnt(0)')
    A('s_barrier')
    A('v_mov_b32 v1, 0')
    A('ds_read_b128 v[4:7], v1')
    A('ds_read_b128 v[8:11], v1 offset:16')
    A('s_waitcnt lgkmcnt(0)')
    A('s_barrier')
    A('v_min_u32 v4, v4, v6')
    A('v_min_u32 v8, v8, v10')
    A('v_min_u32 v5, v5, v7')
    A('v_min_u32 v9, v9, v11')
    A('v_min_u32 v4, v4, v8')
    A('v_min_u32 v5, v5, v9')
    A('s_nop 0')
    A(f'v_readfirstlane_b32 s{S_t1}, v4')
    A(f'v_readfirstlane_b32 s{S_t2}, v5')
    A(f's_min_u32 s79, s{S_t1}, s{S_t2}')
    A(f's_max_u32 s80, s{S_t1}, s{S_t2}')
    A('s_sub_u32 s80, s80, s79')
    A('s_cmp_ge_u32 s80, 100')
    A('s_cselect_b32 s80, 1, 0')
    A('s_cmp_lt_u32 s79, 560')
    A('s_cselect_b32 s80, s80, 0')
    A('s_cmp_eq_u32 s80, 1')
    A('s_cbranch_scc1 L_cal_done')
    A('s_sub_u32 s78, s78, 1')
    A('s_cmp_lg_u32 s78, 0')
    A('s_cbranch_scc1 L_cal_round')
    A('L_cal_done:')
    A(f's_cmp_lt_u32 s{S_t1}, s{S_t2}')
    A('s_cselect_b32 s79, 1, 0')
    A('s_or_b32 s79, s79, 0x100')
    A('v_mov_b32 v2, s79')
    A('v_mov_b32 v1, 64')
    A(f'global_store_dword v1, v2, s[{S_DBG}:{S_DBG+1}] sc1')
    A('v_mov_b32 v1, 80')
    A(f'global_store_dwordx2 v1, v[4:5], s[{S_DBG}:{S_DBG+1}] sc1')
    A('s_waitcnt vmcnt(0)')

def gen_common_entry(A, nwg=256):
    A(f's_cmp_ge_u32 s2, {nwg}')
    A('s_cbranch_scc1 L_end')
    A(f's_load_dwordx2 s[{S_DBG}:{S_DBG+1}], s[0:1], 96')
    A(f's_load_dwordx2 s[4:5], s[0:1], 104')
    A(f's_getreg_b32 s{S_X}, hwreg(HW_REG_XCC_ID, 0, 4)')
    A(f'v_lshrrev_b32 v1, 6, v0')
    A('s_nop 0')
    A(f'v_readfirstlane_b32 s{S_W}, v1')
    A('s_waitcnt lgkmcnt(0)')
    A(f's_mov_b32 s{S_WS}, s4')
    A(f's_and_b32 s{S_WS+1}, s5, 0xffff')
    A(f's_mov_b32 s{S_WS+2}, 0x10000000')
    A(f's_mov_b32 s{S_WS+3}, 0x20000')
    A(f's_cmp_lg_u32 s{S_W}, 0')
    A('s_cbranch_scc1 L_noticket')
    A(f's_lshl_b32 s{S_t0}, s{S_X}, 2')
    A(f'v_mov_b32 v1, s{S_t0}')
    A('v_mov_b32 v2, 1')
    A('s_mov_b64 exec, 1')
    A(f'global_atomic_add v3, v1, v2, s[{S_DBG}:{S_DBG+1}] sc0')
    A('s_waitcnt vmcnt(0)')
    A('v_mov_b32 v1, 0')
    A('ds_write_b32 v1, v3')
    A('s_waitcnt lgkmcnt(0)')
    A('s_mov_b64 exec, -1')
    A('L_noticket:')
    A('s_barrier')
    A('v_mov_b32 v1, 0')
    A('ds_read_b32 v2, v1')
    A('s_waitcnt lgkmcnt(0)')
    A(f'v_readfirstlane_b32 s{S_J}, v2')
    A('s_barrier')
    A(f's_mov_b32 s{S_MODE}, 0')
    A(f's_mov_b32 s{S_TO}, 0x100000')

S_MODE = 3
VR = [4, 5, 6, 7, 80, 81, 82, 83]
def counters_load(A):
    A('v_and_b32 v240, 7, v0')
    A('v_lshlrev_b32 v240, 2, v240')
    A(f'global_load_dword v241, v240, s[{S_DBG}:{S_DBG+1}] sc1')
def counters_sum(A):
    for k in range(8): A(f'v_readlane_b32 s{VR[k]}, v241, {k}')
    A(f's_add_u32 s78, s{VR[0]}, s{VR[1]}')
    for k in range(2, 8): A(f's_add_u32 s78, s78, s{VR[k]}')
def verdict_issue(A, tag):
    A(f's_cmp_lg_u32 s{S_W}, 0')
    A(f's_cbranch_scc1 L_vi{tag}')
    counters_load(A)
    A(f'L_vi{tag}:')
def verdict_eval(A, tag):
    A('s_mov_b32 s79, 0')
    A(f's_cmp_eq_u32 s{S_MODE}, 1')
    A(f's_cbranch_scc1 L_vd{tag}_ok')
    A(f'L_vd{tag}:')
    counters_sum(A)
    A('s_cmp_ge_u32 s78, 256')
    A(f's_cbranch_scc1 L_vd{tag}_full')
    A('s_sleep 16')
    counters_load(A)
    A('s_waitcnt vmcnt(0)')
    A(f's_sub_u32 s{S_TO}, s{S_TO}, 1')
    A(f's_cbranch_scc0 L_vd{tag}')
    A('s_branch L_timeout')
    A(f'L_vd{tag}_full:')
    if 'forcefb' in OPT: A('s_mov_b32 s79, 1')
    for k in range(8):
        A(f's_cmp_lg_u32 s{VR[k]}, 32')
        A('s_cselect_b32 s79, 1, s79')
    A(f'L_vd{tag}_ok:')
def verdict_bcast(A, tag, lds=0):
    A(f's_cmp_lg_u32 s{S_W}, 0')
    A(f's_cbranch_scc1 L_vb{tag}')
    A(f'v_mov_b32 v240, {lds}')
    A('v_mov_b32 v241, s79')
    A('ds_write_b32 v240, v241')
    A('s_waitcnt lgkmcnt(0)')
    A(f'L_vb{tag}:')
    A('s_barrier')
    A(f'v_mov_b32 v240, {lds}')
    A('ds_read_b32 v241, v240')
    A('s_waitcnt lgkmcnt(0)')
    A('v_readfirstlane_b32 s79, v241')
    A('s_barrier')
    A('s_cmp_lg_u32 s79, 0')
    A('s_cbranch_scc1 L_fallback')

def gen_fallback(A):
    A('L_fallback:')
    A('s_waitcnt vmcnt(0) lgkmcnt(0)')
    A('L_fb_poll:')
    counters_load(A)
    A('s_waitcnt vmcnt(0)')
    counters_sum(A)
    A('s_cmp_ge_u32 s78, 256')
    A('s_cbranch_scc1 L_fb_full')
    A('s_sleep 4')
    A(f's_sub_u32 s{S_TO}, s{S_TO}, 1')
    A('s_cbranch_scc0 L_fb_poll')
    A('s_branch L_timeout')
    A('L_fb_full:')
    if 'forcefb' in OPT:
        A('s_mov_b32 s78, s2')
    else:
        A(f's_mov_b32 s78, s{S_J}')
        for k in range(7):
            A(f's_cmp_gt_u32 s{S_X}, {k}')
            A(f's_cselect_b32 s79, s{VR[k]}, 0')
            A('s_add_u32 s78, s78, s79')
    A(f's_lshr_b32 s{S_X}, s78, 5')
    A(f's_and_b32 s{S_J}, s78, 31')
    A(f's_mov_b32 s{S_MODE}, 1')
    A('s_barrier')
    A('s_branch L_role')

def gen_timeout(A):
    A('L_timeout:')
    A('v_mov_b32 v1, 60')
    A('v_mov_b32 v2, 0xdead')
    A(f'global_store_dword v1, v2, s[{S_DBG}:{S_DBG+1}]')
    A('s_waitcnt vmcnt(0)')
    A('s_endpgm')

if __name__ == '__main__':
    out = sys.argv[1]
    OPT.update(sys.argv[2:])
    prof = 'prof' in OPT
    A = Asm()
    K = NAME + '_kernel'
    kernel_begin(A, K)
    gen_common_entry(A)
    A(f's_cmp_lt_u32 s{S_X}, 4')
    A('s_cbranch_scc1 L_chain')
    A(f's_cmp_lg_u32 s{S_W}, 0')
    A('s_cbranch_scc1 L_end')
    gen_calib(A)
    A('v_mov_b32 v1, 32')
    A('v_mov_b32 v2, 1')
    A('s_mov_b64 exec, 1')
    A(f'global_atomic_add v1, v2, s[{S_DBG}:{S_DBG+1}]')
    A('s_waitcnt vmcnt(0)')
    A('L_end:')
    A('s_endpgm')
    A('L_chain:')
    gen_chain(A, prof)
    gen_timeout(A)
    open(out, 'w').write(file_text(['; @launch grid=(256,1,1) block=(256,1,1) lds=163840'], A.text(), kernel_desc(K)))
```

```python
from asmlib import *
from ws_layout import *
import struct, sys

NSEG = 64
S_WS   = 8
S_T    = 12
S_X, S_J, S_H, S_C, S_W, S_STEP = 16, 17, 18, 19, 20, 21
S_TO   = 22
S_HASITEM = 23
S_DUM  = 24
S_DBG  = 28
S_t0, S_t1, S_t2, S_t3 = 30, 31, 32, 33
S_PAR  = 34
S_SCL = 38
S_KM, S_VM = 40, 41
S_SEG2 = 42
S_CPO = 44
S_PROF = 48
S_PT   = 64
S_D0   = 68
S_M0   = 72
S_VALID = 76
S_QV, S_PR, S_MR, S_XR = 84, 88, 92, 96
V_QKST, V_VST, V_RLD, V_VLD, V_P4, V_P2, V_RS0, V_RS1 = 1, 2, 3, 4, 5, 6, 7, 8
V_MS   = 9
V_M0   = 10
V_LM0  = 100
V_LB   = 16
V_LRW, V_LRR = 17, 18
V_T    = 20
V_NEG  = 28
V_SEL  = 32
V_LKV  = 36
V_PRG  = 37
V_CPF  = 38
V_CPV  = 39
V_PH   = 99
V_LRK  = 19
V_XP3  = 107
V_B    = 40
V_KPUB, V_VPUB = 80, 81
V_XS   = 82
V_KPL  = 83
V_ACV  = 84
V_RSD  = 88
V_DM3A, V_DM3B = 96, 97
V_VPL  = 98
V_XL   = 104
V_XD   = 108
V_ACC  = 120
V_R    = 128
V_VV   = 144
V_KX   = 160
V_S    = 192
V_VOX  = 204
V_VOM  = 216
V_PX   = 228
V_PM   = 232
V_F    = 236
V_O    = 248
V_PO   = 56
V_PO2  = 254
A_QK, A_V, A_O = 0, 80, 120
A_ONE, A_HALF = 168, 172
HOFF = 768
MEMSTRIDE = 2*HOFF + 32
L_KV  = 0
L_MEM = 65536
L_RAREA = 81920
BIG = 0x40000000
CENSUS = 192
GO = 96
SCALE_LOG2E = (128 ** -0.5) * 1.4426950408889634
def f2u(x): return struct.unpack('<I', struct.pack('<f', x))[0]
OPT = set()
DEFAULTS = {'xp3on': 0, 'nS': 3, 'gapS': 15, 'rsdelay': 30, 'nX': 2, 'nR': 2, 'nA': 2, 'bsleep': 100, 'vdelay': 12}
WSR = f's[{S_WS}:{S_WS+3}]'
def optval(k, d):
    for o in OPT:
        if o.startswith(k+'='): return o.split('=')[1] if isinstance(d, str) else int(o.split('=')[1])
    return DEFAULTS.get(k, d)
def mfma(A, d, a, b, c):
    A(f'v_mfma_f32_16x16x32_bf16 {d}, {a}, {b}, {c}')
def nops(A, n):
    while n > 0:
        k = min(n, 16); A(f's_nop {k-1}'); n -= k

class Prof:
    def __init__(self, on): self.on = on
    def stamp(self, A, idx, trace_only=False):
        if 'trace' in OPT:
            lab = A.label('L_tr')
            A(f's_cmp_lg_u32 s{S_STEP}, {optval("ts", 30)}')
            A(f's_cbranch_scc1 {lab}')
            A(f's_memrealtime s[{S_PT}:{S_PT+1}]')
            A('s_waitcnt lgkmcnt(0)')
            A(f's_mov_b32 s{S_PROF+idx}, s{S_PT}')
            A(f'{lab}:')
            return
        if not self.on or trace_only: return
        A(f's_memtime s[{S_PT}:{S_PT+1}]')
        A('s_waitcnt lgkmcnt(0)')
        A(f's_sub_u32 s{S_PT+3}, s{S_PT}, s{S_PT+2}')
        A(f's_mov_b32 s{S_PT+2}, s{S_PT}')
        A(f's_add_u32 s{S_PROF+idx}, s{S_PROF+idx}, s{S_PT+3}')

PROFCNT = {}
def check(A, regs, tmp=V_T):
    r = list(regs)
    if len(r) <= 5:
        A(f'v_max3_u32 v{tmp}, v{r[0]}, v{r[1]}, v{r[2]}'); r = r[3:]
        if len(r) == 2: A(f'v_max3_u32 v{tmp}, v{tmp}, v{r[0]}, v{r[1]}')
        elif len(r) == 1: A(f'v_max_u32 v{tmp}, v{tmp}, v{r[0]}')
    else:
        A(f'v_max3_u32 v{tmp}, v{r[0]}, v{r[1]}, v{r[2]}')
        A(f'v_max3_u32 v{tmp+1}, v{r[3]}, v{r[4]}, v{r[5]}'); r = r[6:]; cur = 0
        while len(r) >= 2:
            A(f'v_max3_u32 v{tmp+cur}, v{tmp+cur}, v{r[0]}, v{r[1]}'); r = r[2:]; cur ^= 1
        if r: A(f'v_max3_u32 v{tmp}, v{tmp}, v{tmp+1}, v{r[0]}')
        else: A(f'v_max_u32 v{tmp}, v{tmp}, v{tmp+1}')
    A(f'v_cmp_eq_u32 vcc, -1, v{tmp}')

def retry(A, label, key=None):
    if key in PROFCNT:
        k = PROFCNT[key]; A(f's_add_u32 s{S_PROF+k}, s{S_PROF+k}, 1')
    A(f's_sub_u32 s{S_TO}, s{S_TO}, 1')
    A(f's_cbranch_scc0 {label}')
    A('s_branch L_timeout')

def setsrd(A, lo, size):
    A(f's_mov_b32 s{S_T}, s{lo}')
    A(f's_and_b32 s{S_T+1}, s{lo+1}, 0xffff')
    A(f's_mov_b32 s{S_T+2}, {size}')
    A(f's_mov_b32 s{S_T+3}, 0x20000')

def dbl(A, v, tmp, add=0):
    A(f'v_lshrrev_b32 v{tmp}, 13, v{v}')
    A(f'v_lshlrev_b32 v{tmp}, 14, v{tmp}')
    A(f'v_and_b32 v{v}, 8191, v{v}')
    A(f'v_add_u32 v{v}, v{v}, v{tmp}')
    if add: A(f'v_add_u32 v{v}, {add}, v{v}')

def vox_reads(A, slot):
    for kt in range(2):
        for s4 in range(4):
            A(f'ds_read_b128 {vr(V_KX+16*kt+4*s4,4)}, v{V_LKV} offset:{L_KV + slot*16384 + 8192 + 2048*s4 + 256*kt}')
def vox_compute(A, hook=None):
    A('s_waitcnt lgkmcnt(0)')
    if hook: hook()
    if 'skipvox' in OPT: return
    for tt in range(3):
        acc = V_F if tt % 2 == 0 else V_ACC
        for s4 in range(4):
            for kt in range(2):
                c = '0' if s4 == 0 else vr(acc+4*kt,4)
                mfma(A, vr(acc+4*kt,4), vr(V_KX+16*kt+4*s4,4), ar(A_O+16*tt+4*s4,4), c)
            if tt >= 1 and s4 == 3:
                pacc = V_F if (tt-1) % 2 == 0 else V_ACC
                for kt in range(2):
                    A(f'v_cvt_pk_bf16_f32 v{V_VOX+4*(tt-1)+2*kt}, v{pacc+4*kt}, v{pacc+4*kt+1}')
                    A(f'v_cvt_pk_bf16_f32 v{V_VOX+4*(tt-1)+2*kt+1}, v{pacc+4*kt+2}, v{pacc+4*kt+3}')
    A('s_nop 7')
    for kt in range(2):
        A(f'v_cvt_pk_bf16_f32 v{V_VOX+8+2*kt}, v{V_F+4*kt}, v{V_F+4*kt+1}')
        A(f'v_cvt_pk_bf16_f32 v{V_VOX+8+2*kt+1}, v{V_F+4*kt+2}, v{V_F+4*kt+3}')

def vox_tiles(A, tiles, wait=True):
    if wait: A('s_waitcnt lgkmcnt(0)')
    if 'skipvox' in OPT or not tiles: return
    accs = [V_F, V_ACC]
    for n, tt in enumerate(tiles):
        acc = accs[n % 2]
        for s4 in range(4):
            for kt in range(2):
                c = '0' if s4 == 0 else vr(acc+4*kt,4)
                mfma(A, vr(acc+4*kt,4), vr(V_KX+16*kt+4*s4,4), ar(A_O+16*tt+4*s4,4), c)
            if n >= 1 and s4 == 3:
                pt = tiles[n-1]; pacc = accs[(n-1) % 2]
                for kt in range(2):
                    A(f'v_cvt_pk_bf16_f32 v{V_VOX+4*pt+2*kt}, v{pacc+4*kt}, v{pacc+4*kt+1}')
                    A(f'v_cvt_pk_bf16_f32 v{V_VOX+4*pt+2*kt+1}, v{pacc+4*kt+2}, v{pacc+4*kt+3}')
    A('s_nop 6')
    pt = tiles[-1]; pacc = accs[(len(tiles)-1) % 2]
    for kt in range(2):
        A(f'v_cvt_pk_bf16_f32 v{V_VOX+4*pt+2*kt}, v{pacc+4*kt}, v{pacc+4*kt+1}')
        A(f'v_cvt_pk_bf16_f32 v{V_VOX+4*pt+2*kt+1}, v{pacc+4*kt+2}, v{pacc+4*kt+3}')

def gen_prologue(A, P):
    A(f's_lshr_b32 s{S_t0}, s{S_J}, 2')
    A(f's_lshl_b32 s{S_H}, s{S_X}, 3')
    A(f's_add_u32 s{S_H}, s{S_H}, s{S_t0}')
    A(f's_and_b32 s{S_C}, s{S_J}, 3')
    A(f's_mov_b32 s{S_SCL}, {hex(f2u(SCALE_LOG2E))}')
    A(f's_mov_b32 s{S_SCL+1}, {hex(f2u(SCALE_LOG2E))}')
    L, I, G = V_T, V_T+1, V_T+2
    T0, T1, T2 = V_T+3, V_T+4, V_T+5
    I7 = V_T+6; T3 = V_T+7
    A(f'v_and_b32 v{L}, 63, v0')
    A(f'v_and_b32 v{I}, 15, v0')
    A(f'v_bfe_u32 v{G}, v0, 4, 2')
    A(f'v_and_b32 v{I7}, 7, v{I}')
    A.c('weights DMA')
    A(f's_load_dwordx4 s[4:7], s[0:1], 16')
    A(f's_waitcnt lgkmcnt(0)')
    A(f'v_lshrrev_b32 v{T0}, 2, v{L}')
    A(f'v_lshlrev_b32 v{T0}, 13, v{T0}')
    A(f'v_and_b32 v{T1}, 3, v{L}')
    A(f'v_lshlrev_b32 v{T1}, 4, v{T1}')
    A(f'v_add_u32 v{T0}, v{T0}, v{T1}')
    A(f's_lshl_b32 s{S_t0}, s{S_H}, 8')
    A(f's_lshl_b32 s{S_t1}, s{S_C}, 6')
    A(f's_add_u32 s{S_t0}, s{S_t0}, s{S_t1}')
    A(f'v_add_u32 v{T0}, s{S_t0}, v{T0}')
    def dma_w(area):
        A(f's_lshl_b32 s{S_t0}, s{S_W}, 17')
        A(f's_lshl_b32 s{S_t1}, s{S_W}, 10')
        A(f's_add_u32 s{S_t1}, s{S_t1}, {area}')
        for i in range(10):
            A(f's_mov_b32 m0, s{S_t1}')
            A(f's_add_u32 s{S_t1}, s{S_t1}, 4096')
            A(f'buffer_load_dwordx4 v{T0}, s[{S_T}:{S_T+3}], s{S_t0} offen lds')
            A(f's_add_u32 s{S_t0}, s{S_t0}, {4*131072}')
    setsrd(A, 4, 5242880); dma_w(0)
    setsrd(A, 6, 5242880); dma_w(40960)
    A(f's_load_dwordx4 s[4:7], s[0:1], 32')
    A(f's_waitcnt lgkmcnt(0)')
    setsrd(A, 4, 5242880); dma_w(81920)
    setsrd(A, 6, 5242880)
    WO = V_B
    for b in range(5):
        A(f'v_add_u32 v{T1}, {64*b}, v{L}')
        A(f'v_mul_u32_u24 v{T2}, 3277, v{T1}')
        A(f'v_lshrrev_b32 v{T2}, 16, v{T2}')
        A(f'v_mul_u32_u24 v{WO+b}, 20, v{T2}')
        A(f'v_sub_u32 v{WO+b}, v{T1}, v{WO+b}')
        A(f'v_lshlrev_b32 v{WO+b}, 4, v{WO+b}')
        A(f'v_mul_u32_u24 v{T2}, 1280, v{T2}')
        A(f'v_add_u32 v{WO+b}, v{WO+b}, v{T2}')
    A(f's_mul_i32 s{S_t0}, s{S_H}, {128*1280}')
    A(f's_mul_i32 s{S_t1}, s{S_C}, 320')
    A(f's_add_u32 s{S_t0}, s{S_t0}, s{S_t1}')
    A(f's_mul_i32 s{S_t1}, s{S_W}, {16*1280}')
    A(f's_add_u32 s{S_t0}, s{S_t0}, s{S_t1}')
    A(f's_mul_i32 s{S_t1}, s{S_W}, 5120')
    A(f's_add_u32 s{S_t1}, s{S_t1}, 122880')
    for hi in range(2):
        for b in range(5):
            A(f's_add_u32 m0, s{S_t1}, {hi*4*5120 + b*1024}')
            A(f's_add_u32 s{S_t2}, s{S_t0}, {hi*4*16*1280}')
            A(f'buffer_load_dwordx4 v{WO+b}, s[{S_T}:{S_T+3}], s{S_t2} offen lds')
    A.c('address regs')
    VALID = f's[{S_VALID}:{S_VALID+1}]'
    VV_ = f's[{S_M0}:{S_M0+1}]'
    A(f'v_cmp_gt_u32 {VALID}, 8, v{I}')
    A(f'v_mov_b32 v{T2}, {BIG}')
    TO = V_B+8
    A(f's_lshr_b32 s{S_t1}, s{S_W}, 1')
    A(f's_lshl_b32 s{S_t0}, s{S_t1}, 11')
    A(f's_lshl_b32 s{S_t1}, s{S_C}, 9')
    A(f's_add_u32 s{S_t0}, s{S_t0}, s{S_t1}')
    A(f's_and_b32 s{S_t1}, s{S_W}, 1')
    A(f's_lshl_b32 s{S_t1}, s{S_t1}, 8')
    A(f's_add_u32 s{S_t0}, s{S_t0}, s{S_t1}')
    A(f'v_lshlrev_b32 v{TO}, 5, v{I7}')
    A(f'v_lshl_add_u32 v{TO}, v{G}, 3, v{TO}')
    A(f'v_add_u32 v{TO}, s{S_t0}, v{TO}')
    S_HB = S_D0
    A(f's_lshr_b32 s{S_t0}, s{S_H}, 1')
    A(f's_lshl_b32 s{S_t0}, s{S_t0}, 14')
    A(f's_and_b32 s{S_t1}, s{S_H}, 1')
    A(f's_lshl_b32 s{S_t1}, s{S_t1}, 12')
    A(f's_add_u32 s{S_HB}, s{S_t0}, s{S_t1}')
    A(f'v_add_u32 v{T0}, s{S_HB}, v{TO}')
    A(f'v_cndmask_b32 v{V_QKST}, v{T2}, v{T0}, {VALID}')
    A(f's_cmp_ge_u32 s{S_W}, 2')
    A(f's_cselect_b64 {VV_}, -1, 0')
    A(f's_xor_b64 {VV_}, {VV_}, {VALID}')
    A(f'v_add_u32 v{T0}, {V_RING_OFF}, v{T0}')
    A(f'v_cndmask_b32 v{V_VST}, v{T2}, v{T0}, {VV_}')
    A(f'v_lshlrev_b32 v{T0}, 4, v{L}')
    A(f'v_cmp_gt_u32 vcc, 32, v{L}')
    A(f's_lshl_b32 s{S_t0}, s{S_C}, 9')
    A(f's_lshl_b32 s{S_t1}, s{S_H}, 11')
    A(f's_add_u32 s{S_t1}, s{S_t1}, s{S_t0}')
    A(f'v_add_u32 v{T1}, s{S_t1}, v{T0}')
    A(f'v_cndmask_b32 v{V_KPUB}, v{T2}, v{T1}, vcc')
    A(f's_add_u32 s{S_t1}, s{S_HB}, s{S_t0}')
    A(f's_add_u32 s{S_t1}, s{S_t1}, 2048')
    A(f'v_add_u32 v{T1}, s{S_t1}, v{T0}')
    A(f'v_cndmask_b32 v{V_KPL}, v{T2}, v{T1}, vcc')
    A(f's_lshl_b32 s{S_t0}, s{S_C}, 10')
    A(f's_lshl_b32 s{S_t1}, s{S_H}, 12')
    A(f's_add_u32 s{S_t1}, s{S_t1}, s{S_t0}')
    A(f'v_add_u32 v{V_VPUB}, s{S_t1}, v{T0}')
    A(f's_add_u32 s{S_t1}, s{S_HB}, s{S_t0}')
    A(f's_add_u32 s{S_t1}, s{S_t1}, {V_RING_OFF}')
    A(f'v_add_u32 v{V_VPL}, s{S_t1}, v{T0}')
    A(f's_lshl_b32 s{S_t1}, s{S_W}, 10')
    A(f's_add_u32 s{S_t0}, s{S_HB}, s{S_t1}')
    A(f'v_add_u32 v{V_RLD}, s{S_t0}, v{T0}')
    A(f's_add_u32 s{S_t1}, s{S_t1}, {L_RAREA}')
    A(f'v_add_u32 v{V_LRW}, s{S_t1}, v{T0}')
    A(f'v_lshrrev_b32 v{T0}, 3, v{I}')
    A(f'v_lshlrev_b32 v{T0}, 11, v{T0}')
    A(f'v_lshrrev_b32 v{T1}, 1, v{G}')
    A(f'v_lshl_add_u32 v{T0}, v{T1}, 8, v{T0}')
    A(f'v_lshl_add_u32 v{T0}, v{I7}, 5, v{T0}')
    A(f'v_and_b32 v{T1}, 1, v{G}')
    A(f'v_lshl_add_u32 v{T0}, v{T1}, 4, v{T0}')
    A(f'v_add_u32 v{V_LRR}, {L_RAREA}, v{T0}')
    A(f'v_and_b32 v{V_LRK}, 2047, v{T0}')
    A(f'v_add_u32 v{V_LRK}, {L_RAREA + 2048}, v{V_LRK}')
    A(f's_add_u32 s{S_t0}, s{S_HB}, {V_RING_OFF}')
    A(f'v_add_u32 v{V_VLD}, s{S_t0}, v{T0}')
    A(f's_mul_i32 s{S_t0}, s{S_H}, 10240')
    A(f's_mul_i32 s{S_t1}, s{S_C}, 2560')
    A(f's_add_u32 s{S_t0}, s{S_t0}, s{S_t1}')
    A(f's_lshl_b32 s{S_t1}, s{S_W}, 9')
    A(f's_add_u32 s{S_t1}, s{S_t1}, s{S_t0}')
    A(f'v_lshlrev_b32 v{T0}, 6, v{I}')
    A(f'v_lshl_add_u32 v{T0}, v{G}, 4, v{T0}')
    A(f'v_add_u32 v{T0}, s{S_t1}, v{T0}')
    dbl(A, T0, T1)
    A(f'v_cndmask_b32 v{V_P4}, v{T2}, v{T0}, {VALID}')
    A(f's_lshl_b32 s{S_t1}, s{S_W}, 8')
    A(f's_add_u32 s{S_t1}, s{S_t1}, 2048')
    A(f's_add_u32 s{S_t1}, s{S_t1}, s{S_t0}')
    A(f'v_lshlrev_b32 v{T0}, 5, v{I}')
    A(f'v_lshl_add_u32 v{T0}, v{G}, 3, v{T0}')
    A(f'v_add_u32 v{T0}, s{S_t1}, v{T0}')
    dbl(A, T0, T1)
    A(f's_cmp_lt_u32 s{S_W}, 2')
    A(f's_cselect_b64 s[{S_t2}:{S_t3}], {VALID}, 0')
    A(f'v_cndmask_b32 v{V_P2}, v{T2}, v{T0}, s[{S_t2}:{S_t3}]')
    A(f's_lshl_b32 s{S_t0}, s{S_W}, 5')
    A(f's_add_u32 s{S_t0}, s{S_t0}, s{S_J}')
    A(f's_cmp_lt_u32 s{S_t0}, 80')
    A(f's_cselect_b32 s{S_HASITEM}, 1, 0')
    A(f's_cselect_b32 s{S_t0}, s{S_t0}, 0')
    A(f's_lshl_b32 s{S_t1}, s{S_t0}, 7')
    A(f's_cmp_eq_u32 s{S_HASITEM}, 1')
    A(f's_cselect_b64 {VV_}, -1, 0')
    for u, dst in enumerate((V_RS0, V_RS1)):
        A(f'v_add_u32 v{T0}, {4*u}, v{G}')
        A(f's_lshl_b32 s{S_t2}, s{S_X}, 3')
        A(f'v_add_u32 v{T0}, s{S_t2}, v{T0}')
        A(f'v_mul_u32_u24 v{T0}, 10240, v{T0}')
        A(f'v_lshl_add_u32 v{T0}, v{I}, 3, v{T0}')
        A(f'v_add_u32 v{T0}, s{S_t1}, v{T0}')
        dbl(A, T0, T1)
        A(f'v_cndmask_b32 v{dst}, v{T2}, v{T0}, {VV_}')
    A(f'v_cmp_eq_u32 vcc, 0, v{G}')
    A('s_nop 3')
    A(f's_and_b64 {VV_}, {VV_}, vcc')
    A(f's_mul_i32 s{S_t2}, s{S_X}, 10240')
    A(f's_add_u32 s{S_t2}, s{S_t2}, s{S_t1}')
    A(f'v_lshlrev_b32 v{T0}, 3, v{I}')
    A(f'v_add_u32 v{T0}, s{S_t2}, v{T0}')
    dbl(A, T0, T1)
    A(f'v_cndmask_b32 v{V_MS}, v{T2}, v{T0}, {VV_}')
    for k, dst in enumerate((V_XS, V_XL, V_XL+1, V_XL+2)):
        A(f's_add_u32 s{S_t2}, s{S_X}, {k}')
        A(f's_and_b32 s{S_t2}, s{S_t2}, 3')
        A(f's_mul_i32 s{S_t2}, s{S_t2}, 20480')
        A(f's_lshl_b32 s{S_t3}, s{S_t1}, 1')
        A(f's_add_u32 s{S_t2}, s{S_t2}, s{S_t3}')
        A(f'v_lshlrev_b32 v{T0}, 4, v{I}')
        A(f'v_add_u32 v{T0}, s{S_t2}, v{T0}')
        dbl(A, T0, T1)
        if 'xtag' in OPT and k > 0: A(f'v_mov_b32 v{dst}, v{T0}')
        else: A(f'v_cndmask_b32 v{dst}, v{T2}, v{T0}, {VV_}')
    A(f'v_mov_b32 v{V_PH}, 0')
    A(f'v_lshlrev_b32 v{T0}, 5, v{G}')
    A(f'v_add_u32 v{T0}, s{S_J}, v{T0}')
    A(f'v_cmp_gt_u32 vcc, 80, v{T0}')
    A(f'v_lshlrev_b32 v{T0}, 8, v{T0}')
    A(f'v_lshl_add_u32 v{T0}, v{I}, 4, v{T0}')
    A(f's_mul_i32 s{S_t2}, s{S_X}, 20480')
    A(f'v_add_u32 v{T0}, s{S_t2}, v{T0}')
    dbl(A, T0, T1)
    A(f's_cmp_eq_u32 s{S_W}, 3')
    A(f's_cselect_b64 s[{S_t2}:{S_t3}], vcc, 0')
    A(f'v_cndmask_b32 v{V_XP3}, v{T2}, v{T0}, s[{S_t2}:{S_t3}]')
    Q, LN, PT, ROW, COL = V_B+8, V_B+9, V_B+10, V_B+11, V_B+12
    M_, R2, C2 = V_B+13, V_B+14, V_B+15
    NAG = 4 if 'ag3' in OPT else 3
    for k in range(NAG):
        if 'ag3' in OPT:
            A(f's_mul_i32 s{S_t0}, s{S_W}, 214')
            A(f's_add_u32 s{S_t1}, s{S_t0}, 213')
            A(f's_min_u32 s{S_t1}, s{S_t1}, 639')
            A(f's_add_u32 s{S_t0}, s{S_t0}, {64*k}')
            A(f'v_add_u32 v{Q}, s{S_t0}, v{L}')
            A(f'v_min_u32 v{Q}, s{S_t1}, v{Q}')
        else:
            A(f's_mul_i32 s{S_t0}, s{S_W}, 160')
            A(f's_add_u32 s{S_t0}, s{S_t0}, {64*k}')
            A(f'v_add_u32 v{Q}, s{S_t0}, v{L}')
            if k == 2:
                A(f'v_cmp_le_u32 vcc, 32, v{L}')
                A(f'v_subrev_u32 v{T1}, 32, v{Q}')
                A('s_nop 0')
                A(f'v_cndmask_b32 v{Q}, v{Q}, v{T1}, vcc')
        A(f's_mul_i32 s{S_t0}, s{S_X}, 10240')
        A(f'v_lshlrev_b32 v{V_M0+k}, 4, v{Q}')
        A(f'v_add_u32 v{V_M0+k}, s{S_t0}, v{V_M0+k}')
        dbl(A, V_M0+k, T1)
        A(f'v_lshrrev_b32 v{LN}, 3, v{Q}')
        A(f'v_and_b32 v{PT}, 7, v{Q}')
        A(f'v_mul_u32_u24 v{T0}, 3277, v{LN}')
        A(f'v_lshrrev_b32 v{T0}, 16, v{T0}')
        A(f'v_mul_u32_u24 v{T1}, 20, v{T0}')
        A(f'v_sub_u32 v{LN}, v{LN}, v{T1}')
        A(f'v_mul_u32_u24 v{COL}, 160, v{T0}')
        A(f'v_and_b32 v{T0}, 3, v{LN}')
        A(f'v_lshlrev_b32 v{T0}, 1, v{T0}')
        A(f'v_lshrrev_b32 v{T1}, 2, v{PT}')
        A(f'v_add_u32 v{ROW}, v{T0}, v{T1}')
        A(f'v_lshrrev_b32 v{T0}, 2, v{LN}')
        A(f'v_lshlrev_b32 v{T0}, 5, v{T0}')
        A(f'v_and_b32 v{T1}, 3, v{PT}')
        A(f'v_lshl_add_u32 v{T0}, v{T1}, 3, v{T0}')
        A(f'v_subrev_u32 v{M_}, 16, v{LN}')
        A(f'v_and_b32 v{R2}, 1, v{M_}')
        A(f'v_lshlrev_b32 v{R2}, 2, v{R2}')
        A(f'v_lshrrev_b32 v{T1}, 1, v{PT}')
        A(f'v_add_u32 v{R2}, v{R2}, v{T1}')
        A(f'v_lshrrev_b32 v{C2}, 1, v{M_}')
        A(f'v_lshlrev_b32 v{C2}, 4, v{C2}')
        A(f'v_and_b32 v{T1}, 1, v{PT}')
        A(f'v_lshl_add_u32 v{C2}, v{T1}, 3, v{C2}')
        A(f'v_add_u32 v{C2}, 128, v{C2}')
        A(f'v_cmp_le_u32 vcc, 16, v{LN}')
        A('s_nop 1')
        A(f'v_cndmask_b32 v{ROW}, v{ROW}, v{R2}, vcc')
        A(f'v_cndmask_b32 v{T0}, v{T0}, v{C2}, vcc')
        A(f'v_add_u32 v{COL}, v{COL}, v{T0}')
        A(f'v_lshlrev_b32 v{T0}, 1, v{COL}')
        A(f'v_add_u32 v{T1}, {HOFF-640}, v{T0}')
        A(f'v_cmp_le_u32 vcc, 320, v{COL}')
        A(f'v_mul_u32_u24 v{ROW}, {MEMSTRIDE}, v{ROW}')
        A('s_nop 0')
        A(f'v_cndmask_b32 v{T0}, v{T0}, v{T1}, vcc')
        A(f'v_add_u32 v{V_LM0+k}, v{ROW}, v{T0}')
        A(f'v_add_u32 v{V_LM0+k}, {L_MEM}, v{V_LM0+k}')
    A(f'v_mul_u32_u24 v{T0}, {MEMSTRIDE}, v{I7}')
    A(f'v_lshrrev_b32 v{T1}, 3, v{I}')
    A(f'v_mul_u32_u24 v{T1}, {HOFF}, v{T1}')
    A(f'v_add_u32 v{T0}, v{T0}, v{T1}')
    A(f'v_lshl_add_u32 v{V_LB}, v{G}, 4, v{T0}')
    A(f'v_add_u32 v{V_LB}, {L_MEM}, v{V_LB}')
    A(f'v_lshrrev_b32 v{T0}, 1, v{G}')
    A(f'v_lshlrev_b32 v{T0}, 10, v{T0}')
    A(f'v_and_b32 v{T1}, 1, v{G}')
    A(f'v_lshl_add_u32 v{T0}, v{T1}, 9, v{T0}')
    A(f'v_lshl_add_u32 v{V_LKV}, v{I}, 4, v{T0}')
    A(f'v_lshlrev_b32 v{V_DM3A}, 4, v{L}')
    A(f'v_lshlrev_b32 v{T0}, 12, v{L}')
    A(f's_lshl_b32 s{S_t0}, s{S_H}, 7')
    A(f'v_add_u32 v{T0}, s{S_t0}, v{T0}')
    A(f'v_cmp_gt_u32 vcc, 2, v{L}')
    A(f'v_mov_b32 v{T1}, {BIG}')
    A('s_nop 0')
    A(f'v_cndmask_b32 v{V_PRG}, v{T1}, v{T0}, vcc')
    A(f's_lshl_b32 s{S_t0}, s{S_H}, 2')
    A(f's_add_u32 s{S_t0}, s{S_t0}, s{S_C}')
    A(f's_lshl_b32 s{S_t0}, s{S_t0}, 7')
    A(f'v_mov_b32 v{T0}, s{S_t0}')
    A(f'v_cmp_eq_u32 vcc, 192, v0')
    A('s_nop 1')
    A(f'v_cndmask_b32 v{V_CPF}, v{T1}, v{T0}, vcc')
    for k in range(4): A(f'v_mov_b32 v{V_NEG+k}, -1')
    A(f'v_mov_b32 v{V_SEL}, 0')
    A(f'v_mov_b32 v{V_SEL+1}, 0')
    for m, (reg, val) in enumerate(((0, 0x3F80), (0, 0x3F800000), (1, 0x3F80), (1, 0x3F800000))):
        A(f'v_cmp_eq_u32 vcc, {m}, v{I}')
        A(f'v_mov_b32 v{T0}, {hex(val)}')
        A('s_nop 0')
        A(f'v_cndmask_b32 v{V_SEL+reg}, v{V_SEL+reg}, v{T0}, vcc')
    A(f'v_mov_b32 v{V_SEL+2}, v{V_SEL}')
    A(f'v_mov_b32 v{V_SEL+3}, v{V_SEL+1}')
    for tt in range(3):
        A(f'v_mov_b32 v{V_VOM+4*tt+2}, 0')
        A(f'v_mov_b32 v{V_VOM+4*tt+3}, 0')
    A(f'v_mov_b32 v{V_PM+2}, 0')
    A(f'v_mov_b32 v{V_PM+3}, 0')
    A(f'v_mov_b32 v{T0}, 0x3f803f80')
    A(f'v_mov_b32 v{T1}, 0x3f003f00')
    for r in range(4):
        A(f'v_accvgpr_write_b32 a{A_ONE+r}, v{T0}')
        A(f'v_accvgpr_write_b32 a{A_HALF+r}, v{T1}')
    A.c('initial poison (both parities)')
    A(f'v_mov_b32 v{V_CPV}, 0')
    A(f's_mov_b32 s{S_t0}, {C_CPROG}')
    A(f'buffer_store_dword v{V_CPV}, v{V_CPF}, {WSR}, s{S_t0} offen sc1')
    for sl in range(4):
        A(f's_mov_b32 s{S_t0}, {QV_SLOT(sl)[0]}')
        A(f'buffer_store_dwordx2 {vr(V_NEG,2)}, v{V_QKST}, {WSR}, s{S_t0} offen sc1')
        A(f'buffer_store_dwordx2 {vr(V_NEG,2)}, v{V_VST}, {WSR}, s{S_t0} offen sc1')
        A(f's_mov_b32 s{S_t0}, {P_SLOT(sl)[0]}')
        A(f'buffer_store_dwordx4 {vr(V_NEG,4)}, v{V_P4}, {WSR}, s{S_t0} offen sc1')
        A(f'buffer_store_dwordx2 {vr(V_NEG,2)}, v{V_P2}, {WSR}, s{S_t0} offen sc1')
        A(f's_mov_b32 s{S_t0}, {M_SLOT(sl)[0]}')
        A(f'buffer_store_dwordx2 {vr(V_NEG,2)}, v{V_MS}, {WSR}, s{S_t0} offen sc1')
        for par in range(2):
            A(f's_mov_b32 s{S_t0}, {X_SLOT(sl)[0] + par*8192}')
            A(f'buffer_store_dwordx4 {vr(V_NEG,4)}, v{V_XS}, {WSR}, s{S_t0} offen sc1')
        if sl == 2: A('s_waitcnt vmcnt(30)')
    tl(A, 9)
    A('s_waitcnt vmcnt(%d)' % (7 if TL_ON[0] else 6))
    tl(A, 10)
    verdict_issue(A, 'c')
    A('s_waitcnt vmcnt(0)')
    tl(A, 11)
    A('s_barrier')
    A(f's_cmp_lg_u32 s{S_W}, 0')
    A('s_cbranch_scc1 L_c_arrived')
    verdict_eval(A, 'c')
    A('s_cmp_lg_u32 s79, 0')
    A('s_cbranch_scc1 L_c_arrived')
    arrive(A)
    A('L_c_arrived:')
    tl(A, 1)
    A.c('weights tr-read')
    R_, CQ = V_T+6, V_T+7
    A(f'v_bfe_u32 v{R_}, v{L}, 2, 2')
    A(f'v_and_b32 v{CQ}, 3, v{L}')
    A(f'v_lshl_add_u32 v{T0}, v{G}, 3, v{R_}')
    A(f'v_lshlrev_b32 v{T0}, 6, v{T0}')
    A(f'v_lshl_add_u32 v{T0}, v{CQ}, 3, v{T0}')
    A(f's_and_b32 s{S_t0}, s{S_W}, 1')
    A(f's_lshl_b32 s{S_t0}, s{S_t0}, 5')
    A(f'v_add_u32 v{T0}, s{S_t0}, v{T0}')
    A(f's_lshr_b32 s{S_t1}, s{S_W}, 1')
    A(f's_mul_i32 s{S_t2}, s{S_t1}, 40960')
    A(f'v_add_u32 v{T1}, s{S_t2}, v{T0}')
    for t in range(20):
        for hf in range(2):
            A(f'ds_read_b64_tr_b16 {ar(A_QK+4*t+2*hf,2)}, v{T1} offset:{t*2048+hf*256}')
        if t % 4 == 3: A('s_waitcnt lgkmcnt(0)')
    A(f's_mul_i32 s{S_t3}, s{S_t1}, {10*2048}')
    A(f's_add_u32 s{S_t3}, s{S_t3}, 81920')
    A(f'v_add_u32 v{T1}, s{S_t3}, v{T0}')
    for t in range(10):
        for hf in range(2):
            A(f'ds_read_b64_tr_b16 {ar(A_V+4*t+2*hf,2)}, v{T1} offset:{t*2048+hf*256}')
        if t % 4 == 3: A('s_waitcnt lgkmcnt(0)')
    A('s_waitcnt lgkmcnt(0)')
    A(f'v_lshl_add_u32 v{T0}, v{G}, 3, v{R_}')
    A(f'v_mul_u32_u24 v{T0}, 320, v{T0}')
    A(f'v_add_u32 v{T0}, 122880, v{T0}')
    A(f's_lshl_b32 s{S_t0}, s{S_W}, 6')
    A(f'v_lshl_add_u32 v{T1}, v{CQ}, 4, v{T0}')
    A(f'v_add_u32 v{T1}, s{S_t0}, v{T1}')
    A(f's_and_b32 s{S_t0}, s{S_W}, 1')
    A(f's_lshl_b32 s{S_t0}, s{S_t0}, 5')
    A(f's_add_u32 s{S_t0}, s{S_t0}, 256')
    A(f'v_lshl_add_u32 v{T2}, v{CQ}, 3, v{T0}')
    A(f'v_add_u32 v{T2}, s{S_t0}, v{T2}')
    for tt in range(3):
        for s4 in range(4):
            for hf in range(2):
                if tt < 2:
                    A(f'ds_read_b64_tr_b16 {ar(A_O+16*tt+4*s4+2*hf,2)}, v{T1} offset:{(32*s4+4*hf)*320 + 8*tt}')
                else:
                    A(f'ds_read_b64_tr_b16 {ar(A_O+16*tt+4*s4+2*hf,2)}, v{T2} offset:{(32*s4+4*hf)*320}')
        A('s_waitcnt lgkmcnt(0)')
    A('s_barrier')
    tl(A, 12)
    arrive_finish(A, 'c')
    verdict_bcast(A, 'c')
    A.c('prologue kv + mem0')
    A(f's_mov_b32 s{S_STEP}, 0')
    A(f's_load_dwordx2 s[4:5], s[0:1], 8')
    A('s_waitcnt lgkmcnt(0)')
    setsrd(A, 4, 10240)
    for k in range(3):
        A(f'v_add_u32 v{T0}, {64*k}, v{L}')
        if k == 2:
            A(f'v_cmp_le_u32 vcc, 160, v{T0}')
            A(f'v_subrev_u32 v{T1}, 32, v{T0}')
            A('s_nop 0')
            A(f'v_cndmask_b32 v{T0}, v{T0}, v{T1}, vcc')
        A(f'v_cmp_le_u32 vcc, 80, v{T0}')
        A(f'v_subrev_u32 v{T1}, 80, v{T0}')
        A('s_nop 0')
        A(f'v_cndmask_b32 v{T0}, v{T0}, v{T1}, vcc')
        A(f'v_cndmask_b32 v{T1}, 0, 1, vcc')
        A(f's_lshl_b32 s{S_t0}, s{S_W}, 1')
        A(f'v_add_u32 v{T1}, s{S_t0}, v{T1}')
        A(f'v_lshlrev_b32 v{T0}, 4, v{T0}')
        A(f'v_mul_u32_u24 v{T2}, 1280, v{T1}')
        A(f'v_add_u32 v{T2}, v{T2}, v{T0}')
        A(f'buffer_load_dwordx4 {vr(V_B+4*k,4)}, v{T2}, s[{S_T}:{S_T+3}], 0 offen')
        A(f'v_add_u32 v{V_B+16}, {HOFF-640}, v{T0}')
        A(f'v_cmp_le_u32 vcc, 640, v{T0}')
        A(f'v_mul_u32_u24 v{T1}, {MEMSTRIDE}, v{T1}')
        A('s_nop 0')
        A(f'v_cndmask_b32 v{T0}, v{T0}, v{V_B+16}, vcc')
        A(f'v_add_u32 v{V_B+20+k}, v{T1}, v{T0}')
        A(f'v_add_u32 v{V_B+20+k}, {L_MEM}, v{V_B+20+k}')
    A('s_waitcnt vmcnt(0)')
    for k in range(3):
        A(f'ds_write_b128 v{V_B+20+k}, {vr(V_B+4*k,4)}')
    A('s_waitcnt lgkmcnt(0)')
    A(f's_cmp_lg_u32 s{S_W}, 0')
    A('s_cbranch_scc1 L_c_census_done')
    A('L_c_census:')
    A(f'v_mov_b32 v{T0}, {GO}')
    A(f'global_load_dword v{T1}, v{T0}, s[{S_DBG}:{S_DBG+1}] sc1')
    A('s_waitcnt vmcnt(0)')
    A(f'v_readfirstlane_b32 s{S_t0}, v{T1}')
    A(f's_cmp_lg_u32 s{S_t0}, 0')
    A('s_cbranch_scc1 L_c_census_done')
    A('s_sleep 2')
    retry(A, 'L_c_census')
    A('L_c_census_done:')
    A('s_barrier')
    tl(A, 2)
    A(f'v_mov_b32 v{T0}, 64')
    A(f'global_load_dword v{V_B}, v{T0}, s[{S_DBG}:{S_DBG+1}] sc1')
    A('s_waitcnt vmcnt(0)')
    A(f'v_readfirstlane_b32 s{S_PAR}, v{V_B}')
    A(f's_and_b32 s{S_PAR}, s{S_PAR}, 1')
    if 'xfar' in OPT: A(f's_xor_b32 s{S_PAR}, s{S_PAR}, 1')
    A(f's_lshl_b32 s{S_PAR}, s{S_PAR}, 13')
    for nm, base, fn in (('Q', S_QV, QV_SLOT), ('P', S_PR, P_SLOT), ('M', S_MR, M_SLOT), ('X', S_XR, X_SLOT)):
        for k in range(4):
            addr, pg = fn(k)
            if nm == 'X': A(f's_add_u32 s{base+k}, s{S_PAR}, {addr}')
            else: A(f's_mov_b32 s{base+k}, {addr}')
    if 'noflag' not in OPT:
        A(f's_mov_b32 s{S_t0}, {C_PROG1}')
        A('L_c_w01:')
        A(f'buffer_load_dword v{T1}, v{V_PRG}, {WSR}, s{S_t0} offen sc1')
        A('s_waitcnt vmcnt(0)')
        A(f'v_cmp_gt_u32 vcc, 2, v{T1}')
        A('s_nop 3')
        A('s_and_b64 vcc, vcc, 3')
        A('s_cbranch_vccz L_c_w01_ok')
        A('s_sleep 2')
        retry(A, 'L_c_w01')
        A('L_c_w01_ok:')
        tl(A, 13)
    A(f's_lshl_b32 s{S_t3}, s{S_H}, 13')
    A(f's_lshl_b32 s{S_t1}, s{S_W}, 11')
    for seg in range(2):
        for mat in range(2):
            for k in range(2):
                A(f's_add_u32 m0, s{S_t1}, {L_KV + seg*16384 + mat*8192 + k*1024}')
                A(f's_add_u32 s{S_t2}, s{S_t1}, s{S_t3}')
                A(f's_add_u32 s{S_t2}, s{S_t2}, {(WS_KX, WS_VX)[mat] + seg*32*8192 + k*1024}')
                A(f'buffer_load_dwordx4 v{V_DM3A}, {WSR}, s{S_t2} offen sc1 lds')
    A('s_waitcnt vmcnt(0)')
    A('s_barrier')
    vox_reads(A, 0)
    vox_compute(A)
    A(f's_mov_b32 s{S_CPO}, {C_CPROG}')
    A(f's_mov_b32 s{S_KM}, {WS_KM}')
    A(f's_mov_b32 s{S_VM}, {WS_VM}')
    A(f's_lshl_b32 s{S_SEG2}, s{S_H}, 13')
    A(f's_add_u32 s{S_SEG2}, s{S_SEG2}, {2*32*8192}')

def ablate(A, start, kinds):
    keep = []
    for l in A.lines[start:]:
        t = l.strip()
        if any(t.startswith(k) for k in kinds): continue
        keep.append(l)
    A.lines[start:] = keep

DEFERRED = []
def flush_deferred():
    while DEFERRED: DEFERRED.pop(0)()

def gen_step(A, P, u, safe=False):
    cur, n1, p2, n3 = u, (u+1) & 3, (u+2) & 3, (u+3) & 3
    QC, QP = S_QV+cur, S_QV+p2
    PC, PP = S_PR+cur, S_PR+p2
    MC, MW, MP = S_MR+cur, S_MR+n1, S_MR+n3
    XC, XPn = S_XR+cur, S_XR+p2
    sf = f'_{u}' if not safe else f'_s{u}'
    SC = ' sc1' if safe else ''
    pre = 's' if safe else ''
    XLD = {0: 'sc1', 1: 'sc0 sc1', 2: 'sc1 nt', 3: 'nt'}[optval('xld', 0)]
    XST = {0: 'sc1', 1: 'sc0 sc1', 2: 'sc1 nt'}[optval('xst', 0)]
    def pipe_poll(name, nsets, nloads, issue, regs, pre, ok, gap, chk=None):
        lab = f'L_c_{name}{sf}'
        for k in range(nsets):
            issue(k)
            if k < nsets-1: nops(A, gap)
        if 'inlinepoll' in OPT:
            A(f'{lab}_loop:')
            for k in range(nsets):
                A(f's_waitcnt vmcnt({nloads*(nsets-1)})')
                pre(k)
                (chk or check)(A, regs(k))
                A(f's_cbranch_vccz {lab}_ok{k}')
                issue(k)
            retry(A, f'{lab}_loop', name)
            for k in reversed(range(nsets)):
                A(f'{lab}_ok{k}:')
                if 'cntset' in OPT:
                    idx = {'A': 0, 'R': 3, 'RS': 6, 'X': 9}[name] + k
                    A(f's_add_u32 s{S_PROF+idx}, s{S_PROF+idx}, 1')
                ok(k)
                if k > 0: A(f's_branch {lab}_done')
            A(f'{lab}_done:')
            return
        A(f's_waitcnt vmcnt({nloads*(nsets-1)})')
        pre(0)
        (chk or check)(A, regs(0))
        A(f's_cbranch_vccnz {lab}_retry')
        if 'cntset' in OPT:
            idx = {'A': 0, 'R': 3, 'RS': 6, 'X': 9}[name]
            A(f's_add_u32 s{S_PROF+idx}, s{S_PROF+idx}, 1')
        ok(0)
        A(f'{lab}_done:')
        def tail():
            A(f'{lab}_retry:')
            issue(0)
            A(f'{lab}_loop:')
            order = list(range(1, nsets)) + [0]
            for k in order:
                A(f's_waitcnt vmcnt({nloads*(nsets-1)})')
                pre(k)
                (chk or check)(A, regs(k))
                A(f's_cbranch_vccz {lab}_ok{k}')
                issue(k)
            retry(A, f'{lab}_loop', name)
            for k in range(nsets):
                A(f'{lab}_ok{k}:')
                ok(k)
                A(f's_branch {lab}_done')
        DEFERRED.append(tail)
    A(f'L_c_loop{sf}:')
    P.stamp(A, 11, True)
    nops(A, optval('adelay', 0))
    NAG = 4 if 'ag3' in OPT else 3
    ASET = [V_VV, V_R, V_XD]
    def a_issue(k):
        for q in range(NAG):
            A(f'buffer_load_dwordx4 {vr(ASET[k]+4*q,4)}, v{V_M0+q}, {WSR}, s{MC} offen sc1')
    def a_pre(k):
        for q in range(NAG):
            A(f'ds_write_b128 v{V_LM0+q}, {vr(ASET[k]+4*q,4)}')
    if 'ag3' in OPT:
        A(f's_cmp_eq_u32 s{S_W}, 3')
        A(f's_cbranch_scc1 L_c_A{sf}_done')
    pipe_poll('A', optval('nA', 1), NAG, a_issue, lambda k: range(ASET[k], ASET[k]+4*NAG), a_pre, lambda k: None, optval('gapA', 40))
    P.stamp(A, 8, True)
    A('s_waitcnt lgkmcnt(0)')
    A('s_barrier')
    P.stamp(A, 0)
    if u == 0: A(f'L_c_afterA0{pre}:')
    A.c('[A1] qk mfma')
    mark = len(A.lines)
    for t in range(10):
        A(f'ds_read_b128 {vr(V_B+4*t,4)}, v{V_LB} offset:{64*t}')
    for t in range(10):
        A(f's_waitcnt lgkmcnt({9-t})')
        mfma(A, vr(V_ACC,4), ar(A_QK+4*t,4), vr(V_B+4*t,4), '0' if t == 0 else vr(V_ACC,4))
        mfma(A, vr(V_ACC+4,4), ar(A_QK+4*(t+10),4), vr(V_B+4*t,4), '0' if t == 0 else vr(V_ACC+4,4))
    NV0 = 0 if 'qkfast' in OPT else 2
    for t in range(NV0):
        mfma(A, vr(V_ACV,4), ar(A_V+4*t,4), vr(V_B+4*t,4), '0' if t == 0 else vr(V_ACV,4))
    A(f's_nop {7-NV0}')
    for r in range(4):
        A(f'v_add_f32_dpp v{V_ACC+r}, v{V_ACC+4+r}, v{V_ACC+r} row_ror:8 row_mask:0xf bank_mask:0xf')
    A(f'v_cvt_pk_bf16_f32 v{V_O}, v{V_ACC}, v{V_ACC+1}')
    A(f'v_cvt_pk_bf16_f32 v{V_O+1}, v{V_ACC+2}, v{V_ACC+3}')
    A(f'buffer_store_dwordx2 {vr(V_O,2)}, v{V_QKST}, {WSR}, s{QC} offen{SC}')
    P.stamp(A, 1)
    for t in range(NV0, 10):
        mfma(A, vr(V_ACV,4), ar(A_V+4*t,4), vr(V_B+4*t,4), '0' if t == 0 else vr(V_ACV,4))
    def kx_reads():
        for kt in range(2):
            for s4 in range(4):
                A(f'ds_read_b128 {vr(V_KX+16*kt+4*s4,4)}, v{V_LKV} offset:{L_KV + cur*16384 + 2048*s4 + 256*kt}')
    RE = [V_B+12, V_B+28]
    if 'rearly' in OPT:
        nops(A, optval('re0', 0))
        A(f'buffer_load_dwordx4 {vr(RE[0],4)}, v{V_RLD}, {WSR}, s{QC} offen sc1')
        kx_reads()
    else:
        kx_reads()
    A(f'v_cvt_pk_bf16_f32 v{V_O+2}, v{V_ACV}, v{V_ACV+1}')
    A(f'v_cvt_pk_bf16_f32 v{V_O+3}, v{V_ACV+2}, v{V_ACV+3}')
    if 'rearly' in OPT:
        A(f'buffer_load_dwordx4 {vr(RE[1],4)}, v{V_RLD}, {WSR}, s{QC} offen sc1')
    A(f'buffer_store_dwordx2 {vr(V_O+2,2)}, v{V_VST}, {WSR}, s{QC} offen{SC}')
    if 'rearly' in OPT:
        for k, cnt in ((0, 2), (1, 1)):
            A(f's_waitcnt vmcnt({cnt})')
            A(f'ds_write_b128 v{V_LRW}, {vr(RE[k],4)}')
            check(A, range(RE[k], RE[k]+4))
            A(f's_cbranch_vccz L_c_R{sf}_done')
    if 'skipA1' in OPT: ablate(A, mark, ['v_mfma', 'v_add_f32_dpp'])
    P.stamp(A, 2)
    A.c('[B0] R piece -> LDS')
    nops(A, optval('rdelay', 0))
    if 'skipR' in OPT: A(f's_branch L_c_R{sf}_done')
    RSET = [V_B, V_B+4, V_B+8]
    def vloads():
        for s4 in range(4):
            A(f'buffer_load_dwordx4 {vr(V_VV+4*s4,4)}, v{V_VLD}, {WSR}, s{QC} offen offset:{512*s4} sc1')
    rld = lambda k: A(f'buffer_load_dwordx4 {vr(RSET[k],4)}, v{V_RLD}, {WSR}, s{QC} offen sc1')
    if 'vearly' in OPT:
        rld(0); nops(A, optval('gapR', 20)); rld(1); nops(A, optval('gapV', 16)); vloads()
        for k, cnt in ((0, 5), (1, 4)):
            A(f's_waitcnt vmcnt({cnt})')
            A(f'ds_write_b128 v{V_LRW}, {vr(RSET[k],4)}')
            check(A, range(RSET[k], RSET[k]+4))
            A(f's_cbranch_vccz L_c_Rv{sf}')
    pipe_poll('R', optval('nR', 1), 1, rld,
              lambda k: range(RSET[k], RSET[k]+4),
              lambda k: A(f'ds_write_b128 v{V_LRW}, {vr(RSET[k],4)}'),
              lambda k: None, optval('gapR', 20))
    nops(A, optval('vdelay', 0))
    if 'skipV' not in OPT and 'vearly' not in OPT and 'vafter' not in OPT: vloads()
    A(f'L_c_Rv{sf}:')
    A('s_waitcnt lgkmcnt(0)')
    A('s_barrier')
    P.stamp(A, 3)
    if 'vafter' in OPT: vloads()
    OPT1 = 'noopt1' not in OPT
    V_KD = V_B+20
    late = [f'v_mov_b32 v{V_CPV}, s{S_STEP}',
            f'buffer_store_dword v{V_CPV}, v{V_CPF}, {WSR}, s{S_CPO} offen sc1',
            f'buffer_store_dwordx2 {vr(V_NEG,2)}, v{V_QKST}, {WSR}, s{QP} offen{SC}',
            f'buffer_store_dwordx2 {vr(V_NEG,2)}, v{V_VST}, {WSR}, s{QP} offen{SC}',
            f'buffer_store_dwordx4 {vr(V_NEG,4)}, v{V_P4}, {WSR}, s{PP} offen{SC}',
            f'buffer_store_dwordx2 {vr(V_NEG,2)}, v{V_P2}, {WSR}, s{PP} offen{SC}',
            f'buffer_store_dwordx2 {vr(V_NEG,2)}, v{V_MS}, {WSR}, s{MP} offen{SC}']
    NLATE = 6
    if 'xplate' in OPT:
        late.append(f'buffer_store_dwordx4 {vr(V_NEG,4)}, v{V_XS}, {WSR}, s{XPn} offen sc1')
        NLATE += 1
    for s4 in range(4):
        A(f'ds_read_b128 {vr(V_R+4*s4,4)}, v{V_LRR} offset:{512*s4}')
        if OPT1: A(f'ds_read_b128 {vr(V_KD+4*s4,4)}, v{V_LRK} offset:{512*s4}')
    if not OPT1:
        for l in late: A(l)
        late = []
    A.c('[B1] scores')
    mark = len(A.lines)
    for s4 in range(4):
        c0 = '0' if s4 == 0 else None
        A(f's_waitcnt lgkmcnt({(6-2*s4) if OPT1 else (3-s4)})')
        mfma(A, vr(V_S,4), vr(V_KX+4*s4,4), vr(V_R+4*s4,4), c0 or vr(V_S,4))
        if late: A(late.pop(0))
        mfma(A, vr(V_S+4,4), vr(V_KX+16+4*s4,4), vr(V_R+4*s4,4), c0 or vr(V_S+4,4))
        if late: A(late.pop(0))
        mfma(A, vr(V_S+8,4), vr((V_KD if OPT1 else V_R)+4*s4,4), vr(V_R+4*s4,4), c0 or vr(V_S+8,4))
    for l in late: A(l)
    if 'skipB' in OPT: ablate(A, mark, ['v_mfma'])
    def vcheck():
        A(f's_waitcnt vmcnt({NLATE})')
        A.c('[B2] V check')
        if 'skipV' in OPT: A(f's_branch L_c_okV{sf}')
        check(A, range(V_VV, V_VV+16))
        A(f's_cbranch_vccnz L_c_pollV{sf}')
        A(f'L_c_okV{sf}:')
        def tail():
            A(f'L_c_pollV{sf}:')
            if 'cntset' in OPT: A(f's_add_u32 s{S_PROF+12}, s{S_PROF+12}, 1')
            for s4 in range(4):
                A(f'buffer_load_dwordx4 {vr(V_VV+4*s4,4)}, v{V_VLD}, {WSR}, s{QC} offen offset:{512*s4} sc1')
            A('s_waitcnt vmcnt(0)')
            check(A, range(V_VV, V_VV+16))
            A(f's_cbranch_vccz L_c_okV{sf}')
            retry(A, f'L_c_pollV{sf}', 'V')
        DEFERRED.append(tail)
    VLATE = 'vlate' in OPT
    if not VLATE: vcheck()
    P.stamp(A, 10, True)
    if u == 3:
        A(f's_cmp_eq_u32 s{S_STEP}, {NSEG-1}')
        A(f's_cbranch_scc1 L_c_final')
    if VLATE: A('s_nop 5')
    A.c('[B4] softmax (VOm mfma interleaved)')
    mark = len(A.lines)
    SM = V_S+8; MX = V_T+4
    vom = [(s4, tt) for s4 in range(4) for tt in range(3)]
    vom_on = [not VLATE]
    def vom_next():
        if not vom or not vom_on[0]: return
        s4, tt = vom.pop(0)
        mfma(A, vr(V_F+4*tt,4), vr(V_VV+4*s4,4), ar(A_O+16*tt+4*s4,4), '0' if s4 == 0 else vr(V_F+4*tt,4))
    if not OPT1:
        for r in range(4): A(f'v_mov_b32 v{V_T+r}, v{SM+r}')
    A(f'v_max3_f32 v{MX}, v{V_S}, v{V_S+1}, v{V_S+2}')
    A(f'v_max3_f32 v{MX+1}, v{V_S+3}, v{V_S+4}, v{V_S+5}')
    if not OPT1:
        for r in range(4): A(f'v_permlane32_swap_b32 v{V_T+r}, v{SM+r}')
    vom_next()
    A(f'v_max3_f32 v{MX}, v{MX}, v{V_S+6}, v{V_S+7}')
    A(f'v_max3_f32 v{MX+1}, v{MX+1}, v{SM}, v{SM+1}')
    A(f'v_max3_f32 v{MX}, v{MX}, v{SM+2}, v{SM+3}')
    A(f'v_max_f32 v{MX}, v{MX}, v{MX+1}')
    def allreduce(op, reg, tmp, fill=False):
        for perm in ('v_permlane16_swap_b32', 'v_permlane32_swap_b32'):
            A(f'v_mov_b32 v{tmp}, v{reg}')
            if fill and vom_on[0]: vom_next(); A('s_nop 0')
            else: A('s_nop 1')
            A(f'{perm} v{tmp}, v{reg}')
            A(f'{op} v{reg}, v{reg}, v{tmp}')
    allreduce('v_max_f32', MX, MX+1, True)
    A(f'v_mul_f32 v{MX}, s{S_SCL}, v{MX}')
    if VLATE:
        vcheck(); vom_on[0] = True
    vom_next()
    for r in range(0, 12, 2):
        A(f'v_pk_fma_f32 {vr(V_S+r,2)}, {vr(V_S+r,2)}, s[{S_SCL}:{S_SCL+1}], {vr(MX,2)} op_sel_hi:[1,1,0] neg_lo:[0,0,1] neg_hi:[0,0,1]')
        if r % 4 == 2 or VLATE: vom_next()
    for r in range(12):
        A(f'v_exp_f32 v{V_S+r}, v{V_S+r}')
        if r % 2 == 1 or (VLATE and r < 2): vom_next()
    while vom: vom_next()
    A(f'v_cvt_pk_bf16_f32 v{V_PX}, v{V_S}, v{V_S+1}')
    A(f'v_cvt_pk_bf16_f32 v{V_PX+1}, v{V_S+2}, v{V_S+3}')
    A(f'v_cvt_pk_bf16_f32 v{V_PX+2}, v{V_S+4}, v{V_S+5}')
    A(f'v_cvt_pk_bf16_f32 v{V_PX+3}, v{V_S+6}, v{V_S+7}')
    A(f'v_cvt_pk_bf16_f32 v{V_PM}, v{SM}, v{SM+1}')
    A(f'v_cvt_pk_bf16_f32 v{V_PM+1}, v{SM+2}, v{SM+3}')
    SU = V_T+6; X2 = V_T+7
    FX = [V_ACC, V_ACC+4, V_ACV]
    if OPT1:
        mfma(A, vr(V_T,4), ar(A_ONE,4), vr(V_PX,4), '0')
    for tt in range(3):
        mfma(A, vr(FX[tt],4), vr(V_VOX+4*tt,4), vr(V_PX,4), '0')
    for tt in range(3):
        A(f'v_cvt_pk_bf16_f32 v{V_VOM+4*tt}, v{V_F+4*tt}, v{V_F+4*tt+1}')
        A(f'v_cvt_pk_bf16_f32 v{V_VOM+4*tt+1}, v{V_F+4*tt+2}, v{V_F+4*tt+3}')
    if OPT1:
        mfma(A, vr(V_T,4), ar(A_HALF,4), vr(V_PM,4), vr(V_T,4))
        for tt in range(3):
            mfma(A, vr(FX[tt],4), vr(V_VOM+4*tt,4), vr(V_PM,4), vr(FX[tt],4))
        A('s_nop 4')
        A(f'v_rcp_f32 v{SU}, v{V_T}')
        A('s_nop 1')
    else:
        A(f'v_pk_add_f32 {vr(V_T,2)}, {vr(SM,2)}, {vr(SM+2,2)}')
        A(f'v_pk_add_f32 {vr(V_T+2,2)}, {vr(V_S,2)}, {vr(V_S+2,2)}')
        for tt in range(3):
            mfma(A, vr(FX[tt],4), vr(V_VOM+4*tt,4), vr(V_PM,4), vr(FX[tt],4))
        A(f'v_pk_add_f32 {vr(V_T+4,2)}, {vr(V_S+4,2)}, {vr(V_S+6,2)}')
        A(f'v_pk_add_f32 {vr(V_T+2,2)}, {vr(V_T+2,2)}, {vr(V_T+4,2)}')
        A(f'v_pk_fma_f32 {vr(V_T,2)}, {vr(V_T,2)}, 0.5, {vr(V_T+2,2)} op_sel_hi:[1,0,1]')
        A(f'v_add_f32 v{SU}, v{V_T}, v{V_T+1}')
        allreduce('v_add_f32', SU, X2)
        A(f'v_rcp_f32 v{SU}, v{SU}')
        A('s_nop 0')
    PO = [V_PO, V_PO+2, V_PO2]
    for tt in range(3):
        for r in (0, 2):
            A(f'v_pk_mul_f32 {vr(FX[tt]+r,2)}, {vr(FX[tt]+r,2)}, {vr(SU,2)} op_sel_hi:[1,0]')
        A(f'v_cvt_pk_bf16_f32 v{PO[tt]}, v{FX[tt]}, v{FX[tt]+1}')
        A(f'v_cvt_pk_bf16_f32 v{PO[tt]+1}, v{FX[tt]+2}, v{FX[tt]+3}')
        if tt == 1: A(f'buffer_store_dwordx4 {vr(V_PO,4)}, v{V_P4}, {WSR}, s{PC} offen{SC}')
    A(f'buffer_store_dwordx2 {vr(V_PO2,2)}, v{V_P2}, {WSR}, s{PC} offen{SC}')
    if 'skipB' in OPT:
        ablate(A, mark, ['v_', 's_nop'])
        for r in (V_PO, V_PO+1, V_PO+2, V_PO+3, V_PO2, V_PO2+1): A.lines.insert(mark, f'    v_mov_b32 v{r}, 0')
    P.stamp(A, 4)
    vox_reads(A, n1)
    A(f's_cmp_eq_u32 s{S_HASITEM}, 0')
    A(f's_cbranch_scc1 L_c_noitem{sf}')
    A.c('[C1] local RS')
    nops(A, optval('rsdelay', 0))
    if 'skipRS' in OPT:
        for r in range(4): A(f'v_mov_b32 v{V_RSD+4+r}, 0')
        A(f's_branch L_c_RS{sf}_done')
    SSET = [V_RSD, V_B+20, V_B+24]
    def rs_issue(k):
        A(f'buffer_load_dwordx2 {vr(SSET[k],2)}, v{V_RS0}, {WSR}, s{PC} offen sc1')
        A(f'buffer_load_dwordx2 {vr(SSET[k]+2,2)}, v{V_RS1}, {WSR}, s{PC} offen sc1')
    pipe_poll('RS', optval('nS', 1), 2, rs_issue, lambda k: range(SSET[k], SSET[k]+4),
              lambda k: mfma(A, vr(V_RSD+4,4), vr(V_SEL,4), vr(SSET[k],4), '0'), lambda k: None, optval('gapS', 20))
    P.stamp(A, 12, True)
    A('s_nop 3')
    if 'xtag' in OPT:
        for r in range(4): A(f'v_and_or_b32 v{V_RSD+4+r}, v{V_RSD+4+r}, -2, v{V_PH}')
    A(f'buffer_store_dwordx4 {vr(V_RSD+4,4)}, v{V_XS}, {WSR}, s{XC} offen {XST}')
    if 'xplate' not in OPT and 'xtag' not in OPT and optval('xp3on', 0) != 1: A(f'buffer_store_dwordx4 {vr(V_NEG,4)}, v{V_XS}, {WSR}, s{XPn} offen sc1')
    P.stamp(A, 5)
    NVX = optval('nvx', 3)
    vox_tiles(A, list(range(NVX)))
    P.stamp(A, 6)
    A.c('[C2] cross')
    nops(A, optval('xdelay', 0))
    if 'skipX' in OPT: A(f's_branch L_c_X{sf}_done')
    XLS = (S_XR+n3) if 'xfake' in OPT else XC
    XSET = [V_XD, V_B+28, V_R]
    OWN = V_RSD+4
    def x_issue(k):
        for q in range(3):
            A(f'buffer_load_dwordx4 {vr(XSET[k]+4*q,4)}, v{V_XL+q}, {WSR}, s{XLS} offen {XLD}')
    def x_ok(k):
        X = XSET[k]
        for r in (0, 2):
            A(f'v_pk_add_f32 {vr(V_T+r,2)}, {vr(X+r,2)}, {vr(X+8+r,2)}')
            A(f'v_pk_add_f32 {vr(OWN+r,2)}, {vr(OWN+r,2)}, {vr(X+4+r,2)}')
    def tagcheck(A, regs):
        r = list(regs)
        A(f'v_bitop3_b32 v{V_T+4}, v{r[0]}, v{r[1]}, v{V_PH} bitop3:0x7e')
        A(f'v_bitop3_b32 v{V_T+5}, v{r[2]}, v{r[3]}, v{V_PH} bitop3:0x7e')
        cur = 0
        for x in r[4:]:
            A(f'v_bitop3_b32 v{V_T+4+cur}, v{V_T+4+cur}, v{x}, v{V_PH} bitop3:0xf6'); cur ^= 1
        A(f'v_or_b32 v{V_T+4}, v{V_T+4}, v{V_T+5}')
        A(f'v_and_b32 v{V_T+4}, 1, v{V_T+4}')
        A(f'v_cmp_ne_u32 vcc, 0, v{V_T+4}')
    pipe_poll('X', optval('nX', 1), 3, x_issue, lambda k: range(XSET[k], XSET[k]+12), lambda k: None, x_ok, optval('gapX', 40), (lambda A_, r_: A_('s_mov_b64 vcc, 0')) if 'xfake' in OPT else (tagcheck if 'xtag' in OPT else None))
    P.stamp(A, 9, True)
    for r in (0, 2):
        A(f'v_pk_add_f32 {vr(OWN+r,2)}, {vr(OWN+r,2)}, {vr(V_T+r,2)}')
    A(f'v_cvt_pk_bf16_f32 v{V_PO2}, v{OWN}, v{OWN+1}')
    A(f'v_cvt_pk_bf16_f32 v{V_PO2+1}, v{OWN+2}, v{OWN+3}')
    A(f'buffer_store_dwordx2 {vr(V_PO2,2)}, v{V_MS}, {WSR}, s{MW} offen{SC}')
    vox_tiles(A, list(range(NVX, 3)), wait=False)
    def noitem_path():
        A(f'L_c_noitem{sf}:')
        A(f's_cmp_lg_u32 s{S_W}, 3')
        A(f's_cbranch_scc1 L_c_w2{sf}')
        A(f's_mov_b32 s{S_t0}, {C_PROG1}')
        A(f'buffer_load_dword v{V_T+4}, v{V_PRG}, {WSR}, s{S_t0} offen sc1')
        if 'nopub' not in OPT: publish(A, QC)
        else: A('s_waitcnt vmcnt(0)')
        if optval('xp3on', 0) == 1 and 'xplate' not in OPT and 'xtag' not in OPT: A(f'buffer_store_dwordx4 {vr(V_NEG,4)}, v{V_XP3}, {WSR}, s{XPn} offen sc1')
        vox_compute(A)
        A(f's_cmp_gt_u32 s{S_STEP}, {NSEG-4}')
        A(f's_cbranch_scc1 L_c_stepend{sf}')
        if 'noflag' not in OPT:
            A(f's_add_u32 s{S_t1}, s{S_STEP}, 3')
            A(f'L_c_wk{sf}:')
            A(f'v_cmp_gt_u32 vcc, s{S_t1}, v{V_T+4}')
            A('s_nop 3')
            A('s_and_b64 vcc, vcc, 3')
            A(f's_cbranch_vccz L_c_wk{sf}_ok')
            A(f's_mov_b32 s{S_t0}, {C_PROG1}')
            A(f'buffer_load_dword v{V_T+4}, v{V_PRG}, {WSR}, s{S_t0} offen sc1')
            A('s_waitcnt vmcnt(0)')
            retry(A, f'L_c_wk{sf}')
            A(f'L_c_wk{sf}_ok:')
        if 'nodma' not in OPT:
            for mat, base in ((0, WS_KX), (1, WS_VX)):
                for uu in range(8):
                    A(f's_mov_b32 m0, {L_KV + p2*16384 + mat*8192 + uu*1024}')
                    A(f's_add_u32 s{S_t2}, s{S_SEG2}, {base + uu*1024}')
                    A(f'buffer_load_dwordx4 v{V_DM3A}, {WSR}, s{S_t2} offen sc1 lds')
        A(f's_branch L_c_stepend{sf}')
        A(f'L_c_w2{sf}:')
        vox_compute(A)
        A(f's_branch L_c_stepend{sf}')
    DEFERRED.append(noitem_path)
    A(f'L_c_stepend{sf}:')
    P.stamp(A, 7)
    A(f's_add_u32 s{S_KM}, s{S_KM}, 65536')
    A(f's_add_u32 s{S_VM}, s{S_VM}, 131072')
    A(f's_add_u32 s{S_SEG2}, s{S_SEG2}, {32*8192}')
    A(f's_add_u32 s{S_STEP}, s{S_STEP}, 1')
    if u == 3 and 'xtag' in OPT: A(f'v_xor_b32 v{V_PH}, 1, v{V_PH}')
    if 'nobar0' not in OPT: A('s_barrier')
    if u == 3 and TL_ON[0]:
        for k, st in enumerate((16, 32, 48)):
            lab = A.label('L_tlq')
            A(f's_cmp_lg_u32 s{S_STEP}, {st}')
            A(f's_cbranch_scc1 {lab}')
            tl(A, 6+k)
            A(f'{lab}:')
    if u == 3: A('s_branch L_c_loop_s0' if safe else 's_branch L_c_loop_0')

def publish(A, QC):
    A(f'buffer_load_dwordx4 {vr(V_B,4)}, v{V_KPL}, {WSR}, s{QC} offen sc1')
    A(f'buffer_load_dwordx4 {vr(V_B+4,4)}, v{V_VPL}, {WSR}, s{QC} offen sc1')
    A('s_waitcnt vmcnt(0)')
    A(f'buffer_store_dwordx4 {vr(V_B,4)}, v{V_KPUB}, {WSR}, s{S_KM} offen sc1')
    A(f'buffer_store_dwordx4 {vr(V_B+4,4)}, v{V_VPUB}, {WSR}, s{S_VM} offen sc1')

def gen_chain(A, prof):
    P = Prof(prof)
    if prof and 'trace' not in OPT: PROFCNT.update({'A': 8, 'R': 9, 'V': 10, 'RS': 11, 'X': 12})
    A.c('==== chain role ====')
    gen_prologue(A, P)
    if prof and 'trace' not in OPT:
        for k in range(16): A(f's_mov_b32 s{S_PROF+k}, 0')
        A(f's_memtime s[{S_PT}:{S_PT+1}]')
        A('s_waitcnt lgkmcnt(0)')
        A(f's_mov_b32 s{S_PT+2}, s{S_PT}')
    if 'cntset' in OPT:
        for k in range(16): A(f's_mov_b32 s{S_PROF+k}, 0')
    if 'tot' in OPT:
        A(f's_memrealtime s[{S_PROF}:{S_PROF+1}]')
        A(f's_memtime s[{S_PROF+4}:{S_PROF+5}]')
        A('s_waitcnt lgkmcnt(0)')
    tl(A, 3)
    A(f's_cmp_eq_u32 s{S_MODE}, 1')
    A('s_cbranch_scc1 L_c_afterA0s_far')
    A('s_branch L_c_afterA0')
    A('L_c_afterA0s_far:')
    A('s_branch L_c_afterA0s')
    A('.p2align 6')
    for k in range(optval('shift', 0)): A('s_nop 0')
    for u in range(4): gen_step(A, P, u)
    flush_deferred()
    if 'nosafe' in OPT:
        A('L_c_afterA0s:')
        A('s_branch L_timeout')
    else:
        A('.p2align 6')
        for u in range(4): gen_step(A, P, u, safe=True)
        flush_deferred()
    A('L_c_finals:')
    A('L_c_final:')
    if 'vlate' in OPT:
        A('L_c_fv:')
        for s4 in range(4):
            A(f'buffer_load_dwordx4 {vr(V_VV+4*s4,4)}, v{V_VLD}, {WSR}, s{S_QV+3} offen offset:{512*s4} sc1')
        A('s_waitcnt vmcnt(0)')
        check(A, range(V_VV, V_VV+16))
        A('s_cbranch_vccz L_c_fv_ok')
        retry(A, 'L_c_fv')
        A('L_c_fv_ok:')
    A(f's_cmp_lg_u32 s{S_W}, 3')
    A('s_cbranch_scc1 L_c_end')
    publish(A, S_QV+3)
    A('s_waitcnt vmcnt(0)')
    A(f'v_mov_b32 v{V_CPV}, 64')
    A(f'buffer_store_dword v{V_CPV}, v{V_CPF}, {WSR}, s{S_CPO} offen sc1')
    A('L_c_end:')
    tl(A, 5)
    if 'tot' in OPT:
        A(f's_memrealtime s[{S_PROF+2}:{S_PROF+3}]')
        A(f's_memtime s[{S_PROF+6}:{S_PROF+7}]')
        A('s_waitcnt lgkmcnt(0)')
        A(f's_sub_u32 s{S_PROF}, s{S_PROF+2}, s{S_PROF}')
        A(f's_sub_u32 s{S_PROF+1}, s{S_PROF+6}, s{S_PROF+4}')
        A(f's_mov_b32 s{S_PROF+2}, s{S_PAR}')
    if prof or 'tot' in OPT or 'cntset' in OPT:
        A(f's_lshl_b32 s{S_t0}, s{S_X}, 5')
        A(f's_add_u32 s{S_t0}, s{S_t0}, s{S_J}')
        A(f's_lshl_b32 s{S_t0}, s{S_t0}, 2')
        A(f's_add_u32 s{S_t0}, s{S_t0}, s{S_W}')
        A(f's_lshl_b32 s{S_t0}, s{S_t0}, 6')
        A(f's_add_u32 s{S_t0}, s{S_t0}, {WS_PROF}')
        A(f'v_mov_b32 v{V_T}, 0')
        for k in range(16):
            A(f'v_mov_b32 v{V_T+1}, s{S_PROF+k}')
            A(f'buffer_store_dword v{V_T+1}, v{V_T}, {WSR}, s{S_t0} offen offset:{4*k}')
    A('s_waitcnt vmcnt(0)')
    A('s_endpgm')

def gen_calib(A):
    CB = PG2 + 0x1A0000
    A(f's_lshl_b32 s{S_t0}, s{S_W}, 15')
    A(f's_add_u32 s{S_t0}, s{S_t0}, {CB}')
    A(f's_mov_b32 s{S_t1}, -1')
    A(f's_mov_b32 s{S_t2}, -1')
    A('s_mov_b32 s78, 4')
    A('L_cal_round:')
    A('v_and_b32 v1, 3, v0')
    A('v_lshrrev_b32 v2, 1, v1')
    A('v_lshlrev_b32 v2, 14, v2')
    A('v_and_b32 v1, 1, v1')
    A('v_lshl_add_u32 v1, v1, 13, v2')
    A('v_mov_b32 v2, 0')
    A(f'buffer_store_dword v2, v1, {WSR}, s{S_t0} offen sc1')
    A('s_waitcnt vmcnt(0)')
    for rep in range(2):
        for par, acc in ((0, S_t1), (1, S_t2)):
            A(f'v_mov_b32 v1, {rep*16384 + par*8192}')
            A(f's_memtime s[{S_PT}:{S_PT+1}]')
            A('s_waitcnt lgkmcnt(0)')
            A(f'buffer_load_dword v2, v1, {WSR}, s{S_t0} offen sc1')
            A('s_waitcnt vmcnt(0)')
            A(f's_memtime s[{S_PT+2}:{S_PT+3}]')
            A('s_waitcnt lgkmcnt(0)')
            A(f's_sub_u32 s{S_PT}, s{S_PT+2}, s{S_PT}')
            A(f's_min_u32 s{acc}, s{acc}, s{S_PT}')
    A(f's_lshl_b32 s79, s{S_W}, 3')
    A('v_mov_b32 v1, s79')
    A(f'v_mov_b32 v2, s{S_t1}')
    A(f'v_mov_b32 v3, s{S_t2}')
    A('ds_write_b64 v1, v[2:3]')
    A('s_waitcnt lgkmcnt(0)')
    A('s_barrier')
    A('v_mov_b32 v1, 0')
    A('ds_read_b128 v[4:7], v1')
    A('ds_read_b128 v[8:11], v1 offset:16')
    A('s_waitcnt lgkmcnt(0)')
    A('s_barrier')
    A('v_min_u32 v4, v4, v6')
    A('v_min_u32 v8, v8, v10')
    A('v_min_u32 v5, v5, v7')
    A('v_min_u32 v9, v9, v11')
    A('v_min_u32 v4, v4, v8')
    A('v_min_u32 v5, v5, v9')
    A('s_nop 0')
    A(f'v_readfirstlane_b32 s{S_t1}, v4')
    A(f'v_readfirstlane_b32 s{S_t2}, v5')
    A(f's_min_u32 s79, s{S_t1}, s{S_t2}')
    A(f's_max_u32 s80, s{S_t1}, s{S_t2}')
    A('s_sub_u32 s80, s80, s79')
    A('s_cmp_ge_u32 s80, 100')
    A('s_cselect_b32 s80, 1, 0')
    A('s_cmp_lt_u32 s79, 560')
    A('s_cselect_b32 s80, s80, 0')
    A('s_cmp_eq_u32 s80, 1')
    A('s_cbranch_scc1 L_cal_done')
    A('s_sub_u32 s78, s78, 1')
    A('s_cmp_lg_u32 s78, 0')
    A('s_cbranch_scc1 L_cal_round')
    A('L_cal_done:')
    A(f's_cmp_lt_u32 s{S_t1}, s{S_t2}')
    A('s_cselect_b32 s79, 1, 0')
    A('s_or_b32 s79, s79, 0x100')
    A('v_mov_b32 v2, s79')
    A('v_mov_b32 v1, 64')
    A(f'global_store_dword v1, v2, s[{S_DBG}:{S_DBG+1}] sc1')
    A('v_mov_b32 v1, 80')
    A(f'global_store_dwordx2 v1, v[4:5], s[{S_DBG}:{S_DBG+1}] sc1')
    A('s_waitcnt vmcnt(0)')

def gen_common_entry(A, nwg=256):
    A(f's_cmp_ge_u32 s2, {nwg}')
    A('s_cbranch_scc1 L_end')
    A(f's_load_dwordx2 s[{S_DBG}:{S_DBG+1}], s[0:1], 96')
    A(f's_load_dwordx2 s[4:5], s[0:1], 104')
    A(f's_getreg_b32 s{S_X}, hwreg(HW_REG_XCC_ID, 0, 4)')
    A(f'v_lshrrev_b32 v1, 6, v0')
    A('s_nop 0')
    A(f'v_readfirstlane_b32 s{S_W}, v1')
    A('s_waitcnt lgkmcnt(0)')
    A(f's_mov_b32 s{S_WS}, s4')
    A(f's_and_b32 s{S_WS+1}, s5, 0xffff')
    A(f's_mov_b32 s{S_WS+2}, 0x10000000')
    A(f's_mov_b32 s{S_WS+3}, 0x20000')
    A(f's_cmp_lg_u32 s{S_W}, 0')
    A('s_cbranch_scc1 L_noticket')
    A(f's_lshl_b32 s{S_t0}, s{S_X}, 2')
    A(f'v_mov_b32 v1, s{S_t0}')
    A('v_mov_b32 v2, 1')
    A('s_mov_b64 exec, 1')
    A(f'global_atomic_add v3, v1, v2, s[{S_DBG}:{S_DBG+1}] sc0')
    A('s_waitcnt vmcnt(0)')
    A('v_mov_b32 v1, 0')
    A('ds_write_b32 v1, v3')
    A('s_waitcnt lgkmcnt(0)')
    A('s_mov_b64 exec, -1')
    A('L_noticket:')
    A('s_barrier')
    A('v_mov_b32 v1, 0')
    A('ds_read_b32 v2, v1')
    A('s_waitcnt lgkmcnt(0)')
    A(f'v_readfirstlane_b32 s{S_J}, v2')
    A('s_barrier')
    A(f's_mov_b32 s{S_MODE}, 0')
    A(f's_mov_b32 s{S_TO}, 0x100000')

S_MODE = 3
VR = [4, 5, 6, 7, 80, 81, 82, 83]
def counters_load(A):
    A('v_and_b32 v240, 7, v0')
    A('v_lshlrev_b32 v240, 2, v240')
    A(f'global_load_dword v241, v240, s[{S_DBG}:{S_DBG+1}] sc1')
def counters_sum(A):
    for k in range(8): A(f'v_readlane_b32 s{VR[k]}, v241, {k}')
    A(f's_add_u32 s78, s{VR[0]}, s{VR[1]}')
    for k in range(2, 8): A(f's_add_u32 s78, s78, s{VR[k]}')
def verdict_issue(A, tag):
    A(f's_cmp_lg_u32 s{S_W}, 0')
    A(f's_cbranch_scc1 L_vi{tag}')
    counters_load(A)
    A(f'L_vi{tag}:')
def verdict_eval(A, tag):
    A('s_mov_b32 s79, 0')
    A(f's_cmp_eq_u32 s{S_MODE}, 1')
    A(f's_cbranch_scc1 L_vd{tag}_ok')
    A(f'L_vd{tag}:')
    counters_sum(A)
    A('s_cmp_ge_u32 s78, 256')
    A(f's_cbranch_scc1 L_vd{tag}_full')
    A('s_sleep 16')
    counters_load(A)
    A('s_waitcnt vmcnt(0)')
    A(f's_sub_u32 s{S_TO}, s{S_TO}, 1')
    A(f's_cbranch_scc0 L_vd{tag}')
    A('s_branch L_timeout')
    A(f'L_vd{tag}_full:')
    if 'forcefb' in OPT: A('s_mov_b32 s79, 1')
    for k in range(8):
        A(f's_cmp_lg_u32 s{VR[k]}, 32')
        A('s_cselect_b32 s79, 1, s79')
    A(f'L_vd{tag}_ok:')
def verdict_bcast(A, tag, lds=0):
    A(f's_cmp_lg_u32 s{S_W}, 0')
    A(f's_cbranch_scc1 L_vb{tag}')
    A(f'v_mov_b32 v240, {lds}')
    A('v_mov_b32 v241, s79')
    A('ds_write_b32 v240, v241')
    A('s_waitcnt lgkmcnt(0)')
    A(f'L_vb{tag}:')
    A('s_barrier')
    A(f'v_mov_b32 v240, {lds}')
    A('ds_read_b32 v241, v240')
    A('s_waitcnt lgkmcnt(0)')
    A('v_readfirstlane_b32 s79, v241')
    A('s_barrier')
    A('s_cmp_lg_u32 s79, 0')
    A('s_cbranch_scc1 L_fallback')

def arrive(A):
    A(f'v_mov_b32 v238, {CENSUS}')
    A('v_mov_b32 v239, 1')
    A('s_mov_b64 exec, 1')
    A(f'global_atomic_add v239, v238, v239, s[{S_DBG}:{S_DBG+1}] sc0')
    A('s_mov_b64 exec, -1')
def arrive_finish(A, tag):
    A(f's_cmp_lg_u32 s{S_W}, 0')
    A(f's_cbranch_scc1 L_af{tag}')
    A('s_cmp_lg_u32 s79, 0')
    A(f's_cbranch_scc1 L_af{tag}')
    A('s_waitcnt vmcnt(0)')
    A('v_readfirstlane_b32 s78, v239')
    A('s_cmp_lg_u32 s78, 255')
    A(f's_cbranch_scc1 L_af{tag}')
    A(f'v_mov_b32 v238, {GO}')
    A('v_mov_b32 v239, 1')
    A(f'global_store_dword v238, v239, s[{S_DBG}:{S_DBG+1}] sc1')
    A(f'L_af{tag}:')

def gen_fallback(A):
    A('L_fallback:')
    A('s_waitcnt vmcnt(0) lgkmcnt(0)')
    A('L_fb_poll:')
    counters_load(A)
    A('s_waitcnt vmcnt(0)')
    counters_sum(A)
    A('s_cmp_ge_u32 s78, 256')
    A('s_cbranch_scc1 L_fb_full')
    A('s_sleep 4')
    A(f's_sub_u32 s{S_TO}, s{S_TO}, 1')
    A('s_cbranch_scc0 L_fb_poll')
    A('s_branch L_timeout')
    A('L_fb_full:')
    if 'forcefb' in OPT:
        A('s_mov_b32 s78, s2')
    else:
        A(f's_mov_b32 s78, s{S_J}')
        for k in range(7):
            A(f's_cmp_gt_u32 s{S_X}, {k}')
            A(f's_cselect_b32 s79, s{VR[k]}, 0')
            A('s_add_u32 s78, s78, s79')
    A(f's_lshr_b32 s{S_X}, s78, 5')
    A(f's_and_b32 s{S_J}, s78, 31')
    A(f's_mov_b32 s{S_MODE}, 1')
    A('s_barrier')
    A('s_branch L_role')

def gen_timeout(A):
    A('L_timeout:')
    A('v_mov_b32 v1, 60')
    A('v_mov_b32 v2, 0xdead')
    A(f'global_store_dword v1, v2, s[{S_DBG}:{S_DBG+1}]')
    A('s_waitcnt vmcnt(0)')
    A('s_endpgm')

if __name__ == '__main__':
    out = sys.argv[1]
    OPT.update(sys.argv[2:])
    prof = 'prof' in OPT
    A = Asm()
    K = NAME + '_kernel'
    kernel_begin(A, K)
    gen_common_entry(A)
    A(f's_cmp_lt_u32 s{S_X}, 4')
    A('s_cbranch_scc1 L_chain')
    A(f's_cmp_lg_u32 s{S_W}, 0')
    A('s_cbranch_scc1 L_end')
    gen_calib(A)
    A('v_mov_b32 v1, 32')
    A('v_mov_b32 v2, 1')
    A('s_mov_b64 exec, 1')
    A(f'global_atomic_add v1, v2, s[{S_DBG}:{S_DBG+1}]')
    A('s_waitcnt vmcnt(0)')
    A('L_end:')
    A('s_endpgm')
    A('L_chain:')
    gen_chain(A, prof)
    gen_timeout(A)
    open(out, 'w').write(file_text(['; @launch grid=(256,1,1) block=(256,1,1) lds=163840'], A.text(), kernel_desc(K)))
```

```python
import sys
from asmlib import *
from ws_layout import *
import chain9 as ch
import bulk1, bulk2, bulk3
ch.OPT.update(sys.argv[2:])
import asmlib
asmlib.TL_ON[0] = 'tl' in ch.OPT
bulk3.OSHORT[0] = ch.optval('oshort', 3)
bulk3.TAILN[0] = ch.optval('tail0', 64)
bulk3.NRING[0] = ch.optval('nring', 40)
bulk3.NOOUT[0] = 'noout' in ch.OPT
bulk3.SLEEPN[0] = ch.optval('bsleep', 32)
S_X, S_J, S_W, S_TO, S_DBG, S_WS = 16, 17, 20, 22, 28, 8
WSR = f's[{S_WS}:{S_WS+3}]'
A = Asm(); K = NAME + '_kernel'
kernel_begin(A, K)
ch.gen_common_entry(A)
tl(A, 0)
A('L_role:')
A(f's_cmp_ge_u32 s{S_J}, 32')
A('s_cbranch_scc1 L_overfull')
A(f's_cmp_lt_u32 s{S_X}, 4')
A('s_cbranch_scc1 L_chain')
A(f's_sub_u32 s{bulk1.S_BID}, s{S_X}, 4')
A(f's_lshl_b32 s{bulk1.S_BID}, s{bulk1.S_BID}, 5')
A(f's_add_u32 s{bulk1.S_BID}, s{bulk1.S_BID}, s{S_J}')
def bulk_zero(tag):
    A(f's_cmp_lg_u32 s{S_W}, 0')
    A(f's_cbranch_scc1 L_b_zeroed{tag}')
    A('v_mov_b32 v242, 0')
    A('v_mov_b32 v243, 0')
    A(f's_lshl_b32 s30, s{bulk1.S_BID}, 7')
    A(f's_add_u32 s30, s30, {C_PROG1}')
    A(f'buffer_store_dword v243, v242, {WSR}, s30 offen sc1')
    if tag == 'q':
        A(f's_cmp_lg_u32 s{bulk1.S_BID}, 127')
        A('s_cbranch_scc1 L_b_zeroedq')
        A('v_lshlrev_b32 v242, 7, v0')
        A(f's_mov_b32 s30, {C_XCNT}')
        A(f'buffer_store_dword v243, v242, {WSR}, s30 offen sc1')
        A('v_mov_b32 v242, 0')
        A(f's_mov_b32 s30, {C_BCNT}')
        A(f'buffer_store_dword v243, v242, {WSR}, s30 offen sc1')
    A(f'L_b_zeroed{tag}:')
def bulk_init(tag):
    A(f's_cmp_lg_u32 s{S_W}, 0')
    A(f's_cbranch_scc1 L_b_arrived{tag}')
    ch.verdict_eval(A, tag)
    A('s_cmp_lg_u32 s79, 0')
    A(f's_cbranch_scc1 L_b_arrived{tag}')
    ch.arrive(A)
    A(f'L_b_arrived{tag}:')
A(f's_cmp_lg_u32 s{S_W}, 1')
A('s_cbranch_scc1 L_b_nowarm')
A('s_load_dwordx2 s[4:5], s[0:1], 0')
A('s_waitcnt lgkmcnt(0)')
bulk1.setsrd(A, 12, 4, 2048*1280)
A(f's_mul_i32 s30, s{S_J}, 2560')
A('v_and_b32 v1, 63, v0')
A('v_lshlrev_b32 v1, 4, v1')
for k in range(3):
    A(f'buffer_load_dwordx4 v[244:247], v1, s[12:15], s30 offen offset:{min(k*1024, 1536)}')
A('L_b_nowarm:')
def census_wait(tag):
    A(f's_cmp_lg_u32 s{S_W}, 0')
    A(f's_cbranch_scc1 L_b_census{tag}_ok')
    A(f'L_b_census{tag}:')
    A(f'v_mov_b32 v240, {ch.GO}')
    A(f'global_load_dword v241, v240, s[{S_DBG}:{S_DBG+1}] sc1')
    A('s_waitcnt vmcnt(0)')
    A('v_readfirstlane_b32 s30, v241')
    A('s_cmp_lg_u32 s30, 0')
    A(f's_cbranch_scc1 L_b_census{tag}_ok')
    A('s_sleep 16')
    A(f's_sub_u32 s{S_TO}, s{S_TO}, 1')
    A(f's_cbranch_scc0 L_b_census{tag}')
    A('s_branch L_timeout')
    A(f'L_b_census{tag}_ok:')
    A('s_barrier')
A(f's_cmp_lt_u32 s{bulk1.S_BID}, 64')
A('s_cbranch_scc1 L_b_go')
A(f's_cmp_lg_u32 s{bulk1.S_BID}, 127')
A('s_cbranch_scc1 L_b_nocal')
ch.gen_calib(A)
A('L_b_nocal:')
bulk_zero('q')
A('s_sleep 64')
ch.verdict_issue(A, 'q')
A('s_waitcnt vmcnt(0)')
bulk_init('q')
ch.arrive_finish(A, 'q')
ch.verdict_bcast(A, 'q')
if 'nobulk' not in ch.OPT: census_wait('a')
A('L_b_go:')
def kv_hook1():
    A(f's_cmp_ge_u32 s{bulk1.S_BID}, 64')
    A('s_cbranch_scc1 L_b_hook1')
    bulk_zero('k')
    A('s_waitcnt vmcnt(8)')
    ch.verdict_issue(A, 'k')
    A('L_b_hook1:')
def kv_hook2():
    A(f's_cmp_ge_u32 s{bulk1.S_BID}, 64')
    A('s_cbranch_scc1 L_b_hook2')
    bulk_init('k')
    A('L_b_hook2:')
def kv_hook3():
    A(f's_cmp_ge_u32 s{bulk1.S_BID}, 64')
    A('s_cbranch_scc1 L_b_hook3')
    ch.arrive_finish(A, 'k')
    ch.verdict_bcast(A, 'k')
    A(f's_cmp_eq_u32 s{ch.S_MODE}, 0')
    A('s_cbranch_scc1 L_b_hook3')
    census_wait('k')
    A('L_b_hook3:')
if 'nobulk' in ch.OPT:
    kv_hook1(); A('s_waitcnt vmcnt(0)'); kv_hook2(); kv_hook3()
if 'nobulk' not in ch.OPT:
    bulk1.HOOKS[:] = [kv_hook1, kv_hook2, kv_hook3]
    bulk1.gen_phase1_loop(A)
    tl(A, 2)
    census_wait('b')
    if 'nop2' not in ch.OPT: bulk2.gen_phase2(A)
    tl(A, 3)
    if 'nop3' not in ch.OPT: bulk3.gen_phase3(A)
    tl(A, 5)
A('s_waitcnt vmcnt(0)')
A('L_end:')
A('s_endpgm')
A('L_overfull:')
ch.gen_fallback(A)
A('L_chain:')
ch.gen_chain(A, 'prof' in ch.OPT)
ch.gen_timeout(A)
open(sys.argv[1], 'w').write(file_text(['; @launch grid=(256,1,1) block=(256,1,1) lds=163840'], A.text(), kernel_desc(K)))
```

```python
from asmlib import *
from ws_layout import *
import sys, struct
from bulk2 import wait_words, f2u
from bulk1 import setsrd
S_WS, S_X, S_J, S_W, S_TO, S_DBG = 8, 16, 17, 20, 22, 28
S_T = 12
S_T2 = 24
S_t0, S_t1, S_t2, S_t3 = 30, 31, 32, 33
S_BID = 34
S_H, S_SEG, S_STEP6, S_XB = 36, 37, 38, 39
S_SCL = 42
S_MK = 44
S_A, S_B, S_C = 52, 53, 54
SLEEPN = [32]
NOOUT = [False]
NRING = [40]
OSHORT = [8]
TAILN = [60]
WSR = f's[{S_WS}:{S_WS+3}]'
BIG = 0x40000000
SCL = (128 ** -0.5) * 1.4426950408889634
def mfma(A, d, a, b, c): A(f'v_mfma_f32_16x16x32_bf16 {d}, {a}, {b}, {c}')
def mfma32(A, d, a, b, c): A(f'v_mfma_f32_32x32x16_bf16 {d}, {a}, {b}, {c}')

def gen_xattn(A):
    V_L, V_I, V_G = 1, 2, 3
    V_T = 4
    V_QA, V_MA, V_VA, V_VMA, V_OA, V_LIN, V_PA = 12, 13, 14, 15, 16, 17, 18
    V_GT = 20
    V_MX, V_SU = 22, 24
    V_NINF = 26
    V_Q = 32
    V_K = 64
    V_M = 96
    V_S = 112
    V_PX = 132
    V_PM = 140
    V_VX = 148
    V_VM = 164
    V_O = 180
    V_OUT = 196
    T0, T1, T2, T3 = V_T, V_T+1, V_T+2, V_T+3
    A.c('==== phase 3: x attention ====')
    A(f'v_and_b32 v{V_L}, 63, v0')
    A(f'v_and_b32 v{V_I}, 15, v0')
    A(f'v_bfe_u32 v{V_G}, v0, 4, 2')
    A(f's_mul_i32 s{S_t0}, s{S_XB}, 48')
    A(f's_sub_u32 s{S_t1}, s{S_J}, 20')
    A(f's_lshl_b32 s{S_t1}, s{S_t1}, 2')
    A(f's_add_u32 s{S_t0}, s{S_t0}, s{S_t1}')
    A(f's_add_u32 s{S_t0}, s{S_t0}, s{S_W}')
    A(f's_and_b32 s{S_H}, s{S_t0}, 31')
    A(f's_lshr_b32 s{S_SEG}, s{S_t0}, 5')
    A(f's_mov_b32 s{S_SCL}, {hex(f2u(SCL))}')
    A(f's_mov_b32 s{S_SCL+1}, {hex(f2u(SCL))}')
    A(f'v_mov_b32 v{V_NINF}, 0xff800000')
    A(f'v_lshrrev_b32 v{T0}, 1, v{V_G}')
    A(f'v_lshlrev_b32 v{T1}, 10, v{T0}')
    A(f'v_and_b32 v{T2}, 1, v{V_G}')
    A(f'v_lshl_add_u32 v{T1}, v{T2}, 9, v{T1}')
    A(f'v_lshl_add_u32 v{V_QA}, v{V_I}, 4, v{T1}')
    A(f'v_and_b32 v{T3}, 7, v{V_I}')
    A(f'v_lshlrev_b32 v{T1}, 8, v{T0}')
    A(f'v_lshl_add_u32 v{T1}, v{T3}, 5, v{T1}')
    A(f'v_lshl_add_u32 v{V_MA}, v{T2}, 4, v{T1}')
    A(f's_mul_i32 s{S_A}, s{S_W}, 12288')
    A(f'v_bfe_u32 v{T0}, v{V_L}, 2, 2')
    A(f'v_and_b32 v{T1}, 3, v{V_L}')
    A(f'v_lshl_add_u32 v{T2}, v{V_G}, 2, v{T0}')
    A(f'v_lshlrev_b32 v{T2}, 4, v{T2}')
    A(f'v_lshrrev_b32 v{T3}, 1, v{T1}')
    A(f'v_lshl_add_u32 v{T2}, v{T3}, 10, v{T2}')
    A(f'v_and_b32 v{T3}, 1, v{T1}')
    A(f'v_lshl_add_u32 v{T2}, v{T3}, 9, v{T2}')
    A(f'v_add_u32 v{V_VA}, s{S_A}, v{T2}')
    A(f'v_and_b32 v{T2}, 1, v{V_G}')
    A(f'v_lshl_add_u32 v{T2}, v{T2}, 2, v{T0}')
    A(f'v_lshlrev_b32 v{T2}, 5, v{T2}')
    A(f'v_lshrrev_b32 v{T3}, 1, v{V_G}')
    A(f'v_lshl_add_u32 v{T2}, v{T3}, 11, v{T2}')
    A(f'v_lshrrev_b32 v{T3}, 1, v{T1}')
    A(f'v_lshl_add_u32 v{T2}, v{T3}, 8, v{T2}')
    A(f'v_and_b32 v{T3}, 1, v{T1}')
    A(f'v_lshl_add_u32 v{T2}, v{T3}, 4, v{T2}')
    A(f'v_add_u32 v{T2}, s{S_A}, v{T2}')
    A(f'v_add_u32 v{V_VMA}, 8192, v{T2}')
    A(f'v_lshlrev_b32 v{T0}, 9, v{V_G}')
    A(f'v_lshl_add_u32 v{V_OA}, v{V_I}, 4, v{T0}')
    A(f'v_lshlrev_b32 v{V_LIN}, 4, v{V_L}')
    A(f'v_cmp_gt_u32 vcc, 4, v{V_L}')
    A(f's_lshl_b32 s{S_t0}, s{S_H}, 9')
    A(f'v_lshlrev_b32 v{T0}, 7, v{V_L}')
    A(f'v_add_u32 v{T0}, s{S_t0}, v{T0}')
    A(f'v_mov_b32 v{T1}, {BIG}')
    A(f'v_cndmask_b32 v{V_PA}, v{T1}, v{T0}, vcc')
    for q in range(4):
        A(f'v_mov_b32 v{V_VM+4*q+2}, 0'); A(f'v_mov_b32 v{V_VM+4*q+3}, 0')
    for qt in range(2):
        A(f'v_mov_b32 v{V_PM+4*qt+2}, 0'); A(f'v_mov_b32 v{V_PM+4*qt+3}, 0')
    A(f'v_mov_b32 v{V_PX+2}, 0'); A(f'v_mov_b32 v{V_PX+3}, 0')
    A(f'v_lshlrev_b32 v{T0}, 2, v{V_G}')
    A(f'v_sub_u32 v{T0}, v{V_I}, v{T0}')
    for r in range(4):
        A(f'v_cmp_le_i32 s[{S_MK+2*r}:{S_MK+2*r+1}], {r}, v{T0}')
    A(f'v_cmp_gt_u32 vcc, 3, v{V_L}')
    A(f'v_lshlrev_b32 v{T0}, 12, v{V_L}')
    A(f's_lshl_b32 s{S_t0}, s{S_H}, 7')
    A(f'v_add_u32 v{T0}, s{S_t0}, v{T0}')
    A(f'v_mov_b32 v{T1}, {BIG}')
    A(f'v_cndmask_b32 v{T0}, v{T1}, v{T0}, vcc')
    A(f's_mov_b64 s[{S_t2}:{S_t3}], vcc')
    A(f's_mov_b32 s{S_t0}, {C_PROG1}')
    A('L_x_w1:')
    A(f'buffer_load_dword v{T1}, v{T0}, {WSR}, s{S_t0} offen sc1')
    A('s_waitcnt vmcnt(0)')
    A(f'v_cmp_gt_u32 vcc, 64, v{T1}')
    A('s_nop 3')
    A(f's_and_b64 vcc, vcc, s[{S_t2}:{S_t3}]')
    A('s_cbranch_vccz L_x_unit')
    A('s_sleep 32')
    A(f's_sub_u32 s{S_TO}, s{S_TO}, 1')
    A('s_cbranch_scc0 L_x_w1')
    A('s_branch L_timeout')
    tl(A, 4)
    A('L_x_unit:')
    A(f's_lshl_b32 s{S_t0}, s{S_SEG}, 5')
    A(f's_add_u32 s{S_t0}, s{S_t0}, s{S_H}')
    A(f's_lshl_b32 s{S_B}, s{S_t0}, 13')
    A(f's_add_u32 s{S_t1}, s{S_B}, {WS_QX}')
    for qt in range(2):
        for s4 in range(4):
            A(f's_add_u32 s{S_t2}, s{S_t1}, {s4*2048 + qt*256}')
            A(f'buffer_load_dwordx4 {vr(V_Q+16*qt+4*s4,4)}, v{V_QA}, {WSR}, s{S_t2} offen sc1')
    A(f's_add_u32 s{S_t1}, s{S_B}, {WS_KX}')
    for kt in range(2):
        for s4 in range(4):
            A(f's_add_u32 s{S_t2}, s{S_t1}, {s4*2048 + kt*256}')
            A(f'buffer_load_dwordx4 {vr(V_K+16*kt+4*s4,4)}, v{V_QA}, {WSR}, s{S_t2} offen sc1')
    A(f's_add_u32 s{S_t1}, s{S_B}, {WS_VX}')
    for u in range(8):
        A(f's_add_u32 m0, s{S_A}, {u*1024}')
        A(f's_add_u32 s{S_t2}, s{S_t1}, {u*1024}')
        A(f'buffer_load_dwordx4 v{V_LIN}, {WSR}, s{S_t2} offen sc1 lds')
    A(f's_lshl_b32 s{S_t1}, s{S_SEG}, 11')
    A(f's_add_u32 s{S_t1}, s{S_t1}, {WS_GATE}')
    A(f'v_lshlrev_b32 v{T0}, 4, v{V_I}')
    A(f'buffer_load_ushort v{V_GT}, v{T0}, {WSR}, s{S_t1} offen sc1')
    A(f'buffer_load_ushort v{V_GT+1}, v{T0}, {WSR}, s{S_t1} offen offset:256 sc1')
    A(f's_add_u32 s{S_C}, s{S_SEG}, 1')
    A(f's_mov_b32 s{S_t0}, {C_CPROG}')
    A('L_x_w2:')
    A(f'buffer_load_dword v{T1}, v{V_PA}, {WSR}, s{S_t0} offen sc1')
    A('s_waitcnt vmcnt(0)')
    A(f'v_cmp_gt_u32 vcc, s{S_C}, v{T1}')
    A('s_nop 3')
    A('s_and_b64 vcc, vcc, 15')
    A('s_cbranch_vccz L_x_go')
    A(f's_cmp_ge_u32 s{S_SEG}, 58')
    A('s_cbranch_scc1 L_x_w2_short')
    A(f's_sleep {SLEEPN[0]}')
    A('L_x_w2_short:')
    A('s_sleep 1')
    A(f's_sub_u32 s{S_TO}, s{S_TO}, 1')
    A('s_cbranch_scc0 L_x_w2')
    A('s_branch L_timeout')
    A('L_x_go:')
    tl(A, 6)
    A(f's_lshl_b32 s{S_t0}, s{S_SEG}, 5')
    A(f's_add_u32 s{S_t0}, s{S_t0}, s{S_H}')
    A(f's_lshl_b32 s{S_t1}, s{S_t0}, 11')
    A(f's_add_u32 s{S_t1}, s{S_t1}, {WS_KM}')
    for s4 in range(4):
        A(f'buffer_load_dwordx4 {vr(V_M+4*s4,4)}, v{V_MA}, {WSR}, s{S_t1} offen offset:{512*s4} sc1')
    A(f's_lshl_b32 s{S_t1}, s{S_t0}, 12')
    A(f's_add_u32 s{S_t1}, s{S_t1}, {WS_VM}')
    for u in range(4):
        A(f's_add_u32 m0, s{S_A}, {8192 + u*1024}')
        A(f's_add_u32 s{S_t2}, s{S_t1}, {u*1024}')
        A(f'buffer_load_dwordx4 v{V_LIN}, {WSR}, s{S_t2} offen sc1 lds')
    SX = {(0,0): V_S, (1,0): V_S+8, (1,1): V_S+12}
    SMm = {0: V_S+4, 1: V_S+16}
    for s4 in range(4):
        for (qt, kt), d in SX.items():
            mfma(A, vr(d,4), vr(V_K+16*kt+4*s4,4), vr(V_Q+16*qt+4*s4,4), '0' if s4 == 0 else vr(d,4))
    for qt in range(2):
        A(f'v_lshlrev_b32 v{V_GT+qt}, 16, v{V_GT+qt}')
        A(f'v_mul_f32 v{V_GT+qt}, 0xbfb8aa3b, v{V_GT+qt}')
        A(f'v_exp_f32 v{V_GT+qt}, v{V_GT+qt}')
        A('s_nop 0')
        A(f'v_add_f32 v{V_GT+qt}, 1.0, v{V_GT+qt}')
    A('s_waitcnt vmcnt(4)')
    for s4 in range(4):
        for qt in range(2):
            mfma(A, vr(SMm[qt],4), vr(V_M+4*s4,4), vr(V_Q+16*qt+4*s4,4), '0' if s4 == 0 else vr(SMm[qt],4))
    A('s_nop 7')
    for r in range(4):
        m = f's[{S_MK+2*r}:{S_MK+2*r+1}]'
        A(f'v_cndmask_b32 v{SX[(0,0)]+r}, v{V_NINF}, v{SX[(0,0)]+r}, {m}')
        A(f'v_cndmask_b32 v{SX[(1,1)]+r}, v{V_NINF}, v{SX[(1,1)]+r}, {m}')
    def allreduce(op, reg, tmp):
        for perm in ('v_permlane16_swap_b32', 'v_permlane32_swap_b32'):
            A(f'v_mov_b32 v{tmp}, v{reg}')
            A('s_nop 1')
            A(f'{perm} v{tmp}, v{reg}')
            A(f'{op} v{reg}, v{reg}, v{tmp}')
    for qt in range(2):
        regs = list(range(V_S, V_S+8)) if qt == 0 else list(range(V_S+8, V_S+20))
        mreg = SMm[qt]
        A(f'v_max3_f32 v{V_MX}, v{regs[0]}, v{regs[1]}, v{regs[2]}')
        rr = regs[3:]
        while len(rr) >= 2:
            A(f'v_max3_f32 v{V_MX}, v{V_MX}, v{rr[0]}, v{rr[1]}'); rr = rr[2:]
        if rr: A(f'v_max_f32 v{V_MX}, v{V_MX}, v{rr[0]}')
        allreduce('v_max_f32', V_MX, V_MX+1)
        A(f'v_mul_f32 v{V_MX}, s{S_SCL}, v{V_MX}')
        for r in regs[::2]:
            A(f'v_pk_fma_f32 {vr(r,2)}, {vr(r,2)}, s[{S_SCL}:{S_SCL+1}], {vr(V_MX,2)} op_sel_hi:[1,1,0] neg_lo:[0,0,1] neg_hi:[0,0,1]')
        for r in regs: A(f'v_exp_f32 v{r}, v{r}')
        A('s_nop 0')
        x0 = SX[(qt,0)]
        A(f'v_cvt_pk_bf16_f32 v{V_PX+4*qt}, v{x0}, v{x0+1}')
        A(f'v_cvt_pk_bf16_f32 v{V_PX+4*qt+1}, v{x0+2}, v{x0+3}')
        if qt == 1:
            x1 = SX[(1,1)]
            A(f'v_cvt_pk_bf16_f32 v{V_PX+6}, v{x1}, v{x1+1}')
            A(f'v_cvt_pk_bf16_f32 v{V_PX+7}, v{x1+2}, v{x1+3}')
        A(f'v_cvt_pk_bf16_f32 v{V_PM+4*qt}, v{mreg}, v{mreg+1}')
        A(f'v_cvt_pk_bf16_f32 v{V_PM+4*qt+1}, v{mreg+2}, v{mreg+3}')
        su = V_SU+qt if False else V_T+4+qt
        A(f'v_add_f32 v{T0}, v{mreg}, v{mreg+1}')
        A(f'v_add_f32 v{T1}, v{mreg+2}, v{mreg+3}')
        A(f'v_add_f32 v{T0}, v{T0}, v{T1}')
        A(f'v_mul_f32 v{su}, 0.5, v{T0}')
        for r in regs:
            if mreg <= r < mreg+4: continue
            A(f'v_add_f32 v{su}, v{su}, v{r}')
        allreduce('v_add_f32', su, T0)
        A(f'v_mul_f32 v{su}, v{su}, v{V_GT+qt}')
        A(f'v_rcp_f32 v{su}, v{su}')
    A('s_waitcnt vmcnt(0)')
    A(f's_mul_i32 s{S_t1}, s{S_SEG}, {O_SEG}')
    A(f's_lshl_b32 s{S_t2}, s{S_H}, 13')
    A(f's_add_u32 s{S_t1}, s{S_t1}, s{S_t2}')
    A(f's_add_u32 s{S_t1}, s{S_t1}, {WS_O}')
    for pp in range(4):
        for tt in range(2):
            q = (2*pp+tt) % 4
            A(f'ds_read_b64_tr_b16 {vr(V_VX+4*q,2)}, v{V_VA} offset:{pp*2048 + tt*8}')
            A(f'ds_read_b64_tr_b16 {vr(V_VX+4*q+2,2)}, v{V_VA} offset:{pp*2048 + tt*8 + 256}')
            A(f'ds_read_b64_tr_b16 {vr(V_VM+4*q,2)}, v{V_VMA} offset:{pp*512 + tt*8}')
        A('s_waitcnt lgkmcnt(0)')
        for tt in range(2):
            q = (2*pp+tt) % 4
            for qt in range(2):
                mfma(A, vr(V_O+4*(2*qt+tt),4), vr(V_VX+4*q,4), vr(V_PX+4*qt,4), '0')
        for tt in range(2):
            q = (2*pp+tt) % 4
            for qt in range(2):
                mfma(A, vr(V_O+4*(2*qt+tt),4), vr(V_VM+4*q,4), vr(V_PM+4*qt,4), vr(V_O+4*(2*qt+tt),4))
        A('s_nop 7')
        for qt in range(2):
            su = V_T+4+qt
            for r in range(8):
                A(f'v_mul_f32 v{V_O+8*qt+r}, v{su}, v{V_O+8*qt+r}')
            for k in range(4):
                A(f'v_cvt_pk_bf16_f32 v{V_OUT+4*qt+k}, v{V_O+8*qt+2*k}, v{V_O+8*qt+2*k+1}')
            A(f's_add_u32 s{S_t2}, s{S_t1}, {pp*4*512 + qt*256}')
            A(f'buffer_store_dwordx4 {vr(V_OUT+4*qt,4)}, v{V_OA}, {WSR}, s{S_t2} offen sc1')
        A('s_nop 1')
    tl(A, 7)
    A('s_waitcnt vmcnt(0)')
    A(f's_lshl_b32 s{S_t0}, s{S_SEG}, 7')
    A(f's_add_u32 s{S_t1}, s{S_t0}, {C_XDONE}')
    A(f's_add_u32 s{S_t0}, s{S_t0}, {C_XCNT}')
    A(f'v_mov_b32 v{T0}, 0')
    A(f'v_mov_b32 v{T1}, 1')
    A('s_mov_b64 exec, 1')
    A(f'buffer_atomic_add v{T1}, v{T0}, {WSR}, s{S_t0} offen sc0')
    A('s_waitcnt vmcnt(0)')
    A(f'v_readfirstlane_b32 s{S_t2}, v{T1}')
    A(f's_cmp_lg_u32 s{S_t2}, 31')
    A('s_cbranch_scc1 L_x_notlast')
    A(f'v_mov_b32 v{T1}, 32')
    A(f'buffer_store_dword v{T1}, v{T0}, {WSR}, s{S_t1} offen sc1')
    A('L_x_notlast:')
    A('s_mov_b64 exec, -1')
    A(f's_add_u32 s{S_SEG}, s{S_SEG}, 6')
    A(f's_cmp_lt_u32 s{S_SEG}, 64')
    A('s_cbranch_scc1 L_x_unit')

def gen_outproj(A):
    V_L = 1
    V_T = 2
    V_LIN, V_RW, V_RR, V_OA = 10, 11, 12, 13
    V_W = 16
    V_X = 64
    V_ACC = 224
    V_R = 240
    NR = NRING[0]
    T0, T1, T2, T3 = V_T, V_T+1, V_T+2, V_T+3
    def wreg(t): return ar(4*t,4) if t < 64 else vr(V_W+4*(t-64),4)
    def wreg2(t, hf): return ar(4*t+2*hf,2) if t < 64 else vr(V_W+4*(t-64)+2*hf,2)
    A.c('==== phase 3: out projection ====')
    A(f'v_and_b32 v{V_L}, 63, v0')
    A(f's_load_dwordx2 s[4:5], s[0:1], 40')
    A(f's_load_dwordx2 s[6:7], s[0:1], 72')
    A('s_waitcnt lgkmcnt(0)')
    setsrd(A, S_T, 4, 5242880)
    setsrd(A, S_T2, 6, 640*1280)
    A(f's_mul_i32 s{S_A}, s{S_W}, 38912')
    A(f'v_lshrrev_b32 v{T0}, 2, v{V_L}')
    A(f'v_and_b32 v{T1}, 3, v{V_L}')
    A(f's_lshl_b32 s{S_t0}, s{S_J}, 6')
    A(f'v_lshlrev_b32 v{T1}, 4, v{T1}')
    A(f'v_add_u32 v{T1}, s{S_t0}, v{T1}')
    A(f'v_mul_u32_u24 v{T2}, 1280, v{T0}')
    A(f'v_add_u32 v{T2}, v{T2}, v{T1}')
    R_, CQ, AB, GK, TR = V_T+4, V_T+5, V_T+6, V_T+7, V_LIN
    A(f'v_bfe_u32 v{R_}, v{V_L}, 2, 2')
    A(f'v_and_b32 v{CQ}, 3, v{V_L}')
    A(f'v_bfe_u32 v{AB}, v{V_L}, 4, 1')
    A(f'v_lshrrev_b32 v{GK}, 5, v{V_L}')
    A(f'v_lshl_add_u32 v{TR}, v{GK}, 3, v{R_}')
    A(f'v_lshlrev_b32 v{TR}, 6, v{TR}')
    A(f'v_lshl_add_u32 v{TR}, v{AB}, 5, v{TR}')
    A(f'v_lshl_add_u32 v{TR}, v{CQ}, 3, v{TR}')
    A(f'v_add_u32 v{TR}, s{S_A}, v{TR}')
    for rnd in range(2):
        for i in range(38):
            t = 38*rnd + i
            A(f's_add_u32 m0, s{S_A}, {i*1024}')
            if t < 28:
                A(f's_mul_i32 s{S_t0}, s{S_W}, {76*16*1280}')
                A(f's_add_u32 s{S_t0}, s{S_t0}, {t*16*1280}')
                A(f'buffer_load_dwordx4 v{T2}, s[{S_T}:{S_T+3}], s{S_t0} offen lds')
            else:
                lab = A.label('L_o_b'); lab2 = A.label('L_o_d')
                A(f's_cmp_eq_u32 s{S_W}, 3')
                A(f's_cbranch_scc1 {lab}')
                A(f's_mul_i32 s{S_t0}, s{S_W}, {76*16*1280}')
                A(f's_add_u32 s{S_t0}, s{S_t0}, {t*16*1280}')
                A(f'buffer_load_dwordx4 v{T2}, s[{S_T}:{S_T+3}], s{S_t0} offen lds')
                A(f's_branch {lab2}')
                A(f'{lab}:')
                A(f'v_add_u32 v{T3}, {16*(t-28)}, v{T0}')
                A(f'v_mul_u32_u24 v{V_R}, 2731, v{T3}')
                A(f'v_lshrrev_b32 v{V_R}, 16, v{V_R}')
                A(f'v_mul_u32_u24 v{V_R+1}, 24, v{V_R}')
                A(f'v_sub_u32 v{V_R+1}, v{T3}, v{V_R+1}')
                A(f'v_mul_u32_u24 v{V_R}, 20, v{V_R}')
                A(f'v_add_u32 v{V_R}, v{V_R}, v{V_R+1}')
                A(f'v_mul_u32_u24 v{V_R}, 1280, v{V_R}')
                A(f'v_add_u32 v{V_R}, v{V_R}, v{T1}')
                A(f'v_cmp_gt_u32 vcc, 20, v{V_R+1}')
                A(f'v_mov_b32 v{V_R+1}, {BIG}')
                A('s_nop 0')
                A(f'v_cndmask_b32 v{V_R}, v{V_R+1}, v{V_R}, vcc')
                A(f'buffer_load_dwordx4 v{V_R}, s[{S_T2}:{S_T2+3}], 0 offen lds')
                A(f'{lab2}:')
        A('s_waitcnt vmcnt(0)')
        for i in range(38):
            t = 38*rnd + i
            for hf in range(2):
                A(f'ds_read_b64_tr_b16 {wreg2(t, hf)}, v{TR} offset:{i*1024 + hf*256}')
            if i % 4 == 3: A('s_waitcnt lgkmcnt(0)')
        A('s_waitcnt lgkmcnt(0)')
    A('s_barrier')
    A(f'v_lshlrev_b32 v{V_LIN}, 4, v{V_L}')
    A(f's_lshl_b32 s{S_t0}, s{S_W}, 12')
    A(f'v_add_u32 v{V_RW}, s{S_t0}, v{V_LIN}')
    A(f's_lshl_b32 s{S_t0}, s{S_W}, 10')
    A(f'v_add_u32 v{V_RR}, s{S_t0}, v{V_LIN}')
    A(f'v_and_b32 v{T0}, 31, v{V_L}')
    A(f'v_mul_u32_u24 v{T0}, 1280, v{T0}')
    A(f'v_lshrrev_b32 v{T1}, 5, v{V_L}')
    A(f'v_lshl_add_u32 v{T0}, v{T1}, 3, v{T0}')
    A(f's_lshl_b32 s{S_t0}, s{S_J}, 6')
    A(f's_lshl_b32 s{S_t1}, s{S_W}, 4')
    A(f's_add_u32 s{S_t0}, s{S_t0}, s{S_t1}')
    A(f'v_add_u32 v{V_OA}, s{S_t0}, v{T0}')
    A(f's_load_dwordx2 s[4:5], s[0:1], 88')
    A('s_waitcnt lgkmcnt(0)')
    setsrd(A, S_T, 4, 2048*1280)
    A(f'v_mov_b32 v{T0}, 0')
    A(f's_mov_b32 s{S_t0}, {C_BCNT}')
    A('L_o_wb:')
    A(f'buffer_load_dword v{T1}, v{T0}, {WSR}, s{S_t0} offen sc1')
    A('s_waitcnt vmcnt(0)')
    A(f'v_readfirstlane_b32 s{S_t1}, v{T1}')
    A(f's_cmp_ge_u32 s{S_t1}, 128')
    A('s_cbranch_scc1 L_o_wb_ok')
    A('s_sleep 32')
    A(f's_sub_u32 s{S_TO}, s{S_TO}, 1')
    A('s_cbranch_scc0 L_o_wb')
    A('s_branch L_timeout')
    A('L_o_wb_ok:')
    tl(A, 4)
    def wait_x(tag):
        A(f's_lshl_b32 s{S_t0}, s{S_SEG}, 7')
        A(f's_add_u32 s{S_t0}, s{S_t0}, {C_XDONE}')
        A(f'v_mov_b32 v{T0}, 0')
        A(f's_cmp_lg_u32 s{S_W}, 0')
        A(f's_cbranch_scc1 L_o_wx{tag}_ok')
        A(f'L_o_wx{tag}:')
        A(f'buffer_load_dword v{T1}, v{T0}, {WSR}, s{S_t0} offen sc1')
        A('s_waitcnt vmcnt(0)')
        A(f'v_readfirstlane_b32 s{S_t1}, v{T1}')
        A(f's_cmp_ge_u32 s{S_t1}, 32')
        A(f's_cbranch_scc1 L_o_wx{tag}_ok')
        A(f's_cmp_ge_u32 s{S_SEG}, 58')
        A(f's_cbranch_scc1 L_o_wx{tag}_short')
        A(f's_sleep {SLEEPN[0]}')
        A(f'L_o_wx{tag}_short:')
        A(f's_sleep {OSHORT[0]}')
        A(f's_sub_u32 s{S_TO}, s{S_TO}, 1')
        A(f's_cbranch_scc0 L_o_wx{tag}')
        A('s_branch L_timeout')
        A(f'L_o_wx{tag}_ok:')
        A('s_barrier')
        A(f's_mul_i32 s{S_B}, s{S_SEG}, {O_SEG}')
        A(f's_mul_i32 s{S_t0}, s{S_W}, {76*1024}')
        A(f's_add_u32 s{S_B}, s{S_B}, s{S_t0}')
        A(f's_add_u32 s{S_B}, s{S_B}, {WS_O}')
    LAST = TAILN[0]
    A(f's_mov_b32 s{S_SEG}, s{S_XB}')
    A(f's_mov_b32 s{S_C}, 0')
    A('L_o_seg:')
    wait_x('')
    def xload(t):
        if t % 4 == 0 and t: A(f's_add_u32 s{S_B}, s{S_B}, 4096')
        A(f'buffer_load_dwordx4 {vr(V_X+4*(t%NR),4)}, v{V_LIN}, {WSR}, s{S_B} offen offset:{(t%4)*1024} sc1')
    for t in range(NR): xload(t)
    issued = NR
    for t in range(76):
        A(f's_waitcnt vmcnt({issued-(t+1)})')
        mfma32(A, vr(V_ACC,16), wreg(t), vr(V_X+4*(t%NR),4), '0' if t == 0 else vr(V_ACC,16))
        if issued < 76:
            xload(issued); issued += 1
    A('s_nop 11')
    A(f'v_add_u32 v{T0}, s{S_C}, v{V_RW}')
    for q in range(4):
        A(f'ds_write_b128 v{T0}, {vr(V_ACC+4*q,4)} offset:{q*1024}')
    A('s_waitcnt lgkmcnt(0)')
    A('s_barrier')
    A(f'v_add_u32 v{T0}, s{S_C}, v{V_RR}')
    for src in range(4):
        A(f'ds_read_b128 {vr(V_R+4*src,4)}, v{T0} offset:{src*4096}')
    A('s_waitcnt lgkmcnt(0)')
    for r in (0, 2):
        A(f'v_pk_add_f32 {vr(V_R+r,2)}, {vr(V_R+r,2)}, {vr(V_R+4+r,2)}')
        A(f'v_pk_add_f32 {vr(V_R+8+r,2)}, {vr(V_R+8+r,2)}, {vr(V_R+12+r,2)}')
    for r in (0, 2):
        A(f'v_pk_add_f32 {vr(V_R+r,2)}, {vr(V_R+r,2)}, {vr(V_R+8+r,2)}')
    A(f'v_cvt_pk_bf16_f32 v{V_R+4}, v{V_R}, v{V_R+1}')
    A(f'v_cvt_pk_bf16_f32 v{V_R+5}, v{V_R+2}, v{V_R+3}')
    A(f's_mul_i32 s{S_t0}, s{S_SEG}, {32*1280}')
    A(f'buffer_store_dwordx2 {vr(V_R+4,2)}, v{V_OA}, s[{S_T}:{S_T+3}], s{S_t0} offen')
    A(f's_xor_b32 s{S_C}, s{S_C}, 16384')
    A(f's_add_u32 s{S_SEG}, s{S_SEG}, 4')
    A(f's_cmp_lt_u32 s{S_SEG}, {LAST}')
    A('s_cbranch_scc1 L_o_seg')
    if LAST in (60, 62):
        NT = 24; A0, A1, RR = 160, 176, 192
        A(f's_lshr_b32 s{S_SEG}, s{S_XB}, 1')
        A(f's_add_u32 s{S_SEG}, s{S_SEG}, {LAST}')
        A(f's_and_b32 s{S_A}, s{S_XB}, 1')
        A(f'v_bfe_u32 v{T0}, v{V_L}, 4, 1')
        A(f'v_lshlrev_b32 v{T0}, 10, v{T0}')
        A(f'v_lshrrev_b32 v{T1}, 5, v{V_L}')
        A(f'v_lshl_add_u32 v{T0}, v{T1}, 9, v{T0}')
        A(f'v_and_b32 v{T1}, 15, v{V_L}')
        A(f'v_lshl_add_u32 v{T0}, v{T1}, 4, v{T0}')
        A(f's_lshl_b32 s{S_t0}, s{S_A}, 8')
        A(f'v_add_u32 v{V_LIN}, s{S_t0}, v{T0}')
        A(f'v_mul_u32_u24 v{T0}, 1280, v{T1}')
        A(f's_mul_i32 s{S_t0}, s{S_A}, {16*1280}')
        A(f'v_add_u32 v{T0}, s{S_t0}, v{T0}')
        A(f'v_lshrrev_b32 v{T1}, 5, v{V_L}')
        A(f'v_lshl_add_u32 v{T0}, v{T1}, 3, v{T0}')
        A(f's_lshl_b32 s{S_t0}, s{S_J}, 6')
        A(f's_lshl_b32 s{S_t1}, s{S_W}, 4')
        A(f's_add_u32 s{S_t0}, s{S_t0}, s{S_t1}')
        A(f'v_add_u32 v{T0}, s{S_t0}, v{T0}')
        A(f'v_bfe_u32 v{T1}, v{V_L}, 4, 1')
        A(f'v_cmp_eq_u32 s[56:57], 0, v{T1}')
        A(f'v_mov_b32 v{T2}, {BIG}')
        A('s_nop 1')
        A(f'v_cndmask_b32 v{V_OA}, v{T2}, v{T0}, s[56:57]')
        A('L_o_tail:')
        wait_x('t')
        tl(A, 6)
        def tload(u):
            if u % 2 == 0 and u: A(f's_add_u32 s{S_B}, s{S_B}, 4096')
            A(f'buffer_load_dwordx4 {vr(V_X+4*(u%NT),4)}, v{V_LIN}, {WSR}, s{S_B} offen offset:{(u%2)*2048} sc1')
        for u in range(NT): tload(u)
        issued = NT
        for u in range(38):
            A(f's_waitcnt vmcnt({issued-(u+1)})')
            mfma32(A, vr(A0,16), wreg(2*u), vr(V_X+4*(u%NT),4), '0' if u == 0 else vr(A0,16))
            mfma32(A, vr(A1,16), wreg(2*u+1), vr(V_X+4*(u%NT),4), '0' if u == 0 else vr(A1,16))
            if issued < 38:
                tload(issued); issued += 1
        tl(A, 7)
        A('s_nop 11')
        for r in range(16):
            A(f'v_cndmask_b32 v{V_ACC+r}, v{A1+r}, v{A0+r}, s[56:57]')
        A(f'v_add_u32 v{T0}, s{S_C}, v{V_RW}')
        for q in range(4):
            A(f'ds_write_b128 v{T0}, {vr(V_ACC+4*q,4)} offset:{q*1024}')
        A('s_waitcnt lgkmcnt(0)')
        A('s_barrier')
        A(f'v_add_u32 v{T0}, s{S_C}, v{V_RR}')
        for src in range(4):
            A(f'ds_read_b128 {vr(RR+8*src,4)}, v{T0} offset:{src*4096}')
            A(f'ds_read_b128 {vr(RR+8*src+4,4)}, v{T0} offset:{src*4096+256}')
        A('s_waitcnt lgkmcnt(0)')
        for k in range(1, 8):
            for r in (0, 2):
                A(f'v_pk_add_f32 {vr(RR+r,2)}, {vr(RR+r,2)}, {vr(RR+4*k+r,2)}')
        A(f'v_cvt_pk_bf16_f32 v{V_R+4}, v{RR}, v{RR+1}')
        A(f'v_cvt_pk_bf16_f32 v{V_R+5}, v{RR+2}, v{RR+3}')
        A(f's_mul_i32 s{S_t0}, s{S_SEG}, {32*1280}')
        A(f'buffer_store_dwordx2 {vr(V_R+4,2)}, v{V_OA}, s[{S_T}:{S_T+3}], s{S_t0} offen')
        A(f's_xor_b32 s{S_C}, s{S_C}, 16384')
        A(f's_add_u32 s{S_SEG}, s{S_SEG}, 2')
        A(f's_cmp_lt_u32 s{S_SEG}, 64')
        A('s_cbranch_scc1 L_o_tail')

def gen_phase3(A):
    A(f's_lshr_b32 s{S_XB}, s{S_BID}, 5')
    A(f's_and_b32 s{S_J}, s{S_BID}, 31')
    A('s_barrier')
    A(f's_cmp_lt_u32 s{S_J}, 20')
    A('s_cbranch_scc1 L_p3_end' if NOOUT[0] else 's_cbranch_scc1 L_p3_out')
    gen_xattn(A)
    A('s_branch L_p3_end')
    A('L_p3_out:')
    gen_outproj(A)
    A('L_p3_end:')

if __name__ == '__main__':
    import bulk1, bulk2
    A = Asm(); K = NAME + '_kernel'
    kernel_begin(A, K)
    A('s_cmp_ge_u32 s2, 128')
    A('s_cbranch_scc1 L_end')
    A('s_load_dwordx2 s[4:5], s[0:1], 104')
    A(f's_load_dwordx2 s[{S_DBG}:{S_DBG+1}], s[0:1], 96')
    A('v_lshrrev_b32 v1, 6, v0')
    A('s_nop 0')
    A(f'v_readfirstlane_b32 s{S_W}, v1')
    A('s_waitcnt lgkmcnt(0)')
    setsrd(A, S_WS, 4, 0x10000000)
    A(f's_mov_b32 s{S_BID}, s2')
    A(f's_mov_b32 s{S_TO}, 0x40000')
    bulk1.gen_phase1_loop(A)
    bulk2.gen_phase2(A)
    gen_phase3(A)
    A('s_waitcnt vmcnt(0)')
    A('L_end:')
    A('s_endpgm')
    A('L_timeout:')
    A('v_mov_b32 v1, 60')
    A('v_mov_b32 v2, 0xdead')
    A(f'global_store_dword v1, v2, s[{S_DBG}:{S_DBG+1}]')
    A('s_waitcnt vmcnt(0)')
    A('s_endpgm')
    open(sys.argv[1], 'w').write(file_text(['; @launch grid=(128,1,1) block=(256,1,1) lds=163840'], A.text(), kernel_desc(K)))
```

```python
from asmlib import *
from ws_layout import *
import struct, sys

NSEG = 64
S_WS   = 8
S_T    = 12
S_X, S_J, S_H, S_C, S_W, S_STEP = 16, 17, 18, 19, 20, 21
S_TO   = 22
S_HASITEM = 23
S_DUM  = 24
S_DBG  = 28
S_t0, S_t1, S_t2, S_t3 = 30, 31, 32, 33
S_PAR  = 34
S_SCL = 38
S_KM, S_VM = 40, 41
S_SEG2 = 42
S_CPO = 44
S_PROF = 48
S_PT   = 64
S_D0   = 68
S_M0   = 72
S_VALID = 76
S_QV, S_PR, S_MR, S_XR = 84, 88, 92, 96
V_QKST, V_VST, V_RLD, V_VLD, V_P4, V_P2, V_RS0, V_RS1 = 1, 2, 3, 4, 5, 6, 7, 8
V_MS   = 9
V_M0   = 10
V_LM0  = 100
V_LB   = 16
V_LRW, V_LRR = 17, 18
V_T    = 20
V_NEG  = 28
V_SEL  = 32
V_LKV  = 36
V_PRG  = 37
V_CPF  = 38
V_CPV  = 39
V_PH   = 99
V_LRK  = 19
V_XP3  = 107
V_B    = 40
V_KPUB, V_VPUB = 80, 81
V_XS   = 82
V_KPL  = 83
V_ACV  = 84
V_RSD  = 88
V_DM3A, V_DM3B = 96, 97
V_VPL  = 98
V_XL   = 104
V_XD   = 108
V_ACC  = 120
V_R    = 128
V_VV   = 144
V_KX   = 160
V_S    = 192
V_VOX  = 204
V_VOM  = 216
V_PX   = 228
V_PM   = 232
V_F    = 236
V_O    = 248
V_PO   = 56
V_PO2  = 254
A_QK, A_V, A_O = 0, 80, 120
A_ONE, A_HALF = 168, 172
HOFF = 768
MEMSTRIDE = 2*HOFF + 32
L_KV  = 0
L_MEM = 65536
L_RAREA = 81920
BIG = 0x40000000
CENSUS = 192
GO = 96
SCALE_LOG2E = (128 ** -0.5) * 1.4426950408889634
def f2u(x): return struct.unpack('<I', struct.pack('<f', x))[0]
OPT = set()
DEFAULTS = {'xp3on': 0, 'nS': 3, 'gapS': 15, 'rsdelay': 30, 'nX': 2, 'nR': 2, 'nA': 2, 'bsleep': 100, 'vdelay': 12}
DEFAULT_FLAGS = {'dmamid'}
WSR = f's[{S_WS}:{S_WS+3}]'
def optval(k, d):
    for o in OPT:
        if o.startswith(k+'='): return o.split('=')[1] if isinstance(d, str) else int(o.split('=')[1])
    return DEFAULTS.get(k, d)
def mfma(A, d, a, b, c):
    A(f'v_mfma_f32_16x16x32_bf16 {d}, {a}, {b}, {c}')
def nops(A, n):
    while n > 0:
        k = min(n, 16); A(f's_nop {k-1}'); n -= k

class Prof:
    def __init__(self, on): self.on = on
    def stamp(self, A, idx, trace_only=False):
        if 'trace' in OPT:
            lab = A.label('L_tr')
            A(f's_cmp_lg_u32 s{S_STEP}, {optval("ts", 30)}')
            A(f's_cbranch_scc1 {lab}')
            A(f's_memrealtime s[{S_PT}:{S_PT+1}]')
            A('s_waitcnt lgkmcnt(0)')
            A(f's_mov_b32 s{S_PROF+idx}, s{S_PT}')
            A(f'{lab}:')
            return
        if not self.on or trace_only: return
        A(f's_memtime s[{S_PT}:{S_PT+1}]')
        A('s_waitcnt lgkmcnt(0)')
        A(f's_sub_u32 s{S_PT+3}, s{S_PT}, s{S_PT+2}')
        A(f's_mov_b32 s{S_PT+2}, s{S_PT}')
        A(f's_add_u32 s{S_PROF+idx}, s{S_PROF+idx}, s{S_PT+3}')

PROFCNT = {}
def check(A, regs, tmp=V_T):
    r = list(regs)
    if len(r) <= 5:
        A(f'v_max3_u32 v{tmp}, v{r[0]}, v{r[1]}, v{r[2]}'); r = r[3:]
        if len(r) == 2: A(f'v_max3_u32 v{tmp}, v{tmp}, v{r[0]}, v{r[1]}')
        elif len(r) == 1: A(f'v_max_u32 v{tmp}, v{tmp}, v{r[0]}')
    else:
        A(f'v_max3_u32 v{tmp}, v{r[0]}, v{r[1]}, v{r[2]}')
        A(f'v_max3_u32 v{tmp+1}, v{r[3]}, v{r[4]}, v{r[5]}'); r = r[6:]; cur = 0
        while len(r) >= 2:
            A(f'v_max3_u32 v{tmp+cur}, v{tmp+cur}, v{r[0]}, v{r[1]}'); r = r[2:]; cur ^= 1
        if r: A(f'v_max3_u32 v{tmp}, v{tmp}, v{tmp+1}, v{r[0]}')
        else: A(f'v_max_u32 v{tmp}, v{tmp}, v{tmp+1}')
    A(f'v_cmp_eq_u32 vcc, -1, v{tmp}')

def retry(A, label, key=None):
    if key in PROFCNT:
        k = PROFCNT[key]; A(f's_add_u32 s{S_PROF+k}, s{S_PROF+k}, 1')
    A(f's_sub_u32 s{S_TO}, s{S_TO}, 1')
    A(f's_cbranch_scc0 {label}')
    A('s_branch L_timeout')

def setsrd(A, lo, size):
    A(f's_mov_b32 s{S_T}, s{lo}')
    A(f's_and_b32 s{S_T+1}, s{lo+1}, 0xffff')
    A(f's_mov_b32 s{S_T+2}, {size}')
    A(f's_mov_b32 s{S_T+3}, 0x20000')

def dbl(A, v, tmp, add=0):
    A(f'v_lshrrev_b32 v{tmp}, 13, v{v}')
    A(f'v_lshlrev_b32 v{tmp}, 14, v{tmp}')
    A(f'v_and_b32 v{v}, 8191, v{v}')
    A(f'v_add_u32 v{v}, v{v}, v{tmp}')
    if add: A(f'v_add_u32 v{v}, {add}, v{v}')

def vox_reads(A, slot):
    for kt in range(2):
        for s4 in range(4):
            A(f'ds_read_b128 {vr(V_KX+16*kt+4*s4,4)}, v{V_LKV} offset:{L_KV + slot*16384 + 8192 + 2048*s4 + 256*kt}')
def vox_compute(A, hook=None):
    A('s_waitcnt lgkmcnt(0)')
    if hook: hook()
    if 'skipvox' in OPT: return
    for tt in range(3):
        acc = V_F if tt % 2 == 0 else V_ACC
        for s4 in range(4):
            for kt in range(2):
                c = '0' if s4 == 0 else vr(acc+4*kt,4)
                mfma(A, vr(acc+4*kt,4), vr(V_KX+16*kt+4*s4,4), ar(A_O+16*tt+4*s4,4), c)
            if tt >= 1 and s4 == 3:
                pacc = V_F if (tt-1) % 2 == 0 else V_ACC
                for kt in range(2):
                    A(f'v_cvt_pk_bf16_f32 v{V_VOX+4*(tt-1)+2*kt}, v{pacc+4*kt}, v{pacc+4*kt+1}')
                    A(f'v_cvt_pk_bf16_f32 v{V_VOX+4*(tt-1)+2*kt+1}, v{pacc+4*kt+2}, v{pacc+4*kt+3}')
    A('s_nop 7')
    for kt in range(2):
        A(f'v_cvt_pk_bf16_f32 v{V_VOX+8+2*kt}, v{V_F+4*kt}, v{V_F+4*kt+1}')
        A(f'v_cvt_pk_bf16_f32 v{V_VOX+8+2*kt+1}, v{V_F+4*kt+2}, v{V_F+4*kt+3}')

def vox_tiles(A, tiles, wait=True):
    if wait: A('s_waitcnt lgkmcnt(0)')
    if 'skipvox' in OPT or not tiles: return
    accs = [V_F, V_ACC]
    for n, tt in enumerate(tiles):
        acc = accs[n % 2]
        for s4 in range(4):
            for kt in range(2):
                c = '0' if s4 == 0 else vr(acc+4*kt,4)
                mfma(A, vr(acc+4*kt,4), vr(V_KX+16*kt+4*s4,4), ar(A_O+16*tt+4*s4,4), c)
            if n >= 1 and s4 == 3:
                pt = tiles[n-1]; pacc = accs[(n-1) % 2]
                for kt in range(2):
                    A(f'v_cvt_pk_bf16_f32 v{V_VOX+4*pt+2*kt}, v{pacc+4*kt}, v{pacc+4*kt+1}')
                    A(f'v_cvt_pk_bf16_f32 v{V_VOX+4*pt+2*kt+1}, v{pacc+4*kt+2}, v{pacc+4*kt+3}')
    A('s_nop 6')
    pt = tiles[-1]; pacc = accs[(len(tiles)-1) % 2]
    for kt in range(2):
        A(f'v_cvt_pk_bf16_f32 v{V_VOX+4*pt+2*kt}, v{pacc+4*kt}, v{pacc+4*kt+1}')
        A(f'v_cvt_pk_bf16_f32 v{V_VOX+4*pt+2*kt+1}, v{pacc+4*kt+2}, v{pacc+4*kt+3}')

def gen_prologue(A, P):
    A(f's_lshr_b32 s{S_t0}, s{S_J}, 2')
    A(f's_lshl_b32 s{S_H}, s{S_X}, 3')
    A(f's_add_u32 s{S_H}, s{S_H}, s{S_t0}')
    A(f's_and_b32 s{S_C}, s{S_J}, 3')
    A(f's_mov_b32 s{S_SCL}, {hex(f2u(SCALE_LOG2E))}')
    A(f's_mov_b32 s{S_SCL+1}, {hex(f2u(SCALE_LOG2E))}')
    L, I, G = V_T, V_T+1, V_T+2
    T0, T1, T2 = V_T+3, V_T+4, V_T+5
    I7 = V_T+6; T3 = V_T+7
    A(f'v_and_b32 v{L}, 63, v0')
    A(f'v_and_b32 v{I}, 15, v0')
    A(f'v_bfe_u32 v{G}, v0, 4, 2')
    A(f'v_and_b32 v{I7}, 7, v{I}')
    A.c('weights DMA')
    A(f's_load_dwordx4 s[4:7], s[0:1], 16')
    A(f's_waitcnt lgkmcnt(0)')
    A(f'v_lshrrev_b32 v{T0}, 2, v{L}')
    A(f'v_lshlrev_b32 v{T0}, 13, v{T0}')
    A(f'v_and_b32 v{T1}, 3, v{L}')
    A(f'v_lshlrev_b32 v{T1}, 4, v{T1}')
    A(f'v_add_u32 v{T0}, v{T0}, v{T1}')
    A(f's_lshl_b32 s{S_t0}, s{S_H}, 8')
    A(f's_lshl_b32 s{S_t1}, s{S_C}, 6')
    A(f's_add_u32 s{S_t0}, s{S_t0}, s{S_t1}')
    A(f'v_add_u32 v{T0}, s{S_t0}, v{T0}')
    def dma_w(area):
        A(f's_lshl_b32 s{S_t0}, s{S_W}, 17')
        A(f's_lshl_b32 s{S_t1}, s{S_W}, 10')
        A(f's_add_u32 s{S_t1}, s{S_t1}, {area}')
        for i in range(10):
            A(f's_mov_b32 m0, s{S_t1}')
            A(f's_add_u32 s{S_t1}, s{S_t1}, 4096')
            A(f'buffer_load_dwordx4 v{T0}, s[{S_T}:{S_T+3}], s{S_t0} offen lds')
            A(f's_add_u32 s{S_t0}, s{S_t0}, {4*131072}')
    setsrd(A, 4, 5242880); dma_w(0)
    setsrd(A, 6, 5242880); dma_w(40960)
    A(f's_load_dwordx4 s[4:7], s[0:1], 32')
    A(f's_waitcnt lgkmcnt(0)')
    setsrd(A, 4, 5242880); dma_w(81920)
    setsrd(A, 6, 5242880)
    WO = V_B
    for b in range(5):
        A(f'v_add_u32 v{T1}, {64*b}, v{L}')
        A(f'v_mul_u32_u24 v{T2}, 3277, v{T1}')
        A(f'v_lshrrev_b32 v{T2}, 16, v{T2}')
        A(f'v_mul_u32_u24 v{WO+b}, 20, v{T2}')
        A(f'v_sub_u32 v{WO+b}, v{T1}, v{WO+b}')
        A(f'v_lshlrev_b32 v{WO+b}, 4, v{WO+b}')
        A(f'v_mul_u32_u24 v{T2}, 1280, v{T2}')
        A(f'v_add_u32 v{WO+b}, v{WO+b}, v{T2}')
    A(f's_mul_i32 s{S_t0}, s{S_H}, {128*1280}')
    A(f's_mul_i32 s{S_t1}, s{S_C}, 320')
    A(f's_add_u32 s{S_t0}, s{S_t0}, s{S_t1}')
    A(f's_mul_i32 s{S_t1}, s{S_W}, {16*1280}')
    A(f's_add_u32 s{S_t0}, s{S_t0}, s{S_t1}')
    A(f's_mul_i32 s{S_t1}, s{S_W}, 5120')
    A(f's_add_u32 s{S_t1}, s{S_t1}, 122880')
    for hi in range(2):
        for b in range(5):
            A(f's_add_u32 m0, s{S_t1}, {hi*4*5120 + b*1024}')
            A(f's_add_u32 s{S_t2}, s{S_t0}, {hi*4*16*1280}')
            A(f'buffer_load_dwordx4 v{WO+b}, s[{S_T}:{S_T+3}], s{S_t2} offen lds')
    A.c('address regs')
    VALID = f's[{S_VALID}:{S_VALID+1}]'
    VV_ = f's[{S_M0}:{S_M0+1}]'
    A(f'v_cmp_gt_u32 {VALID}, 8, v{I}')
    A(f'v_mov_b32 v{T2}, {BIG}')
    TO = V_B+8
    A(f's_lshr_b32 s{S_t1}, s{S_W}, 1')
    A(f's_lshl_b32 s{S_t0}, s{S_t1}, 11')
    A(f's_lshl_b32 s{S_t1}, s{S_C}, 9')
    A(f's_add_u32 s{S_t0}, s{S_t0}, s{S_t1}')
    A(f's_and_b32 s{S_t1}, s{S_W}, 1')
    A(f's_lshl_b32 s{S_t1}, s{S_t1}, 8')
    A(f's_add_u32 s{S_t0}, s{S_t0}, s{S_t1}')
    A(f'v_lshlrev_b32 v{TO}, 5, v{I7}')
    A(f'v_lshl_add_u32 v{TO}, v{G}, 3, v{TO}')
    A(f'v_add_u32 v{TO}, s{S_t0}, v{TO}')
    S_HB = S_D0
    A(f's_lshr_b32 s{S_t0}, s{S_H}, 1')
    A(f's_lshl_b32 s{S_t0}, s{S_t0}, 14')
    A(f's_and_b32 s{S_t1}, s{S_H}, 1')
    A(f's_lshl_b32 s{S_t1}, s{S_t1}, 12')
    A(f's_add_u32 s{S_HB}, s{S_t0}, s{S_t1}')
    A(f'v_add_u32 v{T0}, s{S_HB}, v{TO}')
    A(f'v_cndmask_b32 v{V_QKST}, v{T2}, v{T0}, {VALID}')
    A(f's_cmp_ge_u32 s{S_W}, 2')
    A(f's_cselect_b64 {VV_}, -1, 0')
    A(f's_xor_b64 {VV_}, {VV_}, {VALID}')
    A(f'v_add_u32 v{T0}, {V_RING_OFF}, v{T0}')
    A(f'v_cndmask_b32 v{V_VST}, v{T2}, v{T0}, {VV_}')
    A(f'v_lshlrev_b32 v{T0}, 4, v{L}')
    A(f'v_cmp_gt_u32 vcc, 32, v{L}')
    A(f's_lshl_b32 s{S_t0}, s{S_C}, 9')
    A(f's_lshl_b32 s{S_t1}, s{S_H}, 11')
    A(f's_add_u32 s{S_t1}, s{S_t1}, s{S_t0}')
    A(f'v_add_u32 v{T1}, s{S_t1}, v{T0}')
    A(f'v_cndmask_b32 v{V_KPUB}, v{T2}, v{T1}, vcc')
    A(f's_add_u32 s{S_t1}, s{S_HB}, s{S_t0}')
    A(f's_add_u32 s{S_t1}, s{S_t1}, 2048')
    A(f'v_add_u32 v{T1}, s{S_t1}, v{T0}')
    A(f'v_cndmask_b32 v{V_KPL}, v{T2}, v{T1}, vcc')
    A(f's_lshl_b32 s{S_t0}, s{S_C}, 10')
    A(f's_lshl_b32 s{S_t1}, s{S_H}, 12')
    A(f's_add_u32 s{S_t1}, s{S_t1}, s{S_t0}')
    A(f'v_add_u32 v{V_VPUB}, s{S_t1}, v{T0}')
    A(f's_add_u32 s{S_t1}, s{S_HB}, s{S_t0}')
    A(f's_add_u32 s{S_t1}, s{S_t1}, {V_RING_OFF}')
    A(f'v_add_u32 v{V_VPL}, s{S_t1}, v{T0}')
    A(f's_lshl_b32 s{S_t1}, s{S_W}, 10')
    A(f's_add_u32 s{S_t0}, s{S_HB}, s{S_t1}')
    A(f'v_add_u32 v{V_RLD}, s{S_t0}, v{T0}')
    A(f's_add_u32 s{S_t1}, s{S_t1}, {L_RAREA}')
    A(f'v_add_u32 v{V_LRW}, s{S_t1}, v{T0}')
    A(f'v_lshrrev_b32 v{T0}, 3, v{I}')
    A(f'v_lshlrev_b32 v{T0}, 11, v{T0}')
    A(f'v_lshrrev_b32 v{T1}, 1, v{G}')
    A(f'v_lshl_add_u32 v{T0}, v{T1}, 8, v{T0}')
    A(f'v_lshl_add_u32 v{T0}, v{I7}, 5, v{T0}')
    A(f'v_and_b32 v{T1}, 1, v{G}')
    A(f'v_lshl_add_u32 v{T0}, v{T1}, 4, v{T0}')
    A(f'v_add_u32 v{V_LRR}, {L_RAREA}, v{T0}')
    A(f'v_and_b32 v{V_LRK}, 2047, v{T0}')
    A(f'v_add_u32 v{V_LRK}, {L_RAREA + 2048}, v{V_LRK}')
    A(f's_add_u32 s{S_t0}, s{S_HB}, {V_RING_OFF}')
    A(f'v_add_u32 v{V_VLD}, s{S_t0}, v{T0}')
    A(f's_mul_i32 s{S_t0}, s{S_H}, 10240')
    A(f's_mul_i32 s{S_t1}, s{S_C}, 2560')
    A(f's_add_u32 s{S_t0}, s{S_t0}, s{S_t1}')
    A(f's_lshl_b32 s{S_t1}, s{S_W}, 9')
    A(f's_add_u32 s{S_t1}, s{S_t1}, s{S_t0}')
    A(f'v_lshlrev_b32 v{T0}, 6, v{I}')
    A(f'v_lshl_add_u32 v{T0}, v{G}, 4, v{T0}')
    A(f'v_add_u32 v{T0}, s{S_t1}, v{T0}')
    dbl(A, T0, T1)
    A(f'v_cndmask_b32 v{V_P4}, v{T2}, v{T0}, {VALID}')
    A(f's_lshl_b32 s{S_t1}, s{S_W}, 8')
    A(f's_add_u32 s{S_t1}, s{S_t1}, 2048')
    A(f's_add_u32 s{S_t1}, s{S_t1}, s{S_t0}')
    A(f'v_lshlrev_b32 v{T0}, 5, v{I}')
    A(f'v_lshl_add_u32 v{T0}, v{G}, 3, v{T0}')
    A(f'v_add_u32 v{T0}, s{S_t1}, v{T0}')
    dbl(A, T0, T1)
    A(f's_cmp_lt_u32 s{S_W}, 2')
    A(f's_cselect_b64 s[{S_t2}:{S_t3}], {VALID}, 0')
    A(f'v_cndmask_b32 v{V_P2}, v{T2}, v{T0}, s[{S_t2}:{S_t3}]')
    A(f's_lshl_b32 s{S_t0}, s{S_W}, 5')
    A(f's_add_u32 s{S_t0}, s{S_t0}, s{S_J}')
    A(f's_cmp_lt_u32 s{S_t0}, 80')
    A(f's_cselect_b32 s{S_HASITEM}, 1, 0')
    A(f's_cselect_b32 s{S_t0}, s{S_t0}, 0')
    A(f's_lshl_b32 s{S_t1}, s{S_t0}, 7')
    A(f's_cmp_eq_u32 s{S_HASITEM}, 1')
    A(f's_cselect_b64 {VV_}, -1, 0')
    for u, dst in enumerate((V_RS0, V_RS1)):
        A(f'v_add_u32 v{T0}, {4*u}, v{G}')
        A(f's_lshl_b32 s{S_t2}, s{S_X}, 3')
        A(f'v_add_u32 v{T0}, s{S_t2}, v{T0}')
        A(f'v_mul_u32_u24 v{T0}, 10240, v{T0}')
        A(f'v_lshl_add_u32 v{T0}, v{I}, 3, v{T0}')
        A(f'v_add_u32 v{T0}, s{S_t1}, v{T0}')
        dbl(A, T0, T1)
        A(f'v_cndmask_b32 v{dst}, v{T2}, v{T0}, {VV_}')
    A(f'v_cmp_eq_u32 vcc, 0, v{G}')
    A('s_nop 3')
    A(f's_and_b64 {VV_}, {VV_}, vcc')
    A(f's_mul_i32 s{S_t2}, s{S_X}, 10240')
    A(f's_add_u32 s{S_t2}, s{S_t2}, s{S_t1}')
    A(f'v_lshlrev_b32 v{T0}, 3, v{I}')
    A(f'v_add_u32 v{T0}, s{S_t2}, v{T0}')
    dbl(A, T0, T1)
    A(f'v_cndmask_b32 v{V_MS}, v{T2}, v{T0}, {VV_}')
    for k, dst in enumerate((V_XS, V_XL, V_XL+1, V_XL+2)):
        A(f's_add_u32 s{S_t2}, s{S_X}, {k}')
        A(f's_and_b32 s{S_t2}, s{S_t2}, 3')
        A(f's_mul_i32 s{S_t2}, s{S_t2}, 20480')
        A(f's_lshl_b32 s{S_t3}, s{S_t1}, 1')
        A(f's_add_u32 s{S_t2}, s{S_t2}, s{S_t3}')
        A(f'v_lshlrev_b32 v{T0}, 4, v{I}')
        A(f'v_add_u32 v{T0}, s{S_t2}, v{T0}')
        dbl(A, T0, T1)
        if 'xtag' in OPT and k > 0: A(f'v_mov_b32 v{dst}, v{T0}')
        else: A(f'v_cndmask_b32 v{dst}, v{T2}, v{T0}, {VV_}')
    A(f'v_mov_b32 v{V_PH}, 0')
    A(f'v_lshlrev_b32 v{T0}, 5, v{G}')
    A(f'v_add_u32 v{T0}, s{S_J}, v{T0}')
    A(f'v_cmp_gt_u32 vcc, 80, v{T0}')
    A(f'v_lshlrev_b32 v{T0}, 8, v{T0}')
    A(f'v_lshl_add_u32 v{T0}, v{I}, 4, v{T0}')
    A(f's_mul_i32 s{S_t2}, s{S_X}, 20480')
    A(f'v_add_u32 v{T0}, s{S_t2}, v{T0}')
    dbl(A, T0, T1)
    A(f's_cmp_eq_u32 s{S_W}, 3')
    A(f's_cselect_b64 s[{S_t2}:{S_t3}], vcc, 0')
    A(f'v_cndmask_b32 v{V_XP3}, v{T2}, v{T0}, s[{S_t2}:{S_t3}]')
    Q, LN, PT, ROW, COL = V_B+8, V_B+9, V_B+10, V_B+11, V_B+12
    M_, R2, C2 = V_B+13, V_B+14, V_B+15
    NAG = 4 if 'ag3' in OPT else 3
    for k in range(NAG):
        if 'ag3' in OPT:
            A(f's_mul_i32 s{S_t0}, s{S_W}, 214')
            A(f's_add_u32 s{S_t1}, s{S_t0}, 213')
            A(f's_min_u32 s{S_t1}, s{S_t1}, 639')
            A(f's_add_u32 s{S_t0}, s{S_t0}, {64*k}')
            A(f'v_add_u32 v{Q}, s{S_t0}, v{L}')
            A(f'v_min_u32 v{Q}, s{S_t1}, v{Q}')
        else:
            A(f's_mul_i32 s{S_t0}, s{S_W}, 160')
            A(f's_add_u32 s{S_t0}, s{S_t0}, {64*k}')
            A(f'v_add_u32 v{Q}, s{S_t0}, v{L}')
            if k == 2:
                A(f'v_cmp_le_u32 vcc, 32, v{L}')
                A(f'v_subrev_u32 v{T1}, 32, v{Q}')
                A('s_nop 0')
                A(f'v_cndmask_b32 v{Q}, v{Q}, v{T1}, vcc')
        A(f's_mul_i32 s{S_t0}, s{S_X}, 10240')
        A(f'v_lshlrev_b32 v{V_M0+k}, 4, v{Q}')
        A(f'v_add_u32 v{V_M0+k}, s{S_t0}, v{V_M0+k}')
        dbl(A, V_M0+k, T1)
        A(f'v_lshrrev_b32 v{LN}, 3, v{Q}')
        A(f'v_and_b32 v{PT}, 7, v{Q}')
        A(f'v_mul_u32_u24 v{T0}, 3277, v{LN}')
        A(f'v_lshrrev_b32 v{T0}, 16, v{T0}')
        A(f'v_mul_u32_u24 v{T1}, 20, v{T0}')
        A(f'v_sub_u32 v{LN}, v{LN}, v{T1}')
        A(f'v_mul_u32_u24 v{COL}, 160, v{T0}')
        A(f'v_and_b32 v{T0}, 3, v{LN}')
        A(f'v_lshlrev_b32 v{T0}, 1, v{T0}')
        A(f'v_lshrrev_b32 v{T1}, 2, v{PT}')
        A(f'v_add_u32 v{ROW}, v{T0}, v{T1}')
        A(f'v_lshrrev_b32 v{T0}, 2, v{LN}')
        A(f'v_lshlrev_b32 v{T0}, 5, v{T0}')
        A(f'v_and_b32 v{T1}, 3, v{PT}')
        A(f'v_lshl_add_u32 v{T0}, v{T1}, 3, v{T0}')
        A(f'v_subrev_u32 v{M_}, 16, v{LN}')
        A(f'v_and_b32 v{R2}, 1, v{M_}')
        A(f'v_lshlrev_b32 v{R2}, 2, v{R2}')
        A(f'v_lshrrev_b32 v{T1}, 1, v{PT}')
        A(f'v_add_u32 v{R2}, v{R2}, v{T1}')
        A(f'v_lshrrev_b32 v{C2}, 1, v{M_}')
        A(f'v_lshlrev_b32 v{C2}, 4, v{C2}')
        A(f'v_and_b32 v{T1}, 1, v{PT}')
        A(f'v_lshl_add_u32 v{C2}, v{T1}, 3, v{C2}')
        A(f'v_add_u32 v{C2}, 128, v{C2}')
        A(f'v_cmp_le_u32 vcc, 16, v{LN}')
        A('s_nop 1')
        A(f'v_cndmask_b32 v{ROW}, v{ROW}, v{R2}, vcc')
        A(f'v_cndmask_b32 v{T0}, v{T0}, v{C2}, vcc')
        A(f'v_add_u32 v{COL}, v{COL}, v{T0}')
        A(f'v_lshlrev_b32 v{T0}, 1, v{COL}')
        A(f'v_add_u32 v{T1}, {HOFF-640}, v{T0}')
        A(f'v_cmp_le_u32 vcc, 320, v{COL}')
        A(f'v_mul_u32_u24 v{ROW}, {MEMSTRIDE}, v{ROW}')
        A('s_nop 0')
        A(f'v_cndmask_b32 v{T0}, v{T0}, v{T1}, vcc')
        A(f'v_add_u32 v{V_LM0+k}, v{ROW}, v{T0}')
        A(f'v_add_u32 v{V_LM0+k}, {L_MEM}, v{V_LM0+k}')
    A(f'v_mul_u32_u24 v{T0}, {MEMSTRIDE}, v{I7}')
    A(f'v_lshrrev_b32 v{T1}, 3, v{I}')
    A(f'v_mul_u32_u24 v{T1}, {HOFF}, v{T1}')
    A(f'v_add_u32 v{T0}, v{T0}, v{T1}')
    A(f'v_lshl_add_u32 v{V_LB}, v{G}, 4, v{T0}')
    A(f'v_add_u32 v{V_LB}, {L_MEM}, v{V_LB}')
    A(f'v_lshrrev_b32 v{T0}, 1, v{G}')
    A(f'v_lshlrev_b32 v{T0}, 10, v{T0}')
    A(f'v_and_b32 v{T1}, 1, v{G}')
    A(f'v_lshl_add_u32 v{T0}, v{T1}, 9, v{T0}')
    A(f'v_lshl_add_u32 v{V_LKV}, v{I}, 4, v{T0}')
    A(f'v_lshlrev_b32 v{V_DM3A}, 4, v{L}')
    A(f'v_lshlrev_b32 v{T0}, 12, v{L}')
    A(f's_lshl_b32 s{S_t0}, s{S_H}, 7')
    A(f'v_add_u32 v{T0}, s{S_t0}, v{T0}')
    A(f'v_cmp_gt_u32 vcc, 2, v{L}')
    A(f'v_mov_b32 v{T1}, {BIG}')
    A('s_nop 0')
    A(f'v_cndmask_b32 v{V_PRG}, v{T1}, v{T0}, vcc')
    A(f's_lshl_b32 s{S_t0}, s{S_H}, 2')
    A(f's_add_u32 s{S_t0}, s{S_t0}, s{S_C}')
    A(f's_lshl_b32 s{S_t0}, s{S_t0}, 7')
    A(f'v_mov_b32 v{T0}, s{S_t0}')
    A(f'v_cmp_eq_u32 vcc, 192, v0')
    A('s_nop 1')
    A(f'v_cndmask_b32 v{V_CPF}, v{T1}, v{T0}, vcc')
    for k in range(4): A(f'v_mov_b32 v{V_NEG+k}, -1')
    A(f'v_mov_b32 v{V_SEL}, 0')
    A(f'v_mov_b32 v{V_SEL+1}, 0')
    for m, (reg, val) in enumerate(((0, 0x3F80), (0, 0x3F800000), (1, 0x3F80), (1, 0x3F800000))):
        A(f'v_cmp_eq_u32 vcc, {m}, v{I}')
        A(f'v_mov_b32 v{T0}, {hex(val)}')
        A('s_nop 0')
        A(f'v_cndmask_b32 v{V_SEL+reg}, v{V_SEL+reg}, v{T0}, vcc')
    A(f'v_mov_b32 v{V_SEL+2}, v{V_SEL}')
    A(f'v_mov_b32 v{V_SEL+3}, v{V_SEL+1}')
    for tt in range(3):
        A(f'v_mov_b32 v{V_VOM+4*tt+2}, 0')
        A(f'v_mov_b32 v{V_VOM+4*tt+3}, 0')
    A(f'v_mov_b32 v{V_PM+2}, 0')
    A(f'v_mov_b32 v{V_PM+3}, 0')
    A(f'v_mov_b32 v{T0}, 0x3f803f80')
    A(f'v_mov_b32 v{T1}, 0x3f003f00')
    for r in range(4):
        A(f'v_accvgpr_write_b32 a{A_ONE+r}, v{T0}')
        A(f'v_accvgpr_write_b32 a{A_HALF+r}, v{T1}')
    A.c('initial poison (both parities)')
    A(f'v_mov_b32 v{V_CPV}, 0')
    A(f's_mov_b32 s{S_t0}, {C_CPROG}')
    A(f'buffer_store_dword v{V_CPV}, v{V_CPF}, {WSR}, s{S_t0} offen sc1')
    for sl in range(4):
        A(f's_mov_b32 s{S_t0}, {QV_SLOT(sl)[0]}')
        A(f'buffer_store_dwordx2 {vr(V_NEG,2)}, v{V_QKST}, {WSR}, s{S_t0} offen sc1')
        A(f'buffer_store_dwordx2 {vr(V_NEG,2)}, v{V_VST}, {WSR}, s{S_t0} offen sc1')
        A(f's_mov_b32 s{S_t0}, {P_SLOT(sl)[0]}')
        A(f'buffer_store_dwordx4 {vr(V_NEG,4)}, v{V_P4}, {WSR}, s{S_t0} offen sc1')
        A(f'buffer_store_dwordx2 {vr(V_NEG,2)}, v{V_P2}, {WSR}, s{S_t0} offen sc1')
        A(f's_mov_b32 s{S_t0}, {M_SLOT(sl)[0]}')
        A(f'buffer_store_dwordx2 {vr(V_NEG,2)}, v{V_MS}, {WSR}, s{S_t0} offen sc1')
        for par in range(2):
            A(f's_mov_b32 s{S_t0}, {X_SLOT(sl)[0] + par*8192}')
            A(f'buffer_store_dwordx4 {vr(V_NEG,4)}, v{V_XS}, {WSR}, s{S_t0} offen sc1')
        if sl == 2: A('s_waitcnt vmcnt(30)')
    tl(A, 9)
    A('s_waitcnt vmcnt(%d)' % (7 if TL_ON[0] else 6))
    tl(A, 10)
    verdict_issue(A, 'c')
    A('s_waitcnt vmcnt(0)')
    tl(A, 11)
    A('s_barrier')
    A(f's_cmp_lg_u32 s{S_W}, 0')
    A('s_cbranch_scc1 L_c_arrived')
    verdict_eval(A, 'c')
    A('s_cmp_lg_u32 s79, 0')
    A('s_cbranch_scc1 L_c_arrived')
    arrive(A)
    A('L_c_arrived:')
    tl(A, 1)
    A.c('weights tr-read')
    R_, CQ = V_T+6, V_T+7
    A(f'v_bfe_u32 v{R_}, v{L}, 2, 2')
    A(f'v_and_b32 v{CQ}, 3, v{L}')
    A(f'v_lshl_add_u32 v{T0}, v{G}, 3, v{R_}')
    A(f'v_lshlrev_b32 v{T0}, 6, v{T0}')
    A(f'v_lshl_add_u32 v{T0}, v{CQ}, 3, v{T0}')
    A(f's_and_b32 s{S_t0}, s{S_W}, 1')
    A(f's_lshl_b32 s{S_t0}, s{S_t0}, 5')
    A(f'v_add_u32 v{T0}, s{S_t0}, v{T0}')
    A(f's_lshr_b32 s{S_t1}, s{S_W}, 1')
    A(f's_mul_i32 s{S_t2}, s{S_t1}, 40960')
    A(f'v_add_u32 v{T1}, s{S_t2}, v{T0}')
    for t in range(20):
        for hf in range(2):
            A(f'ds_read_b64_tr_b16 {ar(A_QK+4*t+2*hf,2)}, v{T1} offset:{t*2048+hf*256}')
        if t % 4 == 3: A('s_waitcnt lgkmcnt(0)')
    A(f's_mul_i32 s{S_t3}, s{S_t1}, {10*2048}')
    A(f's_add_u32 s{S_t3}, s{S_t3}, 81920')
    A(f'v_add_u32 v{T1}, s{S_t3}, v{T0}')
    for t in range(10):
        for hf in range(2):
            A(f'ds_read_b64_tr_b16 {ar(A_V+4*t+2*hf,2)}, v{T1} offset:{t*2048+hf*256}')
        if t % 4 == 3: A('s_waitcnt lgkmcnt(0)')
    A('s_waitcnt lgkmcnt(0)')
    A(f'v_lshl_add_u32 v{T0}, v{G}, 3, v{R_}')
    A(f'v_mul_u32_u24 v{T0}, 320, v{T0}')
    A(f'v_add_u32 v{T0}, 122880, v{T0}')
    A(f's_lshl_b32 s{S_t0}, s{S_W}, 6')
    A(f'v_lshl_add_u32 v{T1}, v{CQ}, 4, v{T0}')
    A(f'v_add_u32 v{T1}, s{S_t0}, v{T1}')
    A(f's_and_b32 s{S_t0}, s{S_W}, 1')
    A(f's_lshl_b32 s{S_t0}, s{S_t0}, 5')
    A(f's_add_u32 s{S_t0}, s{S_t0}, 256')
    A(f'v_lshl_add_u32 v{T2}, v{CQ}, 3, v{T0}')
    A(f'v_add_u32 v{T2}, s{S_t0}, v{T2}')
    for tt in range(3):
        for s4 in range(4):
            for hf in range(2):
                if tt < 2:
                    A(f'ds_read_b64_tr_b16 {ar(A_O+16*tt+4*s4+2*hf,2)}, v{T1} offset:{(32*s4+4*hf)*320 + 8*tt}')
                else:
                    A(f'ds_read_b64_tr_b16 {ar(A_O+16*tt+4*s4+2*hf,2)}, v{T2} offset:{(32*s4+4*hf)*320}')
        A('s_waitcnt lgkmcnt(0)')
    A('s_barrier')
    tl(A, 12)
    arrive_finish(A, 'c')
    verdict_bcast(A, 'c')
    A.c('prologue kv + mem0')
    A(f's_mov_b32 s{S_STEP}, 0')
    A(f's_load_dwordx2 s[4:5], s[0:1], 8')
    A('s_waitcnt lgkmcnt(0)')
    setsrd(A, 4, 10240)
    for k in range(3):
        A(f'v_add_u32 v{T0}, {64*k}, v{L}')
        if k == 2:
            A(f'v_cmp_le_u32 vcc, 160, v{T0}')
            A(f'v_subrev_u32 v{T1}, 32, v{T0}')
            A('s_nop 0')
            A(f'v_cndmask_b32 v{T0}, v{T0}, v{T1}, vcc')
        A(f'v_cmp_le_u32 vcc, 80, v{T0}')
        A(f'v_subrev_u32 v{T1}, 80, v{T0}')
        A('s_nop 0')
        A(f'v_cndmask_b32 v{T0}, v{T0}, v{T1}, vcc')
        A(f'v_cndmask_b32 v{T1}, 0, 1, vcc')
        A(f's_lshl_b32 s{S_t0}, s{S_W}, 1')
        A(f'v_add_u32 v{T1}, s{S_t0}, v{T1}')
        A(f'v_lshlrev_b32 v{T0}, 4, v{T0}')
        A(f'v_mul_u32_u24 v{T2}, 1280, v{T1}')
        A(f'v_add_u32 v{T2}, v{T2}, v{T0}')
        A(f'buffer_load_dwordx4 {vr(V_B+4*k,4)}, v{T2}, s[{S_T}:{S_T+3}], 0 offen')
        A(f'v_add_u32 v{V_B+16}, {HOFF-640}, v{T0}')
        A(f'v_cmp_le_u32 vcc, 640, v{T0}')
        A(f'v_mul_u32_u24 v{T1}, {MEMSTRIDE}, v{T1}')
        A('s_nop 0')
        A(f'v_cndmask_b32 v{T0}, v{T0}, v{V_B+16}, vcc')
        A(f'v_add_u32 v{V_B+20+k}, v{T1}, v{T0}')
        A(f'v_add_u32 v{V_B+20+k}, {L_MEM}, v{V_B+20+k}')
    A('s_waitcnt vmcnt(0)')
    for k in range(3):
        A(f'ds_write_b128 v{V_B+20+k}, {vr(V_B+4*k,4)}')
    A('s_waitcnt lgkmcnt(0)')
    A(f's_cmp_lg_u32 s{S_W}, 0')
    A('s_cbranch_scc1 L_c_census_done')
    A('L_c_census:')
    A(f'v_mov_b32 v{T0}, {GO}')
    A(f'global_load_dword v{T1}, v{T0}, s[{S_DBG}:{S_DBG+1}] sc1')
    A('s_waitcnt vmcnt(0)')
    A(f'v_readfirstlane_b32 s{S_t0}, v{T1}')
    A(f's_cmp_lg_u32 s{S_t0}, 0')
    A('s_cbranch_scc1 L_c_census_done')
    A('s_sleep 2')
    retry(A, 'L_c_census')
    A('L_c_census_done:')
    A('s_barrier')
    tl(A, 2)
    A(f'v_mov_b32 v{T0}, 64')
    A(f'global_load_dword v{V_B}, v{T0}, s[{S_DBG}:{S_DBG+1}] sc1')
    A('s_waitcnt vmcnt(0)')
    A(f'v_readfirstlane_b32 s{S_PAR}, v{V_B}')
    A(f's_and_b32 s{S_PAR}, s{S_PAR}, 1')
    if 'xfar' in OPT: A(f's_xor_b32 s{S_PAR}, s{S_PAR}, 1')
    A(f's_lshl_b32 s{S_PAR}, s{S_PAR}, 13')
    for nm, base, fn in (('Q', S_QV, QV_SLOT), ('P', S_PR, P_SLOT), ('M', S_MR, M_SLOT), ('X', S_XR, X_SLOT)):
        for k in range(4):
            addr, pg = fn(k)
            if nm == 'X': A(f's_add_u32 s{base+k}, s{S_PAR}, {addr}')
            else: A(f's_mov_b32 s{base+k}, {addr}')
    if 'noflag' not in OPT:
        A(f's_mov_b32 s{S_t0}, {C_PROG1}')
        A('L_c_w01:')
        A(f'buffer_load_dword v{T1}, v{V_PRG}, {WSR}, s{S_t0} offen sc1')
        A('s_waitcnt vmcnt(0)')
        A(f'v_cmp_gt_u32 vcc, 2, v{T1}')
        A('s_nop 3')
        A('s_and_b64 vcc, vcc, 3')
        A('s_cbranch_vccz L_c_w01_ok')
        A('s_sleep 2')
        retry(A, 'L_c_w01')
        A('L_c_w01_ok:')
        tl(A, 13)
    A(f's_lshl_b32 s{S_t3}, s{S_H}, 13')
    A(f's_lshl_b32 s{S_t1}, s{S_W}, 11')
    for seg in range(2):
        for mat in range(2):
            for k in range(2):
                A(f's_add_u32 m0, s{S_t1}, {L_KV + seg*16384 + mat*8192 + k*1024}')
                A(f's_add_u32 s{S_t2}, s{S_t1}, s{S_t3}')
                A(f's_add_u32 s{S_t2}, s{S_t2}, {(WS_KX, WS_VX)[mat] + seg*32*8192 + k*1024}')
                A(f'buffer_load_dwordx4 v{V_DM3A}, {WSR}, s{S_t2} offen sc1 lds')
    A('s_waitcnt vmcnt(0)')
    A('s_barrier')
    vox_reads(A, 0)
    vox_compute(A)
    A(f's_mov_b32 s{S_CPO}, {C_CPROG}')
    A(f's_mov_b32 s{S_KM}, {WS_KM}')
    A(f's_mov_b32 s{S_VM}, {WS_VM}')
    A(f's_lshl_b32 s{S_SEG2}, s{S_H}, 13')
    A(f's_add_u32 s{S_SEG2}, s{S_SEG2}, {2*32*8192}')

def ablate(A, start, kinds):
    keep = []
    for l in A.lines[start:]:
        t = l.strip()
        if any(t.startswith(k) for k in kinds): continue
        keep.append(l)
    A.lines[start:] = keep

DEFERRED = []
def flush_deferred():
    while DEFERRED: DEFERRED.pop(0)()

def gen_step(A, P, u, safe=False):
    cur, n1, p2, n3 = u, (u+1) & 3, (u+2) & 3, (u+3) & 3
    QC, QP = S_QV+cur, S_QV+p2
    PC, PP = S_PR+cur, S_PR+p2
    MC, MW, MP = S_MR+cur, S_MR+n1, S_MR+n3
    XC, XPn = S_XR+cur, S_XR+p2
    sf = f'_{u}' if not safe else f'_s{u}'
    SC = ' sc1' if safe else ''
    pre = 's' if safe else ''
    XLD = {0: 'sc1', 1: 'sc0 sc1', 2: 'sc1 nt', 3: 'nt'}[optval('xld', 0)]
    XST = {0: 'sc1', 1: 'sc0 sc1', 2: 'sc1 nt'}[optval('xst', 0)]
    def pipe_poll(name, nsets, nloads, issue, regs, pre, ok, gap, chk=None):
        lab = f'L_c_{name}{sf}'
        for k in range(nsets):
            issue(k)
            if k < nsets-1: nops(A, gap)
        if 'inlinepoll' in OPT:
            A(f'{lab}_loop:')
            for k in range(nsets):
                A(f's_waitcnt vmcnt({nloads*(nsets-1)})')
                pre(k)
                (chk or check)(A, regs(k))
                A(f's_cbranch_vccz {lab}_ok{k}')
                issue(k)
            retry(A, f'{lab}_loop', name)
            for k in reversed(range(nsets)):
                A(f'{lab}_ok{k}:')
                if 'cntset' in OPT:
                    idx = {'A': 0, 'R': 3, 'RS': 6, 'X': 9}[name] + k
                    A(f's_add_u32 s{S_PROF+idx}, s{S_PROF+idx}, 1')
                ok(k)
                if k > 0: A(f's_branch {lab}_done')
            A(f'{lab}_done:')
            return
        A(f's_waitcnt vmcnt({nloads*(nsets-1)})')
        pre(0)
        (chk or check)(A, regs(0))
        A(f's_cbranch_vccnz {lab}_retry')
        if 'cntset' in OPT:
            idx = {'A': 0, 'R': 3, 'RS': 6, 'X': 9}[name]
            A(f's_add_u32 s{S_PROF+idx}, s{S_PROF+idx}, 1')
        ok(0)
        A(f'{lab}_done:')
        def tail():
            A(f'{lab}_retry:')
            issue(0)
            A(f'{lab}_loop:')
            order = list(range(1, nsets)) + [0]
            for k in order:
                A(f's_waitcnt vmcnt({nloads*(nsets-1)})')
                pre(k)
                (chk or check)(A, regs(k))
                A(f's_cbranch_vccz {lab}_ok{k}')
                issue(k)
            retry(A, f'{lab}_loop', name)
            for k in range(nsets):
                A(f'{lab}_ok{k}:')
                ok(k)
                A(f's_branch {lab}_done')
        DEFERRED.append(tail)
    A(f'L_c_loop{sf}:')
    P.stamp(A, 11, True)
    nops(A, optval('adelay', 0))
    NAG = 4 if 'ag3' in OPT else 3
    ASET = [V_VV, V_R, V_XD]
    def a_issue(k):
        for q in range(NAG):
            A(f'buffer_load_dwordx4 {vr(ASET[k]+4*q,4)}, v{V_M0+q}, {WSR}, s{MC} offen sc1')
    def a_pre(k):
        for q in range(NAG):
            A(f'ds_write_b128 v{V_LM0+q}, {vr(ASET[k]+4*q,4)}')
    if 'ag3' in OPT:
        A(f's_cmp_eq_u32 s{S_W}, 3')
        A(f's_cbranch_scc1 L_c_A{sf}_done')
    pipe_poll('A', optval('nA', 1), NAG, a_issue, lambda k: range(ASET[k], ASET[k]+4*NAG), a_pre, lambda k: None, optval('gapA', 40))
    P.stamp(A, 8, True)
    A('s_waitcnt lgkmcnt(0)')
    A('s_barrier')
    P.stamp(A, 0)
    if u == 0: A(f'L_c_afterA0{pre}:')
    A.c('[A1] qk mfma')
    mark = len(A.lines)
    for t in range(10):
        A(f'ds_read_b128 {vr(V_B+4*t,4)}, v{V_LB} offset:{64*t}')
    for t in range(10):
        A(f's_waitcnt lgkmcnt({9-t})')
        mfma(A, vr(V_ACC,4), ar(A_QK+4*t,4), vr(V_B+4*t,4), '0' if t == 0 else vr(V_ACC,4))
        mfma(A, vr(V_ACC+4,4), ar(A_QK+4*(t+10),4), vr(V_B+4*t,4), '0' if t == 0 else vr(V_ACC+4,4))
    NV0 = 0 if 'qkfast' in OPT else 2
    for t in range(NV0):
        mfma(A, vr(V_ACV,4), ar(A_V+4*t,4), vr(V_B+4*t,4), '0' if t == 0 else vr(V_ACV,4))
    A(f's_nop {7-NV0}')
    for r in range(4):
        A(f'v_add_f32_dpp v{V_ACC+r}, v{V_ACC+4+r}, v{V_ACC+r} row_ror:8 row_mask:0xf bank_mask:0xf')
    A(f'v_cvt_pk_bf16_f32 v{V_O}, v{V_ACC}, v{V_ACC+1}')
    A(f'v_cvt_pk_bf16_f32 v{V_O+1}, v{V_ACC+2}, v{V_ACC+3}')
    A(f'buffer_store_dwordx2 {vr(V_O,2)}, v{V_QKST}, {WSR}, s{QC} offen{SC}')
    P.stamp(A, 1)
    for t in range(NV0, 10):
        mfma(A, vr(V_ACV,4), ar(A_V+4*t,4), vr(V_B+4*t,4), '0' if t == 0 else vr(V_ACV,4))
    def kx_reads():
        for kt in range(2):
            for s4 in range(4):
                A(f'ds_read_b128 {vr(V_KX+16*kt+4*s4,4)}, v{V_LKV} offset:{L_KV + cur*16384 + 2048*s4 + 256*kt}')
    RE = [V_B+12, V_B+28]
    if 'rearly' in OPT:
        nops(A, optval('re0', 0))
        A(f'buffer_load_dwordx4 {vr(RE[0],4)}, v{V_RLD}, {WSR}, s{QC} offen sc1')
        kx_reads()
    else:
        kx_reads()
    A(f'v_cvt_pk_bf16_f32 v{V_O+2}, v{V_ACV}, v{V_ACV+1}')
    A(f'v_cvt_pk_bf16_f32 v{V_O+3}, v{V_ACV+2}, v{V_ACV+3}')
    if 'rearly' in OPT:
        A(f'buffer_load_dwordx4 {vr(RE[1],4)}, v{V_RLD}, {WSR}, s{QC} offen sc1')
    A(f'buffer_store_dwordx2 {vr(V_O+2,2)}, v{V_VST}, {WSR}, s{QC} offen{SC}')
    if 'rearly' in OPT:
        for k, cnt in ((0, 2), (1, 1)):
            A(f's_waitcnt vmcnt({cnt})')
            A(f'ds_write_b128 v{V_LRW}, {vr(RE[k],4)}')
            check(A, range(RE[k], RE[k]+4))
            A(f's_cbranch_vccz L_c_R{sf}_done')
    if 'skipA1' in OPT: ablate(A, mark, ['v_mfma', 'v_add_f32_dpp'])
    P.stamp(A, 2)
    A.c('[B0] R piece -> LDS')
    nops(A, optval('rdelay', 0))
    if 'skipR' in OPT: A(f's_branch L_c_R{sf}_done')
    RSET = [V_B, V_B+4, V_B+8]
    def vloads():
        for s4 in range(4):
            A(f'buffer_load_dwordx4 {vr(V_VV+4*s4,4)}, v{V_VLD}, {WSR}, s{QC} offen offset:{512*s4} sc1')
    rld = lambda k: A(f'buffer_load_dwordx4 {vr(RSET[k],4)}, v{V_RLD}, {WSR}, s{QC} offen sc1')
    if 'vearly' in OPT:
        rld(0); nops(A, optval('gapR', 20)); rld(1); nops(A, optval('gapV', 16)); vloads()
        for k, cnt in ((0, 5), (1, 4)):
            A(f's_waitcnt vmcnt({cnt})')
            A(f'ds_write_b128 v{V_LRW}, {vr(RSET[k],4)}')
            check(A, range(RSET[k], RSET[k]+4))
            A(f's_cbranch_vccz L_c_Rv{sf}')
    pipe_poll('R', optval('nR', 1), 1, rld,
              lambda k: range(RSET[k], RSET[k]+4),
              lambda k: A(f'ds_write_b128 v{V_LRW}, {vr(RSET[k],4)}'),
              lambda k: None, optval('gapR', 20))
    nops(A, optval('vdelay', 0))
    if 'skipV' not in OPT and 'vearly' not in OPT and 'vafter' not in OPT: vloads()
    A(f'L_c_Rv{sf}:')
    A('s_waitcnt lgkmcnt(0)')
    A('s_barrier')
    P.stamp(A, 3)
    if 'vafter' in OPT: vloads()
    OPT1 = 'noopt1' not in OPT
    V_KD = V_B+20
    late = [f'v_mov_b32 v{V_CPV}, s{S_STEP}',
            f'buffer_store_dword v{V_CPV}, v{V_CPF}, {WSR}, s{S_CPO} offen sc1',
            f'buffer_store_dwordx2 {vr(V_NEG,2)}, v{V_QKST}, {WSR}, s{QP} offen{SC}',
            f'buffer_store_dwordx2 {vr(V_NEG,2)}, v{V_VST}, {WSR}, s{QP} offen{SC}',
            f'buffer_store_dwordx4 {vr(V_NEG,4)}, v{V_P4}, {WSR}, s{PP} offen{SC}',
            f'buffer_store_dwordx2 {vr(V_NEG,2)}, v{V_P2}, {WSR}, s{PP} offen{SC}',
            f'buffer_store_dwordx2 {vr(V_NEG,2)}, v{V_MS}, {WSR}, s{MP} offen{SC}']
    NLATE = 6
    if 'xplate' in OPT:
        late.append(f'buffer_store_dwordx4 {vr(V_NEG,4)}, v{V_XS}, {WSR}, s{XPn} offen sc1')
        NLATE += 1
    for s4 in range(4):
        A(f'ds_read_b128 {vr(V_R+4*s4,4)}, v{V_LRR} offset:{512*s4}')
        if OPT1: A(f'ds_read_b128 {vr(V_KD+4*s4,4)}, v{V_LRK} offset:{512*s4}')
    if not OPT1:
        for l in late: A(l)
        late = []
    A.c('[B1] scores')
    mark = len(A.lines)
    for s4 in range(4):
        c0 = '0' if s4 == 0 else None
        A(f's_waitcnt lgkmcnt({(6-2*s4) if OPT1 else (3-s4)})')
        mfma(A, vr(V_S,4), vr(V_KX+4*s4,4), vr(V_R+4*s4,4), c0 or vr(V_S,4))
        if late: A(late.pop(0))
        mfma(A, vr(V_S+4,4), vr(V_KX+16+4*s4,4), vr(V_R+4*s4,4), c0 or vr(V_S+4,4))
        if late: A(late.pop(0))
        mfma(A, vr(V_S+8,4), vr((V_KD if OPT1 else V_R)+4*s4,4), vr(V_R+4*s4,4), c0 or vr(V_S+8,4))
    for l in late: A(l)
    if 'skipB' in OPT: ablate(A, mark, ['v_mfma'])
    def vcheck():
        A(f's_waitcnt vmcnt({NLATE})')
        A.c('[B2] V check')
        if 'skipV' in OPT: A(f's_branch L_c_okV{sf}')
        check(A, range(V_VV, V_VV+16))
        A(f's_cbranch_vccnz L_c_pollV{sf}')
        A(f'L_c_okV{sf}:')
        def tail():
            A(f'L_c_pollV{sf}:')
            if 'cntset' in OPT: A(f's_add_u32 s{S_PROF+12}, s{S_PROF+12}, 1')
            for s4 in range(4):
                A(f'buffer_load_dwordx4 {vr(V_VV+4*s4,4)}, v{V_VLD}, {WSR}, s{QC} offen offset:{512*s4} sc1')
            A('s_waitcnt vmcnt(0)')
            check(A, range(V_VV, V_VV+16))
            A(f's_cbranch_vccz L_c_okV{sf}')
            retry(A, f'L_c_pollV{sf}', 'V')
        DEFERRED.append(tail)
    VLATE = 'vlate' in OPT
    if not VLATE: vcheck()
    P.stamp(A, 10, True)
    if u == 3:
        A(f's_cmp_eq_u32 s{S_STEP}, {NSEG-1}')
        A(f's_cbranch_scc1 L_c_final')
    if VLATE: A('s_nop 5')
    A.c('[B4] softmax (VOm mfma interleaved)')
    mark = len(A.lines)
    SM = V_S+8; MX = V_T+4
    vom = [(s4, tt) for s4 in range(4) for tt in range(3)]
    vom_on = [not VLATE]
    def vom_next():
        if not vom or not vom_on[0]: return
        s4, tt = vom.pop(0)
        mfma(A, vr(V_F+4*tt,4), vr(V_VV+4*s4,4), ar(A_O+16*tt+4*s4,4), '0' if s4 == 0 else vr(V_F+4*tt,4))
    if not OPT1:
        for r in range(4): A(f'v_mov_b32 v{V_T+r}, v{SM+r}')
    A(f'v_max3_f32 v{MX}, v{V_S}, v{V_S+1}, v{V_S+2}')
    A(f'v_max3_f32 v{MX+1}, v{V_S+3}, v{V_S+4}, v{V_S+5}')
    if not OPT1:
        for r in range(4): A(f'v_permlane32_swap_b32 v{V_T+r}, v{SM+r}')
    vom_next()
    A(f'v_max3_f32 v{MX}, v{MX}, v{V_S+6}, v{V_S+7}')
    A(f'v_max3_f32 v{MX+1}, v{MX+1}, v{SM}, v{SM+1}')
    A(f'v_max3_f32 v{MX}, v{MX}, v{SM+2}, v{SM+3}')
    A(f'v_max_f32 v{MX}, v{MX}, v{MX+1}')
    def allreduce(op, reg, tmp, fill=False):
        for perm in ('v_permlane16_swap_b32', 'v_permlane32_swap_b32'):
            A(f'v_mov_b32 v{tmp}, v{reg}')
            if fill and vom_on[0]: vom_next(); A('s_nop 0')
            else: A('s_nop 1')
            A(f'{perm} v{tmp}, v{reg}')
            A(f'{op} v{reg}, v{reg}, v{tmp}')
    allreduce('v_max_f32', MX, MX+1, True)
    A(f'v_mul_f32 v{MX}, s{S_SCL}, v{MX}')
    if VLATE:
        vcheck(); vom_on[0] = True
    vom_next()
    for r in range(0, 12, 2):
        A(f'v_pk_fma_f32 {vr(V_S+r,2)}, {vr(V_S+r,2)}, s[{S_SCL}:{S_SCL+1}], {vr(MX,2)} op_sel_hi:[1,1,0] neg_lo:[0,0,1] neg_hi:[0,0,1]')
        if r % 4 == 2 or VLATE: vom_next()
    for r in range(12):
        A(f'v_exp_f32 v{V_S+r}, v{V_S+r}')
        if r % 2 == 1 or (VLATE and r < 2): vom_next()
    while vom: vom_next()
    A(f'v_cvt_pk_bf16_f32 v{V_PX}, v{V_S}, v{V_S+1}')
    A(f'v_cvt_pk_bf16_f32 v{V_PX+1}, v{V_S+2}, v{V_S+3}')
    A(f'v_cvt_pk_bf16_f32 v{V_PX+2}, v{V_S+4}, v{V_S+5}')
    A(f'v_cvt_pk_bf16_f32 v{V_PX+3}, v{V_S+6}, v{V_S+7}')
    A(f'v_cvt_pk_bf16_f32 v{V_PM}, v{SM}, v{SM+1}')
    A(f'v_cvt_pk_bf16_f32 v{V_PM+1}, v{SM+2}, v{SM+3}')
    SU = V_T+6; X2 = V_T+7
    FX = [V_ACC, V_ACC+4, V_ACV]
    if OPT1:
        mfma(A, vr(V_T,4), ar(A_ONE,4), vr(V_PX,4), '0')
    for tt in range(3):
        mfma(A, vr(FX[tt],4), vr(V_VOX+4*tt,4), vr(V_PX,4), '0')
    for tt in range(3):
        A(f'v_cvt_pk_bf16_f32 v{V_VOM+4*tt}, v{V_F+4*tt}, v{V_F+4*tt+1}')
        A(f'v_cvt_pk_bf16_f32 v{V_VOM+4*tt+1}, v{V_F+4*tt+2}, v{V_F+4*tt+3}')
    if OPT1:
        mfma(A, vr(V_T,4), ar(A_HALF,4), vr(V_PM,4), vr(V_T,4))
        for tt in range(3):
            mfma(A, vr(FX[tt],4), vr(V_VOM+4*tt,4), vr(V_PM,4), vr(FX[tt],4))
        A('s_nop 4')
        A(f'v_rcp_f32 v{SU}, v{V_T}')
        A('s_nop 1')
    else:
        A(f'v_pk_add_f32 {vr(V_T,2)}, {vr(SM,2)}, {vr(SM+2,2)}')
        A(f'v_pk_add_f32 {vr(V_T+2,2)}, {vr(V_S,2)}, {vr(V_S+2,2)}')
        for tt in range(3):
            mfma(A, vr(FX[tt],4), vr(V_VOM+4*tt,4), vr(V_PM,4), vr(FX[tt],4))
        A(f'v_pk_add_f32 {vr(V_T+4,2)}, {vr(V_S+4,2)}, {vr(V_S+6,2)}')
        A(f'v_pk_add_f32 {vr(V_T+2,2)}, {vr(V_T+2,2)}, {vr(V_T+4,2)}')
        A(f'v_pk_fma_f32 {vr(V_T,2)}, {vr(V_T,2)}, 0.5, {vr(V_T+2,2)} op_sel_hi:[1,0,1]')
        A(f'v_add_f32 v{SU}, v{V_T}, v{V_T+1}')
        allreduce('v_add_f32', SU, X2)
        A(f'v_rcp_f32 v{SU}, v{SU}')
        A('s_nop 0')
    PO = [V_PO, V_PO+2, V_PO2]
    for tt in range(3):
        for r in (0, 2):
            A(f'v_pk_mul_f32 {vr(FX[tt]+r,2)}, {vr(FX[tt]+r,2)}, {vr(SU,2)} op_sel_hi:[1,0]')
        A(f'v_cvt_pk_bf16_f32 v{PO[tt]}, v{FX[tt]}, v{FX[tt]+1}')
        A(f'v_cvt_pk_bf16_f32 v{PO[tt]+1}, v{FX[tt]+2}, v{FX[tt]+3}')
        if tt == 1: A(f'buffer_store_dwordx4 {vr(V_PO,4)}, v{V_P4}, {WSR}, s{PC} offen{SC}')
    A(f'buffer_store_dwordx2 {vr(V_PO2,2)}, v{V_P2}, {WSR}, s{PC} offen{SC}')
    if 'skipB' in OPT:
        ablate(A, mark, ['v_', 's_nop'])
        for r in (V_PO, V_PO+1, V_PO+2, V_PO+3, V_PO2, V_PO2+1): A.lines.insert(mark, f'    v_mov_b32 v{r}, 0')
    P.stamp(A, 4)
    vox_reads(A, n1)
    A(f's_cmp_eq_u32 s{S_HASITEM}, 0')
    A(f's_cbranch_scc1 L_c_noitem{sf}')
    A.c('[C1] local RS')
    nops(A, optval('rsdelay', 0))
    if 'skipRS' in OPT:
        for r in range(4): A(f'v_mov_b32 v{V_RSD+4+r}, 0')
        A(f's_branch L_c_RS{sf}_done')
    SSET = [V_RSD, V_B+20, V_B+24]
    def rs_issue(k):
        A(f'buffer_load_dwordx2 {vr(SSET[k],2)}, v{V_RS0}, {WSR}, s{PC} offen sc1')
        A(f'buffer_load_dwordx2 {vr(SSET[k]+2,2)}, v{V_RS1}, {WSR}, s{PC} offen sc1')
    pipe_poll('RS', optval('nS', 1), 2, rs_issue, lambda k: range(SSET[k], SSET[k]+4),
              lambda k: mfma(A, vr(V_RSD+4,4), vr(V_SEL,4), vr(SSET[k],4), '0'), lambda k: None, optval('gapS', 20))
    P.stamp(A, 12, True)
    A('s_nop 3')
    if 'xtag' in OPT:
        for r in range(4): A(f'v_and_or_b32 v{V_RSD+4+r}, v{V_RSD+4+r}, -2, v{V_PH}')
    A(f'buffer_store_dwordx4 {vr(V_RSD+4,4)}, v{V_XS}, {WSR}, s{XC} offen {XST}')
    if 'xplate' not in OPT and 'xtag' not in OPT and optval('xp3on', 0) != 1: A(f'buffer_store_dwordx4 {vr(V_NEG,4)}, v{V_XS}, {WSR}, s{XPn} offen sc1')
    P.stamp(A, 5)
    NVX = optval('nvx', 3)
    vox_tiles(A, list(range(NVX)))
    P.stamp(A, 6)
    A.c('[C2] cross')
    nops(A, optval('xdelay', 0))
    if 'skipX' in OPT: A(f's_branch L_c_X{sf}_done')
    XLS = (S_XR+n3) if 'xfake' in OPT else XC
    XSET = [V_XD, V_B+28, V_R]
    OWN = V_RSD+4
    def x_issue(k):
        for q in range(3):
            A(f'buffer_load_dwordx4 {vr(XSET[k]+4*q,4)}, v{V_XL+q}, {WSR}, s{XLS} offen {XLD}')
    def x_ok(k):
        X = XSET[k]
        for r in (0, 2):
            A(f'v_pk_add_f32 {vr(V_T+r,2)}, {vr(X+r,2)}, {vr(X+8+r,2)}')
            A(f'v_pk_add_f32 {vr(OWN+r,2)}, {vr(OWN+r,2)}, {vr(X+4+r,2)}')
    def tagcheck(A, regs):
        r = list(regs)
        A(f'v_bitop3_b32 v{V_T+4}, v{r[0]}, v{r[1]}, v{V_PH} bitop3:0x7e')
        A(f'v_bitop3_b32 v{V_T+5}, v{r[2]}, v{r[3]}, v{V_PH} bitop3:0x7e')
        cur = 0
        for x in r[4:]:
            A(f'v_bitop3_b32 v{V_T+4+cur}, v{V_T+4+cur}, v{x}, v{V_PH} bitop3:0xf6'); cur ^= 1
        A(f'v_or_b32 v{V_T+4}, v{V_T+4}, v{V_T+5}')
        A(f'v_and_b32 v{V_T+4}, 1, v{V_T+4}')
        A(f'v_cmp_ne_u32 vcc, 0, v{V_T+4}')
    pipe_poll('X', optval('nX', 1), 3, x_issue, lambda k: range(XSET[k], XSET[k]+12), lambda k: None, x_ok, optval('gapX', 40), (lambda A_, r_: A_('s_mov_b64 vcc, 0')) if 'xfake' in OPT else (tagcheck if 'xtag' in OPT else None))
    P.stamp(A, 9, True)
    for r in (0, 2):
        A(f'v_pk_add_f32 {vr(OWN+r,2)}, {vr(OWN+r,2)}, {vr(V_T+r,2)}')
    A(f'v_cvt_pk_bf16_f32 v{V_PO2}, v{OWN}, v{OWN+1}')
    A(f'v_cvt_pk_bf16_f32 v{V_PO2+1}, v{OWN+2}, v{OWN+3}')
    A(f'buffer_store_dwordx2 {vr(V_PO2,2)}, v{V_MS}, {WSR}, s{MW} offen{SC}')
    vox_tiles(A, list(range(NVX, 3)), wait=False)
    def noitem_path():
        A(f'L_c_noitem{sf}:')
        A(f's_cmp_lg_u32 s{S_W}, 3')
        A(f's_cbranch_scc1 L_c_w2{sf}')
        A(f's_mov_b32 s{S_t0}, {C_PROG1}')
        A(f'buffer_load_dword v{V_T+4}, v{V_PRG}, {WSR}, s{S_t0} offen sc1')
        def kvdma():
            lab = A.label('L_c_kvskip')
            A(f's_cmp_gt_u32 s{S_STEP}, {NSEG-4}')
            A(f's_cbranch_scc1 {lab}')
            if 'noflag' not in OPT:
                A(f's_add_u32 s{S_t1}, s{S_STEP}, 3')
                A(f'L_c_wk{sf}:')
                A(f'v_cmp_gt_u32 vcc, s{S_t1}, v{V_T+4}')
                A('s_nop 3')
                A('s_and_b64 vcc, vcc, 3')
                A(f's_cbranch_vccz L_c_wk{sf}_ok')
                A(f's_mov_b32 s{S_t0}, {C_PROG1}')
                A(f'buffer_load_dword v{V_T+4}, v{V_PRG}, {WSR}, s{S_t0} offen sc1')
                A('s_waitcnt vmcnt(0)')
                retry(A, f'L_c_wk{sf}')
                A(f'L_c_wk{sf}_ok:')
            if 'nodma' not in OPT:
                for mat, base in ((0, WS_KX), (1, WS_VX)):
                    for uu in range(8):
                        A(f's_mov_b32 m0, {L_KV + p2*16384 + mat*8192 + uu*1024}')
                        A(f's_add_u32 s{S_t2}, s{S_SEG2}, {base + uu*1024}')
                        A(f'buffer_load_dwordx4 v{V_DM3A}, {WSR}, s{S_t2} offen sc1 lds')
            A(f'{lab}:')
        if 'nopub' not in OPT: publish(A, QC)
        else: A('s_waitcnt vmcnt(0)')
        if 'dmamid' in OPT: kvdma()
        if optval('xp3on', 0) == 1 and 'xplate' not in OPT and 'xtag' not in OPT: A(f'buffer_store_dwordx4 {vr(V_NEG,4)}, v{V_XP3}, {WSR}, s{XPn} offen sc1')
        vox_compute(A)
        if 'dmamid' not in OPT: kvdma()
        A(f's_branch L_c_stepend{sf}')
        A(f'L_c_w2{sf}:')
        vox_compute(A)
        A(f's_branch L_c_stepend{sf}')
    DEFERRED.append(noitem_path)
    A(f'L_c_stepend{sf}:')
    P.stamp(A, 7)
    A(f's_add_u32 s{S_KM}, s{S_KM}, 65536')
    A(f's_add_u32 s{S_VM}, s{S_VM}, 131072')
    A(f's_add_u32 s{S_SEG2}, s{S_SEG2}, {32*8192}')
    A(f's_add_u32 s{S_STEP}, s{S_STEP}, 1')
    if u == 3 and 'xtag' in OPT: A(f'v_xor_b32 v{V_PH}, 1, v{V_PH}')
    if 'nobar0' not in OPT: A('s_barrier')
    if u == 3 and TL_ON[0]:
        for k, st in enumerate((4, 8, 12) if 'tlfine' in OPT else (16, 32, 48)):
            lab = A.label('L_tlq')
            A(f's_cmp_lg_u32 s{S_STEP}, {st}')
            A(f's_cbranch_scc1 {lab}')
            tl(A, 6+k)
            A(f'{lab}:')
    if u == 3: A('s_branch L_c_loop_s0' if safe else 's_branch L_c_loop_0')

def publish(A, QC):
    A(f'buffer_load_dwordx4 {vr(V_B,4)}, v{V_KPL}, {WSR}, s{QC} offen sc1')
    A(f'buffer_load_dwordx4 {vr(V_B+4,4)}, v{V_VPL}, {WSR}, s{QC} offen sc1')
    A('s_waitcnt vmcnt(0)')
    A(f'buffer_store_dwordx4 {vr(V_B,4)}, v{V_KPUB}, {WSR}, s{S_KM} offen sc1')
    A(f'buffer_store_dwordx4 {vr(V_B+4,4)}, v{V_VPUB}, {WSR}, s{S_VM} offen sc1')

def gen_chain(A, prof):
    P = Prof(prof)
    if prof and 'trace' not in OPT: PROFCNT.update({'A': 8, 'R': 9, 'V': 10, 'RS': 11, 'X': 12})
    A.c('==== chain role ====')
    gen_prologue(A, P)
    if prof and 'trace' not in OPT:
        for k in range(16): A(f's_mov_b32 s{S_PROF+k}, 0')
        A(f's_memtime s[{S_PT}:{S_PT+1}]')
        A('s_waitcnt lgkmcnt(0)')
        A(f's_mov_b32 s{S_PT+2}, s{S_PT}')
    if 'cntset' in OPT:
        for k in range(16): A(f's_mov_b32 s{S_PROF+k}, 0')
    if 'tot' in OPT:
        A(f's_memrealtime s[{S_PROF}:{S_PROF+1}]')
        A(f's_memtime s[{S_PROF+4}:{S_PROF+5}]')
        A('s_waitcnt lgkmcnt(0)')
    tl(A, 3)
    A(f's_cmp_eq_u32 s{S_MODE}, 1')
    A('s_cbranch_scc1 L_c_afterA0s_far')
    A('s_branch L_c_afterA0')
    A('L_c_afterA0s_far:')
    A('s_branch L_c_afterA0s')
    A('.p2align 6')
    for k in range(optval('shift', 0)): A('s_nop 0')
    for u in range(4): gen_step(A, P, u)
    flush_deferred()
    if 'nosafe' in OPT:
        A('L_c_afterA0s:')
        A('s_branch L_timeout')
    else:
        A('.p2align 6')
        for u in range(4): gen_step(A, P, u, safe=True)
        flush_deferred()
    A('L_c_finals:')
    A('L_c_final:')
    if 'vlate' in OPT:
        A('L_c_fv:')
        for s4 in range(4):
            A(f'buffer_load_dwordx4 {vr(V_VV+4*s4,4)}, v{V_VLD}, {WSR}, s{S_QV+3} offen offset:{512*s4} sc1')
        A('s_waitcnt vmcnt(0)')
        check(A, range(V_VV, V_VV+16))
        A('s_cbranch_vccz L_c_fv_ok')
        retry(A, 'L_c_fv')
        A('L_c_fv_ok:')
    A(f's_cmp_lg_u32 s{S_W}, 3')
    A('s_cbranch_scc1 L_c_end')
    publish(A, S_QV+3)
    A('s_waitcnt vmcnt(0)')
    A(f'v_mov_b32 v{V_CPV}, 64')
    A(f'buffer_store_dword v{V_CPV}, v{V_CPF}, {WSR}, s{S_CPO} offen sc1')
    A('L_c_end:')
    tl(A, 5)
    if 'tot' in OPT:
        A(f's_memrealtime s[{S_PROF+2}:{S_PROF+3}]')
        A(f's_memtime s[{S_PROF+6}:{S_PROF+7}]')
        A('s_waitcnt lgkmcnt(0)')
        A(f's_sub_u32 s{S_PROF}, s{S_PROF+2}, s{S_PROF}')
        A(f's_sub_u32 s{S_PROF+1}, s{S_PROF+6}, s{S_PROF+4}')
        A(f's_mov_b32 s{S_PROF+2}, s{S_PAR}')
    if prof or 'tot' in OPT or 'cntset' in OPT:
        A(f's_lshl_b32 s{S_t0}, s{S_X}, 5')
        A(f's_add_u32 s{S_t0}, s{S_t0}, s{S_J}')
        A(f's_lshl_b32 s{S_t0}, s{S_t0}, 2')
        A(f's_add_u32 s{S_t0}, s{S_t0}, s{S_W}')
        A(f's_lshl_b32 s{S_t0}, s{S_t0}, 6')
        A(f's_add_u32 s{S_t0}, s{S_t0}, {WS_PROF}')
        A(f'v_mov_b32 v{V_T}, 0')
        for k in range(16):
            A(f'v_mov_b32 v{V_T+1}, s{S_PROF+k}')
            A(f'buffer_store_dword v{V_T+1}, v{V_T}, {WSR}, s{S_t0} offen offset:{4*k}')
    A('s_waitcnt vmcnt(0)')
    A('s_endpgm')

def gen_calib(A):
    CB = PG2 + 0x1A0000
    A(f's_lshl_b32 s{S_t0}, s{S_W}, 15')
    A(f's_add_u32 s{S_t0}, s{S_t0}, {CB}')
    A(f's_mov_b32 s{S_t1}, -1')
    A(f's_mov_b32 s{S_t2}, -1')
    A('s_mov_b32 s78, 4')
    A('L_cal_round:')
    A('v_and_b32 v1, 3, v0')
    A('v_lshrrev_b32 v2, 1, v1')
    A('v_lshlrev_b32 v2, 14, v2')
    A('v_and_b32 v1, 1, v1')
    A('v_lshl_add_u32 v1, v1, 13, v2')
    A('v_mov_b32 v2, 0')
    A(f'buffer_store_dword v2, v1, {WSR}, s{S_t0} offen sc1')
    A('s_waitcnt vmcnt(0)')
    for rep in range(2):
        for par, acc in ((0, S_t1), (1, S_t2)):
            A(f'v_mov_b32 v1, {rep*16384 + par*8192}')
            A(f's_memtime s[{S_PT}:{S_PT+1}]')
            A('s_waitcnt lgkmcnt(0)')
            A(f'buffer_load_dword v2, v1, {WSR}, s{S_t0} offen sc1')
            A('s_waitcnt vmcnt(0)')
            A(f's_memtime s[{S_PT+2}:{S_PT+3}]')
            A('s_waitcnt lgkmcnt(0)')
            A(f's_sub_u32 s{S_PT}, s{S_PT+2}, s{S_PT}')
            A(f's_min_u32 s{acc}, s{acc}, s{S_PT}')
    A(f's_lshl_b32 s79, s{S_W}, 3')
    A('v_mov_b32 v1, s79')
    A(f'v_mov_b32 v2, s{S_t1}')
    A(f'v_mov_b32 v3, s{S_t2}')
    A('ds_write_b64 v1, v[2:3]')
    A('s_waitcnt lgkmcnt(0)')
    A('s_barrier')
    A('v_mov_b32 v1, 0')
    A('ds_read_b128 v[4:7], v1')
    A('ds_read_b128 v[8:11], v1 offset:16')
    A('s_waitcnt lgkmcnt(0)')
    A('s_barrier')
    A('v_min_u32 v4, v4, v6')
    A('v_min_u32 v8, v8, v10')
    A('v_min_u32 v5, v5, v7')
    A('v_min_u32 v9, v9, v11')
    A('v_min_u32 v4, v4, v8')
    A('v_min_u32 v5, v5, v9')
    A('s_nop 0')
    A(f'v_readfirstlane_b32 s{S_t1}, v4')
    A(f'v_readfirstlane_b32 s{S_t2}, v5')
    A(f's_min_u32 s79, s{S_t1}, s{S_t2}')
    A(f's_max_u32 s80, s{S_t1}, s{S_t2}')
    A('s_sub_u32 s80, s80, s79')
    A('s_cmp_ge_u32 s80, 100')
    A('s_cselect_b32 s80, 1, 0')
    A('s_cmp_lt_u32 s79, 560')
    A('s_cselect_b32 s80, s80, 0')
    A('s_cmp_eq_u32 s80, 1')
    A('s_cbranch_scc1 L_cal_done')
    A('s_sub_u32 s78, s78, 1')
    A('s_cmp_lg_u32 s78, 0')
    A('s_cbranch_scc1 L_cal_round')
    A('L_cal_done:')
    A(f's_cmp_lt_u32 s{S_t1}, s{S_t2}')
    A('s_cselect_b32 s79, 1, 0')
    A('s_or_b32 s79, s79, 0x100')
    A('v_mov_b32 v2, s79')
    A('v_mov_b32 v1, 64')
    A(f'global_store_dword v1, v2, s[{S_DBG}:{S_DBG+1}] sc1')
    A('v_mov_b32 v1, 80')
    A(f'global_store_dwordx2 v1, v[4:5], s[{S_DBG}:{S_DBG+1}] sc1')
    A('s_waitcnt vmcnt(0)')

def gen_common_entry(A, nwg=256):
    A(f's_cmp_ge_u32 s2, {nwg}')
    A('s_cbranch_scc1 L_end')
    A(f's_load_dwordx2 s[{S_DBG}:{S_DBG+1}], s[0:1], 96')
    A(f's_load_dwordx2 s[4:5], s[0:1], 104')
    A(f's_getreg_b32 s{S_X}, hwreg(HW_REG_XCC_ID, 0, 4)')
    A(f'v_lshrrev_b32 v1, 6, v0')
    A('s_nop 0')
    A(f'v_readfirstlane_b32 s{S_W}, v1')
    A('s_waitcnt lgkmcnt(0)')
    A(f's_mov_b32 s{S_WS}, s4')
    A(f's_and_b32 s{S_WS+1}, s5, 0xffff')
    A(f's_mov_b32 s{S_WS+2}, 0x10000000')
    A(f's_mov_b32 s{S_WS+3}, 0x20000')
    A(f's_cmp_lg_u32 s{S_W}, 0')
    A('s_cbranch_scc1 L_noticket')
    if 'tik2' in OPT:
        A(f's_and_b32 s{S_t0}, s{S_X}, 3')
        A(f's_lshl_b32 s{S_t0}, s{S_t0}, 2')
        A(f's_lshr_b32 s{S_t1}, s{S_X}, 2')
        A(f's_lshl_b32 s{S_t1}, s{S_t1}, 7')
        A(f's_add_u32 s{S_t0}, s{S_t0}, s{S_t1}')
    else:
        A(f's_lshl_b32 s{S_t0}, s{S_X}, 2')
    A(f'v_mov_b32 v1, s{S_t0}')
    A('v_mov_b32 v2, 1')
    A('s_mov_b64 exec, 1')
    A(f'global_atomic_add v3, v1, v2, s[{S_DBG}:{S_DBG+1}] sc0')
    A('s_waitcnt vmcnt(0)')
    A('v_mov_b32 v1, 0')
    A('ds_write_b32 v1, v3')
    A('s_waitcnt lgkmcnt(0)')
    A('s_mov_b64 exec, -1')
    A('L_noticket:')
    A('s_barrier')
    A('v_mov_b32 v1, 0')
    A('ds_read_b32 v2, v1')
    A('s_waitcnt lgkmcnt(0)')
    A(f'v_readfirstlane_b32 s{S_J}, v2')
    A('s_barrier')
    A(f's_mov_b32 s{S_MODE}, 0')
    A(f's_mov_b32 s{S_TO}, 0x100000')

S_MODE = 3
VR = [4, 5, 6, 7, 80, 81, 82, 83]
def counters_load(A):
    if 'tik2' in OPT:
        A('v_and_b32 v240, 3, v0')
        A('v_lshlrev_b32 v240, 2, v240')
        A('v_bfe_u32 v241, v0, 2, 1')
        A('v_lshl_add_u32 v240, v241, 7, v240')
    else:
        A('v_and_b32 v240, 7, v0')
        A('v_lshlrev_b32 v240, 2, v240')
    A(f'global_load_dword v241, v240, s[{S_DBG}:{S_DBG+1}] sc1')
def counters_sum(A):
    for k in range(8): A(f'v_readlane_b32 s{VR[k]}, v241, {k}')
    A(f's_add_u32 s78, s{VR[0]}, s{VR[1]}')
    for k in range(2, 8): A(f's_add_u32 s78, s78, s{VR[k]}')
def verdict_issue(A, tag):
    A(f's_cmp_lg_u32 s{S_W}, 0')
    A(f's_cbranch_scc1 L_vi{tag}')
    counters_load(A)
    A(f'L_vi{tag}:')
def verdict_eval(A, tag):
    A('s_mov_b32 s79, 0')
    A(f's_cmp_eq_u32 s{S_MODE}, 1')
    A(f's_cbranch_scc1 L_vd{tag}_ok')
    A(f'L_vd{tag}:')
    counters_sum(A)
    A('s_cmp_ge_u32 s78, 256')
    A(f's_cbranch_scc1 L_vd{tag}_full')
    A('s_sleep 16')
    counters_load(A)
    A('s_waitcnt vmcnt(0)')
    A(f's_sub_u32 s{S_TO}, s{S_TO}, 1')
    A(f's_cbranch_scc0 L_vd{tag}')
    A('s_branch L_timeout')
    A(f'L_vd{tag}_full:')
    if 'forcefb' in OPT: A('s_mov_b32 s79, 1')
    for k in range(8):
        A(f's_cmp_lg_u32 s{VR[k]}, 32')
        A('s_cselect_b32 s79, 1, s79')
    A(f'L_vd{tag}_ok:')
def verdict_bcast(A, tag, lds=0):
    A(f's_cmp_lg_u32 s{S_W}, 0')
    A(f's_cbranch_scc1 L_vb{tag}')
    A(f'v_mov_b32 v240, {lds}')
    A('v_mov_b32 v241, s79')
    A('ds_write_b32 v240, v241')
    A('s_waitcnt lgkmcnt(0)')
    A(f'L_vb{tag}:')
    A('s_barrier')
    A(f'v_mov_b32 v240, {lds}')
    A('ds_read_b32 v241, v240')
    A('s_waitcnt lgkmcnt(0)')
    A('v_readfirstlane_b32 s79, v241')
    A('s_barrier')
    A('s_cmp_lg_u32 s79, 0')
    A('s_cbranch_scc1 L_fallback')

def arrive(A):
    A(f'v_mov_b32 v238, {CENSUS}')
    A('v_mov_b32 v239, 1')
    A('s_mov_b64 exec, 1')
    A(f'global_atomic_add v239, v238, v239, s[{S_DBG}:{S_DBG+1}] sc0')
    A('s_mov_b64 exec, -1')
def arrive_finish(A, tag):
    A(f's_cmp_lg_u32 s{S_W}, 0')
    A(f's_cbranch_scc1 L_af{tag}')
    A('s_cmp_lg_u32 s79, 0')
    A(f's_cbranch_scc1 L_af{tag}')
    A('s_waitcnt vmcnt(0)')
    A('v_readfirstlane_b32 s78, v239')
    A('s_cmp_lg_u32 s78, 255')
    A(f's_cbranch_scc1 L_af{tag}')
    A(f'v_mov_b32 v238, {GO}')
    A('v_mov_b32 v239, 1')
    A(f'global_store_dword v238, v239, s[{S_DBG}:{S_DBG+1}] sc1')
    A(f'L_af{tag}:')

def gen_fallback(A):
    A('L_fallback:')
    A('s_waitcnt vmcnt(0) lgkmcnt(0)')
    A('L_fb_poll:')
    counters_load(A)
    A('s_waitcnt vmcnt(0)')
    counters_sum(A)
    A('s_cmp_ge_u32 s78, 256')
    A('s_cbranch_scc1 L_fb_full')
    A('s_sleep 4')
    A(f's_sub_u32 s{S_TO}, s{S_TO}, 1')
    A('s_cbranch_scc0 L_fb_poll')
    A('s_branch L_timeout')
    A('L_fb_full:')
    if 'forcefb' in OPT:
        A('s_mov_b32 s78, s2')
    else:
        A(f's_mov_b32 s78, s{S_J}')
        for k in range(7):
            A(f's_cmp_gt_u32 s{S_X}, {k}')
            A(f's_cselect_b32 s79, s{VR[k]}, 0')
            A('s_add_u32 s78, s78, s79')
    A(f's_lshr_b32 s{S_X}, s78, 5')
    A(f's_and_b32 s{S_J}, s78, 31')
    A(f's_mov_b32 s{S_MODE}, 1')
    A('s_barrier')
    A('s_branch L_role')

def gen_timeout(A):
    A('L_timeout:')
    A('v_mov_b32 v1, 60')
    A('v_mov_b32 v2, 0xdead')
    A(f'global_store_dword v1, v2, s[{S_DBG}:{S_DBG+1}]')
    A('s_waitcnt vmcnt(0)')
    A('s_endpgm')

if __name__ == '__main__':
    out = sys.argv[1]
    OPT.update(sys.argv[2:])
    prof = 'prof' in OPT
    A = Asm()
    K = NAME + '_kernel'
    kernel_begin(A, K)
    gen_common_entry(A)
    A(f's_cmp_lt_u32 s{S_X}, 4')
    A('s_cbranch_scc1 L_chain')
    A(f's_cmp_lg_u32 s{S_W}, 0')
    A('s_cbranch_scc1 L_end')
    gen_calib(A)
    A('v_mov_b32 v1, 32')
    A('v_mov_b32 v2, 1')
    A('s_mov_b64 exec, 1')
    A(f'global_atomic_add v1, v2, s[{S_DBG}:{S_DBG+1}]')
    A('s_waitcnt vmcnt(0)')
    A('L_end:')
    A('s_endpgm')
    A('L_chain:')
    gen_chain(A, prof)
    gen_timeout(A)
    open(out, 'w').write(file_text(['; @launch grid=(256,1,1) block=(256,1,1) lds=163840'], A.text(), kernel_desc(K)))
```

```python
import sys
from asmlib import *
from ws_layout import *
import chain9 as ch
import bulk1, bulk2, bulk3
ch.OPT.update(sys.argv[2:])
ch.OPT.update(f for f in ch.DEFAULT_FLAGS if ('no_' + f) not in ch.OPT)
import asmlib
asmlib.TL_ON[0] = 'tl' in ch.OPT
bulk3.OSHORT[0] = ch.optval('oshort', 3)
bulk3.TAILN[0] = ch.optval('tail0', 60)
bulk3.NRING[0] = ch.optval('nring', 40)
bulk3.NOOUT[0] = 'noout' in ch.OPT
bulk3.SLEEPN[0] = ch.optval('bsleep', 32)
S_X, S_J, S_W, S_TO, S_DBG, S_WS = 16, 17, 20, 22, 28, 8
WSR = f's[{S_WS}:{S_WS+3}]'
A = Asm(); K = NAME + '_kernel'
kernel_begin(A, K)
ch.gen_common_entry(A)
tl(A, 0)
A('L_role:')
A(f's_cmp_ge_u32 s{S_J}, 32')
A('s_cbranch_scc1 L_overfull')
A(f's_cmp_lt_u32 s{S_X}, 4')
A('s_cbranch_scc1 L_chain')
A(f's_sub_u32 s{bulk1.S_BID}, s{S_X}, 4')
A(f's_lshl_b32 s{bulk1.S_BID}, s{bulk1.S_BID}, 5')
A(f's_add_u32 s{bulk1.S_BID}, s{bulk1.S_BID}, s{S_J}')
def bulk_zero(tag):
    A(f's_cmp_lg_u32 s{S_W}, 0')
    A(f's_cbranch_scc1 L_b_zeroed{tag}')
    A('v_mov_b32 v242, 0')
    A('v_mov_b32 v243, 0')
    A(f's_lshl_b32 s30, s{bulk1.S_BID}, 7')
    A(f's_add_u32 s30, s30, {C_PROG1}')
    A(f'buffer_store_dword v243, v242, {WSR}, s30 offen sc1')
    if tag == 'q':
        A(f's_cmp_lg_u32 s{bulk1.S_BID}, 127')
        A('s_cbranch_scc1 L_b_zeroedq')
        A('v_lshlrev_b32 v242, 7, v0')
        A(f's_mov_b32 s30, {C_XCNT}')
        A(f'buffer_store_dword v243, v242, {WSR}, s30 offen sc1')
        A(f's_mov_b32 s30, {C_XDONE}')
        A(f'buffer_store_dword v243, v242, {WSR}, s30 offen sc1')
        A('v_mov_b32 v242, 0')
        A(f's_mov_b32 s30, {C_BCNT}')
        A(f'buffer_store_dword v243, v242, {WSR}, s30 offen sc1')
    A(f'L_b_zeroed{tag}:')
def bulk_init(tag):
    A(f's_cmp_lg_u32 s{S_W}, 0')
    A(f's_cbranch_scc1 L_b_arrived{tag}')
    ch.verdict_eval(A, tag)
    A('s_cmp_lg_u32 s79, 0')
    A(f's_cbranch_scc1 L_b_arrived{tag}')
    ch.arrive(A)
    A(f'L_b_arrived{tag}:')
A(f's_cmp_lg_u32 s{S_W}, 1')
A('s_cbranch_scc1 L_b_nowarm')
A('s_load_dwordx2 s[4:5], s[0:1], 0')
A('s_waitcnt lgkmcnt(0)')
bulk1.setsrd(A, 12, 4, 2048*1280)
A(f's_mul_i32 s30, s{S_J}, 2560')
A('v_and_b32 v1, 63, v0')
A('v_lshlrev_b32 v1, 4, v1')
for k in range(3):
    A(f'buffer_load_dwordx4 v[244:247], v1, s[12:15], s30 offen offset:{min(k*1024, 1536)}')
A('L_b_nowarm:')
def census_wait(tag):
    A(f's_cmp_lg_u32 s{S_W}, 0')
    A(f's_cbranch_scc1 L_b_census{tag}_ok')
    A(f'L_b_census{tag}:')
    A(f'v_mov_b32 v240, {ch.GO}')
    A(f'global_load_dword v241, v240, s[{S_DBG}:{S_DBG+1}] sc1')
    A('s_waitcnt vmcnt(0)')
    A('v_readfirstlane_b32 s30, v241')
    A('s_cmp_lg_u32 s30, 0')
    A(f's_cbranch_scc1 L_b_census{tag}_ok')
    A('s_sleep 16')
    A(f's_sub_u32 s{S_TO}, s{S_TO}, 1')
    A(f's_cbranch_scc0 L_b_census{tag}')
    A('s_branch L_timeout')
    A(f'L_b_census{tag}_ok:')
    A('s_barrier')
A(f's_cmp_lt_u32 s{bulk1.S_BID}, 64')
A('s_cbranch_scc1 L_b_go')
A(f's_cmp_lg_u32 s{bulk1.S_BID}, 127')
A('s_cbranch_scc1 L_b_nocal')
ch.gen_calib(A)
A('L_b_nocal:')
bulk_zero('q')
A('s_sleep 64')
ch.verdict_issue(A, 'q')
A('s_waitcnt vmcnt(0)')
bulk_init('q')
ch.arrive_finish(A, 'q')
ch.verdict_bcast(A, 'q')
if 'nobulk' not in ch.OPT: census_wait('a')
A('L_b_go:')
def kv_hook1():
    A(f's_cmp_ge_u32 s{bulk1.S_BID}, 64')
    A('s_cbranch_scc1 L_b_hook1')
    bulk_zero('k')
    A('s_waitcnt vmcnt(8)')
    ch.verdict_issue(A, 'k')
    A('L_b_hook1:')
def kv_hook2():
    A(f's_cmp_ge_u32 s{bulk1.S_BID}, 64')
    A('s_cbranch_scc1 L_b_hook2')
    bulk_init('k')
    A('L_b_hook2:')
def kv_hook3():
    A(f's_cmp_ge_u32 s{bulk1.S_BID}, 64')
    A('s_cbranch_scc1 L_b_hook3')
    ch.arrive_finish(A, 'k')
    ch.verdict_bcast(A, 'k')
    A(f's_cmp_eq_u32 s{ch.S_MODE}, 0')
    A('s_cbranch_scc1 L_b_hook3')
    census_wait('k')
    A('L_b_hook3:')
if 'nobulk' in ch.OPT:
    kv_hook1(); A('s_waitcnt vmcnt(0)'); kv_hook2(); kv_hook3()
if 'nobulk' not in ch.OPT:
    bulk1.HOOKS[:] = [kv_hook1, kv_hook2, kv_hook3]
    bulk1.gen_phase1_loop(A)
    tl(A, 2)
    census_wait('b')
    if 'nop2' not in ch.OPT: bulk2.gen_phase2(A)
    tl(A, 3)
    if 'nop3' not in ch.OPT: bulk3.gen_phase3(A)
    tl(A, 5)
A('s_waitcnt vmcnt(0)')
A('L_end:')
A('s_endpgm')
A('L_overfull:')
ch.gen_fallback(A)
A('L_chain:')
ch.gen_chain(A, 'prof' in ch.OPT)
ch.gen_timeout(A)
open(sys.argv[1], 'w').write(file_text(['; @launch grid=(256,1,1) block=(256,1,1) lds=163840'], A.text(), kernel_desc(K)))
```

```python
from asmlib import *
from ws_layout import *
import sys
S_WS, S_X, S_J, S_W, S_TO, S_DBG = 8, 16, 17, 20, 22, 28
S_T = 12
S_XS = 24
S_t0, S_t1, S_t2, S_t3 = 30, 31, 32, 33
S_BID = 34
S_SEG = 35
S_OUT = 36
S_OSTR = 37
S_SLOT = 38
S_DSLOT = 39
S_XOFF = 40
S_PROGO = 41
S_KIND = 42
WSR = f's[{S_WS}:{S_WS+3}]'
XSR = f's[{S_XS}:{S_XS+3}]'
BIG = 0x40000000
V_XA = 1
V_RB = 12
V_RD = 13
V_ST = 14
V_FL = 15
V_T = 16
V_PV = 24
V_B = 32
V_ACC = 64
V_O = 96
SLOTB = 45056
NPRE = 8
HOOKS = []

def mfma32(A, d, a, b, c):
    A(f'v_mfma_f32_32x32x16_bf16 {d}, {a}, {b}, {c}')

def setsrd(A, dst, lo, size):
    A(f's_mov_b32 s{dst}, s{lo}')
    A(f's_and_b32 s{dst+1}, s{lo+1}, 0xffff')
    A(f's_mov_b32 s{dst+2}, {size}')
    A(f's_mov_b32 s{dst+3}, 0x20000')

def gen_phase1(A):
    L, T0, T1, T2, T3 = V_T, V_T+1, V_T+2, V_T+3, V_T+4
    A.c('==== phase 1 ====')
    A(f'v_and_b32 v{L}, 63, v0')
    A(f's_mov_b32 s{S_KIND}, 3')
    A(f's_cmp_eq_u32 s{S_BID}, 120')
    A(f's_cselect_b32 s{S_KIND}, 2, s{S_KIND}')
    A(f's_cmp_lt_u32 s{S_BID}, 120')
    A(f's_cselect_b32 s{S_KIND}, 1, s{S_KIND}')
    A(f's_cmp_lt_u32 s{S_BID}, 96')
    A(f's_cselect_b32 s{S_KIND}, 0, s{S_KIND}')
    A(f's_cmp_eq_u32 s{S_KIND}, 3')
    A('s_cbranch_scc1 L_p1_end')
    A(f's_lshl_b32 s{S_PROGO}, s{S_BID}, 7')
    A(f's_add_u32 s{S_PROGO}, s{S_PROGO}, {C_PROG1}')
    A(f'v_mov_b32 v{T2}, {BIG}')
    A(f'v_cmp_eq_u32 vcc, 0, v0')
    A(f'v_mov_b32 v{T0}, 0')
    A('s_nop 0')
    A(f'v_cndmask_b32 v{V_FL}, v{T2}, v{T0}, vcc')
    R_, CQ, AB, GK = V_T+5, V_T+6, V_T+7, V_PV
    A(f'v_bfe_u32 v{R_}, v{L}, 2, 2')
    A(f'v_and_b32 v{CQ}, 3, v{L}')
    A(f'v_bfe_u32 v{AB}, v{L}, 4, 1')
    A(f'v_lshrrev_b32 v{GK}, 5, v{L}')
    A(f'v_and_b32 v{T0}, 1, v{CQ}')
    A(f'v_lshlrev_b32 v{T0}, 3, v{T0}')
    A(f'v_lshrrev_b32 v{T1}, 1, v{CQ}')
    A(f'v_lshl_add_u32 v{T0}, v{T1}, 2, v{T0}')
    A(f'v_lshl_add_u32 v{T3}, v{AB}, 4, v{T0}')
    A(f's_cmp_eq_u32 s{S_KIND}, 0')
    A('s_cbranch_scc0 L_p1_notA')
    A(f's_lshr_b32 s{S_t0}, s{S_BID}, 5')
    A(f's_cmp_eq_u32 s{S_t0}, 0')
    A(f's_cselect_b32 s{S_t1}, 24, 32')
    A(f's_cmp_eq_u32 s{S_t0}, 2')
    A(f's_cselect_b32 s{S_t1}, 16, s{S_t1}')
    A(f's_load_dwordx2 s[4:5], s[0:1], s{S_t1}')
    A(f's_load_dwordx2 s[6:7], s[0:1], 0')
    A(f's_cmp_eq_u32 s{S_t0}, 0')
    A(f's_mov_b32 s{S_OUT}, {WS_VX}')
    A(f's_cselect_b32 s{S_OUT}, {WS_KX}, s{S_OUT}')
    A(f's_cmp_eq_u32 s{S_t0}, 2')
    A(f's_cselect_b32 s{S_OUT}, {WS_QX}, s{S_OUT}')
    A(f's_and_b32 s{S_t2}, s{S_BID}, 31')
    A(f's_lshl_b32 s{S_t3}, s{S_t2}, 13')
    A(f's_add_u32 s{S_OUT}, s{S_OUT}, s{S_t3}')
    A(f's_mov_b32 s{S_OSTR}, {32*8192}')
    A('s_waitcnt lgkmcnt(0)')
    setsrd(A, S_T, 4, 5242880)
    setsrd(A, S_XS, 6, 2048*1280)
    A(f'v_lshrrev_b32 v{T0}, 4, v{L}')
    A(f'v_lshlrev_b32 v{T0}, 13, v{T0}')
    A(f'v_and_b32 v{T1}, 15, v{L}')
    A(f'v_lshl_add_u32 v{T0}, v{T1}, 4, v{T0}')
    A(f's_lshl_b32 s{S_t3}, s{S_t2}, 8')
    A(f'v_add_u32 v{T0}, s{S_t3}, v{T0}')
    A(f's_lshl_b32 s{S_t0}, s{S_W}, 15')
    A(f's_lshl_b32 s{S_t1}, s{S_W}, 10')
    for i in range(40):
        A(f's_mov_b32 m0, s{S_t1}')
        A(f's_add_u32 s{S_t1}, s{S_t1}, 4096')
        A(f'buffer_load_dwordx4 v{T0}, s[{S_T}:{S_T+3}], s{S_t0} offen lds')
        A(f's_add_u32 s{S_t0}, s{S_t0}, {4*32768}')
    A(f'v_lshl_add_u32 v{T0}, v{GK}, 3, v{R_}')
    A(f'v_lshlrev_b32 v{T0}, 8, v{T0}')
    A(f'v_lshl_add_u32 v{T0}, v{T3}, 1, v{T0}')
    A(f's_lshl_b32 s{S_t0}, s{S_W}, 6')
    A(f'v_add_u32 v{T0}, s{S_t0}, v{T0}')
    A(f'v_lshlrev_b32 v{V_ST}, 4, v{L}')
    A(f's_lshl_b32 s{S_t0}, s{S_W}, 11')
    A(f'v_add_u32 v{V_ST}, s{S_t0}, v{V_ST}')
    if HOOKS: HOOKS[0]()
    A('s_waitcnt vmcnt(0)')
    A('s_barrier')
    if HOOKS: HOOKS[1]()
    for s in range(40):
        if s % 10 == 0 and s:
            A(f'v_add_u32 v{T0}, {10*4096}, v{T0}')
        for hf in range(2):
            A(f'ds_read_b64_tr_b16 {ar(4*s+2*hf,2)}, v{T0} offset:{(s%10)*4096 + hf*1024}')
        if s % 4 == 3: A('s_waitcnt lgkmcnt(0)')
    A('s_branch L_p1_wdone')
    A('L_p1_notA:')
    A(f's_cmp_eq_u32 s{S_KIND}, 1')
    A('s_cbranch_scc0 L_p1_gate')
    A(f's_load_dwordx2 s[4:5], s[0:1], 64')
    A(f's_load_dwordx2 s[6:7], s[0:1], 0')
    A(f's_sub_u32 s{S_t0}, s{S_BID}, 96')
    A(f's_lshl_b32 s{S_t0}, s{S_t0}, 2')
    A(f's_add_u32 s{S_t0}, s{S_t0}, s{S_W}')
    A(f's_lshl_b32 s{S_OUT}, s{S_t0}, 11')
    A(f's_add_u32 s{S_OUT}, s{S_OUT}, {WS_QB}')
    A(f's_mov_b32 s{S_OSTR}, {96*2048}')
    A(f's_lshr_b32 s{S_t1}, s{S_t0}, 5')
    A(f's_and_b32 s{S_t2}, s{S_t0}, 31')
    A(f's_mul_i32 s{S_t1}, s{S_t1}, 1280')
    A(f's_mul_i32 s{S_t2}, s{S_t2}, 40')
    A(f's_add_u32 s{S_t2}, s{S_t2}, s{S_t1}')
    A('s_waitcnt lgkmcnt(0)')
    setsrd(A, S_T, 4, 640*3840)
    setsrd(A, S_XS, 6, 2048*1280)
    A(f'v_lshrrev_b32 v{T0}, 2, v{L}')
    A(f'v_mul_u32_u24 v{T0}, 3840, v{T0}')
    A(f'v_and_b32 v{T1}, 3, v{L}')
    A(f'v_lshl_add_u32 v{T0}, v{T1}, 4, v{T0}')
    A(f'v_add_u32 v{T0}, s{S_t2}, v{T0}')
    A(f'v_cmp_eq_u32 vcc, 3, v{T1}')
    A(f's_mul_i32 s{S_t1}, s{S_W}, 40960')
    A(f's_mov_b32 s{S_t0}, 0')
    A(f'v_cndmask_b32 v{T0}, v{T0}, v{T2}, vcc')
    for i in range(40):
        A(f's_mov_b32 m0, s{S_t1}')
        A(f's_add_u32 s{S_t1}, s{S_t1}, 1024')
        A(f'buffer_load_dwordx4 v{T0}, s[{S_T}:{S_T+3}], s{S_t0} offen lds')
        A(f's_add_u32 s{S_t0}, s{S_t0}, {16*3840}')
    A('s_waitcnt vmcnt(0)')
    A('s_branch L_p1_priv')
    A('L_p1_gate:')
    A(f's_load_dwordx2 s[4:5], s[0:1], 80')
    A(f's_load_dwordx2 s[6:7], s[0:1], 0')
    A(f's_mov_b32 s{S_OUT}, {WS_GATE}')
    A(f's_cmp_eq_u32 s{S_W}, 0')
    A(f's_cselect_b32 s{S_OUT}, s{S_OUT}, {BIG}')
    A(f's_mov_b32 s{S_OSTR}, 2048')
    A('s_waitcnt lgkmcnt(0)')
    setsrd(A, S_T, 4, 1280)
    setsrd(A, S_XS, 6, 2048*1280)
    A(f's_mul_i32 s{S_t1}, s{S_W}, 40960')
    A(f'v_lshlrev_b32 v{T0}, 4, v{L}')
    A(f'v_add_u32 v{T0}, s{S_t1}, v{T0}')
    for r in range(4): A(f'v_mov_b32 v{V_B+r}, 0')
    for i in range(40): A(f'ds_write_b128 v{T0}, {vr(V_B,4)} offset:{i*1024}')
    A(f'v_lshlrev_b32 v{T1}, 1, v{L}')
    for i in range(10):
        A(f'buffer_load_ushort v{V_B+4+i}, v{T1}, s[{S_T}:{S_T+3}], 0 offen offset:{128*i}')
    A(f'v_lshlrev_b32 v{T0}, 6, v{L}')
    A(f'v_add_u32 v{T0}, s{S_t1}, v{T0}')
    A('s_waitcnt vmcnt(0) lgkmcnt(0)')
    for i in range(10):
        A(f'ds_write_b16 v{T0}, v{V_B+4+i} offset:{i*4096}')
    A('s_waitcnt lgkmcnt(0)')
    A('L_p1_priv:')
    A(f'v_lshl_add_u32 v{T0}, v{GK}, 3, v{R_}')
    A(f'v_lshlrev_b32 v{T0}, 6, v{T0}')
    A(f'v_lshlrev_b32 v{T1}, 1, v{T3}')
    A(f'v_cmp_le_u32 vcc, 20, v{T3}')
    A(f'v_mov_b32 v{T2}, 48')
    A('s_nop 0')
    A(f'v_cndmask_b32 v{T1}, v{T1}, v{T2}, vcc')
    A(f'v_add_u32 v{T0}, v{T0}, v{T1}')
    A(f's_mul_i32 s{S_t1}, s{S_W}, 40960')
    A(f'v_add_u32 v{T0}, s{S_t1}, v{T0}')
    A(f'v_lshlrev_b32 v{V_ST}, 4, v{L}')
    for s in range(40):
        for hf in range(2):
            A(f'ds_read_b64_tr_b16 {ar(4*s+2*hf,2)}, v{T0} offset:{s*1024 + hf*256}')
        if s % 4 == 3: A('s_waitcnt lgkmcnt(0)')
    A('L_p1_wdone:')
    A('s_waitcnt lgkmcnt(0)')
    A('s_barrier')
    if HOOKS: HOOKS[2]()
    for i in range(11):
        A(f's_lshl_b32 s{S_t0}, s{S_W}, 6')
        A(f's_add_u32 s{S_t0}, s{S_t0}, {256*i}')
        A(f'v_add_u32 v{T0}, s{S_t0}, v{L}')
        A(f'v_mul_u32_u24 v{T1}, 12946, v{T0}')
        A(f'v_lshrrev_b32 v{T1}, 20, v{T1}')
        A(f'v_mul_u32_u24 v{T2}, 81, v{T1}')
        A(f'v_sub_u32 v{T2}, v{T0}, v{T2}')
        A(f'v_mul_u32_u24 v{T3}, 1280, v{T1}')
        A(f'v_lshl_add_u32 v{T3}, v{T2}, 4, v{T3}')
        A(f'v_cmp_gt_u32 vcc, 80, v{T2}')
        A(f'v_cmp_gt_u32 s[{S_t2}:{S_t3}], 32, v{T1}')
        A('s_nop 3')
        A(f's_and_b64 vcc, vcc, s[{S_t2}:{S_t3}]')
        A(f'v_mov_b32 v{T0}, {BIG}')
        A('s_nop 0')
        A(f'v_cndmask_b32 v{V_XA+i}, v{T0}, v{T3}, vcc')
    A(f'v_and_b32 v{T0}, 31, v{L}')
    A(f'v_mul_u32_u24 v{T0}, 1296, v{T0}')
    A(f'v_lshrrev_b32 v{T1}, 5, v{L}')
    A(f'v_lshl_add_u32 v{V_RB}, v{T1}, 4, v{T0}')
    def dma_x(i):
        A(f's_add_u32 m0, s{S_t1}, {4096*i}')
        return f'buffer_load_dwordx4 v{V_XA+i}, {XSR}, s{S_XOFF} offen lds'
    for seg in range(3):
        A(f's_lshl_b32 s{S_t1}, s{S_W}, 10')
        A(f's_add_u32 s{S_t1}, s{S_t1}, {seg*SLOTB}')
        A(f's_mov_b32 s{S_XOFF}, {seg*32*1280}')
        for i in range(11):
            ins = dma_x(i); A('s_nop 0'); A(ins)
        for k in range(3):
            pass
    tl(A, 1)
    A(f's_mov_b32 s{S_SEG}, 0')
    A(f's_mov_b32 s{S_SLOT}, 0')
    A(f's_mov_b32 s{S_DSLOT}, {2*SLOTB}')
    A(f's_mov_b32 s{S_XOFF}, {2*32*1280}')
    A(f's_sub_u32 s{S_OUT}, s{S_OUT}, s{S_OSTR}')
    def body(par, start=None):
        acc, pacc = V_ACC+16*par, V_ACC+16*(1-par)
        tlx = 1 if TL_ON[0] else 0
        A('s_waitcnt vmcnt(%d)' % {0: 22+tlx, 1: 11+tlx, None: 11}[start])
        A('s_barrier')
        A(f'v_add_u32 v{V_RD}, s{S_SLOT}, v{V_RB}')
        A(f's_max_i32 s{S_t0}, s{S_SEG}, 3')
        A(f's_sub_u32 s{S_t0}, s{S_t0}, 1')
        A(f'v_mov_b32 v{V_PV}, s{S_t0}')
        A(f's_lshl_b32 s{S_t1}, s{S_W}, 10')
        A(f's_add_u32 s{S_t1}, s{S_t1}, s{S_DSLOT}')
        for t in range(NPRE):
            A(f'ds_read_b128 {vr(V_B+4*t,4)}, v{V_RD} offset:{32*t}')
        if start is None: A(f'buffer_store_dword v{V_PV}, v{V_FL}, {WSR}, s{S_PROGO} offen sc1')
        issued = NPRE
        extra = []
        for t in range(40):
            A(f's_waitcnt lgkmcnt({min(issued-(t+1), 7)})')
            mfma32(A, vr(acc,16), ar(4*t,4), vr(V_B+4*(t%NPRE),4), '0' if t == 0 else vr(acc,16))
            if issued < 40:
                A(f'ds_read_b128 {vr(V_B+4*(issued%NPRE),4)}, v{V_RD} offset:{32*issued}')
                issued += 1
            if 2 <= t < 6 and start != 0:
                k = t-2
                A(f'v_cvt_pk_bf16_f32 v{V_O+2*k}, v{pacc+4*k}, v{pacc+4*k+1}')
                A(f'v_cvt_pk_bf16_f32 v{V_O+2*k+1}, v{pacc+4*k+2}, v{pacc+4*k+3}')
            if t == 7 and start != 0:
                A(f'buffer_store_dwordx4 {vr(V_O,4)}, v{V_ST}, {WSR}, s{S_OUT} offen sc1')
                A(f'buffer_store_dwordx4 {vr(V_O+4,4)}, v{V_ST}, {WSR}, s{S_OUT} offen offset:1024 sc1')
            if start is None and t >= 8 and (t-8) % 3 == 0 and (t-8)//3 < 11:
                ins = dma_x((t-8)//3); A('s_nop 0'); A(ins)
        A(f's_add_u32 s{S_SEG}, s{S_SEG}, 1')
        A(f's_add_u32 s{S_OUT}, s{S_OUT}, s{S_OSTR}')
        A(f's_add_u32 s{S_XOFF}, s{S_XOFF}, {32*1280}')
        for r in (S_SLOT, S_DSLOT):
            A(f's_add_u32 s{r}, s{r}, {SLOTB}')
            A(f's_cmp_eq_u32 s{r}, {3*SLOTB}')
            A(f's_cselect_b32 s{r}, 0, s{r}')
    return body

def gen_phase1_loop(A):
    body = gen_phase1(A)
    L = 'L_p1_loop'
    body(0, start=0)
    body(1, start=1)
    A('s_nop 15')
    for k in range(4):
        A(f'v_cvt_pk_bf16_f32 v{V_O+2*k}, v{V_ACC+16+4*k}, v{V_ACC+16+4*k+1}')
        A(f'v_cvt_pk_bf16_f32 v{V_O+2*k+1}, v{V_ACC+16+4*k+2}, v{V_ACC+16+4*k+3}')
    A(f'buffer_store_dwordx4 {vr(V_O,4)}, v{V_ST}, {WSR}, s{S_OUT} offen sc1')
    A(f'buffer_store_dwordx4 {vr(V_O+4,4)}, v{V_ST}, {WSR}, s{S_OUT} offen offset:1024 sc1')
    A('s_waitcnt vmcnt(0)')
    A('s_barrier')
    A(f'v_mov_b32 v{V_PV}, 2')
    A(f'buffer_store_dword v{V_PV}, v{V_FL}, {WSR}, s{S_PROGO} offen sc1')
    A(f's_lshl_b32 s{S_t1}, s{S_W}, 10')
    A(f's_mov_b32 s{S_XOFF}, {3*32*1280}')
    for i in range(11):
        A(f's_add_u32 m0, s{S_t1}, {4096*i}')
        A('s_nop 0')
        A(f'buffer_load_dwordx4 v{V_XA+i}, {XSR}, s{S_XOFF} offen lds')
    A(f's_mov_b32 s{S_XOFF}, {4*32*1280}')
    A(f'{L}:')
    body(0)
    body(1)
    A(f's_cmp_lt_u32 s{S_SEG}, 64')
    A(f's_cbranch_scc1 {L}')
    A('s_nop 15')
    pacc = V_ACC+16
    for k in range(4):
        A(f'v_cvt_pk_bf16_f32 v{V_O+2*k}, v{pacc+4*k}, v{pacc+4*k+1}')
        A(f'v_cvt_pk_bf16_f32 v{V_O+2*k+1}, v{pacc+4*k+2}, v{pacc+4*k+3}')
    A(f'buffer_store_dwordx4 {vr(V_O,4)}, v{V_ST}, {WSR}, s{S_OUT} offen sc1')
    A(f'buffer_store_dwordx4 {vr(V_O+4,4)}, v{V_ST}, {WSR}, s{S_OUT} offen offset:1024 sc1')
    A('s_waitcnt vmcnt(0)')
    A('s_barrier')
    A(f'v_mov_b32 v{V_PV}, 64')
    A(f'buffer_store_dword v{V_PV}, v{V_FL}, {WSR}, s{S_PROGO} offen sc1')
    A('L_p1_end:')

if __name__ == '__main__':
    A = Asm(); K = NAME + '_kernel'
    kernel_begin(A, K)
    A('s_cmp_ge_u32 s2, 128')
    A('s_cbranch_scc1 L_end')
    A('s_load_dwordx2 s[4:5], s[0:1], 104')
    A('v_lshrrev_b32 v1, 6, v0')
    A('s_nop 0')
    A(f'v_readfirstlane_b32 s{S_W}, v1')
    A('s_waitcnt lgkmcnt(0)')
    setsrd(A, S_WS, 4, 0x10000000)
    A(f's_mov_b32 s{S_BID}, s2')
    gen_phase1_loop(A)
    A('s_waitcnt vmcnt(0)')
    A('L_end:')
    A('s_endpgm')
    open(sys.argv[1], 'w').write(file_text(['; @launch grid=(128,1,1) block=(256,1,1) lds=163840'], A.text(), kernel_desc(K)))
```

```python
from asmlib import *
from ws_layout import *
import struct, sys

NSEG = 64
S_WS   = 8
S_T    = 12
S_X, S_J, S_H, S_C, S_W, S_STEP = 16, 17, 18, 19, 20, 21
S_TO   = 22
S_HASITEM = 23
S_DUM  = 24
S_DBG  = 28
S_t0, S_t1, S_t2, S_t3 = 30, 31, 32, 33
S_PAR  = 34
S_SCL = 38
S_KM, S_VM = 40, 41
S_SEG2 = 42
S_CPO = 44
S_PROF = 48
S_PT   = 64
S_D0   = 68
S_M0   = 72
S_VALID = 76
S_QV, S_PR, S_MR, S_XR = 84, 88, 92, 96
V_QKST, V_VST, V_RLD, V_VLD, V_P4, V_P2, V_RS0, V_RS1 = 1, 2, 3, 4, 5, 6, 7, 8
V_MS   = 9
V_M0   = 10
V_LM0  = 100
V_LB   = 16
V_LRW, V_LRR = 17, 18
V_T    = 20
V_NEG  = 28
V_SEL  = 32
V_LKV  = 36
V_PRG  = 37
V_CPF  = 38
V_CPV  = 39
V_PH   = 99
V_LRK  = 19
V_XP3  = 107
V_B    = 40
V_KPUB, V_VPUB = 80, 81
V_XS   = 82
V_KPL  = 83
V_ACV  = 84
V_RSD  = 88
V_DM3A, V_DM3B = 96, 97
V_VPL  = 98
V_XL   = 104
V_XD   = 108
V_ACC  = 120
V_R    = 128
V_VV   = 144
V_KX   = 160
V_S    = 192
V_VOX  = 204
V_VOM  = 216
V_PX   = 228
V_PM   = 232
V_F    = 236
V_O    = 248
V_PO   = 56
V_PO2  = 254
A_QK, A_V, A_O = 0, 80, 120
A_ONE, A_HALF = 168, 172
HOFF = 768
MEMSTRIDE = 2*HOFF + 32
L_KV  = 0
L_MEM = 65536
L_RAREA = 81920
BIG = 0x40000000
CENSUS = 192
GO = 96
SCALE_LOG2E = (128 ** -0.5) * 1.4426950408889634
def f2u(x): return struct.unpack('<I', struct.pack('<f', x))[0]
OPT = set()
DEFAULTS = {'xp3on': 0, 'nS': 3, 'gapS': 15, 'rsdelay': 30, 'nX': 2, 'nR': 2, 'nA': 2, 'bsleep': 100, 'vdelay': 12}
DEFAULT_FLAGS = {'dmamid'}
WSR = f's[{S_WS}:{S_WS+3}]'
def optval(k, d):
    for o in OPT:
        if o.startswith(k+'='): return o.split('=')[1] if isinstance(d, str) else int(o.split('=')[1])
    return DEFAULTS.get(k, d)
def mfma(A, d, a, b, c):
    A(f'v_mfma_f32_16x16x32_bf16 {d}, {a}, {b}, {c}')
def nops(A, n):
    while n > 0:
        k = min(n, 16); A(f's_nop {k-1}'); n -= k

class Prof:
    def __init__(self, on): self.on = on
    def stamp(self, A, idx, trace_only=False):
        if 'trace' in OPT:
            lab = A.label('L_tr')
            A(f's_cmp_lg_u32 s{S_STEP}, {optval("ts", 30)}')
            A(f's_cbranch_scc1 {lab}')
            A(f's_memrealtime s[{S_PT}:{S_PT+1}]')
            A('s_waitcnt lgkmcnt(0)')
            A(f's_mov_b32 s{S_PROF+idx}, s{S_PT}')
            A(f'{lab}:')
            return
        if not self.on or trace_only: return
        A(f's_memtime s[{S_PT}:{S_PT+1}]')
        A('s_waitcnt lgkmcnt(0)')
        A(f's_sub_u32 s{S_PT+3}, s{S_PT}, s{S_PT+2}')
        A(f's_mov_b32 s{S_PT+2}, s{S_PT}')
        A(f's_add_u32 s{S_PROF+idx}, s{S_PROF+idx}, s{S_PT+3}')

PROFCNT = {}
def check(A, regs, tmp=V_T):
    r = list(regs)
    if len(r) <= 5:
        A(f'v_max3_u32 v{tmp}, v{r[0]}, v{r[1]}, v{r[2]}'); r = r[3:]
        if len(r) == 2: A(f'v_max3_u32 v{tmp}, v{tmp}, v{r[0]}, v{r[1]}')
        elif len(r) == 1: A(f'v_max_u32 v{tmp}, v{tmp}, v{r[0]}')
    else:
        A(f'v_max3_u32 v{tmp}, v{r[0]}, v{r[1]}, v{r[2]}')
        A(f'v_max3_u32 v{tmp+1}, v{r[3]}, v{r[4]}, v{r[5]}'); r = r[6:]; cur = 0
        while len(r) >= 2:
            A(f'v_max3_u32 v{tmp+cur}, v{tmp+cur}, v{r[0]}, v{r[1]}'); r = r[2:]; cur ^= 1
        if r: A(f'v_max3_u32 v{tmp}, v{tmp}, v{tmp+1}, v{r[0]}')
        else: A(f'v_max_u32 v{tmp}, v{tmp}, v{tmp+1}')
    A(f'v_cmp_eq_u32 vcc, -1, v{tmp}')

def retry(A, label, key=None):
    if key in PROFCNT:
        k = PROFCNT[key]; A(f's_add_u32 s{S_PROF+k}, s{S_PROF+k}, 1')
    A(f's_sub_u32 s{S_TO}, s{S_TO}, 1')
    A(f's_cbranch_scc0 {label}')
    A('s_branch L_timeout')

def setsrd(A, lo, size):
    A(f's_mov_b32 s{S_T}, s{lo}')
    A(f's_and_b32 s{S_T+1}, s{lo+1}, 0xffff')
    A(f's_mov_b32 s{S_T+2}, {size}')
    A(f's_mov_b32 s{S_T+3}, 0x20000')

def dbl(A, v, tmp, add=0):
    A(f'v_lshrrev_b32 v{tmp}, 13, v{v}')
    A(f'v_lshlrev_b32 v{tmp}, 14, v{tmp}')
    A(f'v_and_b32 v{v}, 8191, v{v}')
    A(f'v_add_u32 v{v}, v{v}, v{tmp}')
    if add: A(f'v_add_u32 v{v}, {add}, v{v}')

def vox_reads(A, slot):
    for kt in range(2):
        for s4 in range(4):
            A(f'ds_read_b128 {vr(V_KX+16*kt+4*s4,4)}, v{V_LKV} offset:{L_KV + slot*16384 + 8192 + 2048*s4 + 256*kt}')
def vox_compute(A, hook=None):
    A('s_waitcnt lgkmcnt(0)')
    if hook: hook()
    if 'skipvox' in OPT: return
    for tt in range(3):
        acc = V_F if tt % 2 == 0 else V_ACC
        for s4 in range(4):
            for kt in range(2):
                c = '0' if s4 == 0 else vr(acc+4*kt,4)
                mfma(A, vr(acc+4*kt,4), vr(V_KX+16*kt+4*s4,4), ar(A_O+16*tt+4*s4,4), c)
            if tt >= 1 and s4 == 3:
                pacc = V_F if (tt-1) % 2 == 0 else V_ACC
                for kt in range(2):
                    A(f'v_cvt_pk_bf16_f32 v{V_VOX+4*(tt-1)+2*kt}, v{pacc+4*kt}, v{pacc+4*kt+1}')
                    A(f'v_cvt_pk_bf16_f32 v{V_VOX+4*(tt-1)+2*kt+1}, v{pacc+4*kt+2}, v{pacc+4*kt+3}')
    A('s_nop 7')
    for kt in range(2):
        A(f'v_cvt_pk_bf16_f32 v{V_VOX+8+2*kt}, v{V_F+4*kt}, v{V_F+4*kt+1}')
        A(f'v_cvt_pk_bf16_f32 v{V_VOX+8+2*kt+1}, v{V_F+4*kt+2}, v{V_F+4*kt+3}')

def vox_tiles(A, tiles, wait=True):
    if wait: A('s_waitcnt lgkmcnt(0)')
    if 'skipvox' in OPT or not tiles: return
    accs = [V_F, V_ACC]
    for n, tt in enumerate(tiles):
        acc = accs[n % 2]
        for s4 in range(4):
            for kt in range(2):
                c = '0' if s4 == 0 else vr(acc+4*kt,4)
                mfma(A, vr(acc+4*kt,4), vr(V_KX+16*kt+4*s4,4), ar(A_O+16*tt+4*s4,4), c)
            if n >= 1 and s4 == 3:
                pt = tiles[n-1]; pacc = accs[(n-1) % 2]
                for kt in range(2):
                    A(f'v_cvt_pk_bf16_f32 v{V_VOX+4*pt+2*kt}, v{pacc+4*kt}, v{pacc+4*kt+1}')
                    A(f'v_cvt_pk_bf16_f32 v{V_VOX+4*pt+2*kt+1}, v{pacc+4*kt+2}, v{pacc+4*kt+3}')
    A('s_nop 6')
    pt = tiles[-1]; pacc = accs[(len(tiles)-1) % 2]
    for kt in range(2):
        A(f'v_cvt_pk_bf16_f32 v{V_VOX+4*pt+2*kt}, v{pacc+4*kt}, v{pacc+4*kt+1}')
        A(f'v_cvt_pk_bf16_f32 v{V_VOX+4*pt+2*kt+1}, v{pacc+4*kt+2}, v{pacc+4*kt+3}')

def gen_prologue(A, P):
    A(f's_lshr_b32 s{S_t0}, s{S_J}, 2')
    A(f's_lshl_b32 s{S_H}, s{S_X}, 3')
    A(f's_add_u32 s{S_H}, s{S_H}, s{S_t0}')
    A(f's_and_b32 s{S_C}, s{S_J}, 3')
    A(f's_mov_b32 s{S_SCL}, {hex(f2u(SCALE_LOG2E))}')
    A(f's_mov_b32 s{S_SCL+1}, {hex(f2u(SCALE_LOG2E))}')
    L, I, G = V_T, V_T+1, V_T+2
    T0, T1, T2 = V_T+3, V_T+4, V_T+5
    I7 = V_T+6; T3 = V_T+7
    A(f'v_and_b32 v{L}, 63, v0')
    A(f'v_and_b32 v{I}, 15, v0')
    A(f'v_bfe_u32 v{G}, v0, 4, 2')
    A(f'v_and_b32 v{I7}, 7, v{I}')
    A.c('weights DMA')
    A(f's_load_dwordx4 s[4:7], s[0:1], 16')
    A(f's_waitcnt lgkmcnt(0)')
    A(f'v_lshrrev_b32 v{T0}, 2, v{L}')
    A(f'v_lshlrev_b32 v{T0}, 13, v{T0}')
    if 'tilemix' in OPT:
        A(f'v_and_b32 v{T1}, 1, v{L}')
        A(f'v_lshlrev_b32 v{T1}, 4, v{T1}')
        A(f'v_bfe_u32 v{T2}, v{L}, 1, 1')
        A(f'v_lshl_add_u32 v{T1}, v{T2}, 7, v{T1}')
        A(f'v_add_u32 v{T0}, v{T0}, v{T1}')
        A(f's_lshl_b32 s{S_t0}, s{S_H}, 8')
        A(f's_lshl_b32 s{S_t1}, s{S_C}, 5')
    else:
        A(f'v_and_b32 v{T1}, 3, v{L}')
        A(f'v_lshlrev_b32 v{T1}, 4, v{T1}')
        A(f'v_add_u32 v{T0}, v{T0}, v{T1}')
        A(f's_lshl_b32 s{S_t0}, s{S_H}, 8')
        A(f's_lshl_b32 s{S_t1}, s{S_C}, 6')
    A(f's_add_u32 s{S_t0}, s{S_t0}, s{S_t1}')
    A(f'v_add_u32 v{T0}, s{S_t0}, v{T0}')
    ROT = 'norot' not in OPT and 'tilemix' not in OPT
    def dma_w(area, rot=0):
        A(f's_add_u32 s{S_t1}, s{S_C}, {rot if ROT else 0}')
        A(f's_and_b32 s{S_t1}, s{S_t1}, 3')
        A(f's_sub_u32 s{S_t1}, s{S_t1}, s{S_C}')
        A(f's_lshl_b32 s{S_t1}, s{S_t1}, 6')
        A(f'v_add_u32 v{T3}, s{S_t1}, v{T0}')
        A(f's_lshl_b32 s{S_t0}, s{S_W}, 17')
        A(f's_lshl_b32 s{S_t1}, s{S_W}, 10')
        A(f's_add_u32 s{S_t1}, s{S_t1}, {area}')
        for i in range(10):
            A(f's_mov_b32 m0, s{S_t1}')
            A(f's_add_u32 s{S_t1}, s{S_t1}, 4096')
            A(f'buffer_load_dwordx4 v{T3}, s[{S_T}:{S_T+3}], s{S_t0} offen lds')
            A(f's_add_u32 s{S_t0}, s{S_t0}, {4*131072}')
    setsrd(A, 6, 5242880); dma_w(40960, 2)
    A(f's_load_dwordx4 s[80:83], s[0:1], 32')
    A(f's_waitcnt lgkmcnt(0)')
    setsrd(A, 80, 5242880); dma_w(81920, 1)
    setsrd(A, 4, 5242880); dma_w(0)
    setsrd(A, 82, 5242880)
    WO = V_B
    for b in range(5):
        A(f'v_add_u32 v{T1}, {64*b}, v{L}')
        A(f'v_mul_u32_u24 v{T2}, 3277, v{T1}')
        A(f'v_lshrrev_b32 v{T2}, 16, v{T2}')
        A(f'v_mul_u32_u24 v{WO+b}, 20, v{T2}')
        A(f'v_sub_u32 v{WO+b}, v{T1}, v{WO+b}')
        A(f'v_lshlrev_b32 v{WO+b}, 4, v{WO+b}')
        A(f'v_mul_u32_u24 v{T2}, 1280, v{T2}')
        A(f'v_add_u32 v{WO+b}, v{WO+b}, v{T2}')
    A(f's_mul_i32 s{S_t0}, s{S_H}, {128*1280}')
    A(f's_mul_i32 s{S_t1}, s{S_C}, 320')
    A(f's_add_u32 s{S_t0}, s{S_t0}, s{S_t1}')
    A(f's_mul_i32 s{S_t1}, s{S_W}, {16*1280}')
    A(f's_add_u32 s{S_t0}, s{S_t0}, s{S_t1}')
    A(f's_mul_i32 s{S_t1}, s{S_W}, 5120')
    A(f's_add_u32 s{S_t1}, s{S_t1}, 122880')
    for hi in range(2):
        for b in range(5):
            A(f's_add_u32 m0, s{S_t1}, {hi*4*5120 + b*1024}')
            A(f's_add_u32 s{S_t2}, s{S_t0}, {hi*4*16*1280}')
            A(f'buffer_load_dwordx4 v{WO+b}, s[{S_T}:{S_T+3}], s{S_t2} offen lds')
    A.c('address regs')
    VALID = f's[{S_VALID}:{S_VALID+1}]'
    VV_ = f's[{S_M0}:{S_M0+1}]'
    A(f'v_cmp_gt_u32 {VALID}, 8, v{I}')
    A(f'v_mov_b32 v{T2}, {BIG}')
    TO = V_B+8
    A(f's_lshr_b32 s{S_t1}, s{S_W}, 1')
    A(f's_lshl_b32 s{S_t0}, s{S_t1}, 11')
    SH_C, SH_W = (8, 10) if 'tilemix' in OPT else (9, 8)
    A(f's_lshl_b32 s{S_t1}, s{S_C}, {SH_C}')
    A(f's_add_u32 s{S_t0}, s{S_t0}, s{S_t1}')
    A(f's_and_b32 s{S_t1}, s{S_W}, 1')
    A(f's_lshl_b32 s{S_t1}, s{S_t1}, {SH_W}')
    A(f's_add_u32 s{S_t0}, s{S_t0}, s{S_t1}')
    A(f'v_lshlrev_b32 v{TO}, 5, v{I7}')
    A(f'v_lshl_add_u32 v{TO}, v{G}, 3, v{TO}')
    A(f'v_add_u32 v{TO}, s{S_t0}, v{TO}')
    S_HB = S_D0
    A(f's_lshr_b32 s{S_t0}, s{S_H}, 1')
    A(f's_lshl_b32 s{S_t0}, s{S_t0}, 14')
    A(f's_and_b32 s{S_t1}, s{S_H}, 1')
    A(f's_lshl_b32 s{S_t1}, s{S_t1}, 12')
    A(f's_add_u32 s{S_HB}, s{S_t0}, s{S_t1}')
    def qdelta(rot, dst):
        A(f's_add_u32 s{dst}, s{S_C}, {rot if ROT else 0}')
        A(f's_and_b32 s{dst}, s{dst}, 3')
        A(f's_sub_u32 s{dst}, s{dst}, s{S_C}')
        A(f's_lshl_b32 s{dst}, s{dst}, 9')
    qdelta(2, S_t0)
    A(f's_cmp_ge_u32 s{S_W}, 2')
    A(f's_cselect_b32 s{S_t0}, s{S_t0}, 0')
    A(f's_add_u32 s{S_t0}, s{S_t0}, s{S_HB}')
    A(f'v_add_u32 v{T0}, s{S_t0}, v{TO}')
    A(f'v_cndmask_b32 v{V_QKST}, v{T2}, v{T0}, {VALID}')
    A(f's_cmp_ge_u32 s{S_W}, 2')
    A(f's_cselect_b64 {VV_}, -1, 0')
    A(f's_xor_b64 {VV_}, {VV_}, {VALID}')
    qdelta(1, S_t0)
    A(f's_add_u32 s{S_t0}, s{S_t0}, s{S_HB}')
    A(f'v_add_u32 v{T0}, s{S_t0}, v{TO}')
    A(f'v_add_u32 v{T0}, {V_RING_OFF}, v{T0}')
    A(f'v_cndmask_b32 v{V_VST}, v{T2}, v{T0}, {VV_}')
    A(f'v_lshlrev_b32 v{T0}, 4, v{L}')
    A(f'v_cmp_gt_u32 vcc, 32, v{L}')
    A(f's_lshl_b32 s{S_t0}, s{S_C}, 9')
    A(f's_lshl_b32 s{S_t1}, s{S_H}, 11')
    A(f's_add_u32 s{S_t1}, s{S_t1}, s{S_t0}')
    A(f'v_add_u32 v{T1}, s{S_t1}, v{T0}')
    A(f'v_cndmask_b32 v{V_KPUB}, v{T2}, v{T1}, vcc')
    A(f's_add_u32 s{S_t1}, s{S_HB}, s{S_t0}')
    A(f's_add_u32 s{S_t1}, s{S_t1}, 2048')
    A(f'v_add_u32 v{T1}, s{S_t1}, v{T0}')
    A(f'v_cndmask_b32 v{V_KPL}, v{T2}, v{T1}, vcc')
    A(f's_lshl_b32 s{S_t0}, s{S_C}, 10')
    A(f's_lshl_b32 s{S_t1}, s{S_H}, 12')
    A(f's_add_u32 s{S_t1}, s{S_t1}, s{S_t0}')
    A(f'v_add_u32 v{V_VPUB}, s{S_t1}, v{T0}')
    A(f's_add_u32 s{S_t1}, s{S_HB}, s{S_t0}')
    A(f's_add_u32 s{S_t1}, s{S_t1}, {V_RING_OFF}')
    A(f'v_add_u32 v{V_VPL}, s{S_t1}, v{T0}')
    A(f's_lshl_b32 s{S_t1}, s{S_W}, 10')
    A(f's_add_u32 s{S_t0}, s{S_HB}, s{S_t1}')
    A(f'v_add_u32 v{V_RLD}, s{S_t0}, v{T0}')
    A(f's_add_u32 s{S_t1}, s{S_t1}, {L_RAREA}')
    A(f'v_add_u32 v{V_LRW}, s{S_t1}, v{T0}')
    A(f'v_lshrrev_b32 v{T0}, 3, v{I}')
    A(f'v_lshlrev_b32 v{T0}, 11, v{T0}')
    A(f'v_lshrrev_b32 v{T1}, 1, v{G}')
    A(f'v_lshl_add_u32 v{T0}, v{T1}, 8, v{T0}')
    A(f'v_lshl_add_u32 v{T0}, v{I7}, 5, v{T0}')
    A(f'v_and_b32 v{T1}, 1, v{G}')
    A(f'v_lshl_add_u32 v{T0}, v{T1}, 4, v{T0}')
    A(f'v_add_u32 v{V_LRR}, {L_RAREA}, v{T0}')
    A(f'v_and_b32 v{V_LRK}, 2047, v{T0}')
    A(f'v_add_u32 v{V_LRK}, {L_RAREA + 2048}, v{V_LRK}')
    A(f's_add_u32 s{S_t0}, s{S_HB}, {V_RING_OFF}')
    A(f'v_add_u32 v{V_VLD}, s{S_t0}, v{T0}')
    A(f's_mul_i32 s{S_t0}, s{S_H}, 10240')
    A(f's_mul_i32 s{S_t1}, s{S_C}, 2560')
    A(f's_add_u32 s{S_t0}, s{S_t0}, s{S_t1}')
    A(f's_lshl_b32 s{S_t1}, s{S_W}, 9')
    A(f's_add_u32 s{S_t1}, s{S_t1}, s{S_t0}')
    A(f'v_lshlrev_b32 v{T0}, 6, v{I}')
    A(f'v_lshl_add_u32 v{T0}, v{G}, 4, v{T0}')
    A(f'v_add_u32 v{T0}, s{S_t1}, v{T0}')
    dbl(A, T0, T1)
    A(f'v_cndmask_b32 v{V_P4}, v{T2}, v{T0}, {VALID}')
    A(f's_lshl_b32 s{S_t1}, s{S_W}, 8')
    A(f's_add_u32 s{S_t1}, s{S_t1}, 2048')
    A(f's_add_u32 s{S_t1}, s{S_t1}, s{S_t0}')
    A(f'v_lshlrev_b32 v{T0}, 5, v{I}')
    A(f'v_lshl_add_u32 v{T0}, v{G}, 3, v{T0}')
    A(f'v_add_u32 v{T0}, s{S_t1}, v{T0}')
    dbl(A, T0, T1)
    A(f's_cmp_lt_u32 s{S_W}, 2')
    A(f's_cselect_b64 s[{S_t2}:{S_t3}], {VALID}, 0')
    A(f'v_cndmask_b32 v{V_P2}, v{T2}, v{T0}, s[{S_t2}:{S_t3}]')
    A(f's_lshl_b32 s{S_t0}, s{S_W}, 5')
    A(f's_add_u32 s{S_t0}, s{S_t0}, s{S_J}')
    A(f's_cmp_lt_u32 s{S_t0}, 80')
    A(f's_cselect_b32 s{S_HASITEM}, 1, 0')
    A(f's_cselect_b32 s{S_t0}, s{S_t0}, 0')
    A(f's_lshl_b32 s{S_t1}, s{S_t0}, 7')
    A(f's_cmp_eq_u32 s{S_HASITEM}, 1')
    A(f's_cselect_b64 {VV_}, -1, 0')
    for u, dst in enumerate((V_RS0, V_RS1)):
        A(f'v_add_u32 v{T0}, {4*u}, v{G}')
        A(f's_lshl_b32 s{S_t2}, s{S_X}, 3')
        A(f'v_add_u32 v{T0}, s{S_t2}, v{T0}')
        A(f'v_mul_u32_u24 v{T0}, 10240, v{T0}')
        A(f'v_lshl_add_u32 v{T0}, v{I}, 3, v{T0}')
        A(f'v_add_u32 v{T0}, s{S_t1}, v{T0}')
        dbl(A, T0, T1)
        A(f'v_cndmask_b32 v{dst}, v{T2}, v{T0}, {VV_}')
    A(f'v_cmp_eq_u32 vcc, 0, v{G}')
    A('s_nop 3')
    A(f's_and_b64 {VV_}, {VV_}, vcc')
    A(f's_mul_i32 s{S_t2}, s{S_X}, 10240')
    A(f's_add_u32 s{S_t2}, s{S_t2}, s{S_t1}')
    A(f'v_lshlrev_b32 v{T0}, 3, v{I}')
    A(f'v_add_u32 v{T0}, s{S_t2}, v{T0}')
    dbl(A, T0, T1)
    A(f'v_cndmask_b32 v{V_MS}, v{T2}, v{T0}, {VV_}')
    for k, dst in enumerate((V_XS, V_XL, V_XL+1, V_XL+2)):
        A(f's_add_u32 s{S_t2}, s{S_X}, {k}')
        A(f's_and_b32 s{S_t2}, s{S_t2}, 3')
        A(f's_mul_i32 s{S_t2}, s{S_t2}, 20480')
        A(f's_lshl_b32 s{S_t3}, s{S_t1}, 1')
        A(f's_add_u32 s{S_t2}, s{S_t2}, s{S_t3}')
        A(f'v_lshlrev_b32 v{T0}, 4, v{I}')
        A(f'v_add_u32 v{T0}, s{S_t2}, v{T0}')
        dbl(A, T0, T1)
        if 'xtag' in OPT and k > 0: A(f'v_mov_b32 v{dst}, v{T0}')
        else: A(f'v_cndmask_b32 v{dst}, v{T2}, v{T0}, {VV_}')
    A(f'v_mov_b32 v{V_PH}, 0')
    A(f'v_lshlrev_b32 v{T0}, 5, v{G}')
    A(f'v_add_u32 v{T0}, s{S_J}, v{T0}')
    A(f'v_cmp_gt_u32 vcc, 80, v{T0}')
    A(f'v_lshlrev_b32 v{T0}, 8, v{T0}')
    A(f'v_lshl_add_u32 v{T0}, v{I}, 4, v{T0}')
    A(f's_mul_i32 s{S_t2}, s{S_X}, 20480')
    A(f'v_add_u32 v{T0}, s{S_t2}, v{T0}')
    dbl(A, T0, T1)
    A(f's_cmp_eq_u32 s{S_W}, 3')
    A(f's_cselect_b64 s[{S_t2}:{S_t3}], vcc, 0')
    A(f'v_cndmask_b32 v{V_XP3}, v{T2}, v{T0}, s[{S_t2}:{S_t3}]')
    Q, LN, PT, ROW, COL = V_B+8, V_B+9, V_B+10, V_B+11, V_B+12
    M_, R2, C2 = V_B+13, V_B+14, V_B+15
    NAG = 4 if 'ag3' in OPT else 3
    for k in range(NAG):
        if 'ag3' in OPT:
            A(f's_mul_i32 s{S_t0}, s{S_W}, 214')
            A(f's_add_u32 s{S_t1}, s{S_t0}, 213')
            A(f's_min_u32 s{S_t1}, s{S_t1}, 639')
            A(f's_add_u32 s{S_t0}, s{S_t0}, {64*k}')
            A(f'v_add_u32 v{Q}, s{S_t0}, v{L}')
            A(f'v_min_u32 v{Q}, s{S_t1}, v{Q}')
        else:
            A(f's_mul_i32 s{S_t0}, s{S_W}, 160')
            A(f's_add_u32 s{S_t0}, s{S_t0}, {64*k}')
            A(f'v_add_u32 v{Q}, s{S_t0}, v{L}')
            if k == 2:
                A(f'v_cmp_le_u32 vcc, 32, v{L}')
                A(f'v_subrev_u32 v{T1}, 32, v{Q}')
                A('s_nop 0')
                A(f'v_cndmask_b32 v{Q}, v{Q}, v{T1}, vcc')
        A(f's_mul_i32 s{S_t0}, s{S_X}, 10240')
        A(f'v_lshlrev_b32 v{V_M0+k}, 4, v{Q}')
        A(f'v_add_u32 v{V_M0+k}, s{S_t0}, v{V_M0+k}')
        dbl(A, V_M0+k, T1)
        A(f'v_lshrrev_b32 v{LN}, 3, v{Q}')
        A(f'v_and_b32 v{PT}, 7, v{Q}')
        A(f'v_mul_u32_u24 v{T0}, 3277, v{LN}')
        A(f'v_lshrrev_b32 v{T0}, 16, v{T0}')
        A(f'v_mul_u32_u24 v{T1}, 20, v{T0}')
        A(f'v_sub_u32 v{LN}, v{LN}, v{T1}')
        A(f'v_mul_u32_u24 v{COL}, 160, v{T0}')
        A(f'v_and_b32 v{T0}, 3, v{LN}')
        A(f'v_lshlrev_b32 v{T0}, 1, v{T0}')
        A(f'v_lshrrev_b32 v{T1}, 2, v{PT}')
        A(f'v_add_u32 v{ROW}, v{T0}, v{T1}')
        A(f'v_lshrrev_b32 v{T0}, 2, v{LN}')
        A(f'v_lshlrev_b32 v{T0}, 5, v{T0}')
        A(f'v_and_b32 v{T1}, 3, v{PT}')
        A(f'v_lshl_add_u32 v{T0}, v{T1}, 3, v{T0}')
        A(f'v_subrev_u32 v{M_}, 16, v{LN}')
        A(f'v_and_b32 v{R2}, 1, v{M_}')
        A(f'v_lshlrev_b32 v{R2}, 2, v{R2}')
        A(f'v_lshrrev_b32 v{T1}, 1, v{PT}')
        A(f'v_add_u32 v{R2}, v{R2}, v{T1}')
        A(f'v_lshrrev_b32 v{C2}, 1, v{M_}')
        A(f'v_lshlrev_b32 v{C2}, 4, v{C2}')
        A(f'v_and_b32 v{T1}, 1, v{PT}')
        A(f'v_lshl_add_u32 v{C2}, v{T1}, 3, v{C2}')
        A(f'v_add_u32 v{C2}, 128, v{C2}')
        A(f'v_cmp_le_u32 vcc, 16, v{LN}')
        A('s_nop 1')
        A(f'v_cndmask_b32 v{ROW}, v{ROW}, v{R2}, vcc')
        A(f'v_cndmask_b32 v{T0}, v{T0}, v{C2}, vcc')
        A(f'v_add_u32 v{COL}, v{COL}, v{T0}')
        A(f'v_lshlrev_b32 v{T0}, 1, v{COL}')
        A(f'v_add_u32 v{T1}, {HOFF-640}, v{T0}')
        A(f'v_cmp_le_u32 vcc, 320, v{COL}')
        A(f'v_mul_u32_u24 v{ROW}, {MEMSTRIDE}, v{ROW}')
        A('s_nop 0')
        A(f'v_cndmask_b32 v{T0}, v{T0}, v{T1}, vcc')
        A(f'v_add_u32 v{V_LM0+k}, v{ROW}, v{T0}')
        A(f'v_add_u32 v{V_LM0+k}, {L_MEM}, v{V_LM0+k}')
    A(f'v_mul_u32_u24 v{T0}, {MEMSTRIDE}, v{I7}')
    A(f'v_lshrrev_b32 v{T1}, 3, v{I}')
    A(f'v_mul_u32_u24 v{T1}, {HOFF}, v{T1}')
    A(f'v_add_u32 v{T0}, v{T0}, v{T1}')
    A(f'v_lshl_add_u32 v{V_LB}, v{G}, 4, v{T0}')
    A(f'v_add_u32 v{V_LB}, {L_MEM}, v{V_LB}')
    A(f'v_lshrrev_b32 v{T0}, 1, v{G}')
    A(f'v_lshlrev_b32 v{T0}, 10, v{T0}')
    A(f'v_and_b32 v{T1}, 1, v{G}')
    A(f'v_lshl_add_u32 v{T0}, v{T1}, 9, v{T0}')
    A(f'v_lshl_add_u32 v{V_LKV}, v{I}, 4, v{T0}')
    A(f'v_lshlrev_b32 v{V_DM3A}, 4, v{L}')
    A(f'v_lshlrev_b32 v{T0}, 12, v{L}')
    A(f's_lshl_b32 s{S_t0}, s{S_H}, 7')
    A(f'v_add_u32 v{T0}, s{S_t0}, v{T0}')
    A(f'v_cmp_gt_u32 vcc, 2, v{L}')
    A(f'v_mov_b32 v{T1}, {BIG}')
    A('s_nop 0')
    A(f'v_cndmask_b32 v{V_PRG}, v{T1}, v{T0}, vcc')
    A(f's_lshl_b32 s{S_t0}, s{S_H}, 2')
    A(f's_add_u32 s{S_t0}, s{S_t0}, s{S_C}')
    A(f's_lshl_b32 s{S_t0}, s{S_t0}, 7')
    A(f'v_mov_b32 v{T0}, s{S_t0}')
    A(f'v_cmp_eq_u32 vcc, 192, v0')
    A('s_nop 1')
    A(f'v_cndmask_b32 v{V_CPF}, v{T1}, v{T0}, vcc')
    for k in range(4): A(f'v_mov_b32 v{V_NEG+k}, -1')
    A(f'v_mov_b32 v{V_SEL}, 0')
    A(f'v_mov_b32 v{V_SEL+1}, 0')
    for m, (reg, val) in enumerate(((0, 0x3F80), (0, 0x3F800000), (1, 0x3F80), (1, 0x3F800000))):
        A(f'v_cmp_eq_u32 vcc, {m}, v{I}')
        A(f'v_mov_b32 v{T0}, {hex(val)}')
        A('s_nop 0')
        A(f'v_cndmask_b32 v{V_SEL+reg}, v{V_SEL+reg}, v{T0}, vcc')
    A(f'v_mov_b32 v{V_SEL+2}, v{V_SEL}')
    A(f'v_mov_b32 v{V_SEL+3}, v{V_SEL+1}')
    for tt in range(3):
        A(f'v_mov_b32 v{V_VOM+4*tt+2}, 0')
        A(f'v_mov_b32 v{V_VOM+4*tt+3}, 0')
    A(f'v_mov_b32 v{V_PM+2}, 0')
    A(f'v_mov_b32 v{V_PM+3}, 0')
    A(f'v_mov_b32 v{T0}, 0x3f803f80')
    A(f'v_mov_b32 v{T1}, 0x3f003f00')
    for r in range(4):
        A(f'v_accvgpr_write_b32 a{A_ONE+r}, v{T0}')
        A(f'v_accvgpr_write_b32 a{A_HALF+r}, v{T1}')
    A.c('initial poison (both parities)')
    A(f'v_mov_b32 v{V_CPV}, 0')
    A(f's_mov_b32 s{S_t0}, {C_CPROG}')
    A(f'buffer_store_dword v{V_CPV}, v{V_CPF}, {WSR}, s{S_t0} offen sc1')
    for sl in range(4):
        A(f's_mov_b32 s{S_t0}, {QV_SLOT(sl)[0]}')
        A(f'buffer_store_dwordx2 {vr(V_NEG,2)}, v{V_QKST}, {WSR}, s{S_t0} offen sc1')
        A(f'buffer_store_dwordx2 {vr(V_NEG,2)}, v{V_VST}, {WSR}, s{S_t0} offen sc1')
        A(f's_mov_b32 s{S_t0}, {P_SLOT(sl)[0]}')
        A(f'buffer_store_dwordx4 {vr(V_NEG,4)}, v{V_P4}, {WSR}, s{S_t0} offen sc1')
        A(f'buffer_store_dwordx2 {vr(V_NEG,2)}, v{V_P2}, {WSR}, s{S_t0} offen sc1')
        A(f's_mov_b32 s{S_t0}, {M_SLOT(sl)[0]}')
        A(f'buffer_store_dwordx2 {vr(V_NEG,2)}, v{V_MS}, {WSR}, s{S_t0} offen sc1')
        for par in range(2):
            A(f's_mov_b32 s{S_t0}, {X_SLOT(sl)[0] + par*8192}')
            A(f'buffer_store_dwordx4 {vr(V_NEG,4)}, v{V_XS}, {WSR}, s{S_t0} offen sc1')
        if sl == 2: A('s_waitcnt vmcnt(30)')
    tl(A, 9)
    A('s_waitcnt vmcnt(%d)' % (7 if TL_ON[0] else 6))
    tl(A, 10)
    verdict_issue(A, 'c')
    A('s_waitcnt vmcnt(0)')
    tl(A, 11)
    A('s_barrier')
    A(f's_cmp_lg_u32 s{S_W}, 0')
    A('s_cbranch_scc1 L_c_arrived')
    verdict_eval(A, 'c')
    A('s_cmp_lg_u32 s79, 0')
    A('s_cbranch_scc1 L_c_arrived')
    arrive(A)
    A('L_c_arrived:')
    tl(A, 1)
    A.c('weights tr-read')
    R_, CQ = V_T+6, V_T+7
    A(f'v_bfe_u32 v{R_}, v{L}, 2, 2')
    A(f'v_and_b32 v{CQ}, 3, v{L}')
    A(f'v_lshl_add_u32 v{T0}, v{G}, 3, v{R_}')
    A(f'v_lshlrev_b32 v{T0}, 6, v{T0}')
    A(f'v_lshl_add_u32 v{T0}, v{CQ}, 3, v{T0}')
    A(f's_and_b32 s{S_t0}, s{S_W}, 1')
    A(f's_lshl_b32 s{S_t0}, s{S_t0}, 5')
    A(f'v_add_u32 v{T0}, s{S_t0}, v{T0}')
    A(f's_lshr_b32 s{S_t1}, s{S_W}, 1')
    A(f's_mul_i32 s{S_t2}, s{S_t1}, 40960')
    A(f'v_add_u32 v{T1}, s{S_t2}, v{T0}')
    for t in range(20):
        for hf in range(2):
            A(f'ds_read_b64_tr_b16 {ar(A_QK+4*t+2*hf,2)}, v{T1} offset:{t*2048+hf*256}')
        if t % 4 == 3: A('s_waitcnt lgkmcnt(0)')
    A(f's_mul_i32 s{S_t3}, s{S_t1}, {10*2048}')
    A(f's_add_u32 s{S_t3}, s{S_t3}, 81920')
    A(f'v_add_u32 v{T1}, s{S_t3}, v{T0}')
    for t in range(10):
        for hf in range(2):
            A(f'ds_read_b64_tr_b16 {ar(A_V+4*t+2*hf,2)}, v{T1} offset:{t*2048+hf*256}')
        if t % 4 == 3: A('s_waitcnt lgkmcnt(0)')
    A('s_waitcnt lgkmcnt(0)')
    A(f'v_lshl_add_u32 v{T0}, v{G}, 3, v{R_}')
    A(f'v_mul_u32_u24 v{T0}, 320, v{T0}')
    A(f'v_add_u32 v{T0}, 122880, v{T0}')
    A(f's_lshl_b32 s{S_t0}, s{S_W}, 6')
    A(f'v_lshl_add_u32 v{T1}, v{CQ}, 4, v{T0}')
    A(f'v_add_u32 v{T1}, s{S_t0}, v{T1}')
    A(f's_and_b32 s{S_t0}, s{S_W}, 1')
    A(f's_lshl_b32 s{S_t0}, s{S_t0}, 5')
    A(f's_add_u32 s{S_t0}, s{S_t0}, 256')
    A(f'v_lshl_add_u32 v{T2}, v{CQ}, 3, v{T0}')
    A(f'v_add_u32 v{T2}, s{S_t0}, v{T2}')
    for tt in range(3):
        for s4 in range(4):
            for hf in range(2):
                if tt < 2:
                    A(f'ds_read_b64_tr_b16 {ar(A_O+16*tt+4*s4+2*hf,2)}, v{T1} offset:{(32*s4+4*hf)*320 + 8*tt}')
                else:
                    A(f'ds_read_b64_tr_b16 {ar(A_O+16*tt+4*s4+2*hf,2)}, v{T2} offset:{(32*s4+4*hf)*320}')
        A('s_waitcnt lgkmcnt(0)')
    A('s_barrier')
    tl(A, 12)
    arrive_finish(A, 'c')
    verdict_bcast(A, 'c')
    A.c('prologue kv + mem0')
    A(f's_mov_b32 s{S_STEP}, 0')
    A(f's_load_dwordx2 s[4:5], s[0:1], 8')
    A('s_waitcnt lgkmcnt(0)')
    setsrd(A, 4, 10240)
    for k in range(3):
        A(f'v_add_u32 v{T0}, {64*k}, v{L}')
        if k == 2:
            A(f'v_cmp_le_u32 vcc, 160, v{T0}')
            A(f'v_subrev_u32 v{T1}, 32, v{T0}')
            A('s_nop 0')
            A(f'v_cndmask_b32 v{T0}, v{T0}, v{T1}, vcc')
        A(f'v_cmp_le_u32 vcc, 80, v{T0}')
        A(f'v_subrev_u32 v{T1}, 80, v{T0}')
        A('s_nop 0')
        A(f'v_cndmask_b32 v{T0}, v{T0}, v{T1}, vcc')
        A(f'v_cndmask_b32 v{T1}, 0, 1, vcc')
        A(f's_lshl_b32 s{S_t0}, s{S_W}, 1')
        A(f'v_add_u32 v{T1}, s{S_t0}, v{T1}')
        A(f'v_lshlrev_b32 v{T0}, 4, v{T0}')
        A(f'v_mul_u32_u24 v{T2}, 1280, v{T1}')
        A(f'v_add_u32 v{T2}, v{T2}, v{T0}')
        A(f'buffer_load_dwordx4 {vr(V_B+4*k,4)}, v{T2}, s[{S_T}:{S_T+3}], 0 offen')
        A(f'v_add_u32 v{V_B+16}, {HOFF-640}, v{T0}')
        A(f'v_cmp_le_u32 vcc, 640, v{T0}')
        A(f'v_mul_u32_u24 v{T1}, {MEMSTRIDE}, v{T1}')
        A('s_nop 0')
        A(f'v_cndmask_b32 v{T0}, v{T0}, v{V_B+16}, vcc')
        A(f'v_add_u32 v{V_B+20+k}, v{T1}, v{T0}')
        A(f'v_add_u32 v{V_B+20+k}, {L_MEM}, v{V_B+20+k}')
    A('s_waitcnt vmcnt(0)')
    for k in range(3):
        A(f'ds_write_b128 v{V_B+20+k}, {vr(V_B+4*k,4)}')
    A('s_waitcnt lgkmcnt(0)')
    A(f's_cmp_lg_u32 s{S_W}, 0')
    A('s_cbranch_scc1 L_c_census_done')
    A('L_c_census:')
    A(f'v_mov_b32 v{T0}, {GO}')
    A(f'global_load_dword v{T1}, v{T0}, s[{S_DBG}:{S_DBG+1}] sc1')
    A('s_waitcnt vmcnt(0)')
    A(f'v_readfirstlane_b32 s{S_t0}, v{T1}')
    A(f's_cmp_lg_u32 s{S_t0}, 0')
    A('s_cbranch_scc1 L_c_census_done')
    A('s_sleep 2')
    retry(A, 'L_c_census')
    A('L_c_census_done:')
    A('s_barrier')
    tl(A, 2)
    A(f'v_mov_b32 v{T0}, 64')
    A(f'global_load_dword v{V_B}, v{T0}, s[{S_DBG}:{S_DBG+1}] sc1')
    A('s_waitcnt vmcnt(0)')
    A(f'v_readfirstlane_b32 s{S_PAR}, v{V_B}')
    A(f's_and_b32 s{S_PAR}, s{S_PAR}, 1')
    if 'xfar' in OPT: A(f's_xor_b32 s{S_PAR}, s{S_PAR}, 1')
    A(f's_lshl_b32 s{S_PAR}, s{S_PAR}, 13')
    for nm, base, fn in (('Q', S_QV, QV_SLOT), ('P', S_PR, P_SLOT), ('M', S_MR, M_SLOT), ('X', S_XR, X_SLOT)):
        for k in range(4):
            addr, pg = fn(k)
            if nm == 'X': A(f's_add_u32 s{base+k}, s{S_PAR}, {addr}')
            else: A(f's_mov_b32 s{base+k}, {addr}')
    if 'noflag' not in OPT:
        A(f's_mov_b32 s{S_t0}, {C_PROG1}')
        A('L_c_w01:')
        A(f'buffer_load_dword v{T1}, v{V_PRG}, {WSR}, s{S_t0} offen sc1')
        A('s_waitcnt vmcnt(0)')
        A(f'v_cmp_gt_u32 vcc, 2, v{T1}')
        A('s_nop 3')
        A('s_and_b64 vcc, vcc, 3')
        A('s_cbranch_vccz L_c_w01_ok')
        A('s_sleep 2')
        retry(A, 'L_c_w01')
        A('L_c_w01_ok:')
        tl(A, 13)
    A(f's_lshl_b32 s{S_t3}, s{S_H}, 13')
    A(f's_lshl_b32 s{S_t1}, s{S_W}, 11')
    for seg in range(2):
        for mat in range(2):
            for k in range(2):
                A(f's_add_u32 m0, s{S_t1}, {L_KV + seg*16384 + mat*8192 + k*1024}')
                A(f's_add_u32 s{S_t2}, s{S_t1}, s{S_t3}')
                A(f's_add_u32 s{S_t2}, s{S_t2}, {(WS_KX, WS_VX)[mat] + seg*32*8192 + k*1024}')
                A(f'buffer_load_dwordx4 v{V_DM3A}, {WSR}, s{S_t2} offen sc1 lds')
    A('s_waitcnt vmcnt(0)')
    A('s_barrier')
    vox_reads(A, 0)
    vox_compute(A)
    A(f's_mov_b32 s{S_CPO}, {C_CPROG}')
    A(f's_mov_b32 s{S_KM}, {WS_KM}')
    A(f's_mov_b32 s{S_VM}, {WS_VM}')
    A(f's_lshl_b32 s{S_SEG2}, s{S_H}, 13')
    A(f's_add_u32 s{S_SEG2}, s{S_SEG2}, {2*32*8192}')

def ablate(A, start, kinds):
    keep = []
    for l in A.lines[start:]:
        t = l.strip()
        if any(t.startswith(k) for k in kinds): continue
        keep.append(l)
    A.lines[start:] = keep

DEFERRED = []
def flush_deferred():
    while DEFERRED: DEFERRED.pop(0)()

def gen_step(A, P, u, safe=False):
    cur, n1, p2, n3 = u, (u+1) & 3, (u+2) & 3, (u+3) & 3
    QC, QP = S_QV+cur, S_QV+p2
    PC, PP = S_PR+cur, S_PR+p2
    MC, MW, MP = S_MR+cur, S_MR+n1, S_MR+n3
    XC, XPn = S_XR+cur, S_XR+p2
    sf = f'_{u}' if not safe else f'_s{u}'
    SC = ' sc1' if safe else ''
    pre = 's' if safe else ''
    XLD = {0: 'sc1', 1: 'sc0 sc1', 2: 'sc1 nt', 3: 'nt'}[optval('xld', 0)]
    XST = {0: 'sc1', 1: 'sc0 sc1', 2: 'sc1 nt'}[optval('xst', 0)]
    def pipe_poll(name, nsets, nloads, issue, regs, pre, ok, gap, chk=None):
        lab = f'L_c_{name}{sf}'
        for k in range(nsets):
            issue(k)
            if k < nsets-1: nops(A, gap)
        if 'inlinepoll' in OPT:
            A(f'{lab}_loop:')
            for k in range(nsets):
                A(f's_waitcnt vmcnt({nloads*(nsets-1)})')
                pre(k)
                (chk or check)(A, regs(k))
                A(f's_cbranch_vccz {lab}_ok{k}')
                issue(k)
            retry(A, f'{lab}_loop', name)
            for k in reversed(range(nsets)):
                A(f'{lab}_ok{k}:')
                if 'cntset' in OPT:
                    idx = {'A': 0, 'R': 3, 'RS': 6, 'X': 9}[name] + k
                    A(f's_add_u32 s{S_PROF+idx}, s{S_PROF+idx}, 1')
                ok(k)
                if k > 0: A(f's_branch {lab}_done')
            A(f'{lab}_done:')
            return
        A(f's_waitcnt vmcnt({nloads*(nsets-1)})')
        pre(0)
        (chk or check)(A, regs(0))
        A(f's_cbranch_vccnz {lab}_retry')
        if 'cntset' in OPT:
            idx = {'A': 0, 'R': 3, 'RS': 6, 'X': 9}[name]
            A(f's_add_u32 s{S_PROF+idx}, s{S_PROF+idx}, 1')
        ok(0)
        A(f'{lab}_done:')
        def tail():
            A(f'{lab}_retry:')
            issue(0)
            A(f'{lab}_loop:')
            order = list(range(1, nsets)) + [0]
            for k in order:
                A(f's_waitcnt vmcnt({nloads*(nsets-1)})')
                pre(k)
                (chk or check)(A, regs(k))
                A(f's_cbranch_vccz {lab}_ok{k}')
                issue(k)
            retry(A, f'{lab}_loop', name)
            for k in range(nsets):
                A(f'{lab}_ok{k}:')
                ok(k)
                A(f's_branch {lab}_done')
        DEFERRED.append(tail)
    A(f'L_c_loop{sf}:')
    P.stamp(A, 11, True)
    nops(A, optval('adelay', 0))
    NAG = 4 if 'ag3' in OPT else 3
    ASET = [V_VV, V_R, V_XD]
    def a_issue(k):
        for q in range(NAG):
            A(f'buffer_load_dwordx4 {vr(ASET[k]+4*q,4)}, v{V_M0+q}, {WSR}, s{MC} offen sc1')
    def a_pre(k):
        for q in range(NAG):
            A(f'ds_write_b128 v{V_LM0+q}, {vr(ASET[k]+4*q,4)}')
    if 'ag3' in OPT:
        A(f's_cmp_eq_u32 s{S_W}, 3')
        A(f's_cbranch_scc1 L_c_A{sf}_done')
    pipe_poll('A', optval('nA', 1), NAG, a_issue, lambda k: range(ASET[k], ASET[k]+4*NAG), a_pre, lambda k: None, optval('gapA', 40))
    P.stamp(A, 8, True)
    A('s_waitcnt lgkmcnt(0)')
    A('s_barrier')
    P.stamp(A, 0)
    if u == 0: A(f'L_c_afterA0{pre}:')
    A.c('[A1] qk mfma')
    mark = len(A.lines)
    for t in range(10):
        A(f'ds_read_b128 {vr(V_B+4*t,4)}, v{V_LB} offset:{64*t}')
    for t in range(10):
        A(f's_waitcnt lgkmcnt({9-t})')
        mfma(A, vr(V_ACC,4), ar(A_QK+4*t,4), vr(V_B+4*t,4), '0' if t == 0 else vr(V_ACC,4))
        mfma(A, vr(V_ACC+4,4), ar(A_QK+4*(t+10),4), vr(V_B+4*t,4), '0' if t == 0 else vr(V_ACC+4,4))
    NV0 = 0 if 'qkfast' in OPT else 2
    for t in range(NV0):
        mfma(A, vr(V_ACV,4), ar(A_V+4*t,4), vr(V_B+4*t,4), '0' if t == 0 else vr(V_ACV,4))
    A(f's_nop {7-NV0}')
    for r in range(4):
        A(f'v_add_f32_dpp v{V_ACC+r}, v{V_ACC+4+r}, v{V_ACC+r} row_ror:8 row_mask:0xf bank_mask:0xf')
    A(f'v_cvt_pk_bf16_f32 v{V_O}, v{V_ACC}, v{V_ACC+1}')
    A(f'v_cvt_pk_bf16_f32 v{V_O+1}, v{V_ACC+2}, v{V_ACC+3}')
    A(f'buffer_store_dwordx2 {vr(V_O,2)}, v{V_QKST}, {WSR}, s{QC} offen{SC}')
    P.stamp(A, 1)
    for t in range(NV0, 10):
        mfma(A, vr(V_ACV,4), ar(A_V+4*t,4), vr(V_B+4*t,4), '0' if t == 0 else vr(V_ACV,4))
    def kx_reads():
        for kt in range(2):
            for s4 in range(4):
                A(f'ds_read_b128 {vr(V_KX+16*kt+4*s4,4)}, v{V_LKV} offset:{L_KV + cur*16384 + 2048*s4 + 256*kt}')
    RE = [V_B+12, V_B+28]
    if 'rearly' in OPT:
        nops(A, optval('re0', 0))
        A(f'buffer_load_dwordx4 {vr(RE[0],4)}, v{V_RLD}, {WSR}, s{QC} offen sc1')
        kx_reads()
    else:
        kx_reads()
    A(f'v_cvt_pk_bf16_f32 v{V_O+2}, v{V_ACV}, v{V_ACV+1}')
    A(f'v_cvt_pk_bf16_f32 v{V_O+3}, v{V_ACV+2}, v{V_ACV+3}')
    if 'rearly' in OPT:
        A(f'buffer_load_dwordx4 {vr(RE[1],4)}, v{V_RLD}, {WSR}, s{QC} offen sc1')
    A(f'buffer_store_dwordx2 {vr(V_O+2,2)}, v{V_VST}, {WSR}, s{QC} offen{SC}')
    if 'rearly' in OPT:
        for k, cnt in ((0, 2), (1, 1)):
            A(f's_waitcnt vmcnt({cnt})')
            A(f'ds_write_b128 v{V_LRW}, {vr(RE[k],4)}')
            check(A, range(RE[k], RE[k]+4))
            A(f's_cbranch_vccz L_c_R{sf}_done')
    if 'skipA1' in OPT: ablate(A, mark, ['v_mfma', 'v_add_f32_dpp'])
    P.stamp(A, 2)
    A.c('[B0] R piece -> LDS')
    nops(A, optval('rdelay', 0))
    if 'skipR' in OPT: A(f's_branch L_c_R{sf}_done')
    RSET = [V_B, V_B+4, V_B+8]
    def vloads():
        for s4 in range(4):
            A(f'buffer_load_dwordx4 {vr(V_VV+4*s4,4)}, v{V_VLD}, {WSR}, s{QC} offen offset:{512*s4} sc1')
    rld = lambda k: A(f'buffer_load_dwordx4 {vr(RSET[k],4)}, v{V_RLD}, {WSR}, s{QC} offen sc1')
    if 'vearly' in OPT:
        rld(0); nops(A, optval('gapR', 20)); rld(1); nops(A, optval('gapV', 16)); vloads()
        for k, cnt in ((0, 5), (1, 4)):
            A(f's_waitcnt vmcnt({cnt})')
            A(f'ds_write_b128 v{V_LRW}, {vr(RSET[k],4)}')
            check(A, range(RSET[k], RSET[k]+4))
            A(f's_cbranch_vccz L_c_Rv{sf}')
    pipe_poll('R', optval('nR', 1), 1, rld,
              lambda k: range(RSET[k], RSET[k]+4),
              lambda k: A(f'ds_write_b128 v{V_LRW}, {vr(RSET[k],4)}'),
              lambda k: None, optval('gapR', 20))
    nops(A, optval('vdelay', 0))
    if 'skipV' not in OPT and 'vearly' not in OPT and 'vafter' not in OPT: vloads()
    A(f'L_c_Rv{sf}:')
    A('s_waitcnt lgkmcnt(0)')
    A('s_barrier')
    P.stamp(A, 3)
    if 'vafter' in OPT: vloads()
    OPT1 = 'noopt1' not in OPT
    V_KD = V_B+20
    late = [f'v_mov_b32 v{V_CPV}, s{S_STEP}',
            f'buffer_store_dword v{V_CPV}, v{V_CPF}, {WSR}, s{S_CPO} offen sc1',
            f'buffer_store_dwordx2 {vr(V_NEG,2)}, v{V_QKST}, {WSR}, s{QP} offen{SC}',
            f'buffer_store_dwordx2 {vr(V_NEG,2)}, v{V_VST}, {WSR}, s{QP} offen{SC}',
            f'buffer_store_dwordx4 {vr(V_NEG,4)}, v{V_P4}, {WSR}, s{PP} offen{SC}',
            f'buffer_store_dwordx2 {vr(V_NEG,2)}, v{V_P2}, {WSR}, s{PP} offen{SC}',
            f'buffer_store_dwordx2 {vr(V_NEG,2)}, v{V_MS}, {WSR}, s{MP} offen{SC}']
    NLATE = 6
    if 'xplate' in OPT:
        late.append(f'buffer_store_dwordx4 {vr(V_NEG,4)}, v{V_XS}, {WSR}, s{XPn} offen sc1')
        NLATE += 1
    for s4 in range(4):
        A(f'ds_read_b128 {vr(V_R+4*s4,4)}, v{V_LRR} offset:{512*s4}')
        if OPT1: A(f'ds_read_b128 {vr(V_KD+4*s4,4)}, v{V_LRK} offset:{512*s4}')
    if not OPT1:
        for l in late: A(l)
        late = []
    A.c('[B1] scores')
    mark = len(A.lines)
    for s4 in range(4):
        c0 = '0' if s4 == 0 else None
        A(f's_waitcnt lgkmcnt({(6-2*s4) if OPT1 else (3-s4)})')
        mfma(A, vr(V_S,4), vr(V_KX+4*s4,4), vr(V_R+4*s4,4), c0 or vr(V_S,4))
        if late: A(late.pop(0))
        mfma(A, vr(V_S+4,4), vr(V_KX+16+4*s4,4), vr(V_R+4*s4,4), c0 or vr(V_S+4,4))
        if late: A(late.pop(0))
        mfma(A, vr(V_S+8,4), vr((V_KD if OPT1 else V_R)+4*s4,4), vr(V_R+4*s4,4), c0 or vr(V_S+8,4))
    for l in late: A(l)
    if 'skipB' in OPT: ablate(A, mark, ['v_mfma'])
    def vcheck():
        A(f's_waitcnt vmcnt({NLATE})')
        A.c('[B2] V check')
        if 'skipV' in OPT: A(f's_branch L_c_okV{sf}')
        check(A, range(V_VV, V_VV+16))
        A(f's_cbranch_vccnz L_c_pollV{sf}')
        A(f'L_c_okV{sf}:')
        def tail():
            A(f'L_c_pollV{sf}:')
            if 'cntset' in OPT: A(f's_add_u32 s{S_PROF+12}, s{S_PROF+12}, 1')
            for s4 in range(4):
                A(f'buffer_load_dwordx4 {vr(V_VV+4*s4,4)}, v{V_VLD}, {WSR}, s{QC} offen offset:{512*s4} sc1')
            A('s_waitcnt vmcnt(0)')
            check(A, range(V_VV, V_VV+16))
            A(f's_cbranch_vccz L_c_okV{sf}')
            retry(A, f'L_c_pollV{sf}', 'V')
        DEFERRED.append(tail)
    VLATE = 'vlate' in OPT
    if not VLATE: vcheck()
    P.stamp(A, 10, True)
    if u == 3:
        A(f's_cmp_eq_u32 s{S_STEP}, {NSEG-1}')
        A(f's_cbranch_scc1 L_c_final')
    if VLATE: A('s_nop 5')
    A.c('[B4] softmax (VOm mfma interleaved)')
    mark = len(A.lines)
    SM = V_S+8; MX = V_T+4
    vom = [(s4, tt) for s4 in range(4) for tt in range(3)]
    vom_on = [not VLATE]
    def vom_next():
        if not vom or not vom_on[0]: return
        s4, tt = vom.pop(0)
        mfma(A, vr(V_F+4*tt,4), vr(V_VV+4*s4,4), ar(A_O+16*tt+4*s4,4), '0' if s4 == 0 else vr(V_F+4*tt,4))
    if not OPT1:
        for r in range(4): A(f'v_mov_b32 v{V_T+r}, v{SM+r}')
    A(f'v_max3_f32 v{MX}, v{V_S}, v{V_S+1}, v{V_S+2}')
    A(f'v_max3_f32 v{MX+1}, v{V_S+3}, v{V_S+4}, v{V_S+5}')
    if not OPT1:
        for r in range(4): A(f'v_permlane32_swap_b32 v{V_T+r}, v{SM+r}')
    vom_next()
    A(f'v_max3_f32 v{MX}, v{MX}, v{V_S+6}, v{V_S+7}')
    A(f'v_max3_f32 v{MX+1}, v{MX+1}, v{SM}, v{SM+1}')
    A(f'v_max3_f32 v{MX}, v{MX}, v{SM+2}, v{SM+3}')
    A(f'v_max_f32 v{MX}, v{MX}, v{MX+1}')
    def allreduce(op, reg, tmp, fill=False):
        for perm in ('v_permlane16_swap_b32', 'v_permlane32_swap_b32'):
            A(f'v_mov_b32 v{tmp}, v{reg}')
            if fill and vom_on[0]: vom_next(); A('s_nop 0')
            else: A('s_nop 1')
            A(f'{perm} v{tmp}, v{reg}')
            A(f'{op} v{reg}, v{reg}, v{tmp}')
    allreduce('v_max_f32', MX, MX+1, True)
    A(f'v_mul_f32 v{MX}, s{S_SCL}, v{MX}')
    if VLATE:
        vcheck(); vom_on[0] = True
    vom_next()
    for r in range(0, 12, 2):
        A(f'v_pk_fma_f32 {vr(V_S+r,2)}, {vr(V_S+r,2)}, s[{S_SCL}:{S_SCL+1}], {vr(MX,2)} op_sel_hi:[1,1,0] neg_lo:[0,0,1] neg_hi:[0,0,1]')
        if r % 4 == 2 or VLATE: vom_next()
    for r in range(12):
        A(f'v_exp_f32 v{V_S+r}, v{V_S+r}')
        if r % 2 == 1 or (VLATE and r < 2): vom_next()
    while vom: vom_next()
    A(f'v_cvt_pk_bf16_f32 v{V_PX}, v{V_S}, v{V_S+1}')
    A(f'v_cvt_pk_bf16_f32 v{V_PX+1}, v{V_S+2}, v{V_S+3}')
    A(f'v_cvt_pk_bf16_f32 v{V_PX+2}, v{V_S+4}, v{V_S+5}')
    A(f'v_cvt_pk_bf16_f32 v{V_PX+3}, v{V_S+6}, v{V_S+7}')
    A(f'v_cvt_pk_bf16_f32 v{V_PM}, v{SM}, v{SM+1}')
    A(f'v_cvt_pk_bf16_f32 v{V_PM+1}, v{SM+2}, v{SM+3}')
    SU = V_T+6; X2 = V_T+7
    FX = [V_ACC, V_ACC+4, V_ACV]
    if OPT1:
        mfma(A, vr(V_T,4), ar(A_ONE,4), vr(V_PX,4), '0')
    for tt in range(3):
        mfma(A, vr(FX[tt],4), vr(V_VOX+4*tt,4), vr(V_PX,4), '0')
    for tt in range(3):
        A(f'v_cvt_pk_bf16_f32 v{V_VOM+4*tt}, v{V_F+4*tt}, v{V_F+4*tt+1}')
        A(f'v_cvt_pk_bf16_f32 v{V_VOM+4*tt+1}, v{V_F+4*tt+2}, v{V_F+4*tt+3}')
    if OPT1:
        mfma(A, vr(V_T,4), ar(A_HALF,4), vr(V_PM,4), vr(V_T,4))
        for tt in range(3):
            mfma(A, vr(FX[tt],4), vr(V_VOM+4*tt,4), vr(V_PM,4), vr(FX[tt],4))
        A('s_nop 4')
        A(f'v_rcp_f32 v{SU}, v{V_T}')
        A('s_nop 1')
    else:
        A(f'v_pk_add_f32 {vr(V_T,2)}, {vr(SM,2)}, {vr(SM+2,2)}')
        A(f'v_pk_add_f32 {vr(V_T+2,2)}, {vr(V_S,2)}, {vr(V_S+2,2)}')
        for tt in range(3):
            mfma(A, vr(FX[tt],4), vr(V_VOM+4*tt,4), vr(V_PM,4), vr(FX[tt],4))
        A(f'v_pk_add_f32 {vr(V_T+4,2)}, {vr(V_S+4,2)}, {vr(V_S+6,2)}')
        A(f'v_pk_add_f32 {vr(V_T+2,2)}, {vr(V_T+2,2)}, {vr(V_T+4,2)}')
        A(f'v_pk_fma_f32 {vr(V_T,2)}, {vr(V_T,2)}, 0.5, {vr(V_T+2,2)} op_sel_hi:[1,0,1]')
        A(f'v_add_f32 v{SU}, v{V_T}, v{V_T+1}')
        allreduce('v_add_f32', SU, X2)
        A(f'v_rcp_f32 v{SU}, v{SU}')
        A('s_nop 0')
    PO = [V_PO, V_PO+2, V_PO2]
    for tt in range(3):
        for r in (0, 2):
            A(f'v_pk_mul_f32 {vr(FX[tt]+r,2)}, {vr(FX[tt]+r,2)}, {vr(SU,2)} op_sel_hi:[1,0]')
        A(f'v_cvt_pk_bf16_f32 v{PO[tt]}, v{FX[tt]}, v{FX[tt]+1}')
        A(f'v_cvt_pk_bf16_f32 v{PO[tt]+1}, v{FX[tt]+2}, v{FX[tt]+3}')
        if tt == 1: A(f'buffer_store_dwordx4 {vr(V_PO,4)}, v{V_P4}, {WSR}, s{PC} offen{SC}')
    A(f'buffer_store_dwordx2 {vr(V_PO2,2)}, v{V_P2}, {WSR}, s{PC} offen{SC}')
    if 'skipB' in OPT:
        ablate(A, mark, ['v_', 's_nop'])
        for r in (V_PO, V_PO+1, V_PO+2, V_PO+3, V_PO2, V_PO2+1): A.lines.insert(mark, f'    v_mov_b32 v{r}, 0')
    P.stamp(A, 4)
    vox_reads(A, n1)
    A(f's_cmp_eq_u32 s{S_HASITEM}, 0')
    A(f's_cbranch_scc1 L_c_noitem{sf}')
    A.c('[C1] local RS')
    nops(A, optval('rsdelay', 0))
    if 'skipRS' in OPT:
        for r in range(4): A(f'v_mov_b32 v{V_RSD+4+r}, 0')
        A(f's_branch L_c_RS{sf}_done')
    SSET = [V_RSD, V_B+20, V_B+24]
    def rs_issue(k):
        A(f'buffer_load_dwordx2 {vr(SSET[k],2)}, v{V_RS0}, {WSR}, s{PC} offen sc1')
        A(f'buffer_load_dwordx2 {vr(SSET[k]+2,2)}, v{V_RS1}, {WSR}, s{PC} offen sc1')
    pipe_poll('RS', optval('nS', 1), 2, rs_issue, lambda k: range(SSET[k], SSET[k]+4),
              lambda k: mfma(A, vr(V_RSD+4,4), vr(V_SEL,4), vr(SSET[k],4), '0'), lambda k: None, optval('gapS', 20))
    P.stamp(A, 12, True)
    A('s_nop 3')
    if 'xtag' in OPT:
        for r in range(4): A(f'v_and_or_b32 v{V_RSD+4+r}, v{V_RSD+4+r}, -2, v{V_PH}')
    A(f'buffer_store_dwordx4 {vr(V_RSD+4,4)}, v{V_XS}, {WSR}, s{XC} offen {XST}')
    if 'xplate' not in OPT and 'xtag' not in OPT and optval('xp3on', 0) != 1: A(f'buffer_store_dwordx4 {vr(V_NEG,4)}, v{V_XS}, {WSR}, s{XPn} offen sc1')
    P.stamp(A, 5)
    NVX = optval('nvx', 3)
    vox_tiles(A, list(range(NVX)))
    P.stamp(A, 6)
    A.c('[C2] cross')
    nops(A, optval('xdelay', 0))
    if 'skipX' in OPT: A(f's_branch L_c_X{sf}_done')
    XLS = (S_XR+n3) if 'xfake' in OPT else XC
    XSET = [V_XD, V_B+28, V_R]
    OWN = V_RSD+4
    def x_issue(k):
        for q in range(3):
            A(f'buffer_load_dwordx4 {vr(XSET[k]+4*q,4)}, v{V_XL+q}, {WSR}, s{XLS} offen {XLD}')
    def x_ok(k):
        X = XSET[k]
        for r in (0, 2):
            A(f'v_pk_add_f32 {vr(V_T+r,2)}, {vr(X+r,2)}, {vr(X+8+r,2)}')
            A(f'v_pk_add_f32 {vr(OWN+r,2)}, {vr(OWN+r,2)}, {vr(X+4+r,2)}')
    def tagcheck(A, regs):
        r = list(regs)
        A(f'v_bitop3_b32 v{V_T+4}, v{r[0]}, v{r[1]}, v{V_PH} bitop3:0x7e')
        A(f'v_bitop3_b32 v{V_T+5}, v{r[2]}, v{r[3]}, v{V_PH} bitop3:0x7e')
        cur = 0
        for x in r[4:]:
            A(f'v_bitop3_b32 v{V_T+4+cur}, v{V_T+4+cur}, v{x}, v{V_PH} bitop3:0xf6'); cur ^= 1
        A(f'v_or_b32 v{V_T+4}, v{V_T+4}, v{V_T+5}')
        A(f'v_and_b32 v{V_T+4}, 1, v{V_T+4}')
        A(f'v_cmp_ne_u32 vcc, 0, v{V_T+4}')
    pipe_poll('X', optval('nX', 1), 3, x_issue, lambda k: range(XSET[k], XSET[k]+12), lambda k: None, x_ok, optval('gapX', 40), (lambda A_, r_: A_('s_mov_b64 vcc, 0')) if 'xfake' in OPT else (tagcheck if 'xtag' in OPT else None))
    P.stamp(A, 9, True)
    for r in (0, 2):
        A(f'v_pk_add_f32 {vr(OWN+r,2)}, {vr(OWN+r,2)}, {vr(V_T+r,2)}')
    A(f'v_cvt_pk_bf16_f32 v{V_PO2}, v{OWN}, v{OWN+1}')
    A(f'v_cvt_pk_bf16_f32 v{V_PO2+1}, v{OWN+2}, v{OWN+3}')
    A(f'buffer_store_dwordx2 {vr(V_PO2,2)}, v{V_MS}, {WSR}, s{MW} offen{SC}')
    vox_tiles(A, list(range(NVX, 3)), wait=False)
    def noitem_path():
        A(f'L_c_noitem{sf}:')
        A(f's_cmp_lg_u32 s{S_W}, 3')
        A(f's_cbranch_scc1 L_c_w2{sf}')
        A(f's_mov_b32 s{S_t0}, {C_PROG1}')
        A(f'buffer_load_dword v{V_T+4}, v{V_PRG}, {WSR}, s{S_t0} offen sc1')
        def kvdma():
            lab = A.label('L_c_kvskip')
            A(f's_cmp_gt_u32 s{S_STEP}, {NSEG-4}')
            A(f's_cbranch_scc1 {lab}')
            if 'noflag' not in OPT:
                A(f's_add_u32 s{S_t1}, s{S_STEP}, 3')
                A(f'L_c_wk{sf}:')
                A(f'v_cmp_gt_u32 vcc, s{S_t1}, v{V_T+4}')
                A('s_nop 3')
                A('s_and_b64 vcc, vcc, 3')
                A(f's_cbranch_vccz L_c_wk{sf}_ok')
                A(f's_mov_b32 s{S_t0}, {C_PROG1}')
                A(f'buffer_load_dword v{V_T+4}, v{V_PRG}, {WSR}, s{S_t0} offen sc1')
                A('s_waitcnt vmcnt(0)')
                retry(A, f'L_c_wk{sf}')
                A(f'L_c_wk{sf}_ok:')
            if 'nodma' not in OPT:
                for mat, base in ((0, WS_KX), (1, WS_VX)):
                    for uu in range(8):
                        A(f's_mov_b32 m0, {L_KV + p2*16384 + mat*8192 + uu*1024}')
                        A(f's_add_u32 s{S_t2}, s{S_SEG2}, {base + uu*1024}')
                        A(f'buffer_load_dwordx4 v{V_DM3A}, {WSR}, s{S_t2} offen sc1 lds')
            A(f'{lab}:')
        if 'nopub' not in OPT: publish(A, QC)
        else: A('s_waitcnt vmcnt(0)')
        if 'dmamid' in OPT: kvdma()
        if optval('xp3on', 0) == 1 and 'xplate' not in OPT and 'xtag' not in OPT: A(f'buffer_store_dwordx4 {vr(V_NEG,4)}, v{V_XP3}, {WSR}, s{XPn} offen sc1')
        vox_compute(A)
        if 'dmamid' not in OPT: kvdma()
        A(f's_branch L_c_stepend{sf}')
        A(f'L_c_w2{sf}:')
        vox_compute(A)
        A(f's_branch L_c_stepend{sf}')
    DEFERRED.append(noitem_path)
    A(f'L_c_stepend{sf}:')
    P.stamp(A, 7)
    A(f's_add_u32 s{S_KM}, s{S_KM}, 65536')
    A(f's_add_u32 s{S_VM}, s{S_VM}, 131072')
    A(f's_add_u32 s{S_SEG2}, s{S_SEG2}, {32*8192}')
    A(f's_add_u32 s{S_STEP}, s{S_STEP}, 1')
    if u == 3 and 'xtag' in OPT: A(f'v_xor_b32 v{V_PH}, 1, v{V_PH}')
    if 'nobar0' not in OPT: A('s_barrier')
    if u == 3 and TL_ON[0]:
        for k, st in enumerate((4, 8, 12) if 'tlfine' in OPT else (16, 32, 48)):
            lab = A.label('L_tlq')
            A(f's_cmp_lg_u32 s{S_STEP}, {st}')
            A(f's_cbranch_scc1 {lab}')
            tl(A, 6+k)
            A(f'{lab}:')
    if u == 3: A('s_branch L_c_loop_s0' if safe else 's_branch L_c_loop_0')

def publish(A, QC):
    A(f'buffer_load_dwordx4 {vr(V_B,4)}, v{V_KPL}, {WSR}, s{QC} offen sc1')
    A(f'buffer_load_dwordx4 {vr(V_B+4,4)}, v{V_VPL}, {WSR}, s{QC} offen sc1')
    A('s_waitcnt vmcnt(0)')
    A(f'buffer_store_dwordx4 {vr(V_B,4)}, v{V_KPUB}, {WSR}, s{S_KM} offen sc1')
    A(f'buffer_store_dwordx4 {vr(V_B+4,4)}, v{V_VPUB}, {WSR}, s{S_VM} offen sc1')

def gen_chain(A, prof):
    P = Prof(prof)
    if prof and 'trace' not in OPT: PROFCNT.update({'A': 8, 'R': 9, 'V': 10, 'RS': 11, 'X': 12})
    A.c('==== chain role ====')
    gen_prologue(A, P)
    if prof and 'trace' not in OPT:
        for k in range(16): A(f's_mov_b32 s{S_PROF+k}, 0')
        A(f's_memtime s[{S_PT}:{S_PT+1}]')
        A('s_waitcnt lgkmcnt(0)')
        A(f's_mov_b32 s{S_PT+2}, s{S_PT}')
    if 'cntset' in OPT:
        for k in range(16): A(f's_mov_b32 s{S_PROF+k}, 0')
    if 'tot' in OPT:
        A(f's_memrealtime s[{S_PROF}:{S_PROF+1}]')
        A(f's_memtime s[{S_PROF+4}:{S_PROF+5}]')
        A('s_waitcnt lgkmcnt(0)')
    tl(A, 3)
    A(f's_cmp_eq_u32 s{S_MODE}, 1')
    A('s_cbranch_scc1 L_c_afterA0s_far')
    A('s_branch L_c_afterA0')
    A('L_c_afterA0s_far:')
    A('s_branch L_c_afterA0s')
    A('.p2align 6')
    for k in range(optval('shift', 0)): A('s_nop 0')
    for u in range(4): gen_step(A, P, u)
    flush_deferred()
    if 'nosafe' in OPT:
        A('L_c_afterA0s:')
        A('s_branch L_timeout')
    else:
        A('.p2align 6')
        for u in range(4): gen_step(A, P, u, safe=True)
        flush_deferred()
    A('L_c_finals:')
    A('L_c_final:')
    if 'vlate' in OPT:
        A('L_c_fv:')
        for s4 in range(4):
            A(f'buffer_load_dwordx4 {vr(V_VV+4*s4,4)}, v{V_VLD}, {WSR}, s{S_QV+3} offen offset:{512*s4} sc1')
        A('s_waitcnt vmcnt(0)')
        check(A, range(V_VV, V_VV+16))
        A('s_cbranch_vccz L_c_fv_ok')
        retry(A, 'L_c_fv')
        A('L_c_fv_ok:')
    A(f's_cmp_lg_u32 s{S_W}, 3')
    A('s_cbranch_scc1 L_c_end')
    publish(A, S_QV+3)
    A('s_waitcnt vmcnt(0)')
    A(f'v_mov_b32 v{V_CPV}, 64')
    A(f'buffer_store_dword v{V_CPV}, v{V_CPF}, {WSR}, s{S_CPO} offen sc1')
    A('L_c_end:')
    tl(A, 5)
    if 'tot' in OPT:
        A(f's_memrealtime s[{S_PROF+2}:{S_PROF+3}]')
        A(f's_memtime s[{S_PROF+6}:{S_PROF+7}]')
        A('s_waitcnt lgkmcnt(0)')
        A(f's_sub_u32 s{S_PROF}, s{S_PROF+2}, s{S_PROF}')
        A(f's_sub_u32 s{S_PROF+1}, s{S_PROF+6}, s{S_PROF+4}')
        A(f's_mov_b32 s{S_PROF+2}, s{S_PAR}')
    if prof or 'tot' in OPT or 'cntset' in OPT:
        A(f's_lshl_b32 s{S_t0}, s{S_X}, 5')
        A(f's_add_u32 s{S_t0}, s{S_t0}, s{S_J}')
        A(f's_lshl_b32 s{S_t0}, s{S_t0}, 2')
        A(f's_add_u32 s{S_t0}, s{S_t0}, s{S_W}')
        A(f's_lshl_b32 s{S_t0}, s{S_t0}, 6')
        A(f's_add_u32 s{S_t0}, s{S_t0}, {WS_PROF}')
        A(f'v_mov_b32 v{V_T}, 0')
        for k in range(16):
            A(f'v_mov_b32 v{V_T+1}, s{S_PROF+k}')
            A(f'buffer_store_dword v{V_T+1}, v{V_T}, {WSR}, s{S_t0} offen offset:{4*k}')
    A('s_waitcnt vmcnt(0)')
    A('s_endpgm')

def gen_calib(A):
    CB = PG2 + 0x1A0000
    A(f's_lshl_b32 s{S_t0}, s{S_W}, 15')
    A(f's_add_u32 s{S_t0}, s{S_t0}, {CB}')
    A(f's_mov_b32 s{S_t1}, -1')
    A(f's_mov_b32 s{S_t2}, -1')
    A('s_mov_b32 s78, 4')
    A('L_cal_round:')
    A('v_and_b32 v1, 3, v0')
    A('v_lshrrev_b32 v2, 1, v1')
    A('v_lshlrev_b32 v2, 14, v2')
    A('v_and_b32 v1, 1, v1')
    A('v_lshl_add_u32 v1, v1, 13, v2')
    A('v_mov_b32 v2, 0')
    A(f'buffer_store_dword v2, v1, {WSR}, s{S_t0} offen sc1')
    A('s_waitcnt vmcnt(0)')
    for rep in range(2):
        for par, acc in ((0, S_t1), (1, S_t2)):
            A(f'v_mov_b32 v1, {rep*16384 + par*8192}')
            A(f's_memtime s[{S_PT}:{S_PT+1}]')
            A('s_waitcnt lgkmcnt(0)')
            A(f'buffer_load_dword v2, v1, {WSR}, s{S_t0} offen sc1')
            A('s_waitcnt vmcnt(0)')
            A(f's_memtime s[{S_PT+2}:{S_PT+3}]')
            A('s_waitcnt lgkmcnt(0)')
            A(f's_sub_u32 s{S_PT}, s{S_PT+2}, s{S_PT}')
            A(f's_min_u32 s{acc}, s{acc}, s{S_PT}')
    A(f's_lshl_b32 s79, s{S_W}, 3')
    A('v_mov_b32 v1, s79')
    A(f'v_mov_b32 v2, s{S_t1}')
    A(f'v_mov_b32 v3, s{S_t2}')
    A('ds_write_b64 v1, v[2:3]')
    A('s_waitcnt lgkmcnt(0)')
    A('s_barrier')
    A('v_mov_b32 v1, 0')
    A('ds_read_b128 v[4:7], v1')
    A('ds_read_b128 v[8:11], v1 offset:16')
    A('s_waitcnt lgkmcnt(0)')
    A('s_barrier')
    A('v_min_u32 v4, v4, v6')
    A('v_min_u32 v8, v8, v10')
    A('v_min_u32 v5, v5, v7')
    A('v_min_u32 v9, v9, v11')
    A('v_min_u32 v4, v4, v8')
    A('v_min_u32 v5, v5, v9')
    A('s_nop 0')
    A(f'v_readfirstlane_b32 s{S_t1}, v4')
    A(f'v_readfirstlane_b32 s{S_t2}, v5')
    A(f's_min_u32 s79, s{S_t1}, s{S_t2}')
    A(f's_max_u32 s80, s{S_t1}, s{S_t2}')
    A('s_sub_u32 s80, s80, s79')
    A('s_cmp_ge_u32 s80, 100')
    A('s_cselect_b32 s80, 1, 0')
    A('s_cmp_lt_u32 s79, 560')
    A('s_cselect_b32 s80, s80, 0')
    A('s_cmp_eq_u32 s80, 1')
    A('s_cbranch_scc1 L_cal_done')
    A('s_sub_u32 s78, s78, 1')
    A('s_cmp_lg_u32 s78, 0')
    A('s_cbranch_scc1 L_cal_round')
    A('L_cal_done:')
    A(f's_cmp_lt_u32 s{S_t1}, s{S_t2}')
    A('s_cselect_b32 s79, 1, 0')
    A('s_or_b32 s79, s79, 0x100')
    A('v_mov_b32 v2, s79')
    A('v_mov_b32 v1, 64')
    A(f'global_store_dword v1, v2, s[{S_DBG}:{S_DBG+1}] sc1')
    A('v_mov_b32 v1, 80')
    A(f'global_store_dwordx2 v1, v[4:5], s[{S_DBG}:{S_DBG+1}] sc1')
    A('s_waitcnt vmcnt(0)')

def gen_common_entry(A, nwg=256):
    A(f's_cmp_ge_u32 s2, {nwg}')
    A('s_cbranch_scc1 L_end')
    A(f's_load_dwordx2 s[{S_DBG}:{S_DBG+1}], s[0:1], 96')
    A(f's_load_dwordx2 s[4:5], s[0:1], 104')
    A(f's_getreg_b32 s{S_X}, hwreg(HW_REG_XCC_ID, 0, 4)')
    A(f'v_lshrrev_b32 v1, 6, v0')
    A('s_nop 0')
    A(f'v_readfirstlane_b32 s{S_W}, v1')
    A('s_waitcnt lgkmcnt(0)')
    A(f's_mov_b32 s{S_WS}, s4')
    A(f's_and_b32 s{S_WS+1}, s5, 0xffff')
    A(f's_mov_b32 s{S_WS+2}, 0x10000000')
    A(f's_mov_b32 s{S_WS+3}, 0x20000')
    A(f's_cmp_lg_u32 s{S_W}, 0')
    A('s_cbranch_scc1 L_noticket')
    if 'tik2' in OPT:
        A(f's_and_b32 s{S_t0}, s{S_X}, 3')
        A(f's_lshl_b32 s{S_t0}, s{S_t0}, 2')
        A(f's_lshr_b32 s{S_t1}, s{S_X}, 2')
        A(f's_lshl_b32 s{S_t1}, s{S_t1}, 7')
        A(f's_add_u32 s{S_t0}, s{S_t0}, s{S_t1}')
    else:
        A(f's_lshl_b32 s{S_t0}, s{S_X}, 2')
    A(f'v_mov_b32 v1, s{S_t0}')
    A('v_mov_b32 v2, 1')
    A('s_mov_b64 exec, 1')
    A(f'global_atomic_add v3, v1, v2, s[{S_DBG}:{S_DBG+1}] sc0')
    A('s_waitcnt vmcnt(0)')
    A('v_mov_b32 v1, 0')
    A('ds_write_b32 v1, v3')
    A('s_waitcnt lgkmcnt(0)')
    A('s_mov_b64 exec, -1')
    A('L_noticket:')
    A('s_barrier')
    A('v_mov_b32 v1, 0')
    A('ds_read_b32 v2, v1')
    A('s_waitcnt lgkmcnt(0)')
    A(f'v_readfirstlane_b32 s{S_J}, v2')
    A('s_barrier')
    A(f's_mov_b32 s{S_MODE}, 0')
    A(f's_mov_b32 s{S_TO}, 0x100000')

S_MODE = 3
VR = [4, 5, 6, 7, 80, 81, 82, 83]
def counters_load(A):
    if 'tik2' in OPT:
        A('v_and_b32 v240, 3, v0')
        A('v_lshlrev_b32 v240, 2, v240')
        A('v_bfe_u32 v241, v0, 2, 1')
        A('v_lshl_add_u32 v240, v241, 7, v240')
    else:
        A('v_and_b32 v240, 7, v0')
        A('v_lshlrev_b32 v240, 2, v240')
    A(f'global_load_dword v241, v240, s[{S_DBG}:{S_DBG+1}] sc1')
def counters_sum(A):
    for k in range(8): A(f'v_readlane_b32 s{VR[k]}, v241, {k}')
    A(f's_add_u32 s78, s{VR[0]}, s{VR[1]}')
    for k in range(2, 8): A(f's_add_u32 s78, s78, s{VR[k]}')
def verdict_issue(A, tag):
    A(f's_cmp_lg_u32 s{S_W}, 0')
    A(f's_cbranch_scc1 L_vi{tag}')
    counters_load(A)
    A(f'L_vi{tag}:')
def verdict_eval(A, tag):
    A('s_mov_b32 s79, 0')
    A(f's_cmp_eq_u32 s{S_MODE}, 1')
    A(f's_cbranch_scc1 L_vd{tag}_ok')
    A(f'L_vd{tag}:')
    counters_sum(A)
    A('s_cmp_ge_u32 s78, 256')
    A(f's_cbranch_scc1 L_vd{tag}_full')
    A('s_sleep 16')
    counters_load(A)
    A('s_waitcnt vmcnt(0)')
    A(f's_sub_u32 s{S_TO}, s{S_TO}, 1')
    A(f's_cbranch_scc0 L_vd{tag}')
    A('s_branch L_timeout')
    A(f'L_vd{tag}_full:')
    if 'forcefb' in OPT: A('s_mov_b32 s79, 1')
    for k in range(8):
        A(f's_cmp_lg_u32 s{VR[k]}, 32')
        A('s_cselect_b32 s79, 1, s79')
    A(f'L_vd{tag}_ok:')
def verdict_bcast(A, tag, lds=0):
    A(f's_cmp_lg_u32 s{S_W}, 0')
    A(f's_cbranch_scc1 L_vb{tag}')
    A(f'v_mov_b32 v240, {lds}')
    A('v_mov_b32 v241, s79')
    A('ds_write_b32 v240, v241')
    A('s_waitcnt lgkmcnt(0)')
    A(f'L_vb{tag}:')
    A('s_barrier')
    A(f'v_mov_b32 v240, {lds}')
    A('ds_read_b32 v241, v240')
    A('s_waitcnt lgkmcnt(0)')
    A('v_readfirstlane_b32 s79, v241')
    A('s_barrier')
    A('s_cmp_lg_u32 s79, 0')
    A('s_cbranch_scc1 L_fallback')

def arrive(A):
    A(f'v_mov_b32 v238, {CENSUS}')
    A('v_mov_b32 v239, 1')
    A('s_mov_b64 exec, 1')
    A(f'global_atomic_add v239, v238, v239, s[{S_DBG}:{S_DBG+1}] sc0')
    A('s_mov_b64 exec, -1')
def arrive_finish(A, tag):
    A(f's_cmp_lg_u32 s{S_W}, 0')
    A(f's_cbranch_scc1 L_af{tag}')
    A('s_cmp_lg_u32 s79, 0')
    A(f's_cbranch_scc1 L_af{tag}')
    A('s_waitcnt vmcnt(0)')
    A('v_readfirstlane_b32 s78, v239')
    A('s_cmp_lg_u32 s78, 255')
    A(f's_cbranch_scc1 L_af{tag}')
    A(f'v_mov_b32 v238, {GO}')
    A('v_mov_b32 v239, 1')
    A(f'global_store_dword v238, v239, s[{S_DBG}:{S_DBG+1}] sc1')
    A(f'L_af{tag}:')

def gen_fallback(A):
    A('L_fallback:')
    A('s_waitcnt vmcnt(0) lgkmcnt(0)')
    A('L_fb_poll:')
    counters_load(A)
    A('s_waitcnt vmcnt(0)')
    counters_sum(A)
    A('s_cmp_ge_u32 s78, 256')
    A('s_cbranch_scc1 L_fb_full')
    A('s_sleep 4')
    A(f's_sub_u32 s{S_TO}, s{S_TO}, 1')
    A('s_cbranch_scc0 L_fb_poll')
    A('s_branch L_timeout')
    A('L_fb_full:')
    if 'forcefb' in OPT:
        A('s_mov_b32 s78, s2')
    else:
        A(f's_mov_b32 s78, s{S_J}')
        for k in range(7):
            A(f's_cmp_gt_u32 s{S_X}, {k}')
            A(f's_cselect_b32 s79, s{VR[k]}, 0')
            A('s_add_u32 s78, s78, s79')
    A(f's_lshr_b32 s{S_X}, s78, 5')
    A(f's_and_b32 s{S_J}, s78, 31')
    A(f's_mov_b32 s{S_MODE}, 1')
    A('s_barrier')
    A('s_branch L_role')

def gen_timeout(A):
    A('L_timeout:')
    A('v_mov_b32 v1, 60')
    A('v_mov_b32 v2, 0xdead')
    A(f'global_store_dword v1, v2, s[{S_DBG}:{S_DBG+1}]')
    A('s_waitcnt vmcnt(0)')
    A('s_endpgm')

if __name__ == '__main__':
    out = sys.argv[1]
    OPT.update(sys.argv[2:])
    prof = 'prof' in OPT
    A = Asm()
    K = NAME + '_kernel'
    kernel_begin(A, K)
    gen_common_entry(A)
    A(f's_cmp_lt_u32 s{S_X}, 4')
    A('s_cbranch_scc1 L_chain')
    A(f's_cmp_lg_u32 s{S_W}, 0')
    A('s_cbranch_scc1 L_end')
    gen_calib(A)
    A('v_mov_b32 v1, 32')
    A('v_mov_b32 v2, 1')
    A('s_mov_b64 exec, 1')
    A(f'global_atomic_add v1, v2, s[{S_DBG}:{S_DBG+1}]')
    A('s_waitcnt vmcnt(0)')
    A('L_end:')
    A('s_endpgm')
    A('L_chain:')
    gen_chain(A, prof)
    gen_timeout(A)
    open(out, 'w').write(file_text(['; @launch grid=(256,1,1) block=(256,1,1) lds=163840'], A.text(), kernel_desc(K)))
```
